```python
import torch

def _softmax(x, axis=-1):
    return torch.softmax(x, dim=axis)
def _gelu(x):
    return torch.nn.functional.gelu(x, approximate="tanh")
def _silu(x):
    return torch.nn.functional.silu(x)
def _sigmoid(x):
    return torch.sigmoid(x)
def _layernorm(x, axis=-1, eps=1e-5):
    m = x.mean(dim=axis, keepdim=True)
    v = x.var(dim=axis, keepdim=True, unbiased=False)
    return (x - m) / torch.sqrt(v + eps)
def _scatter_add(tgt, idx, src, axis=0):
    return tgt.clone().index_add_(axis, idx, src)
def _segment_sum(src, seg, n):
    out = torch.zeros((n,) + src.shape[1:], dtype=src.dtype)
    return out.index_add_(0, seg, src)
def _pad(x, pw):
    flat = tuple(v for pair in reversed(pw) for v in pair)
    return torch.nn.functional.pad(x, flat)

kernel_name = 'gated_mix__mha_block__ssm_conv_h3__prompt'

def setup_inputs():

    _w = (lambda a: (lambda t: t.to(torch.bfloat16) if t.is_floating_point() else t)(torch.as_tensor(a)))
    def _A_setup():
        B, S, D, H = 1, 2048, 512, 32
        return {
            "x": _w((lambda *s: torch.randn(*s, dtype=torch.bfloat16) * 0.05)(B, S, D)),
            "wqkv": _w((lambda *s: torch.randn(*s, dtype=torch.bfloat16) * 0.8)(D, 3 * D)),
            "wo": _w((lambda *s: torch.randn(*s, dtype=torch.bfloat16) * 0.05)(D, D)),
        }
    _A_in = _A_setup()

    def _B_setup():
        B, S, D = 1, 2048, 512
        ks = 4
        return {
            "q": _w((lambda *s: torch.randn(*s, dtype=torch.bfloat16) * 0.05)(B, S, D)),
            "k": _w((lambda *s: torch.randn(*s, dtype=torch.bfloat16) * 0.4)(B, S, D)),
            "v": _w((lambda *s: torch.randn(*s, dtype=torch.bfloat16) * 0.4)(B, S, D)),
            "shift_k": _w((lambda *s: torch.randn(*s, dtype=torch.bfloat16) * 0.4)(D, ks) * 0.5),
            "ssm_k": _w((lambda *s: torch.randn(*s, dtype=torch.bfloat16) * 1.6)(D, S) * (1.0 / S ** 0.5)),
            "ssm_D": _w((lambda *s: torch.randn(*s, dtype=torch.bfloat16) * 0.4)(D)),
        }
    _B_in = _B_setup()

    return {
        "A_x": _A_in["x"],
        "A_wqkv": _A_in["wqkv"],
        "A_wo": _A_in["wo"],
        "B_q": _B_in["q"],
        "B_k": _B_in["k"],
        "B_v": _B_in["v"],
        "B_shift_k": _B_in["shift_k"],
        "B_ssm_k": _B_in["ssm_k"],
        "B_ssm_D": _B_in["ssm_D"],
        "gate_w": _w((lambda *s: torch.randn(*s, dtype=torch.bfloat16) * 0.05)(512) * 16.0),
    }

def reference(A_x, A_wqkv, A_wo, B_q, B_k, B_v, B_shift_k, B_ssm_k, B_ssm_D, gate_w):
    def _A_ref(x, wqkv, wo):
        B, S, D = x.shape
        H = 32
        Dh = D // H
        qkv = (lambda x, *d: x.permute(*d))((x @ wqkv).reshape(B, S, 3, H, Dh), 2, 0, 3, 1, 4)
        q, k, v = qkv[0], qkv[1], qkv[2]
        scores = torch.einsum("bhqd,bhkd->bhqk", q, k) * (Dh ** -0.5)
        p = _softmax(scores, axis=-1)
        o = torch.einsum("bhqk,bhkd->bhqd", p, v)
        return (lambda x, *d: x.permute(*d))(o, 0, 2, 1, 3).reshape(B, S, D) @ wo

    def _B_ref(q, k, v, shift_k, ssm_k, ssm_D):
        B, S, D = q.shape
        ks = shift_k.shape[-1]
        k_pad = _pad(k, ((0, 0), (ks - 1, 0), (0, 0)))
        k_shift = torch.zeros_like(k)
        for t in range(ks):
            k_shift = k_shift + k_pad[:, t:t + S, :] * shift_k[:, ks - 1 - t][None, None, :]
        kv = k_shift * v
        L = 2 * S
        kv_pad = _pad(kv, ((0, 0), (0, S), (0, 0)))
        kf_pad = _pad(ssm_k, ((0, 0), (0, S)))
        kv_f = (lambda x, axes=(-2,-1): torch.fft.rfft2(x.float(), dim=axes))(kv_pad[:, None, :, :], axes=(1, 2))
        kf_f = (lambda x, axes=(-2,-1): torch.fft.rfft2(x.float(), dim=axes))(kf_pad[:, None, :], axes=(1, 2))
        kf_f = (lambda x, *d: x.permute(*d))(kf_f, 1, 2, 0)
        y_f = kv_f * kf_f[None, :, :, :]
        y = (lambda x, s, axes=(-2,-1): torch.fft.irfft2(x, s=s, dim=axes).to(torch.bfloat16))(y_f, (1, L), axes=(1, 2))[:, 0, :S, :]
        y = y + kv * ssm_D[None, None, :]
        return q * y

    x = A_x
    g = _sigmoid((x * gate_w).sum(-1, keepdims=True))
    a = _A_ref(x, A_wqkv, A_wo)
    b = _B_ref(x, B_k, B_v, B_shift_k, B_ssm_k, B_ssm_D)
    return g * a + (1 - g) * b
```

```python
import re

TRANS = ("v_exp_f32", "v_log_f32", "v_rcp_f32", "v_rsq_f32", "v_sqrt_f32", "v_sin_f32", "v_cos_f32")
REG_RE = re.compile(r"\b([vs])\[(\d+):(\d+)\]|\b([vs])(\d+)\b|\b(vcc|exec|m0)\b")


def regs_of(tok):
    out = set()
    for m in REG_RE.finditer(tok):
        if m.group(1):
            out |= {(m.group(1), i) for i in range(int(m.group(2)), int(m.group(3)) + 1)}
        elif m.group(4):
            out.add((m.group(4), int(m.group(5))))
        else:
            out.add((m.group(6), 0))
    return out


def split_ops(rest):
    ops, depth, cur = [], 0, ""
    for ch in rest:
        if ch == "[":
            depth += 1
        if ch == "]":
            depth -= 1
        if ch == "," and depth == 0:
            ops.append(cur.strip())
            cur = ""
        else:
            cur += ch
    if cur.strip():
        ops.append(cur.strip())
    return ops


class Ins:
    def __init__(self, text):
        self.text = text
        t = text.split(";")[0].strip()
        self.label = t.endswith(":")
        self.directive = t.startswith(".")
        self.op = "" if (self.label or self.directive or not t) else t.split()[0]
        rest = t[len(self.op):].strip() if self.op else ""
        ops = split_ops(rest)
        self.ops = ops
        op = self.op
        self.kind = "none"
        self.defs, self.uses = set(), set()
        self.srcc = set()
        self.srcab = set()
        self.passes = 0
        self.states = 1 if op else 0
        self.wide_store = set()
        if not op:
            return
        allr = [regs_of(o) for o in ops]
        if op.startswith("v_mfma") or op.startswith("v_smfmac"):
            self.kind = "mfma"
            self.passes = 4 if "16x16" in op else 8
            self.defs = allr[0]
            if op.startswith("v_smfmac"):
                self.srcc = allr[0]
                self.srcab = allr[1] | allr[2] | allr[3]
            else:
                self.srcc = allr[3]
                self.srcab = allr[1] | allr[2]
            self.uses = self.srcc | self.srcab
        elif op.startswith("v_"):
            self.kind = "valu"
            self.trans = op.replace("_e32", "").replace("_e64", "") in TRANS
            self.dpp = "dpp" in op or "row_" in t or "quad_perm" in t
            self.defs = set(allr[0])
            srcs = allr[1:]
            if op.startswith("v_permlane"):
                self.defs = allr[0] | allr[1]
                srcs = allr
            elif "_co_" in op:
                self.defs |= allr[1]
                srcs = allr[2:]
            if op.startswith(("v_fmac", "v_dot2c", "v_pk_fmac", "v_writelane")) or self.dpp:
                srcs = allr
            for s in srcs:
                self.uses |= s
            if op.startswith("v_cmpx"):
                self.defs.add(("exec", 0))
            if op.startswith("v_cndmask") and len(ops) == 3:
                self.uses.add(("vcc", 0))
        elif op.startswith("ds_"):
            self.kind = "ds"
            if op.startswith(("ds_read", "ds_bpermute", "ds_permute", "ds_swizzle")):
                self.defs = allr[0]
                for s in allr[1:]:
                    self.uses |= s
            else:
                for s in allr:
                    self.uses |= s
        elif op.startswith(("buffer_", "global_")):
            self.kind = "vmem"
            self.lds = bool(re.search(r"\blds\b", t)) or "_lds_" in op
            if "load" in op and not self.lds:
                self.defs = allr[0]
                for s in allr[1:]:
                    self.uses |= s
                if "d16" in op:
                    self.uses |= allr[0]
            else:
                for s in allr:
                    self.uses |= s
                if "store" in op and ("x4" in op or "x3" in op):
                    self.wide_store = allr[0] if op.startswith("buffer_") else allr[1]
            if self.lds:
                self.uses.add(("m0", 0))
        elif op == "s_nop":
            self.kind = "nop"
            self.states = int(ops[0]) + 1
        elif op.startswith("s_"):
            self.kind = "salu"
            if op.startswith(("s_cmp", "s_waitcnt", "s_barrier", "s_cbranch", "s_branch", "s_endpgm", "s_setprio", "s_sleep", "s_bitcmp")):
                for s in allr:
                    self.uses |= s
            else:
                self.defs = set(allr[0]) if allr else set()
                for s in allr[1:]:
                    self.uses |= s
                if "saveexec" in op:
                    self.defs.add(("exec", 0))


def vg(rs):
    return {r for r in rs if r[0] == "v"}


def sg(rs):
    return {r for r in rs if r[0] != "v"}


MFMA_RD = {4: 8, 8: 12}
MFMA_OVL = {4: 6, 8: 10}
MFMA_WAR = {4: 3, 8: 7}


def need(p, c):
    n = 0
    if p.kind == "valu":
        pv, ps = vg(p.defs), sg(p.defs)
        if c.kind == "mfma" and pv & c.uses:
            n = max(n, 2)
        if c.kind == "mfma" and ("exec", 0) in ps:
            n = max(n, 4)
        if c.kind == "valu":
            if c.dpp and pv & c.uses:
                n = max(n, 2)
            if c.op.startswith("v_permlane") and pv & c.uses:
                n = max(n, 2)
            if c.op.startswith(("v_readlane", "v_readfirstlane")) and pv & c.uses:
                n = max(n, 1)
            if p.trans and pv & (c.uses | c.defs):
                n = max(n, 1)
            if ps & c.uses:
                n = max(n, 4 if c.op.startswith(("v_readlane", "v_writelane")) else 2)
            if ("exec", 0) in ps:
                n = max(n, 5 if c.dpp else 4 if c.op.startswith(("v_readlane", "v_readfirstlane", "v_writelane", "v_permlane")) else 0)
        if c.kind == "vmem" and ps & c.uses:
            n = max(n, 5)
        if c.kind == "salu" and ps & c.uses:
            n = max(n, 2)
        if p.trans and c.kind in ("ds", "vmem") and pv & c.uses:
            n = max(n, 1)
        if p.op.startswith("v_dot") and pv & (c.uses | c.defs):
            chain = c.op == p.op and pv == vg(c.defs) and not (pv & regs_of(",".join(c.ops[1:3])))
            if not chain:
                n = max(n, 3)
    if p.kind == "mfma":
        d = p.defs
        if c.kind == "mfma":
            if d & c.srcab:
                n = max(n, MFMA_RD[p.passes])
            if d & c.srcc and not (d == c.srcc and p.passes == c.passes):
                n = max(n, MFMA_OVL[p.passes])
            if d & c.defs and not (d & c.srcc) and not (d == c.defs and p.passes == c.passes):
                n = max(n, MFMA_OVL[p.passes])
        elif c.kind in ("valu", "ds", "vmem"):
            if d & (c.uses | c.defs):
                n = max(n, MFMA_RD[p.passes])
            if c.kind == "valu" and p.srcc & c.defs:
                n = max(n, MFMA_WAR[p.passes])
    if p.kind == "salu" and ("m0", 0) in p.defs and c.kind == "vmem" and getattr(c, "lds", False):
        n = max(n, 1)
    if p.kind == "vmem" and p.wide_store and (c.defs & p.wide_store):
        n = max(n, 2)
    return n


def pad(lines, window=24):
    out = []
    for t in lines:
        c = Ins(t)
        if c.op:
            dist, short = 0, 0
            for p in reversed(out[-3 * window:]):
                if dist >= window:
                    break
                if p.op:
                    short = max(short, need(p, c) - dist)
                    dist += p.states
                if p.op in ("s_branch", "s_endpgm", "s_setpc_b64"):
                    break
            while short > 0:
                k = min(short, 16)
                out.append(Ins(f"    s_nop {k - 1}"))
                short -= k
        out.append(c)
    return [i.text for i in out]


def check_seq(lines, what):
    padded = pad(lines)
    if len(padded) != len(lines):
        for a, b in zip(padded, lines):
            if a != b:
                raise AssertionError(f"hazard across edge in {what}: needs '{a.strip()}' before '{b.strip()}'")
        raise AssertionError(f"hazard across edge in {what}")


class E:
    def __init__(self):
        self.l = []
        self.vmq = []
        self.dsq = []

    def __call__(self, text):
        for t in text.strip().split("\n"):
            t = t.strip()
            if t:
                self.l.append(t if t.endswith(":") else "    " + t)

    def vm(self, tag, text):
        self(text)
        self.vmq.append(tag)

    def ds(self, tag, text):
        self(text)
        self.dsq.append(tag)

    @staticmethod
    def _count(q, tags):
        tags = (tags,) if isinstance(tags, str) else tuple(tags)
        last = max((i for i, t in enumerate(q) if t in tags), default=-1)
        return last, len(q) - 1 - last

    def wait(self, vm=None, ds=None):
        parts = []
        if vm is not None:
            last, n = self._count(self.vmq, vm) if vm != "*" else (len(self.vmq) - 1, 0)
            if last >= 0:
                assert n <= 63, n
                parts.append(f"vmcnt({n})")
                self.vmq = self.vmq[last + 1:]
        if ds is not None:
            last, n = self._count(self.dsq, ds) if ds != "*" else (len(self.dsq) - 1, 0)
            if last >= 0:
                n = min(n, 14)
                parts.append(f"lgkmcnt({n})")
                self.dsq = self.dsq[len(self.dsq) - n:] if n else []
        if parts:
            self("s_waitcnt " + " ".join(parts))

    def fork(self):
        e = E()
        e.vmq, e.dsq = list(self.vmq), list(self.dsq)
        return e


def vr(a, n):
    return f"v{a}" if n == 1 else f"v[{a}:{a + n - 1}]"


def sr(a, n):
    return f"s{a}" if n == 1 else f"s[{a}:{a + n - 1}]"
```

```python
from asmlib import E, vr, sr

WS_KV = 0x0000000
WS_QF = 0x0400000
WS_U = 0x0600000
WS_Y = 0x0A00000
WS_OF = 0x0C00000
WS_G = 0x0E00000
WS_NK = 0x0E04000
WS_NQ = 0x0E08000
WS_SIZE = 0x1000000

QSCALE = 0x3EB8AA3B
NLOG2E = 0xBFB8AA3B
BOUND2 = 0x44610000

P_X, P_W, P_WO, P_K, P_V, P_SH, P_H, P_D, P_GW, P_OUT, P_WS = 16, 18, 20, 24, 26, 28, 30, 32, 34, 36, 40
S_WAVE, S_HP, S_J = 3, 4, 5
R_X, R_W, R_K, R_V, R_SH, R_GW, R_WS, R_H, R_OUT = 44, 48, 52, 56, 60, 64, 68, 72, 76
T0, T1, T2, T3 = 8, 9, 10, 11


def srd(e, r, p, size):
    e(f"s_mov_b32 s{r}, s{p}\ns_mov_b32 s{r+1}, s{p+1}\ns_mov_b32 s{r+2}, {size}\ns_mov_b32 s{r+3}, 0x20000")


def prologue(e, end):
    e(f"""
    s_cmp_ge_u32 s2, 256
    s_cbranch_scc1 {end}
    s_load_dwordx16 s[16:31], s[0:1], 0
    s_load_dwordx8 s[32:39], s[0:1], 64
    s_load_dwordx2 s[40:41], s[0:1], 96
    v_lshrrev_b32 v1, 6, v0
    v_readfirstlane_b32 s{S_WAVE}, v1
    v_and_b32 v1, 63, v0
    s_and_b32 s{T0}, s2, 7
    s_lshl_b32 s{T0}, s{T0}, 1
    s_bfe_u32 s{S_HP}, s2, 0x10003
    s_add_u32 s{S_HP}, s{S_HP}, s{T0}
    s_lshr_b32 s{S_J}, s2, 4
    """)


def wave_reduce(e, op, regs):
    for ctl in ("row_shr:1 row_mask:0xf", "row_shr:2 row_mask:0xf", "row_shr:4 row_mask:0xf", "row_shr:8 row_mask:0xf",
                "row_bcast:15 row_mask:0xa", "row_bcast:31 row_mask:0xc"):
        for r in regs:
            e(f"{op}_dpp v{r}, v{r}, v{r} {ctl} bank_mask:0xf")


SLOT = 28672
L_PRE = 5 * SLOT
K1_LDS = L_PRE + 128 * 144
V_XA, V_XB, V_WD = 4, 5, 6
V_ADR = 128
ACC0, ACC1 = 96, 112
FR = 144


def x_dma(e, c):
    e(f"s_add_u32 m0, s12, {(c % 5) * SLOT}\ns_movk_i32 s{T0}, {c * 128}")
    e.vm(f"x{c}", f"buffer_load_dwordx4 v{V_XA}, {sr(R_X,4)}, s{T0} offen lds")
    e.vm(f"x{c}", f"buffer_load_dwordx4 v{V_XB}, {sr(R_X,4)}, s{T0} offen offset:1024 lds")


def w_dma(e, pair, m0_delta):
    e(f"s_add_u32 m0, s13, {m0_delta}\ns_mov_b32 s{T0}, {pair * 393216}")
    for part in range(3):
        e.vm(f"w{pair}", f"buffer_load_dwordx4 v{V_WD}, {sr(R_W,4)}, s{T0} offen offset:{part*1024} lds")


def phase1_head(e, st):
    e(f"""
    s_and_b32 s6, s2, 7
    s_lshr_b32 s7, s2, 3
    v_lshrrev_b32 v2, 5, v0
    v_and_b32 v7, 31, v0
    s_lshl_b32 s{T0}, s7, 16
    s_lshl_b32 s{T1}, s6, 7
    s_add_u32 s{T0}, s{T0}, s{T1}
    v_lshlrev_b32 v3, 12, v2
    v_lshl_add_u32 v3, v7, 2, v3
    v_add_u32 v3, s{T0}, v3
    v_add_u32 v2, 0xfffff000, v3
    s_lshl_b32 s{T1}, s6, 9
    v_lshl_add_u32 v36, v7, 4, s{T1}
    v_lshlrev_b32 v37, 4, v1
    s_lshl_b32 s14, s{S_J}, 4
    s_add_u32 s14, s14, s{S_HP}
    s_lshl_b32 s14, s14, 3
    s_add_u32 s14, s14, s{S_WAVE}
    s_lshl_b32 s{T2}, s14, 10
    s_waitcnt lgkmcnt(0)
    """)
    srd(e, R_K, P_K, 0x200000)
    srd(e, R_V, P_V, 0x200000)
    for i in range(4):
        e.vm("pre", f"buffer_load_dword v{8+i}, v2, {sr(R_K,4)}, 0 offen offset:{i*1024}")
    for i in range(4):
        e.vm("pre", f"buffer_load_dword v{12+i}, v3, {sr(R_K,4)}, 0 offen offset:{i*1024}")
    e.vm("pre", f"buffer_load_dword v16, v2, {sr(R_V,4)}, 0 offen offset:3072")
    for i in range(4):
        e.vm("pre", f"buffer_load_dword v{17+i}, v3, {sr(R_V,4)}, 0 offen offset:{i*1024}")
    srd(e, R_SH, P_SH, 4096)
    srd(e, R_X, P_X, 0x200000)
    srd(e, R_GW, P_GW, 1024)
    e.vm("pre", f"buffer_load_dwordx4 v[24:27], v36, {sr(R_SH,4)}, 0 offen")
    e.vm("gate", f"buffer_load_dwordx4 v[28:31], v37, {sr(R_X,4)}, s{T2} offen")
    e.vm("gate", f"buffer_load_dwordx4 v[32:35], v37, {sr(R_GW,4)}, 0 offen")
    srd(e, R_W, P_W, 0x180000)
    srd(e, R_WS, P_WS, WS_SIZE)
    e(f"""
    v_lshrrev_b32 v36, 3, v1
    v_lshrrev_b32 v37, 4, v1
    v_xor_b32 v37, v37, v1
    v_and_b32 v37, 7, v37
    v_lshlrev_b32 v37, 4, v37
    v_lshl_add_u32 v37, v36, 10, v37
    s_lshl_b32 s{T0}, s{S_J}, 3
    s_add_u32 s{T0}, s{T0}, s{S_WAVE}
    s_lshl_b32 s{T0}, s{T0}, 14
    v_add_u32 v{V_XA}, s{T0}, v37
    v_xor_b32 v{V_XB}, 64, v{V_XA}
    v_add_u32 v{V_XB}, 0x1c00, v{V_XB}
    s_lshl_b32 s12, s{S_WAVE}, 11
    v_lshrrev_b32 v36, 2, v0
    v_mul_u32_u24 v36, 0xc00, v36
    v_and_b32 v37, 3, v1
    v_lshl_add_u32 v36, v37, 4, v36
    s_lshl_b32 s{T0}, s{S_HP}, 6
    v_add_u32 v{V_WD}, s{T0}, v36
    s_lshr_b32 s{T0}, s{S_WAVE}, 2
    s_mul_i32 s13, s{T0}, {SLOT}
    s_and_b32 s15, s{S_WAVE}, 3
    s_mul_i32 s{T1}, s15, 3072
    s_add_u32 s13, s13, s{T1}
    s_add_u32 s13, s13, 16384
    """)
    x_dma(e, 0)
    w_dma(e, 0, 0)
    x_dma(e, 1)
    x_dma(e, 2)
    w_dma(e, 1, 2 * SLOT)
    x_dma(e, 3)
    x_dma(e, 4)
    e(f"""
    v_and_b32 v36, 31, v1
    v_lshrrev_b32 v37, 5, v1
    v_bfe_u32 v38, v1, 1, 3
    v_xor_b32 v38, v38, v37
    v_lshlrev_b32 v38, 4, v38
    v_lshl_add_u32 v38, v36, 7, v38
    s_lshl_b32 s{T0}, s15, 12
    v_add_u32 v{V_ADR}, s{T0}, v38
    v_xor_b32 v{V_ADR+1}, 32, v{V_ADR}
    v_xor_b32 v{V_ADR+2}, 64, v{V_ADR}
    v_xor_b32 v{V_ADR+3}, 0x60, v{V_ADR}
    v_bfe_u32 v38, v1, 2, 2
    v_lshl_add_u32 v38, v37, 3, v38
    v_lshlrev_b32 v38, 6, v38
    v_bfe_u32 v39, v1, 4, 1
    v_lshl_add_u32 v38, v39, 5, v38
    v_and_b32 v39, 3, v1
    v_lshl_add_u32 v38, v39, 3, v38
    v_add_u32 v{V_ADR+4}, 0x4000, v38
    """)
    for s in (1, 2):
        for i in range(5):
            e(f"v_add_u32 v{V_ADR+5*s+i}, {2*SLOT*s}, v{V_ADR+i}")
    for i in range(32):
        e(f"v_mov_b32 v{ACC0+i}, 0")
    e(f"""
    v_lshrrev_b32 v39, 5, v0
    v_mul_u32_u24 v36, 288, v7
    v_lshlrev_b32 v39, 3, v39
    v_sub_u32 v36, v36, v39
    v_add_u32 v36, {L_PRE + 120}, v36
    v_lshrrev_b32 v39, 3, v0
    v_and_b32 v38, 7, v0
    v_lshlrev_b32 v38, 4, v38
    v_mul_u32_u24 v37, 144, v39
    v_add_u32 v37, v37, v38
    v_add_u32 v37, {L_PRE}, v37
    v_lshl_add_u32 v38, v39, 13, v38
    s_lshl_b32 s{T1}, s6, 19
    s_lshl_b32 s{T2}, s7, 7
    s_sub_u32 s{T1}, s{T1}, s{T2}
    s_add_u32 s{T1}, s{T1}, {WS_U + 3968}
    """)
    e.wait(vm="pre")
    KF, VF, WF, U, PK = 40, 56, 66, 74, 84
    for i in range(8):
        e(f"v_lshlrev_b32 v{KF+2*i}, 16, v{8+i}\nv_and_b32 v{KF+2*i+1}, 0xffff0000, v{8+i}")
    for j in range(4):
        if j % 2 == 0:
            e(f"v_lshlrev_b32 v{WF+2*j}, 16, v{24+j//2}\nv_lshlrev_b32 v{WF+2*j+1}, 16, v{26+j//2}")
        else:
            e(f"v_and_b32 v{WF+2*j}, 0xffff0000, v{24+j//2}\nv_and_b32 v{WF+2*j+1}, 0xffff0000, v{26+j//2}")
    for i in range(5):
        e(f"v_lshlrev_b32 v{VF+2*i}, 16, v{16+i}\nv_and_b32 v{VF+2*i+1}, 0xffff0000, v{16+i}")
    for j in (3, 2, 1, 0):
        for o in range(5):
            kr = KF + 2 * (o + 3 - j)
            if j == 3:
                e(f"v_pk_mul_f32 {vr(U+2*o,2)}, {vr(kr,2)}, {vr(WF+2*j,2)}")
            else:
                e(f"v_pk_fma_f32 {vr(U+2*o,2)}, {vr(kr,2)}, {vr(WF+2*j,2)}, {vr(U+2*o,2)}")
    for o in range(5):
        e(f"v_pk_mul_f32 {vr(U+2*o,2)}, {vr(U+2*o,2)}, {vr(VF+2*o,2)}")
    for ch in range(2):
        u = lambda o: U + 2 * o + ch
        e(f"v_cvt_pk_bf16_f32 v{PK+4*ch}, v{u(3)}, v{u(2)}\nv_cvt_pk_bf16_f32 v{PK+4*ch+1}, v{u(1)}, v{u(0)}")
        e(f"v_cvt_pk_bf16_f32 v{PK+4*ch+2}, v{u(4)}, v{u(3)}\nv_cvt_pk_bf16_f32 v{PK+4*ch+3}, v{u(2)}, v{u(1)}")
    for ch in range(2):
        for p in range(2):
            e.ds("pw", f"ds_write_b64 v36, {vr(PK+4*ch+2*p,2)} offset:{p*64*144 + ch*144}")
    e.wait(vm="gate")
    e(f"""
    v_dot2_f32_bf16 v39, v28, v32, 0
    v_dot2_f32_bf16 v39, v29, v33, v39
    v_dot2_f32_bf16 v39, v30, v34, v39
    v_dot2_f32_bf16 v39, v31, v35, v39
    """)
    e.wait(ds="pw")
    e("s_barrier")
    e.ds("pr", f"ds_read_b128 v[8:11], v37")
    e.ds("pr", f"ds_read_b128 v[12:15], v37 offset:{64*144}")
    wave_reduce(e, "v_add_f32", [39])
    e(f"""
    v_mul_f32 v39, {NLOG2E}, v39
    v_exp_f32 v39, v39
    v_add_f32 v39, 1.0, v39
    v_rcp_f32 v39, v39
    s_lshl_b32 s{T2}, s14, 2
    s_add_u32 s{T2}, s{T2}, {WS_G - 252}
    v_lshlrev_b32 v7, 2, v1
    """)
    e.wait(ds="pr")
    e.vm("st", f"buffer_store_dwordx4 v[8:11], v38, {sr(R_WS,4)}, s{T1} offen{st}")
    e(f"s_add_u32 s{T1}, s{T1}, 4096")
    e.vm("st", f"buffer_store_dwordx4 v[12:15], v38, {sr(R_WS,4)}, s{T1} offen{st}")
    e("s_lshl_b64 exec, 1, 63")
    e.vm("st", f"buffer_store_dword v39, v7, {sr(R_WS,4)}, s{T2} offen{st}")
    e("s_mov_b64 exec, -1")


def gemm_chunk(e, c, qk):
    slot = c % 5
    a, imm = V_ADR + 5 * (slot // 2), (slot % 2) * SLOT
    parts = (0, 1) if qk else (2,)
    per = 4 + 4 * len(parts)

    def reads(ks):
        f = FR + per * (ks % 3)
        e.ds(f"r{ks}", f"ds_read_b128 {vr(f,4)}, v{a+ks} offset:{imm}")
        for n, part in enumerate(parts):
            for j in range(2):
                e.ds(f"r{ks}", f"ds_read_b64_tr_b16 {vr(f+4+4*n+2*j,2)}, v{a+4} offset:{imm + (ks*3+part)*1024 + j*256}")

    reads(0)
    reads(1)
    for ks in range(4):
        if ks + 2 < 4:
            if ks == 0:
                reads(2)
        e.wait(ds=f"r{ks}")
        f = FR + per * (ks % 3)
        if qk:
            e(f"v_mfma_f32_32x32x16_bf16 {vr(ACC0,16)}, {vr(f+4,4)}, {vr(f,4)}, {vr(ACC0,16)}")
            e(f"v_mfma_f32_32x32x16_bf16 {vr(ACC1,16)}, {vr(f+8,4)}, {vr(f,4)}, {vr(ACC1,16)}")
        else:
            e(f"v_mfma_f32_32x32x16_bf16 {vr(ACC0,16)}, {vr(f,4)}, {vr(f+4,4)}, {vr(ACC0,16)}")
        if ks == 0:
            reads(3)


def phase1_gemm(e, qk):
    if qk:
        w_dma(e, 2, 4 * SLOT)
    for c in range(8):
        tags = [f"x{c}"]
        if (c % 2 == 0) == qk:
            tags.append(f"w{c//2}")
        e.wait(vm=tags)
        e("s_barrier")
        if 1 <= c <= 3:
            x_dma(e, c + 4)
            if c == 1 and not qk:
                w_dma(e, 2, -SLOT)
            if c == 2 and qk:
                w_dma(e, 3, SLOT)
            if c == 3 and not qk:
                w_dma(e, 3, SLOT)
        gemm_chunk(e, c, qk)


def kv_block_base(e, s):
    e(f"s_lshl_b32 s{s}, s{S_HP}, 4\ns_add_u32 s{s}, s{s}, s{S_J}")


def phase1_epi_qk(e, st):
    QP, KP = 8, 16
    kv_block_base(e, T3)
    e(f"""
    v_and_b32 v36, 0x33, v1
    v_bfe_u32 v37, v1, 2, 1
    v_lshl_or_b32 v36, v37, 3, v36
    v_bfe_u32 v37, v1, 3, 1
    v_lshl_or_b32 v36, v37, 2, v36
    v_lshlrev_b32 v36, 4, v36
    s_lshl_b32 s{T0}, s{T3}, 14
    s_lshl_b32 s{T1}, s15, 11
    s_add_u32 s{T0}, s{T0}, s{T1}
    s_add_u32 s{T1}, s{T0}, 8192
    s_mov_b32 s12, {QSCALE}
    s_mov_b32 s13, {QSCALE}
    v_lshlrev_b32 v37, 4, v1
    """)
    for i in range(8):
        e(f"v_cvt_pk_bf16_f32 v{KP+i}, v{ACC1+2*i}, v{ACC1+2*i+1}")
    e.vm("st", f"buffer_store_dwordx4 {vr(KP,4)}, v36, {sr(R_WS,4)}, s{T0} offen{st}")
    e.vm("st", f"buffer_store_dwordx4 {vr(KP+4,4)}, v36, {sr(R_WS,4)}, s{T1} offen{st}")
    for i in range(8):
        e(f"v_pk_mul_f32 {vr(ACC0+2*i,2)}, {vr(ACC0+2*i,2)}, s[12:13]")
    for i in range(8):
        e(f"v_cvt_pk_bf16_f32 v{QP+i}, v{ACC0+2*i}, v{ACC0+2*i+1}")
    e(f"""
    s_lshl_b32 s{T0}, s{T3}, 13
    s_lshl_b32 s{T1}, s15, 10
    s_add_u32 s{T0}, s{T0}, s{T1}
    s_add_u32 s{T0}, s{T0}, {WS_QF}
    s_add_u32 s{T1}, s{T0}, 4096
    """)
    e.vm("st", f"buffer_store_dwordx4 {vr(QP,4)}, v37, {sr(R_WS,4)}, s{T0} offen{st}")
    e.vm("st", f"buffer_store_dwordx4 {vr(QP+4,4)}, v37, {sr(R_WS,4)}, s{T1} offen{st}")
    for i in range(4):
        for h, (d, s) in enumerate(((40, QP), (41, QP + 4), (42, KP), (43, KP + 4))):
            e(f"v_dot2_f32_bf16 v{d}, v{s+i}, v{s+i}, {'0' if i == 0 else f'v{d}'}")
    e("v_max_f32 v40, v40, v41\nv_max_f32 v42, v42, v43")
    wave_reduce(e, "v_max_f32", [40, 42])
    e(f"""
    s_lshl_b32 s{T0}, s{T3}, 2
    s_add_u32 s{T0}, s{T0}, s15
    s_lshl_b32 s{T0}, s{T0}, 2
    s_add_u32 s{T1}, s{T0}, {WS_NQ - 252}
    s_add_u32 s{T0}, s{T0}, {WS_NK - 252}
    s_lshl_b64 exec, 1, 63
    """)
    e.vm("st", f"buffer_store_dword v40, v7, {sr(R_WS,4)}, s{T1} offen{st}")
    e.vm("st", f"buffer_store_dword v42, v7, {sr(R_WS,4)}, s{T0} offen{st}")
    e("s_mov_b64 exec, -1")


def phase1_epi_v(e, st):
    VP = 8
    kv_block_base(e, T3)
    e(f"""
    v_bfe_u32 v36, v1, 4, 1
    v_lshlrev_b32 v36, 13, v36
    v_lshrrev_b32 v37, 5, v1
    v_lshl_add_u32 v36, v37, 8, v36
    v_and_b32 v37, 15, v1
    v_lshl_add_u32 v36, v37, 4, v36
    s_lshl_b32 s{T0}, s{T3}, 14
    s_lshl_b32 s{T1}, s15, 11
    s_add_u32 s{T0}, s{T0}, s{T1}
    """)
    for i in range(8):
        e(f"v_cvt_pk_bf16_f32 v{VP+i}, v{ACC0+2*i}, v{ACC0+2*i+1}")
    e.vm("st", f"buffer_store_dwordx4 {vr(VP,4)}, v36, {sr(R_WS,4)}, s{T0} offen offset:1024{st}")
    e.vm("st", f"buffer_store_dwordx4 {vr(VP+4,4)}, v36, {sr(R_WS,4)}, s{T0} offen offset:1536{st}")


L_A, A_COPY = 0, 4160
L_B, B_COPY = 8 * 4160, 4576
L_P = L_B + 4 * 4576
CONV_LDS = L_P + 32768
C_ACC, C_A, C_B = 64, 96, 128


def conv_loads(e, ld):
    e(f"""
    s_lshr_b32 s{T0}, s{S_WAVE}, 2
    s_lshl_b32 s{T1}, s2, 1
    s_add_u32 s{T1}, s{T1}, s{T0}
    s_lshl_b32 s{T2}, s{T1}, 12
    s_add_u32 s{R_H}, s{P_H}, s{T2}
    s_addc_u32 s{R_H+1}, s{P_H+1}, 0
    s_mov_b32 s{R_H+2}, 4096
    s_mov_b32 s{R_H+3}, 0x20000
    s_lshl_b32 s{T2}, s2, 2
    s_load_dword s42, s[{P_D}:{P_D+1}], s{T2}
    s_and_b32 s{T0}, s{S_WAVE}, 3
    s_lshl_b32 s{T0}, s{T0}, 2
    v_lshl_add_u32 v2, v1, 4, s{T0}
    v_add_u32 v2, 4, v2
    v_lshl_add_u32 v3, v1, 2, s{T0}
    v_add_u32 v3, -60, v3
    s_mul_i32 s{T2}, s{S_WAVE}, {A_COPY}
    s_add_u32 m0, s{T2}, {L_A + 64}
    """)
    for i in range(4):
        e.vm("cv", f"buffer_load_dwordx4 v2, {sr(R_H,4)}, 0 offen offset:{i*1024} lds")
    e(f"s_add_u32 m0, s{T2}, {L_A}\ns_mov_b64 exec, 0xffff")
    e.vm("cv", f"buffer_load_dword v3, {sr(R_H,4)}, 0 offen lds")
    e(f"""
    s_mov_b64 exec, -1
    s_lshr_b32 s{T0}, s{S_WAVE}, 1
    s_mul_i32 s{T2}, s{T0}, {B_COPY}
    s_add_u32 s{T2}, s{T2}, {L_B}
    s_and_b32 s{T3}, s{S_WAVE}, 1
    s_lshl_b32 s{T3}, s{T3}, 11
    s_add_u32 m0, s{T2}, s{T3}
    s_lshl_b32 s{T1}, s2, 14
    s_lshl_b32 s{T0}, s{S_WAVE}, 11
    s_add_u32 s{T1}, s{T1}, s{T0}
    s_add_u32 s{T1}, s{T1}, {WS_U}
    v_lshlrev_b32 v2, 4, v1
    """)
    for i in range(2):
        e.vm("cv", f"buffer_load_dwordx4 v2, {sr(R_WS,4)}, s{T1} offen offset:{i*1024}{ld} lds")
    e(f"""
    v_lshl_add_u32 v3, v1, 3, s{T2}
    v_mov_b32 v4, 0
    v_mov_b32 v5, 0
    s_lshr_b64 exec, -1, 4
    """)
    e.ds("cz", f"ds_write_b64 v3, v[4:5] offset:4096")
    e("s_mov_b64 exec, -1")


def conv_body():
    b = E()
    for a in range(8):
        for bb in range(7 - a, -1, -1):
            if a == 0:
                b(f"s_waitcnt lgkmcnt({2*bb})")
            n = a + bb
            b(f"v_mfma_f32_16x16x32_bf16 {vr(C_ACC+4*n,4)}, {vr(C_A+4*a,4)}, {vr(C_B+4*bb,4)}, {vr(C_ACC+4*n,4)}")
        conv_pair(b, a)
    return b.l


def conv_pair(e, a):
    e(f"ds_read_b128 {vr(C_A+4*a,4)}, v6 offset:{a*512}")
    e(f"ds_read_b128 {vr(C_B+4*(7-a),4)}, v7 offset:{a*512}")


def conv_compute(e, st, tag):
    from asmlib import check_seq
    e(f"""
    v_and_b32 v2, 3, v1
    v_mul_u32_u24 v6, {A_COPY}, v2
    v_bfe_u32 v2, v1, 2, 2
    v_lshrrev_b32 v3, 4, v1
    v_add_u32 v2, v2, v3
    v_lshl_add_u32 v6, v2, 4, v6
    s_lshr_b32 s{T0}, s{S_WAVE}, 1
    s_and_b32 s{T1}, s{S_WAVE}, 1
    s_lshl_b32 s{T1}, s{T1}, 8
    s_mul_i32 s{T2}, s{T0}, {4*A_COPY}
    s_add_u32 s{T2}, s{T2}, s{T1}
    v_add_u32 v6, s{T2}, v6
    v_and_b32 v2, 1, v1
    v_mul_u32_u24 v7, {B_COPY}, v2
    v_lshl_add_u32 v7, v3, 4, v7
    v_bfe_u32 v2, v1, 1, 3
    v_lshlrev_b32 v2, 6, v2
    v_sub_u32 v7, v7, v2
    v_add_u32 v8, {L_B + 4080}, v7
    v_lshlrev_b32 v9, 5, v3
    v_sub_u32 v8, v8, v9
    s_lshl_b32 s{T3}, s{S_WAVE}, 9
    v_subrev_u32 v8, s{T3}, v8
    s_mul_i32 s{T2}, s{T0}, {2*B_COPY}
    s_add_u32 s{T2}, s{T2}, s{T1}
    s_add_u32 s{T2}, s{T2}, {L_B + 448}
    v_add_u32 v7, s{T2}, v7
    v_lshlrev_b32 v9, 4, v1
    """)
    for i in range(32):
        e(f"v_mov_b32 v{C_ACC+i}, 0")
    e.wait(vm="cv", ds="cz")
    e(f"s_barrier\ns_cmp_ge_u32 s{S_WAVE}, 4\ns_cbranch_scc1 {tag}_cvskip")
    for a in range(8):
        conv_pair(e, a)
    body = conv_body()
    head = ["    v_add_u32 v6, 64, v6", "    v_add_u32 v7, 64, v7"]
    tail = [f"    s_sub_u32 s{T0}, s{T0}, 1", f"    s_cmp_lg_u32 s{T0}, 0", f"    s_cbranch_scc1 {tag}_cvloop"]
    check_seq(head + body + tail + head + body, "conv loop")
    e(f"s_mov_b32 s{T0}, 4\n{tag}_cvloop:")
    e("\n".join(head + body + tail))
    e(f"s_lshl_b32 s{T1}, s{S_WAVE}, 13\ns_add_u32 s{T1}, s{T1}, {L_P}\nv_add_u32 v2, s{T1}, v9\ns_waitcnt lgkmcnt(0)")
    for n in range(8):
        e(f"ds_write_b128 v2, {vr(C_ACC+4*n,4)} offset:{n*1024}")
    e(f"""
    s_waitcnt lgkmcnt(0)
    {tag}_cvskip:
    s_barrier
    s_lshl_b32 s{T1}, s{S_WAVE}, 10
    s_add_u32 s{T1}, s{T1}, {L_P}
    v_add_u32 v2, s{T1}, v9
    """)
    for q in range(4):
        e.ds("cp", f"ds_read_b128 {vr(C_A+4*q,4)}, v2 offset:{q*8192}")
    for ch in range(2):
        e.ds("cp", f"ds_read_b128 {vr(C_B+4*ch,4)}, v8 offset:{ch*2*B_COPY}")
    e(f"""
    v_bfe_u32 v2, v1, 1, 3
    v_lshlrev_b32 v2, 7, v2
    v_lshl_add_u32 v2, v3, 5, v2
    v_and_b32 v4, 1, v1
    v_lshl_add_u32 v2, v4, 4, v2
    s_lshl_b32 s{T0}, s2, 3
    s_add_u32 s{T0}, s{T0}, s{S_WAVE}
    s_lshl_b32 s{T0}, s{T0}, 10
    s_add_u32 s{T0}, s{T0}, {WS_Y}
    s_waitcnt lgkmcnt(0)
    s_lshl_b32 s{T1}, s42, 16
    s_and_b32 s{T2}, s42, 0xffff0000
    """)
    e.dsq = []
    for ch in range(2):
        for r in range(4):
            e(f"v_add_f32 v{C_A+8*ch+r}, v{C_A+8*ch+r}, v{C_A+8*ch+4+r}")
            e(f"v_lshlrev_b32 v{C_B+4*ch+3-r}, 16, v{C_B+4*ch+3-r}")
        for r in range(4):
            e(f"v_fmac_f32 v{C_A+8*ch+r}, s{T1+ch}, v{C_B+4*ch+3-r}")
    for r in range(4):
        e(f"v_cvt_pk_bf16_f32 v{C_ACC+r}, v{C_A+r}, v{C_A+8+r}")
    e.vm("st", f"buffer_store_dwordx4 {vr(C_ACC,4)}, v2, {sr(R_WS,4)}, s{T0} offen{st}")


O_ACC, S_BUF, Q_FR, KV_ST, V_IDX, V_KO, V_VO, V_NRM = 64, 128, 192, 208, 244, 245, 246, 247
NS = 3
S_KVB, S_VMASK = 80, 82
XCH = 2304


def kv_regs(j):
    b = KV_ST + 12 * (j % NS)
    return b, b + 4, b + 8


def kv_soff(e, j):
    e(f"s_add_u32 s{T0}, s{S_J}, {j}\ns_and_b32 s{T0}, s{T0}, 15\ns_lshl_b32 s{T0}, s{T0}, 14\ns_add_u32 s{T0}, s{T0}, s{S_KVB}")


def k_load(e, j, ld):
    kv_soff(e, j)
    e.vm(f"k{j}", f"buffer_load_dwordx4 {vr(kv_regs(j)[0],4)}, v{V_KO}, {sr(R_WS,4)}, s{T0} offen{ld}")


def v_load(e, j, ld):
    _, v0, v1 = kv_regs(j)
    e(f"s_mov_b64 exec, s[{S_VMASK}:{S_VMASK+1}]")
    e.vm(f"v{j}", f"buffer_load_dwordx4 {vr(v0,4)}, v{V_VO}, {sr(R_WS,4)}, s{T0} offen offset:1024{ld}")
    e.vm(f"v{j}", f"buffer_load_dwordx4 {vr(v1,4)}, v{V_VO}, {sr(R_WS,4)}, s{T0} offen offset:1536{ld}")
    e("s_mov_b64 exec, -1")


def attn_setup(e):
    e(f"""
    s_lshr_b32 s{T1}, s{S_WAVE}, 2
    s_and_b32 s15, s{S_WAVE}, 3
    s_lshl_b32 s{S_KVB}, s{S_HP}, 18
    s_lshl_b32 s{T2}, s{T1}, 13
    s_add_u32 s{S_KVB}, s{S_KVB}, s{T2}
    s_lshl_b32 s{T2}, s15, 11
    s_add_u32 s{S_KVB}, s{S_KVB}, s{T2}
    s_mov_b32 s{S_VMASK}, 0xffff
    s_mov_b32 s{S_VMASK+1}, 0xffff
    v_lshlrev_b32 v{V_KO}, 4, v1
    v_lshrrev_b32 v{V_VO}, 5, v1
    v_lshlrev_b32 v{V_VO}, 4, v{V_VO}
    v_and_or_b32 v{V_VO}, v1, 15, v{V_VO}
    v_lshlrev_b32 v{V_VO}, 4, v{V_VO}
    v_mov_b32 v{V_IDX}, 0xdddddddd
    """)
    for s in range(NS):
        for i in range(8):
            e(f"v_mov_b32 v{KV_ST+12*s+4+i}, 0x3f803f80")


def attn_q_from_ws(e):
    kv_block_base(e, T3)
    e(f"""
    s_lshr_b32 s{T1}, s{S_WAVE}, 2
    s_lshl_b32 s{T2}, s{T3}, 1
    s_add_u32 s{T2}, s{T2}, s{T1}
    s_lshl_b32 s{T2}, s{T2}, 12
    s_add_u32 s{T2}, s{T2}, {WS_QF}
    """)
    for i in range(4):
        e(f"s_add_u32 s{T0}, s15, {i}\ns_and_b32 s{T0}, s{T0}, 3\ns_lshl_b32 s{T0}, s{T0}, 10\ns_add_u32 s{T0}, s{T0}, s{T2}")
        e.vm("q", f"buffer_load_dwordx4 {vr(Q_FR+4*i,4)}, v{V_KO}, {sr(R_WS,4)}, s{T0} offen")
    e(f"""
    v_lshlrev_b32 v10, 2, v1
    s_lshl_b32 s{T0}, s{S_HP}, 8
    s_add_u32 s{T0}, s{T0}, {WS_NK}
    v_and_b32 v11, 12, v10
    s_lshl_b32 s{T1}, s{T3}, 4
    s_add_u32 s{T1}, s{T1}, {WS_NQ}
    """)
    e.vm("n", f"buffer_load_dword v{V_NRM}, v10, {sr(R_WS,4)}, s{T0} offen")
    e.vm("n", f"buffer_load_dword v{V_NRM+1}, v11, {sr(R_WS,4)}, s{T1} offen")


def attn_decide(e, slow):
    e.wait(vm="n")
    wave_reduce(e, "v_max_f32", [V_NRM, V_NRM + 1])
    e(f"""
    v_mul_f32 v{V_NRM}, v{V_NRM}, v{V_NRM+1}
    v_mov_b32 v10, {BOUND2}
    v_cmp_le_f32 vcc, v{V_NRM}, v10
    s_bitcmp1_b32 vcc_hi, 31
    s_cbranch_scc0 {slow}
    """)


def qk(e, j, i):
    e(f"v_mfma_f32_32x32x16_bf16 {vr(S_BUF+16*i,16)}, {vr(kv_regs(j)[0],4)}, {vr(Q_FR+4*i,4)}, 0")


def pv(e, j, i, half):
    e(f"v_smfmac_f32_32x32x32_bf16 {vr(O_ACC+16*i,16)}, {vr(kv_regs(j)[1+half],4)}, {vr(S_BUF+16*i+8*half,8)}, v{V_IDX}")


def attn_fast(e, ld, preloaded):
    for i in range(64):
        e(f"v_mov_b32 v{O_ACC+i}, 0")
    e.wait(vm=["q", "k0"])
    qk(e, 0, 0)
    tiles = [(j, i) for j in range(16) for i in range(4)]
    for t, (j, i) in enumerate(tiles):
        s = S_BUF + 16 * i
        ex = [f"v_exp_f32 v{s+r}, v{s+r}" for r in range(16)]
        nxt = tiles[t + 1] if t + 1 < 64 else None
        prv = tiles[t - 1] if t else None
        if nxt:
            if nxt[1] == 0:
                e.wait(vm=f"k{nxt[0]}")
            qk(e, *nxt)
        e("\n".join(ex[0:4]))
        if prv:
            pv(e, prv[0], prv[1], 1)
        if i == 0 and j >= 1 and j - 1 + NS < 16 and j - 1 + NS >= preloaded:
            k_load(e, j - 1 + NS, ld)
            v_load(e, j - 1 + NS, ld)
        e("\n".join(ex[4:10]))
        if i == 0:
            e.wait(vm=f"v{j}")
        pv(e, j, i, 0)
        e("\n".join(ex[10:16]))
    pv(e, 15, 3, 1)


def attn_slow(e, ld, tag):
    M = 12
    for i in range(64):
        e(f"v_mov_b32 v{O_ACC+i}, 0")
    for i in range(4):
        e(f"v_mov_b32 v{M+i}, 0xff7fffff")
    k, v0, v1 = kv_regs(0)
    e(f"""
    s_waitcnt vmcnt(0)
    s_mov_b32 s{T3}, 0
    {tag}_slowloop:
    s_lshl_b32 s{T0}, s{T3}, 14
    s_add_u32 s{T0}, s{T0}, s{S_KVB}
    buffer_load_dwordx4 {vr(k,4)}, v{V_KO}, {sr(R_WS,4)}, s{T0} offen{ld}
    s_mov_b64 exec, s[{S_VMASK}:{S_VMASK+1}]
    buffer_load_dwordx4 {vr(v0,4)}, v{V_VO}, {sr(R_WS,4)}, s{T0} offen offset:1024{ld}
    buffer_load_dwordx4 {vr(v1,4)}, v{V_VO}, {sr(R_WS,4)}, s{T0} offen offset:1536{ld}
    s_mov_b64 exec, -1
    s_waitcnt vmcnt(0)
    """)
    for i in range(4):
        qk(e, 0, i)
    for i in range(4):
        s, o = S_BUF + 16 * i, O_ACC + 16 * i
        e(f"v_max3_f32 v10, v{s}, v{s+1}, v{M+i}")
        for r in range(2, 16, 2):
            e(f"v_max3_f32 v10, v{s+r}, v{s+r+1}, v10")
        e(f"""
        v_mov_b32 v11, v10
        v_permlane32_swap_b32 v10, v11
        v_max_f32 v10, v10, v11
        v_sub_f32 v11, v{M+i}, v10
        v_exp_f32 v11, v11
        v_mov_b32 v{M+i}, v10
        """)
        for r in range(16):
            e(f"v_sub_f32 v{s+r}, v{s+r}, v10\nv_exp_f32 v{s+r}, v{s+r}")
        for r in range(16):
            e(f"v_mul_f32 v{o+r}, v{o+r}, v11")
        pv(e, 0, i, 0)
        pv(e, 0, i, 1)
    e(f"""
    s_add_u32 s{T3}, s{T3}, 1
    s_cmp_lt_u32 s{T3}, 16
    s_nop 7
    s_nop 7
    s_cbranch_scc1 {tag}_slowloop
    """)


def attn_combine(e, st, slow):
    M, R = 12, S_BUF
    e(f"s_lshr_b32 s{T1}, s{S_WAVE}, 2\ns_lshl_b32 s{T1}, s{T1}, 2\nv_lshlrev_b32 v10, 2, v1")
    for i in range(1, 4):
        o = O_ACC + 16 * i
        e(f"""
        s_add_u32 s{T0}, s15, {i}
        s_and_b32 s{T0}, s{T0}, 3
        s_add_u32 s{T0}, s{T0}, s{T1}
        s_mul_i32 s{T0}, s{T0}, {3*(XCH+256)}
        v_add_u32 v{16+i}, s{T0}, v{V_KO}
        v_add_u32 v{20+i}, s{T0}, v10
        """)
    for i in range(1, 4):
        o, off = O_ACC + 16 * i, (i - 1) * (XCH + 256)
        e.ds("xw", f"ds_write_b128 v{16+i}, {vr(o,4)} offset:{off}")
        e.ds("xw", f"ds_write_b128 v{16+i}, {vr(o+4,4)} offset:{off+1024}")
        e.ds("xw", f"ds_write_b32 v{20+i}, v{o+8} offset:{off+2048}")
        if slow:
            e.ds("xw", f"ds_write_b32 v{20+i}, v{M+i} offset:{off+XCH}")
    e(f"s_mul_i32 s{T0}, s{S_WAVE}, {3*(XCH+256)}\nv_add_u32 v16, s{T0}, v{V_KO}\nv_add_u32 v20, s{T0}, v10")
    e.wait(ds="xw")
    e("s_barrier")
    for i in range(3):
        off = i * (XCH + 256)
        e.ds(f"xr{i}", f"ds_read_b128 {vr(R+12*i,4)}, v16 offset:{off}")
        e.ds(f"xr{i}", f"ds_read_b128 {vr(R+12*i+4,4)}, v16 offset:{off+1024}")
        e.ds(f"xr{i}", f"ds_read_b32 v{R+12*i+8}, v20 offset:{off+2048}")
        if slow:
            e.ds(f"xr{i}", f"ds_read_b32 v{R+12*i+9}, v20 offset:{off+XCH}")
    e(f"""
    s_lshl_b32 s{T0}, s{S_J}, 2
    s_add_u32 s{T0}, s{T0}, s15
    s_lshl_b32 s{T0}, s{T0}, 4
    s_add_u32 s{T0}, s{T0}, s{S_HP}
    s_lshl_b32 s{T0}, s{T0}, 1
    s_lshr_b32 s{T1}, s{S_WAVE}, 2
    s_add_u32 s{T0}, s{T0}, s{T1}
    s_lshl_b32 s{T0}, s{T0}, 10
    s_add_u32 s{T0}, s{T0}, {WS_OF}
    """)
    if slow:
        e.wait(ds="*")
        e(f"v_max3_f32 v10, v{M}, v{R+9}, v{R+21}\nv_max_f32 v10, v10, v{R+33}")
        for src, base in ((M, O_ACC), (R + 9, R), (R + 21, R + 12), (R + 33, R + 24)):
            e(f"v_sub_f32 v11, v{src}, v10\nv_exp_f32 v11, v11")
            for r in range(9):
                e(f"v_mul_f32 v{base+r}, v{base+r}, v11")
    for i in range(3):
        e.wait(ds=f"xr{i}")
        e(f"v_add_f32 v{O_ACC+8}, v{O_ACC+8}, v{R+12*i+8}")
        for r in range(0, 8, 2):
            e(f"v_pk_add_f32 {vr(O_ACC+r,2)}, {vr(O_ACC+r,2)}, {vr(R+12*i+r,2)}")
    e(f"v_rcp_f32 v{O_ACC+8}, v{O_ACC+8}")
    for r in range(0, 8, 2):
        e(f"v_pk_mul_f32 {vr(O_ACC+r,2)}, {vr(O_ACC+r,2)}, {vr(O_ACC+8,2)} op_sel_hi:[1,0]")
    for r in range(4):
        e(f"v_cvt_pk_bf16_f32 v{O_ACC+12+r}, v{O_ACC+2*r}, v{O_ACC+2*r+1}")
    e.vm("st", f"buffer_store_dwordx4 {vr(O_ACC+12,4)}, v{V_KO}, {sr(R_WS,4)}, s{T0} offen{st}")


L_WO, L_O = 0, 131072
K3_LDS = 163840
S_QT, S_NQ = 84, 85


def p3_ids(e):
    e(f"""
    s_lshr_b32 s{T0}, s2, 5
    s_lshl_b32 s{T0}, s{T0}, 3
    s_and_b32 s{S_QT}, s2, 7
    s_add_u32 s{S_QT}, s{S_QT}, s{T0}
    s_bfe_u32 s{S_NQ}, s2, 0x20003
    """)


def p3_wo_dma(e):
    srd(e, R_W, P_WO, 0x80000)
    e(f"""
    s_lshr_b32 s{T1}, s{S_WAVE}, 2
    s_lshl_b32 s{T1}, s{T1}, 18
    s_and_b32 s{T2}, s{S_WAVE}, 3
    s_lshl_b32 s{T2}, s{T2}, 6
    s_add_u32 s{T1}, s{T1}, s{T2}
    s_lshl_b32 s{T2}, s{S_NQ}, 8
    s_add_u32 s{T1}, s{T1}, s{T2}
    v_lshrrev_b32 v2, 2, v1
    v_lshlrev_b32 v2, 10, v2
    v_and_b32 v3, 3, v1
    v_lshl_add_u32 v2, v3, 4, v2
    v_add_u32 v2, s{T1}, v2
    s_lshl_b32 s{T2}, s{S_WAVE}, 14
    """)
    for blk in range(16):
        if blk % 4 == 0:
            e(f"s_add_u32 m0, s{T2}, {L_WO + blk*1024}")
        e(f"s_mov_b32 s{T0}, {blk*16384 - (blk%4)*1024}")
        e.vm("wo", f"buffer_load_dwordx4 v2, {sr(R_W,4)}, s{T0} offen offset:{(blk%4)*1024} lds")


def p3_o_dma(e, ld):
    e(f"""
    s_lshl_b32 s{T0}, s{S_QT}, 3
    s_add_u32 s{T0}, s{T0}, s{S_WAVE}
    s_lshl_b32 s{T0}, s{T0}, 12
    s_add_u32 s{T0}, s{T0}, {WS_OF}
    s_lshl_b32 s{T1}, s{S_WAVE}, 12
    s_add_u32 m0, s{T1}, {L_O}
    v_lshlrev_b32 v4, 4, v1
    """)
    for i in range(4):
        e.vm("o", f"buffer_load_dwordx4 v4, {sr(R_WS,4)}, s{T0} offen offset:{i*1024}{ld} lds")


B_X, B_Y, B_G, B_T, V_OUT = 16, 20, 24, 32, 25


def p3_b_loads(e, ld):
    srd(e, R_X, P_X, 0x200000)
    srd(e, R_OUT, P_OUT, 0x200000)
    e(f"""
    s_and_b32 s{T1}, s{S_WAVE}, 3
    s_lshl_b32 s{T1}, s{T1}, 1
    s_lshr_b32 s{T2}, s{S_WAVE}, 2
    s_add_u32 s{T1}, s{T1}, s{T2}
    s_lshl_b32 s{T2}, s{S_NQ}, 3
    s_add_u32 s{T1}, s{T1}, s{T2}
    v_and_b32 v5, 31, v1
    v_lshrrev_b32 v6, 5, v1
    v_lshlrev_b32 v{V_OUT}, 10, v5
    v_lshl_add_u32 v{V_OUT}, v6, 4, v{V_OUT}
    s_lshl_b32 s{T2}, s{S_QT}, 15
    s_lshl_b32 s{T3}, s{T1}, 5
    s_add_u32 s{T2}, s{T2}, s{T3}
    v_add_u32 v{V_OUT}, s{T2}, v{V_OUT}
    """)
    e.vm("b", f"buffer_load_dwordx4 {vr(B_X,4)}, v{V_OUT}, {sr(R_X,4)}, 0 offen")
    e(f"""
    v_bfe_u32 v7, v1, 3, 2
    v_lshlrev_b32 v7, 5, v7
    v_and_b32 v8, 1, v1
    v_lshl_add_u32 v7, v8, 4, v7
    v_bfe_u32 v8, v1, 1, 2
    v_lshl_add_u32 v7, v8, 2, v7
    v_lshl_add_u32 v7, v6, 15, v7
    s_lshl_b32 s{T2}, s{T1}, 16
    s_lshl_b32 s{T3}, s{S_QT}, 7
    s_add_u32 s{T2}, s{T2}, s{T3}
    s_add_u32 s{T2}, s{T2}, {WS_Y}
    """)
    for jj in range(4):
        e.vm("b", f"buffer_load_dword v{B_Y+jj}, v7, {sr(R_WS,4)}, s{T2} offen{ld}")
        if jj < 3:
            e(f"s_add_u32 s{T2}, s{T2}, 8192")
    e(f"v_lshlrev_b32 v5, 2, v5\ns_add_u32 s{T3}, s{T3}, {WS_G}")
    e.vm("b", f"buffer_load_dword v{B_G}, v5, {sr(R_WS,4)}, s{T3} offen{ld}")


def p3_bterm(e):
    e.wait(vm="b")
    e(f"v_sub_f32 v26, 1.0, v{B_G}")
    for i in range(4):
        e(f"""
        v_lshlrev_b32 v{B_T+2*i}, 16, v{B_X+i}
        v_and_b32 v{B_T+2*i+1}, 0xffff0000, v{B_X+i}
        v_lshlrev_b32 v28, 16, v{B_Y+i}
        v_and_b32 v29, 0xffff0000, v{B_Y+i}
        v_pk_mul_f32 {vr(B_T+2*i,2)}, {vr(B_T+2*i,2)}, v[28:29]
        v_pk_mul_f32 {vr(B_T+2*i,2)}, {vr(B_T+2*i,2)}, v[26:27] op_sel_hi:[1,0]
        """)


W_FR, O_FR, P_ACC = 64, 128, 48


def p3_wo_frags(e):
    e(f"""
    v_lshrrev_b32 v5, 5, v1
    v_bfe_u32 v6, v1, 2, 2
    v_lshl_add_u32 v5, v5, 2, v6
    v_lshlrev_b32 v5, 6, v5
    v_bfe_u32 v6, v1, 4, 1
    s_lshr_b32 s{T1}, s{S_WAVE}, 2
    v_xor_b32 v6, s{T1}, v6
    v_lshl_add_u32 v5, v6, 5, v5
    v_and_b32 v6, 1, v1
    v_lshl_add_u32 v5, v6, 4, v5
    v_bfe_u32 v6, v1, 1, 1
    v_lshl_add_u32 v5, v6, 3, v5
    s_lshl_b32 s{T2}, s{S_WAVE}, 14
    v_add_u32 v5, s{T2}, v5
    """)
    e.wait(vm="wo")
    for blk in range(16):
        for j in range(2):
            e.ds(f"wf", f"ds_read_b64_tr_b16 {vr(W_FR+4*blk+2*j,2)}, v5 offset:{L_WO + blk*1024 + j*512}")
        if blk % 4 == 3:
            e.wait(ds="wf")


def p3_gemm(e):
    e(f"""
    s_lshr_b32 s{T1}, s{S_WAVE}, 2
    s_lshl_b32 s{T1}, s{T1}, 14
    s_add_u32 s{T1}, s{T1}, {L_O}
    v_lshl_add_u32 v6, v1, 4, s{T1}
    s_lshl_b32 s{T2}, s{S_WAVE}, 14
    v_lshl_add_u32 v7, v1, 4, s{T2}
    v_xor_b32 v8, 0x10000, v7
    """)
    e.wait(vm="o")
    e("s_barrier")
    for blk in range(8):
        e.ds(f"of{blk}", f"ds_read_b128 {vr(O_FR+4*blk,4)}, v6 offset:{blk*1024}")
    for blk in range(16):
        e.wait(ds=f"of{blk}")
        c = "0" if blk == 0 else vr(P_ACC, 16)
        e(f"v_mfma_f32_32x32x16_bf16 {vr(P_ACC,16)}, {vr(W_FR+4*blk,4)}, {vr(O_FR+4*blk,4)}, {c}")
        if blk + 8 < 16:
            e.ds(f"of{blk+8}", f"ds_read_b128 {vr(O_FR+4*(blk+8),4)}, v6 offset:{(blk+8)*1024}")
    e.ds("pw", f"ds_write_b128 v7, {vr(P_ACC+8,4)}")
    e.ds("pw", f"ds_write_b128 v7, {vr(P_ACC+12,4)} offset:1024")
    e.wait(ds="pw")
    e("s_barrier")
    e.ds("pr", f"ds_read_b128 {vr(O_FR,4)}, v8")
    e.ds("pr", f"ds_read_b128 {vr(O_FR+4,4)}, v8 offset:1024")
    e.wait(ds="pr")
    for r in range(0, 8, 2):
        e(f"v_pk_add_f32 {vr(P_ACC+r,2)}, {vr(P_ACC+r,2)}, {vr(O_FR+r,2)}")
    for r in range(0, 8, 2):
        e(f"v_pk_fma_f32 {vr(P_ACC+r,2)}, {vr(P_ACC+r,2)}, {vr(B_G,2)}, {vr(B_T+r,2)} op_sel_hi:[1,0,1]")
    for r in range(4):
        e(f"v_cvt_pk_bf16_f32 v{O_FR+r}, v{P_ACC+2*r}, v{P_ACC+2*r+1}")
    e.vm("st", f"buffer_store_dwordx4 {vr(O_FR,4)}, v{V_OUT}, {sr(R_OUT,4)}, 0 offen")
```

```python
import sys
from asmlib import E, pad
from phases import *

def descriptor(name, vgpr):
    return f""".p2align 6
.amdhsa_kernel {name}
  .amdhsa_next_free_vgpr {vgpr}
  .amdhsa_next_free_sgpr 96
  .amdhsa_accum_offset {vgpr}
  .amdhsa_group_segment_fixed_size 0
  .amdhsa_kernarg_size 104
  .amdhsa_user_sgpr_count 2
  .amdhsa_user_sgpr_kernarg_segment_ptr 1
  .amdhsa_system_sgpr_workgroup_id_x 1
  .amdhsa_float_denorm_mode_32 3
.end_amdhsa_kernel"""

def k1():
    e = E()
    prologue(e, "k1_end")
    phase1_head(e, "")
    e(f"s_cmp_ge_u32 s{S_WAVE}, 4\ns_cbranch_scc1 k1_vrole")
    v = e.fork()
    phase1_gemm(e, True)
    phase1_epi_qk(e, "")
    e("s_endpgm\nk1_vrole:")
    phase1_gemm(v, False)
    phase1_epi_v(v, "")
    v("k1_end:\ns_endpgm")
    return e.l + v.l

def k2(force_slow=False):
    e = E()
    prologue(e, "k2_end")
    e("s_waitcnt lgkmcnt(0)")
    srd(e, R_WS, P_WS, WS_SIZE)
    conv_loads(e, "")
    attn_setup(e)
    attn_q_from_ws(e)
    for j in range(NS):
        k_load(e, j, "")
        v_load(e, j, "")
    conv_compute(e, "", "k2")
    attn_decide(e, "k2_slow")
    if force_slow:
        e("s_branch k2_slow")
    s = e.fork()
    attn_fast(e, "", NS)
    e("s_barrier")
    attn_combine(e, "", False)
    e("s_endpgm\nk2_slow:")
    attn_slow(s, "", "k2")
    s("s_barrier")
    attn_combine(s, "", True)
    s("k2_end:\ns_endpgm")
    return e.l + s.l

def k3():
    e = E()
    prologue(e, "k3_end")
    p3_ids(e)
    e("s_waitcnt lgkmcnt(0)")
    srd(e, R_WS, P_WS, WS_SIZE)
    p3_o_dma(e, "")
    p3_wo_dma(e)
    p3_b_loads(e, "")
    p3_wo_frags(e)
    p3_bterm(e)
    p3_gemm(e)
    e("k3_end:\ns_endpgm")
    return e.l

def build(force_slow=False, extra_empty=0):
    ks = [("k1_kernel", k1(), K1_LDS), ("k2_kernel", k2(force_slow), CONV_LDS), ("k3_kernel", k3(), K3_LDS)]
    for i in range(extra_empty):
        ks.append((f"e{i}_kernel", ["    s_endpgm"], 0))
    out = [f"; @launch kernel={n} grid=(256,1,1) block=(512,1,1) lds={lds}" for n, _, lds in ks]
    out += ['.amdgcn_target "amdgcn-amd-amdhsa--gfx950"', ".text"]
    for n, body, _ in ks:
        out += [f".globl {n}", ".p2align 8", f".type {n},@function", f"{n}:"] + pad(body)
    out.append('.section .rodata,"a"')
    out += [descriptor(n, 256) for n, _, _ in ks]
    return "\n".join(out) + "\n"

if __name__ == "__main__":
    open(sys.argv[1], "w").write(build("slow" in sys.argv, 2 if "empty" in sys.argv else 0))
```

```python
import sys
from asmlib import E, vr, sr, pad, check_seq

NAME = "gated_mix__mha_block__ssm_conv_h3__prompt_kernel"
OPT = {}

TILE = 2176
BLK = 8 * TILE
WS_KV = 0x0000000
WS_U = 0x0600000
WS_Y = 0x0A00000
WS_OF = 0x0C00000
WS_G = 0x0E00000
WS_FL = 0x0E10000
FL_U, FL_KV, FL_Y, FL_O = (WS_FL + i * 0x4000 for i in range(4))
WS_GEN = WS_FL + 0x10000
WS_ST = 0x0F00000
WS_SIZE = 0x1000000
OOB = 0x7F000000

QSCALE = 0x3EB8AA3B
NLOG2E = 0xBFB8AA3B
BOUND2 = 0x44610000
SPIN_MAX = 1 << 18

P_X, P_W, P_WO, P_K, P_V, P_SH, P_H, P_D, P_GW, P_OUT, P_WS = 16, 18, 20, 24, 26, 28, 30, 32, 34, 36, 40
S_WAVE, S_HP, S_J, S_CG, S_TB = 3, 4, 5, 6, 7
T0, T1, T2, T3 = 8, 9, 10, 11
S_MX, S_MW, S_ROW, S_W4 = 12, 13, 14, 15
S_D, S_TAG = 42, 43
R_X, R_W, R_K, R_V, R_SH, R_GW, R_WS, R_H, R_OUT = 44, 48, 52, 56, 60, 64, 68, 72, 76
S_STEP = 52
S_BLK, S_ROT, S_SPIN, S_QT, S_NQ = 80, 81, 82, 84, 85

SLOT = 28672
L_Z = 4 * SLOT
L_PRE, L_A, A_COPY = L_Z, L_Z, 4160
L_STG = L_Z + 128 * 144
L_Q = L_Z + 8 * A_COPY
L_MISC = L_Q + 8192
L_B, B_COPY = 0, 4576
L_KVO = SLOT
L_P = 2 * SLOT
L_WO, L_O = 0, 131072
LDS = 163840
XCH = 2560

SC = " sc1"


def srd(e, r, p, size):
    e(f"s_mov_b32 s{r}, s{p}\ns_mov_b32 s{r+1}, s{p+1}\ns_mov_b32 s{r+2}, {size}\ns_mov_b32 s{r+3}, 0x20000")


def stamp(e, i):
    if OPT.get("stamp"):
        e(f"s_memrealtime s[86:87]\ns_waitcnt lgkmcnt(0)\nv_writelane_b32 v255, s86, {i}")
        e(f"s_memtime s[86:87]\ns_waitcnt lgkmcnt(0)\nv_writelane_b32 v255, s86, {32+i}")
        e.dsq = []


def stamp_flush(e, n):
    if OPT.get("stamp"):
        e.wait(vm="*")
        stamp(e, n)
        e(f"""
        s_lshl_b32 s86, s2, 3
        s_add_u32 s86, s86, s{S_WAVE}
        s_lshl_b32 s86, s86, 8
        s_add_u32 s86, s86, {WS_ST}
        v_lshlrev_b32 v11, 2, v1
        buffer_store_dword v255, v11, {sr(R_WS,4)}, s86 offen
        """)


def wave_reduce(e, op, regs):
    for ctl in ("row_shr:1 row_mask:0xf", "row_shr:2 row_mask:0xf", "row_shr:4 row_mask:0xf", "row_shr:8 row_mask:0xf",
                "row_bcast:15 row_mask:0xa", "row_bcast:31 row_mask:0xc"):
        for r in regs:
            e(f"{op}_dpp v{r}, v{r}, v{r} {ctl} bank_mask:0xf")


def poll(e, label, loads, words, first=None):
    e(f"s_mov_b32 s{S_SPIN}, {SPIN_MAX}")
    if first:
        e.wait(vm=first)
        e(f"s_branch {label}_chk")
    e(f"{label}:")
    for ld in loads:
        e(ld)
    e("s_waitcnt vmcnt(0)")
    if first:
        e(f"{label}_chk:")
    else:
        e.vmq = []
    e(f"v_cmp_ne_u32 vcc, s{S_TAG}, v{words[0]}")
    for w in words[1:]:
        e(f"v_cmp_ne_u32 s[{T0}:{T1}], s{S_TAG}, v{w}\ns_or_b64 vcc, vcc, s[{T0}:{T1}]")
    e(f"""
    s_cbranch_vccz {label}_ok
    s_sub_u32 s{S_SPIN}, s{S_SPIN}, 1
    s_cbranch_scc0 {label}
    {label}_ok:
    """)


def flag_store(e, base, idx_sreg, width, data):
    e(f"""
    s_lshl_b32 s{T0}, s{idx_sreg}, 6
    s_mul_i32 s{T1}, s{S_WAVE}, {width}
    s_add_u32 s{T0}, s{T0}, s{T1}
    s_add_u32 s{T0}, s{T0}, {base}
    v_mov_b32 v{data}, s{S_TAG}
    v_mov_b32 v2, 0
    s_lshl_b64 exec, 1, 63
    """)
    if width == 4:
        e.vm("fl", f"buffer_store_dword v{data}, v2, {sr(R_WS,4)}, s{T0} offen{SC}")
    else:
        e.vm("fl", f"buffer_store_dwordx2 {vr(data,2)}, v2, {sr(R_WS,4)}, s{T0} offen{SC}")
    e("s_mov_b64 exec, -1")


def make_tag(e):
    e.wait(vm="gen")
    e(f"""
    v_readfirstlane_b32 s{S_TAG}, v254
    s_mul_i32 s{S_TAG}, s{S_TAG}, 0x9e3779b1
    s_add_u32 s{S_TAG}, s{S_TAG}, 0x7f4a7c15
    """)


def prologue(e):
    e(f"""
    s_cmp_ge_u32 s2, 256
    s_cbranch_scc1 L_end
    s_load_dwordx16 s[16:31], s[0:1], 0
    s_load_dwordx8 s[32:39], s[0:1], 64
    s_load_dwordx2 s[40:41], s[0:1], 96
    v_lshrrev_b32 v1, 6, v0
    v_readfirstlane_b32 s{S_WAVE}, v1
    v_and_b32 v1, 63, v0
    s_bfe_u32 s{T0}, s2, 0x20001
    s_bfe_u32 s{T1}, s2, 0x20003
    s_lshl_b32 s{S_J}, s{T0}, 2
    s_add_u32 s{S_J}, s{S_J}, s{T1}
    s_and_b32 s{T0}, s2, 1
    s_lshr_b32 s{T2}, s2, 5
    s_lshl_b32 s{S_HP}, s{T0}, 3
    s_add_u32 s{S_HP}, s{S_HP}, s{T2}
    s_lshl_b32 s{T1}, s{T1}, 1
    s_add_u32 s{S_ROT}, s{T2}, s{T1}
    s_lshl_b32 s{S_BLK}, s{S_HP}, 4
    s_add_u32 s{S_BLK}, s{S_BLK}, s{S_J}
    s_and_b32 s{S_CG}, s2, 7
    s_lshr_b32 s{S_TB}, s2, 3
    s_and_b32 s{S_W4}, s{S_WAVE}, 3
    v_mov_b32 v2, {WS_GEN}
    """)
    if OPT.get("norot"):
        e(f"s_mov_b32 s{S_ROT}, 0")
    if OPT.get("rot2"):
        e(f"s_and_b32 s{S_ROT}, s{S_ROT}, 1\ns_lshl_b32 s{S_ROT}, s{S_ROT}, 2")


V_XD, V_WD = 4, 3
V_ADR = 128
ACC0, ACC1 = 96, 112
FR = 144


def frag_addresses(e):
    e(f"""
    v_and_b32 v56, 31, v1
    v_lshrrev_b32 v57, 5, v1
    v_bfe_u32 v58, v1, 1, 3
    v_xor_b32 v58, v58, v57
    v_lshlrev_b32 v58, 4, v58
    v_lshl_add_u32 v58, v56, 7, v58
    s_lshl_b32 s{T0}, s{S_W4}, 12
    v_add_u32 v{V_ADR}, s{T0}, v58
    v_xor_b32 v{V_ADR+1}, 32, v{V_ADR}
    v_xor_b32 v{V_ADR+2}, 64, v{V_ADR}
    v_xor_b32 v{V_ADR+3}, 0x60, v{V_ADR}
    v_bfe_u32 v58, v1, 2, 2
    v_lshl_add_u32 v58, v57, 3, v58
    v_lshlrev_b32 v58, 6, v58
    v_bfe_u32 v59, v1, 4, 1
    v_lshl_add_u32 v58, v59, 5, v58
    v_and_b32 v59, 3, v1
    v_lshl_add_u32 v58, v59, 3, v58
    v_add_u32 v{V_ADR+4}, 0x4000, v58
    """)
    for i in range(5):
        e(f"v_add_u32 v{V_ADR+5+i}, {2*SLOT}, v{V_ADR+i}")


def chunk_dma_steps(e, c):
    slot = (c % 4) * SLOT

    def x(i):
        if i == 0:
            e(f"s_add_u32 s{T1}, s{S_ROT}, {c}\ns_and_b32 s{T1}, s{T1}, 7\ns_add_u32 m0, s{S_MX}, {slot}\ns_lshl_b32 s{T0}, s{T1}, 7")
        e.vm(f"c{c}", f"buffer_load_dwordx4 v{V_XD+i}, {sr(R_X,4)}, s{T0} offen offset:{i*1024} lds")

    def w(part):
        if part == 0:
            e(f"s_add_u32 m0, s{S_MW}, {slot}\ns_mul_i32 s{T0}, s{T1}, 196608")
        e.vm(f"c{c}", f"buffer_load_dwordx4 v{V_WD}, {sr(R_W,4)}, s{T0} offen offset:{part*1024} lds")

    return [lambda i=i: x(i) for i in range(4)] + [lambda p=p: w(p) for p in range(3)]


def frag_reads(e, c, ks, parts, f):
    a, imm = V_ADR + 5 * ((c % 4) // 2), (c % 2) * SLOT
    e.ds(f"r{c}_{ks}", f"ds_read_b128 {vr(f,4)}, v{a+ks} offset:{imm}")
    for n, part in enumerate(parts):
        for j in range(2):
            e.ds(f"r{c}_{ks}", f"ds_read_b64_tr_b16 {vr(f+4+4*n+2*j,2)}, v{a+4} offset:{imm + (ks*3+part)*1024 + j*256}")


KR, VR, SH, GX, GW = 8, 20, 32, 36, 44
KF, VF, WF, U_, PK = 192, 216, 234, 60, 192


def prepass_setup(e):
    e(f"""
    s_lshl_b32 s{T0}, s{S_TB}, 2
    s_add_u32 s{T0}, s{T0}, s{S_WAVE}
    s_lshl_b32 s{T0}, s{T0}, 14
    s_lshl_b32 s{T1}, s{S_CG}, 7
    s_add_u32 s{T0}, s{T0}, s{T1}
    v_lshrrev_b32 v48, 3, v1
    v_and_b32 v49, 7, v1
    v_lshlrev_b32 v49, 4, v49
    v_lshl_add_u32 v4, v48, 10, v49
    v_add_u32 v4, s{T0}, v4
    v_add_u32 v3, 0xffffe000, v4
    v_add_u32 v5, 0x2000, v4
    v_and_b32 v53, 31, v1
    s_lshl_b32 s{T1}, s{S_CG}, 9
    v_lshl_add_u32 v6, v53, 4, s{T1}
    v_lshlrev_b32 v7, 4, v1
    s_lshl_b32 s{S_ROW}, s{S_J}, 4
    s_add_u32 s{S_ROW}, s{S_ROW}, s{S_HP}
    s_lshl_b32 s{S_ROW}, s{S_ROW}, 2
    s_add_u32 s{S_ROW}, s{S_ROW}, s{S_WAVE}
    s_mul_i32 s{S_MX}, s{S_WAVE}, 6144
    s_add_u32 s{S_MX}, s{S_MX}, {L_STG}
    v_lshrrev_b32 v54, 5, v0
    v_mul_u32_u24 v50, 288, v53
    v_lshlrev_b32 v55, 4, v54
    v_sub_u32 v50, v50, v55
    v_add_u32 v50, {L_PRE + 112}, v50
    v_and_b32 v54, 1, v54
    v_lshlrev_b32 v53, 2, v53
    v_lshl_add_u32 v53, v54, 10, v53
    v_add_u32 v53, s{S_MX}, v53
    v_lshrrev_b32 v48, 3, v0
    v_mul_u32_u24 v51, 144, v48
    v_add_u32 v51, v51, v49
    v_add_u32 v51, {L_PRE}, v51
    v_lshl_add_u32 v52, v48, 13, v49
    s_lshl_b32 s{S_MW}, s{S_CG}, 19
    s_lshl_b32 s{T3}, s{S_TB}, 7
    s_sub_u32 s{S_MW}, s{S_MW}, s{T3}
    s_add_u32 s{S_MW}, s{S_MW}, {WS_U + 3968}
    """)
    frag_addresses(e)
    e("s_waitcnt lgkmcnt(0)")
    srd(e, R_K, P_K, 0x200000)
    srd(e, R_V, P_V, 0x200000)
    srd(e, R_SH, P_SH, 4096)
    srd(e, R_X, P_X, 0x200000)
    srd(e, R_GW, P_GW, 1024)
    srd(e, R_WS, P_WS, WS_SIZE)
    e.vm("gen", f"buffer_load_dword v254, v2, {sr(R_WS,4)}, 0 offen sc0 sc1")


def prepass_items(e):
    it = []

    def add(c, cost, fn):
        it.append((c, cost, fn))

    def text(c, lines):
        for t in lines:
            add(c, 1, lambda t=t: e(t))

    for n, r in enumerate((R_K, R_V)):
        for i in range(3):
            def dma(n=n, r=r, i=i):
                e(f"s_add_u32 m0, s{S_MX}, {n*3072 + i*1024}")
                e.vm("pre", f"buffer_load_dwordx4 v{3+i}, {sr(r,4)}, 0 offen lds")
            add(0, 4, dma)
    add(0, 3, lambda: e.vm("pre", f"buffer_load_dwordx4 {vr(SH,4)}, v6, {sr(R_SH,4)}, 0 offen"))
    add(0, 1, lambda: e(f"s_lshl_b32 s{T2}, s{S_ROW}, 11"))
    add(0, 3, lambda: e.vm("gate", f"buffer_load_dwordx4 {vr(GX,4)}, v7, {sr(R_X,4)}, s{T2} offen"))
    add(0, 3, lambda: e.vm("gate", f"buffer_load_dwordx4 {vr(GX+4,4)}, v7, {sr(R_X,4)}, s{T2} offen offset:1024"))
    add(0, 3, lambda: e.vm("gate", f"buffer_load_dwordx4 {vr(GW,4)}, v7, {sr(R_GW,4)}, 0 offen"))
    c0 = 2
    add(c0, 1, lambda: e.wait(vm="pre"))
    for i in range(12):
        add(c0, 1, lambda i=i: e.ds(f"pk{i//4}", f"ds_read_b32 v{KR+i}, v53 offset:{(4+i)*128}"))
        if i == 5:
            for j in range(4):
                if j % 2 == 0:
                    text(c0, [f"v_lshlrev_b32 v{WF+2*j}, 16, v{SH+j//2}", f"v_lshlrev_b32 v{WF+2*j+1}, 16, v{SH+2+j//2}"])
                else:
                    text(c0, [f"v_and_b32 v{WF+2*j}, 0xffff0000, v{SH+j//2}", f"v_and_b32 v{WF+2*j+1}, 0xffff0000, v{SH+2+j//2}"])
    for g in range(3):
        add(c0, 0, lambda g=g: e.wait(ds=f"pk{g}"))
        for i in range(4 * g, 4 * g + 4):
            text(c0, [f"v_lshlrev_b32 v{KF+2*i}, 16, v{KR+i}", f"v_and_b32 v{KF+2*i+1}, 0xffff0000, v{KR+i}"])
        for i in range(3 * g, 3 * g + 3):
            add(c0, 1, lambda i=i: e.ds("pv", f"ds_read_b32 v{VR+i}, v53 offset:{3072 + (7+i)*128}"))
    for j in (3, 2, 1, 0):
        for o in range(9):
            kr = KF + 2 * (o + 3 - j)
            if j == 3:
                text(c0, [f"v_pk_mul_f32 {vr(U_+2*o,2)}, {vr(kr,2)}, {vr(WF+2*j,2)}"])
            else:
                text(c0, [f"v_pk_fma_f32 {vr(U_+2*o,2)}, {vr(kr,2)}, {vr(WF+2*j,2)}, {vr(U_+2*o,2)}"])
    add(c0, 0, lambda: e.wait(ds="pv"))
    for i in range(9):
        text(c0, [f"v_lshlrev_b32 v{VF+2*i}, 16, v{VR+i}", f"v_and_b32 v{VF+2*i+1}, 0xffff0000, v{VR+i}"])
    for o in range(9):
        text(c0, [f"v_pk_mul_f32 {vr(U_+2*o,2)}, {vr(U_+2*o,2)}, {vr(VF+2*o,2)}"])
    for ch in range(2):
        for p in range(2):
            d = PK + 8 * ch + 4 * p
            for q in range(4):
                o = 7 + p - 2 * q
                text(c0, [f"v_cvt_pk_bf16_f32 v{d+q}, v{U_+2*o+ch}, v{U_+2*(o-1)+ch}"])
            add(c0, 2, lambda d=d, p=p, ch=ch: e.ds("pw", f"ds_write_b128 v50, {vr(d,4)} offset:{p*64*144 + ch*144}"))
    c1 = 5
    for i in range(4):
        add(c1, 1, lambda i=i: e.ds(f"pr{i}", f"ds_read_b128 {vr(8+4*i,4)}, v51 offset:{i*32*144}"))
    add(c1, 0, lambda: e.wait(vm="gate"))
    for i in range(4):
        for r in range(2):
            text(c1, [f"v_dot2_f32_bf16 v{54+r}, v{GX+4*r+i}, v{GW+i}, {'0' if i == 0 else f'v{54+r}'}"])
    for i in range(4):
        def ust(i=i):
            e.wait(ds=f"pr{i}")
            e(f"s_add_u32 s{T0}, s{S_MW}, {(i%2)*32*8192 + (i//2)*4096}")
            e.vm("ust", f"buffer_store_dwordx4 {vr(8+4*i,4)}, v52, {sr(R_WS,4)}, s{T0} offen{SC}")
        add(c1, 3, ust)
    r = E()
    wave_reduce(r, "v_add_f32", [54, 55])
    for k in range(0, 12, 2):
        add(c1, 3, lambda k=k: e("\n".join(r.l[k:k+2])))
    for op in (f"v_mul_f32 v{{0}}, {NLOG2E}, v{{0}}", "v_exp_f32 v{0}, v{0}", "v_add_f32 v{0}, 1.0, v{0}", "v_rcp_f32 v{0}, v{0}"):
        text(c1, [op.format(54), op.format(55)])

    def gst():
        e(f"s_lshl_b32 s{T2}, s{S_ROW}, 3\ns_add_u32 s{T2}, s{T2}, {WS_G}\nv_mov_b32 v2, 0\ns_lshl_b64 exec, 1, 63")
        e.vm("ust", f"buffer_store_dwordx2 v[54:55], v2, {sr(R_WS,4)}, s{T2} offen{SC}")
        e("s_mov_b64 exec, -1")
        make_tag(e)
    add(c1, 8, gst)
    return it


def gemm_qk(e):
    items = prepass_items(e)
    if OPT.get("nopre"):
        items = [items[-1]]
    budget = {0: 5, 1: 0, 2: 7, 3: 7, 4: 100, 5: 7, 6: 100, 7: 0}

    def fill(c, last):
        b = budget[c] if budget[c] < 100 or last else 7
        while items and items[0][0] <= c and b > 0:
            _, cost, fn = items.pop(0)
            fn()
            b -= cost

    def fr(ks):
        return FR + 12 * ks

    def mm(c, ks, cc, last=False):
        e.wait(ds=f"r{c}_{ks}")
        f = fr(ks)
        first = c == 0 and ks == 0
        e(f"v_mfma_f32_32x32x16_bf16 {vr(ACC0,16)}, {vr(f+4,4)}, {vr(f,4)}, {'0' if first else vr(ACC0,16)}")
        fill(cc, False)
        e(f"v_mfma_f32_32x32x16_bf16 {vr(ACC1,16)}, {vr(f+8,4)}, {vr(f,4)}, {'0' if first else vr(ACC1,16)}")
        fill(cc, last)

    for c in range(8):
        if c == 5:
            assert all(i[0] >= 5 for i in items)
            e.wait(ds="pw")
        if c and OPT.get("d3"):
            e.wait(ds=f"r{c-1}_3")
        e("s_barrier")
        stamp(e, 20 + c)
        frag_reads(e, c, 0, (0, 1), fr(0))
        if c:
            mm(c - 1, 2, c)
        frag_reads(e, c, 1, (0, 1), fr(1))
        if c:
            mm(c - 1, 3, c)
        else:
            fill(0, False)
            fill(0, False)
        frag_reads(e, c, 2, (0, 1), fr(2))
        mm(c, 0, c)
        frag_reads(e, c, 3, (0, 1), fr(3))
        mm(c, 1, c, True)
        if c == 0:
            while items and items[0][0] == 0:
                items.pop(0)[2]()
    assert not items
    mm(7, 2, 7)
    mm(7, 3, 7)


def loader_setup(e):
    e(f"""
    v_lshrrev_b32 v36, 3, v1
    v_lshrrev_b32 v37, 4, v1
    v_xor_b32 v37, v37, v1
    v_and_b32 v37, 7, v37
    v_lshlrev_b32 v37, 4, v37
    v_lshl_add_u32 v37, v36, 10, v37
    s_lshl_b32 s{T0}, s{S_J}, 2
    s_add_u32 s{T0}, s{T0}, s{S_W4}
    s_lshl_b32 s{T0}, s{T0}, 15
    v_add_u32 v{V_XD}, s{T0}, v37
    v_xor_b32 v{V_XD+1}, 64, v{V_XD}
    v_add_u32 v{V_XD+2}, {16384-2048}, v{V_XD}
    v_add_u32 v{V_XD+3}, {24576-3072}, v{V_XD+1}
    v_add_u32 v{V_XD+1}, {8192-1024}, v{V_XD+1}
    s_lshl_b32 s{S_MX}, s{S_W4}, 12
    v_bfe_u32 v36, v0, 2, 6
    v_mul_u32_u24 v36, 0xc00, v36
    v_and_b32 v37, 3, v1
    v_lshl_add_u32 v36, v37, 4, v36
    s_lshl_b32 s{T0}, s{S_HP}, 6
    v_add_u32 v{V_WD}, s{T0}, v36
    s_mul_i32 s{S_MW}, s{S_W4}, 3072
    s_add_u32 s{S_MW}, s{S_MW}, 16384
    s_waitcnt lgkmcnt(0)
    """)
    srd(e, R_X, P_X, 0x200000)
    srd(e, R_W, P_W, 0x180000)


def conv_h_steps(e):
    e(f"""
    s_lshr_b32 s{T0}, s{S_W4}, 1
    s_lshl_b32 s{T1}, s2, 1
    s_add_u32 s{T1}, s{T1}, s{T0}
    s_lshl_b32 s{T2}, s{T1}, 12
    s_add_u32 s{R_H}, s{P_H}, s{T2}
    s_addc_u32 s{R_H+1}, s{P_H+1}, 0
    s_mov_b32 s{R_H+2}, 4096
    s_mov_b32 s{R_H+3}, 0x20000
    s_and_b32 s{T0}, s{S_W4}, 1
    s_lshl_b32 s{T0}, s{T0}, 3
    v_lshl_add_u32 v8, v1, 4, s{T0}
    v_lshl_add_u32 v9, v1, 2, s{T0}
    s_mul_i32 s{T2}, s{S_W4}, {2*A_COPY}
    """)
    steps = []
    for cc in range(2):
        def big(i, cc=cc):
            if i == 0:
                e(f"v_add_u32 v10, {4+4*cc}, v8\nv_add_u32 v11, {-60+4*cc}, v9\ns_add_u32 m0, s{T2}, {L_A + cc*A_COPY + 64}")
            e.vm("h", f"buffer_load_dwordx4 v10, {sr(R_H,4)}, 0 offen offset:{i*1024} lds")

        def head(cc=cc):
            e(f"s_add_u32 m0, s{T2}, {L_A + cc*A_COPY}\ns_mov_b64 exec, 0xffff")
            e.vm("h", f"buffer_load_dword v11, {sr(R_H,4)}, 0 offen lds")
            e("s_mov_b64 exec, -1")
        steps += [lambda i=i, big=big: big(i) for i in range(4)] + [head]
    return steps


def conv_u_flag_load(e, text_only=False):
    ld = f"buffer_load_dwordx4 v[12:15], v10, {sr(R_WS,4)}, s{S_MW} offen{SC}"
    if text_only:
        return ld
    e(f"""
    v_and_b32 v10, 31, v1
    v_lshlrev_b32 v10, 9, v10
    s_lshr_b32 s{S_MW}, s2, 5
    s_lshl_b32 s{S_MW}, s{S_MW}, 6
    s_add_u32 s{S_MW}, s{S_MW}, {FL_U}
    """)
    e.vm("uf", ld)


def conv_u_loads(e):
    poll(e, "L_pollu", [conv_u_flag_load(e, True)], [12, 13, 14, 15], first="uf")
    e(f"""
    s_mul_i32 s{T2}, s{S_W4}, {B_COPY}
    s_add_u32 m0, s{T2}, {L_B}
    s_lshl_b32 s{T1}, s2, 2
    s_add_u32 s{T1}, s{T1}, s{S_W4}
    s_lshl_b32 s{T1}, s{T1}, 12
    s_add_u32 s{T1}, s{T1}, {WS_U}
    """)
    for i in range(4):
        e.vm("u", f"buffer_load_dwordx4 v{V_KO}, {sr(R_WS,4)}, s{T1} offen offset:{i*1024}{SC} lds")
    e(f"""
    v_lshl_add_u32 v12, v1, 3, s{T2}
    v_mov_b32 v10, 0
    v_mov_b32 v11, 0
    s_lshr_b64 exec, -1, 4
    """)
    e.ds("cz", f"ds_write_b64 v12, v[10:11] offset:{L_B + 4096}")
    e("s_mov_b64 exec, -1")


def gemm_v(e):
    for c in range(2):
        for st in chunk_dma_steps(e, c):
            st()
    srd(e, R_WS, P_WS, WS_SIZE)
    e.vm("gen", f"buffer_load_dword v254, v2, {sr(R_WS,4)}, 0 offen sc0 sc1")
    stamp(e, 1)
    frag_addresses(e)
    stamp(e, 2)
    for c in range(8):
        e.wait(vm=f"c{c}")
        if c == 0:
            stamp(e, 3)
        e("s_barrier")
        stamp(e, 20 + c)
        if OPT.get("d3"):
            steps = chunk_dma_steps(e, c + 3) if c + 3 < 8 else conv_h_steps(e) if c == 5 else []
            per = 2 if c in (0, 5) else 1
            if c == 0:
                steps = chunk_dma_steps(e, 2) + steps
        else:
            steps = chunk_dma_steps(e, c + 2) if c + 2 < 8 else conv_h_steps(e) if c == 6 else []
            per = 2 if c == 6 else 1

        def step():
            for _ in range(per):
                if steps:
                    steps.pop(0)()
        for ks in range(4):
            step()
            frag_reads(e, c, ks, (2,), FR + 8 * ks)
        for ks in range(4):
            e.wait(ds=f"r{c}_{ks}")
            f = FR + 8 * ks
            e(f"v_mfma_f32_32x32x16_bf16 {vr(ACC0,16)}, {vr(f,4)}, {vr(f+4,4)}, {'0' if c + ks == 0 else vr(ACC0,16)}")
            step()
        assert not steps
        if c == 3:
            make_tag(e)


def tile_base(e, s):
    e(f"s_mul_i32 s{s}, s{S_BLK}, {BLK}\ns_mul_i32 s{T3}, s{S_W4}, {TILE}\ns_add_u32 s{s}, s{s}, s{T3}")


V_MK = 41


def epi_qk(e):
    QP, KP = 8, 16
    tile_base(e, T0)
    e(f"""
    v_and_b32 v36, 0x33, v1
    v_bfe_u32 v37, v1, 2, 1
    v_lshl_or_b32 v36, v37, 3, v36
    v_bfe_u32 v37, v1, 3, 1
    v_lshl_or_b32 v36, v37, 2, v36
    v_lshlrev_b32 v36, 4, v36
    s_add_u32 s{T1}, s{T0}, {4*TILE}
    s_lshl_b32 s{T2}, s{S_W4}, 11
    v_add_u32 v38, s{T2}, v36
    s_mov_b32 s{S_MX}, {QSCALE}
    s_mov_b32 s{S_MW}, {QSCALE}
    s_lshl_b32 s{T2}, s{S_W4}, 10
    v_lshl_add_u32 v37, v1, 4, s{T2}
    """)
    for i in range(8):
        e(f"v_cvt_pk_bf16_f32 v{KP+i}, v{ACC1+2*i}, v{ACC1+2*i+1}")
    e.vm("st", f"buffer_store_dwordx4 {vr(KP,4)}, v36, {sr(R_WS,4)}, s{T0} offen{SC}")
    e.vm("st", f"buffer_store_dwordx4 {vr(KP+4,4)}, v36, {sr(R_WS,4)}, s{T1} offen{SC}")
    e.ds("ew", f"ds_write_b128 v38, {vr(KP,4)} offset:{L_KVO}")
    e.ds("ew", f"ds_write_b128 v38, {vr(KP+4,4)} offset:{L_KVO + 8192}")
    for i in range(8):
        e(f"v_pk_mul_f32 {vr(ACC0+2*i,2)}, {vr(ACC0+2*i,2)}, s[{S_MX}:{S_MW}]")
    for i in range(8):
        e(f"v_cvt_pk_bf16_f32 v{QP+i}, v{ACC0+2*i}, v{ACC0+2*i+1}")
    e(f"v_add_u32 v37, {L_Q}, v37")
    e.ds("ew", f"ds_write_b128 v37, {vr(QP,4)}")
    e.ds("ew", f"ds_write_b128 v37, {vr(QP+4,4)} offset:4096")
    for i in range(4):
        for d, s in ((42, QP), (43, QP + 4), (V_MK, KP), (44, KP + 4)):
            e(f"v_dot2_f32_bf16 v{d}, v{s+i}, v{s+i}, {'0' if i == 0 else f'v{d}'}")
    e(f"v_max_f32 v42, v42, v43\nv_max_f32 v{V_MK}, v{V_MK}, v44")
    wave_reduce(e, "v_max_f32", [42, V_MK])
    e(f"s_lshl_b32 s{T2}, s{S_W4}, 2\ns_add_u32 s{T2}, s{T2}, {L_MISC}\nv_mov_b32 v37, s{T2}\ns_lshl_b64 exec, 1, 63")
    e.ds("ew", f"ds_write_b32 v37, v42")
    e("s_mov_b64 exec, -1")


def epi_v(e):
    VP = 16
    tile_base(e, T0)
    e(f"""
    v_bfe_u32 v38, v1, 4, 1
    v_lshrrev_b32 v37, 5, v1
    v_lshlrev_b32 v37, 8, v37
    v_and_b32 v39, 15, v1
    v_lshl_add_u32 v37, v39, 4, v37
    v_mad_u32_u24 v36, v38, s{S_MX}, v37
    v_lshl_add_u32 v37, v38, 13, v37
    s_lshl_b32 s{T2}, s{S_W4}, 11
    v_add_u32 v37, s{T2}, v37
    v_mul_u32_u24 v39, {4*TILE}, v1
    v_mov_b32 v{V_MK}, 0
    """.replace(f"v_mad_u32_u24 v36, v38, s{S_MX}, v37", f"s_movk_i32 s{S_MX}, {4*TILE}\nv_mad_u32_u24 v36, v38, s{S_MX}, v37"))
    for i in range(4):
        e(f"v_mov_b32 v{24+i}, 0x3f803f80")
    for i in range(8):
        e(f"v_cvt_pk_bf16_f32 v{VP+i}, v{ACC0+2*i}, v{ACC0+2*i+1}")
    e.vm("st", f"buffer_store_dwordx4 {vr(VP,4)}, v36, {sr(R_WS,4)}, s{T0} offen offset:1024{SC}")
    e.vm("st", f"buffer_store_dwordx4 {vr(VP+4,4)}, v36, {sr(R_WS,4)}, s{T0} offen offset:1536{SC}")
    e("s_mov_b64 exec, 3")
    e.vm("st", f"buffer_store_dwordx4 v[24:27], v39, {sr(R_WS,4)}, s{T0} offen offset:2048{SC}")
    e("s_mov_b64 exec, -1")
    e.ds("ew", f"ds_write_b128 v37, {vr(VP,4)} offset:{L_KVO + 1024}")
    e.ds("ew", f"ds_write_b128 v37, {vr(VP+4,4)} offset:{L_KVO + 1536}")


O_ACC, S_BUF, Q_FR, KV_ST = 64, 128, 192, 208
V_IDX, V_KO, V_V0, V_V1 = 244, 245, 246, 247
NS = 3
C_ACC, C_A, C_B = 16, 128, 160


def kv_regs(j):
    b = KV_ST + 12 * (j % NS)
    return b, b + 4, b + 8


def attn_setup(e):
    k, v0, v1 = kv_regs(0)
    e(f"""
    v_lshlrev_b32 v{V_KO}, 4, v1
    v_lshrrev_b32 v12, 5, v1
    v_lshlrev_b32 v12, 4, v12
    v_and_or_b32 v12, v1, 15, v12
    v_lshlrev_b32 v12, 4, v12
    s_lshl_b32 s{T2}, s{S_WAVE}, 11
    v_add_u32 v13, s{T2}, v{V_KO}
    v_add_u32 v14, s{T2}, v12
    v_and_b32 v15, 27, v1
    v_cmp_eq_u32 vcc, 16, v15
    v_mov_b32 v15, 0x3f803f80
    v_cndmask_b32 v15, 0, v15, vcc
    """)
    e.ds("aq", f"ds_read_b128 {vr(k,4)}, v13 offset:{L_KVO}")
    for i in range(8):
        e(f"v_mov_b32 v{v0+i}, v15")
    e(f"s_lshr_b32 s{T2}, s{S_WAVE}, 2\ns_lshl_b32 s{T2}, s{T2}, 12\ns_add_u32 s{T2}, s{T2}, {L_Q}")
    for i in range(4):
        e(f"s_add_u32 s{T0}, s{S_W4}, {i}\ns_and_b32 s{T0}, s{T0}, 3\ns_lshl_b32 s{T0}, s{T0}, 10\ns_add_u32 s{T0}, s{T0}, s{T2}")
        e(f"v_add_u32 v13, s{T0}, v{V_KO}")
        e.ds("aq", f"ds_read_b128 {vr(Q_FR+4*i,4)}, v13")
    e("s_mov_b32 exec_lo, 0xffff\ns_mov_b32 exec_hi, 0xffff")
    e.ds("aq", f"ds_read_b128 {vr(v0,4)}, v14 offset:{L_KVO + 1024}")
    e.ds("aq", f"ds_read_b128 {vr(v1,4)}, v14 offset:{L_KVO + 1536}")
    e(f"""
    s_mov_b64 exec, -1
    v_mov_b32 v13, {OOB}
    v_mov_b32 v14, 1024
    v_cndmask_b32 v{V_V0}, v13, v14, vcc
    v_mov_b32 v14, 512
    v_cndmask_b32 v{V_V1}, v13, v14, vcc
    v_and_b32 v13, 16, v1
    v_cmp_eq_u32 vcc, 0, v13
    v_mov_b32 v{V_IDX}, 0xdddddddd
    v_cndmask_b32 v{V_V0}, v{V_V0}, v12, vcc
    v_cndmask_b32 v{V_V1}, v{V_V1}, v12, vcc
    s_mul_i32 s{T1}, s{S_WAVE}, {TILE}
    s_mul_i32 s{T0}, s{S_HP}, {16*BLK}
    s_add_u32 s{T1}, s{T1}, s{T0}
    """)
    for j in range(16):
        e(f"s_add_u32 s{T0}, s{S_J}, {j}\ns_and_b32 s{T0}, s{T0}, 15\ns_mul_i32 s{T0}, s{T0}, {BLK}\ns_add_u32 s{S_STEP+j}, s{T0}, s{T1}")


def kv_load(e, j, soff=None):
    k, v0, v1 = kv_regs(j)
    so = soff or f"s{S_STEP+j}"
    e.vm(f"kv{j}", f"buffer_load_dwordx4 {vr(k,4)}, v{V_KO}, {sr(R_WS,4)}, {so} offen{SC}")
    e.vm(f"kv{j}", f"buffer_load_dwordx4 {vr(v0,4)}, v{V_V0}, {sr(R_WS,4)}, {so} offen offset:1024{SC}")
    e.vm(f"kv{j}", f"buffer_load_dwordx4 {vr(v1,4)}, v{V_V1}, {sr(R_WS,4)}, {so} offen offset:1536{SC}")


def conv_pair(e, a):
    e(f"ds_read_b128 {vr(C_A+4*a,4)}, v6 offset:{a*512}")
    e(f"ds_read_b128 {vr(C_B+4*(7-a),4)}, v7 offset:{a*512}")


def conv_body(first=False):
    b = E()
    b("v_add_u32 v6, 64, v6\nv_add_u32 v7, 64, v7")
    for a in range(8):
        for bb in range(7 - a, -1, -1):
            if a == 0:
                b(f"s_waitcnt lgkmcnt({2*bb})")
            n = a + bb
            c = "0" if first and a == 0 else vr(C_ACC + 4 * n, 4)
            b(f"v_mfma_f32_16x16x32_bf16 {vr(C_ACC+4*n,4)}, {vr(C_A+4*a,4)}, {vr(C_B+4*bb,4)}, {c}")
        conv_pair(b, a)
    return b.l


def conv_addresses(e):
    e(f"""
    s_lshl_b32 s{T2}, s2, 2
    s_load_dword s{S_D}, s[{P_D}:{P_D+1}], s{T2}
    v_and_b32 v2, 3, v1
    v_mul_u32_u24 v6, {A_COPY}, v2
    v_bfe_u32 v2, v1, 2, 2
    v_lshrrev_b32 v3, 4, v1
    v_add_u32 v2, v2, v3
    v_lshl_add_u32 v6, v2, 4, v6
    s_lshr_b32 s{T0}, s{S_WAVE}, 1
    s_and_b32 s{T1}, s{S_WAVE}, 1
    s_lshl_b32 s{T1}, s{T1}, 8
    s_mul_i32 s{T2}, s{T0}, {4*A_COPY}
    s_add_u32 s{T2}, s{T2}, s{T1}
    s_add_u32 s{T2}, s{T2}, {L_A}
    v_add_u32 v6, s{T2}, v6
    v_and_b32 v2, 1, v1
    v_mul_u32_u24 v7, {B_COPY}, v2
    v_lshl_add_u32 v7, v3, 4, v7
    v_bfe_u32 v2, v1, 1, 3
    v_lshlrev_b32 v2, 6, v2
    v_sub_u32 v7, v7, v2
    v_add_u32 v8, {L_B + 4080}, v7
    v_lshlrev_b32 v9, 5, v3
    v_sub_u32 v8, v8, v9
    s_lshl_b32 s{T3}, s{S_WAVE}, 9
    v_subrev_u32 v8, s{T3}, v8
    s_mul_i32 s{T2}, s{T0}, {2*B_COPY}
    s_add_u32 s{T2}, s{T2}, s{T1}
    s_add_u32 s{T2}, s{T2}, {L_B + 448}
    v_add_u32 v7, s{T2}, v7
    v_lshlrev_b32 v9, 4, v1
    """)


def conv_mfma(e):
    for a in range(8):
        conv_pair(e, a)
    body = conv_body()
    e("\n".join(conv_body(True)))
    tail = [f"    s_sub_u32 s{T0}, s{T0}, 1", f"    s_cmp_lg_u32 s{T0}, 0", "    s_cbranch_scc1 L_cvloop"]
    check_seq(body + tail + body, "conv loop")
    e(f"s_mov_b32 s{T0}, 3\nL_cvloop:")
    e("\n".join(body + tail))
    e(f"s_lshl_b32 s{T1}, s{S_WAVE}, 13\ns_add_u32 s{T1}, s{T1}, {L_P}\nv_add_u32 v2, s{T1}, v9\ns_waitcnt lgkmcnt(0)")
    for n in range(8):
        e(f"ds_write_b128 v2, {vr(C_ACC+4*n,4)} offset:{n*1024}")
    e("s_waitcnt lgkmcnt(0)")


def kv_wait_and_decide(e):
    e(f"""
    s_lshl_b32 s{T2}, s{S_HP}, 10
    s_add_u32 s{T2}, s{T2}, {FL_KV}
    v_and_b32 v10, 3, v1
    v_lshlrev_b32 v10, 2, v10
    v_add_u32 v10, {L_MISC}, v10
    """)
    e.ds("mq", "ds_read_b32 v11, v10")
    poll(e, "L_pollkv", [f"buffer_load_dwordx4 v[12:15], v{V_KO}, {sr(R_WS,4)}, s{T2} offen{SC}"], [12, 14])
    for j in (1, 2, 3):
        kv_load(e, j)
    e.wait(ds="*")
    e("v_max_f32 v13, v13, v15")
    wave_reduce(e, "v_max_f32", [11, 13])
    e(f"v_mul_f32 v11, v11, v13\nv_mov_b32 v10, {L_MISC + 16}\ns_lshl_b64 exec, 1, 63")
    e.ds("dw", "ds_write_b32 v10, v11")
    e("s_mov_b64 exec, -1")
    e.wait(ds="*")


def conv_final(e):
    e(f"""
    s_lshl_b32 s{T1}, s{S_WAVE}, 10
    s_add_u32 s{T1}, s{T1}, {L_P}
    v_add_u32 v2, s{T1}, v9
    v_mov_b32 v10, {L_MISC + 16}
    """)
    for q in range(4):
        e.ds("cp", f"ds_read_b128 {vr(C_A+4*q,4)}, v2 offset:{q*8192}")
    for ch in range(2):
        e.ds("cp", f"ds_read_b128 {vr(C_B+4*ch,4)}, v8 offset:{ch*2*B_COPY}")
    e.ds("cp", "ds_read_b32 v11, v10")
    e(f"""
    v_bfe_u32 v2, v1, 1, 3
    v_lshlrev_b32 v2, 7, v2
    v_lshl_add_u32 v2, v3, 5, v2
    v_and_b32 v4, 1, v1
    v_lshl_add_u32 v2, v4, 4, v2
    s_lshl_b32 s{T0}, s2, 3
    s_add_u32 s{T0}, s{T0}, s{S_WAVE}
    s_lshl_b32 s{T0}, s{T0}, 10
    s_add_u32 s{T0}, s{T0}, {WS_Y}
    s_lshl_b32 s{T1}, s{S_D}, 16
    s_and_b32 s{T2}, s{S_D}, 0xffff0000
    v_mov_b32 v10, {BOUND2}
    """)
    e.wait(ds="*")
    e("s_barrier")
    for ch in range(2):
        for r in range(4):
            e(f"v_add_f32 v{C_A+8*ch+r}, v{C_A+8*ch+r}, v{C_A+8*ch+4+r}")
            e(f"v_lshlrev_b32 v{C_B+4*ch+3-r}, 16, v{C_B+4*ch+3-r}")
        for r in range(4):
            e(f"v_fmac_f32 v{C_A+8*ch+r}, s{T1+ch}, v{C_B+4*ch+3-r}")
    for r in range(4):
        e(f"v_cvt_pk_bf16_f32 v{12+r}, v{C_A+r}, v{C_A+8+r}")
    e.vm("y", f"buffer_store_dwordx4 v[12:15], v2, {sr(R_WS,4)}, s{T0} offen{SC}")
    e("v_cmp_le_f32 vcc, v11, v10")


W_FR = 16
W_FR2 = 208
N_EARLY = 7


def wfr(blk):
    return W_FR + 4 * blk if blk < N_EARLY else W_FR2 + 4 * (blk - N_EARLY)


def qk(e, j, i):
    e(f"v_mfma_f32_32x32x16_bf16 {vr(S_BUF+16*i,16)}, {vr(kv_regs(j)[0],4)}, {vr(Q_FR+4*i,4)}, 0")


def pv(e, j, i, half):
    e(f"v_smfmac_f32_32x32x32_bf16 {vr(O_ACC+16*i,16)}, {vr(kv_regs(j)[1+half],4)}, {vr(S_BUF+16*i+8*half,8)}, v{V_IDX}")


def p3_setup(e):
    srd(e, R_W, P_WO, 0x80000)
    e(f"""
    s_lshr_b32 s{T0}, s2, 5
    s_lshl_b32 s{T0}, s{T0}, 3
    s_and_b32 s{S_QT}, s2, 7
    s_add_u32 s{S_QT}, s{S_QT}, s{T0}
    s_bfe_u32 s{S_NQ}, s2, 0x20003
    s_lshr_b32 s{T3}, s{S_WAVE}, 2
    s_lshl_b32 s{T1}, s{T3}, 18
    s_lshl_b32 s{T2}, s{S_W4}, 6
    s_add_u32 s{T1}, s{T1}, s{T2}
    s_lshl_b32 s{T2}, s{S_NQ}, 8
    s_add_u32 s{T1}, s{T1}, s{T2}
    v_lshrrev_b32 v4, 2, v1
    v_lshlrev_b32 v4, 10, v4
    v_and_b32 v3, 3, v1
    v_lshl_add_u32 v4, v3, 4, v4
    v_add_u32 v4, s{T1}, v4
    s_lshl_b32 s{S_MX}, s{S_WAVE}, 14
    v_lshrrev_b32 v5, 5, v1
    v_bfe_u32 v6, v1, 2, 2
    v_lshl_add_u32 v5, v5, 2, v6
    v_lshlrev_b32 v5, 6, v5
    v_bfe_u32 v6, v1, 4, 1
    v_xor_b32 v6, s{T3}, v6
    v_lshl_add_u32 v5, v6, 5, v5
    v_and_b32 v6, 1, v1
    v_lshl_add_u32 v5, v6, 4, v5
    v_bfe_u32 v6, v1, 1, 1
    v_lshl_add_u32 v5, v6, 3, v5
    v_add_u32 v5, s{S_MX}, v5
    """)


def wo_dma(e, blk):
    if blk % 4 == 0:
        e(f"s_add_u32 m0, s{S_MX}, {L_WO + blk*1024}")
    e(f"s_mov_b32 s{T0}, {blk*16384 - (blk%4)*1024}")
    e.vm("wo", f"buffer_load_dwordx4 v4, {sr(R_W,4)}, s{T0} offen offset:{(blk%4)*1024} lds")


def wo_frag(e, blk):
    for j in range(2):
        e.ds("wf", f"ds_read_b64_tr_b16 {vr(wfr(blk)+2*j,2)}, v5 offset:{L_WO + blk*1024 + j*512}")


def zero_o(e):
    for i in range(4):
        e(f"v_mov_b32 v{12+i}, 0")
    for i in range(4):
        e(f"v_mfma_f32_32x32x16_bf16 {vr(O_ACC+16*i,16)}, v[12:15], v[12:15], 0")


def attn_steps(e, j0, j1, extra=None):
    tiles = [(j, i) for j in range(j0, j1) for i in range(4)]
    e.wait(vm=f"kv{j0}")
    qk(e, j0, 0)
    for t, (j, i) in enumerate(tiles):
        s = S_BUF + 16 * i
        ex = [f"v_exp_f32 v{s+r}, v{s+r}" for r in range(16)]
        nxt = tiles[t + 1] if t + 1 < len(tiles) else None
        prv = tiles[t - 1] if t else None
        if nxt:
            if nxt[1] == 0:
                e.wait(vm=f"kv{nxt[0]}")
            qk(e, *nxt)
        e("\n".join(ex[0:4]))
        if prv:
            pv(e, prv[0], prv[1], 1)
        e("\n".join(ex[4:8]))
        if i == 0 and j > j0 and j - 1 + NS < j1:
            kv_load(e, j - 1 + NS)
        e("\n".join(ex[8:10]))
        pv(e, j, i, 0)
        e("\n".join(ex[10:14]))
        if extra:
            extra(j, i)
        e("\n".join(ex[14:16]))
    pv(e, j1 - 1, 3, 1)


def attn_fast(e):
    def extra(j, i):
        if (j, i) == (1, 0):
            p3_setup(e)
        if (j, i) == (3, 3):
            flag_store(e, FL_Y, 2, 4, 12)
        if 2 <= j <= 5:
            wo_dma(e, (j - 2) * 4 + i)
        if j in (10, 11) and (j - 10) * 4 + i < N_EARLY:
            wo_frag(e, (j - 10) * 4 + i)
    attn_steps(e, 1, 16, extra)


def attn_slow(e):
    M = 44
    p3_setup(e)
    for blk in range(16):
        wo_dma(e, blk)
    for i in range(4):
        e(f"v_mov_b32 v{M+i}, 0xff7fffff")
    e.wait(vm="*")
    zero_o(e)
    flag_store(e, FL_Y, 2, 4, 12)
    for blk in range(N_EARLY):
        wo_frag(e, blk)
    e(f"""
    s_mul_i32 s{T2}, s{S_WAVE}, {TILE}
    s_mul_i32 s{T0}, s{S_HP}, {16*BLK}
    s_add_u32 s{T2}, s{T2}, s{T0}
    s_mov_b32 s{T3}, 0
    L_slowloop:
    """)
    kv_load(e, 0, f"s{T2}")
    e.wait(vm="*")
    for i in range(4):
        qk(e, 0, i)
    for i in range(4):
        s, o = S_BUF + 16 * i, O_ACC + 16 * i
        e(f"v_max3_f32 v10, v{s}, v{s+1}, v{M+i}")
        for r in range(2, 16, 2):
            e(f"v_max3_f32 v10, v{s+r}, v{s+r+1}, v10")
        e(f"""
        v_mov_b32 v11, v10
        v_permlane32_swap_b32 v10, v11
        v_max_f32 v10, v10, v11
        v_sub_f32 v11, v{M+i}, v10
        v_exp_f32 v11, v11
        v_mov_b32 v{M+i}, v10
        """)
        for r in range(16):
            e(f"v_sub_f32 v{s+r}, v{s+r}, v10\nv_exp_f32 v{s+r}, v{s+r}")
        for r in range(16):
            e(f"v_mul_f32 v{o+r}, v{o+r}, v11")
        pv(e, 0, i, 0)
        pv(e, 0, i, 1)
    e(f"""
    s_add_u32 s{T2}, s{T2}, {BLK}
    s_add_u32 s{T3}, s{T3}, 1
    s_cmp_lt_u32 s{T3}, 16
    s_nop 7
    s_nop 7
    s_cbranch_scc1 L_slowloop
    """)


def attn_combine(e, slow):
    M, R = 44, S_BUF
    e(f"v_add_u32 v12, s{S_MX}, v{V_KO}\nv_lshl_add_u32 v13, v1, 2, s{S_MX}")
    e.wait(ds="wf")
    order = (1, 2, 3)
    for i in order:
        o, off = O_ACC + 16 * i, (i - 1) * 2304
        e.ds("xw", f"ds_write_b128 v12, {vr(o,4)} offset:{off}")
        e.ds("xw", f"ds_write_b128 v12, {vr(o+4,4)} offset:{off+1024}")
        e.ds("xw", f"ds_write_b32 v13, v{o+8} offset:{off+2048}")
    if slow:
        e(f"s_lshl_b32 s{T0}, s{S_WAVE}, 10\ns_add_u32 s{T0}, s{T0}, {L_O}\nv_lshl_add_u32 v14, v1, 2, s{T0}")
        for i in order:
            e.ds("xw", f"ds_write_b32 v14, v{M+i} offset:{(i-1)*256}")
    e(f"s_and_b32 s{T1}, s{S_WAVE}, 4")
    for i in order:
        e(f"""
        s_sub_u32 s{T0}, s{S_W4}, {i}
        s_and_b32 s{T0}, s{T0}, 3
        s_add_u32 s{T0}, s{T0}, s{T1}
        s_lshl_b32 s{T2}, s{T0}, 14
        v_add_u32 v{48+i}, s{T2}, v{V_KO}
        v_lshl_add_u32 v{52+i}, v1, 2, s{T2}
        """)
        if slow:
            e(f"s_lshl_b32 s{T0}, s{T0}, 10\ns_add_u32 s{T0}, s{T0}, {L_O}\nv_lshl_add_u32 v{56+i}, v1, 2, s{T0}")
    e(f"""
    s_lshl_b32 s{T0}, s{S_J}, 2
    s_add_u32 s{T0}, s{T0}, s{S_W4}
    s_lshl_b32 s{T0}, s{T0}, 4
    s_add_u32 s{T0}, s{T0}, s{S_HP}
    s_lshl_b32 s{T0}, s{T0}, 1
    s_lshr_b32 s{T1}, s{S_WAVE}, 2
    s_add_u32 s{T0}, s{T0}, s{T1}
    s_lshl_b32 s{T0}, s{T0}, 10
    s_add_u32 s{T0}, s{T0}, {WS_OF}
    """)
    e.wait(ds="xw")
    e("s_barrier")
    for n, i in enumerate(order):
        off = (i - 1) * 2304
        e.ds(f"xr{n}", f"ds_read_b128 {vr(R+12*n,4)}, v{48+i} offset:{off}")
        e.ds(f"xr{n}", f"ds_read_b128 {vr(R+12*n+4,4)}, v{48+i} offset:{off+1024}")
        e.ds(f"xr{n}", f"ds_read_b32 v{R+12*n+8}, v{52+i} offset:{off+2048}")
        if slow:
            e.ds(f"xr{n}", f"ds_read_b32 v{R+12*n+9}, v{56+i} offset:{(i-1)*256}")
    if slow:
        e.wait(ds="*")
        e("s_barrier")
        e(f"v_max3_f32 v10, v{M}, v{R+9}, v{R+21}\nv_max_f32 v10, v10, v{R+33}")
        for src, base in ((M, O_ACC), (R + 9, R), (R + 21, R + 12), (R + 33, R + 24)):
            e(f"v_sub_f32 v11, v{src}, v10\nv_exp_f32 v11, v11")
            for r in range(9):
                e(f"v_mul_f32 v{base+r}, v{base+r}, v11")
    for n in range(3):
        e.wait(ds=f"xr{n}")
        e(f"v_add_f32 v{O_ACC+8}, v{O_ACC+8}, v{R+12*n+8}")
        for r in range(0, 8, 2):
            e(f"v_pk_add_f32 {vr(O_ACC+r,2)}, {vr(O_ACC+r,2)}, {vr(R+12*n+r,2)}")
    e(f"v_rcp_f32 v{O_ACC+8}, v{O_ACC+8}")
    for r in range(0, 8, 2):
        e(f"v_pk_mul_f32 {vr(O_ACC+r,2)}, {vr(O_ACC+r,2)}, {vr(O_ACC+8,2)} op_sel_hi:[1,0]")
    for r in range(4):
        e(f"v_cvt_pk_bf16_f32 v{O_ACC+12+r}, v{O_ACC+2*r}, v{O_ACC+2*r+1}")
    e.vm("o", f"buffer_store_dwordx4 {vr(O_ACC+12,4)}, v{V_KO}, {sr(R_WS,4)}, s{T0} offen{SC}")


B_X, B_Y, B_G, V_OUT, B_T = 96, 100, 104, 105, 112
O_FR, P_ACC = 128, 80


def tail(e):
    e(f"""
    v_lshlrev_b32 v9, 6, v1
    s_lshl_b32 s{T2}, s{S_NQ}, 12
    s_lshr_b32 s{T3}, s{S_QT}, 3
    s_lshl_b32 s{T3}, s{T3}, 2
    s_add_u32 s{T2}, s{T2}, s{T3}
    s_add_u32 s{S_CG}, s{T2}, {FL_Y}
    v_lshrrev_b32 v10, 2, v1
    v_lshlrev_b32 v10, 10, v10
    v_and_b32 v11, 3, v1
    v_lshl_add_u32 v10, v11, 3, v10
    s_lshr_b32 s{T3}, s{S_QT}, 2
    s_lshl_b32 s{S_MW}, s{T3}, 6
    s_add_u32 s{S_TB}, s{S_MW}, {FL_KV}
    """)
    yl = [f"buffer_load_dword v14, v9, {sr(R_WS,4)}, s{S_CG} offen{SC}", f"buffer_load_dword v15, v10, {sr(R_WS,4)}, s{S_TB} offen{SC}"]
    for ld in yl:
        e.vm("yf", ld)
    srd(e, R_X, P_X, 0x200000)
    srd(e, R_OUT, P_OUT, 0x200000)
    e(f"""
    s_lshl_b32 s{T1}, s{S_W4}, 1
    s_lshr_b32 s{T2}, s{S_WAVE}, 2
    s_add_u32 s{T1}, s{T1}, s{T2}
    s_lshl_b32 s{T2}, s{S_NQ}, 3
    s_add_u32 s{S_ROW}, s{T1}, s{T2}
    v_and_b32 v8, 31, v1
    v_lshrrev_b32 v6, 5, v1
    v_lshlrev_b32 v{V_OUT}, 10, v8
    v_lshl_add_u32 v{V_OUT}, v6, 4, v{V_OUT}
    s_lshl_b32 s{T2}, s{S_QT}, 15
    s_lshl_b32 s{T3}, s{S_ROW}, 5
    s_add_u32 s{T2}, s{T2}, s{T3}
    v_add_u32 v{V_OUT}, s{T2}, v{V_OUT}
    """)
    e.vm("b", f"buffer_load_dwordx4 {vr(B_X,4)}, v{V_OUT}, {sr(R_X,4)}, 0 offen")
    for blk in range(N_EARLY, 16):
        wo_frag(e, blk)
    e.wait(vm="o")
    flag_store(e, FL_O, S_BLK, 4, 12)
    stamp(e, 13)
    poll(e, "L_polly", yl, [14, 15], first="yf")
    e(f"""
    v_bfe_u32 v7, v1, 3, 2
    v_lshlrev_b32 v7, 5, v7
    v_and_b32 v9, 1, v1
    v_lshl_add_u32 v7, v9, 4, v7
    v_bfe_u32 v9, v1, 1, 2
    v_lshl_add_u32 v7, v9, 2, v7
    v_lshl_add_u32 v7, v6, 15, v7
    s_lshl_b32 s{T2}, s{S_ROW}, 16
    s_lshl_b32 s{T3}, s{S_QT}, 7
    s_add_u32 s{T2}, s{T2}, s{T3}
    s_add_u32 s{T2}, s{T2}, {WS_Y}
    """)
    for jj in range(4):
        e.vm("b", f"buffer_load_dword v{B_Y+jj}, v7, {sr(R_WS,4)}, s{T2} offen{SC}")
        if jj < 3:
            e(f"s_add_u32 s{T2}, s{T2}, 8192")
    e(f"v_lshlrev_b32 v8, 2, v8\ns_add_u32 s{T3}, s{T3}, {WS_G}")
    e.vm("b", f"buffer_load_dword v{B_G}, v8, {sr(R_WS,4)}, s{T3} offen{SC}")
    e(f"""
    v_and_b32 v9, 2, v1
    v_lshlrev_b32 v9, 9, v9
    v_and_b32 v10, 1, v1
    v_lshl_add_u32 v9, v10, 4, v9
    s_lshl_b32 s{T2}, s{S_WAVE}, 11
    s_add_u32 s{T2}, s{T2}, s{S_MW}
    s_and_b32 s{T3}, s{S_QT}, 3
    s_lshl_b32 s{T3}, s{T3}, 2
    s_add_u32 s{T2}, s{T2}, s{T3}
    s_add_u32 s{T2}, s{T2}, {FL_O}
    s_lshl_b32 s{T3}, s{S_WAVE}, 12
    s_add_u32 m0, s{T3}, {L_O}
    s_lshl_b32 s{S_MW}, s{S_QT}, 15
    s_add_u32 s{T3}, s{T3}, s{S_MW}
    s_add_u32 s{T3}, s{T3}, {WS_OF}
    """)
    stamp(e, 14)
    poll(e, "L_pollo", [f"buffer_load_dword v12, v9, {sr(R_WS,4)}, s{T2} offen{SC}"], [12])
    for i in range(4):
        e.vm("o", f"buffer_load_dwordx4 v{V_KO}, {sr(R_WS,4)}, s{T3} offen offset:{i*1024}{SC} lds")
    stamp(e, 15)
    e(f"v_sub_f32 v10, 1.0, v{B_G}")
    for i in range(4):
        e(f"""
        v_lshlrev_b32 v{B_T+2*i}, 16, v{B_X+i}
        v_and_b32 v{B_T+2*i+1}, 0xffff0000, v{B_X+i}
        v_lshlrev_b32 v12, 16, v{B_Y+i}
        v_and_b32 v13, 0xffff0000, v{B_Y+i}
        v_pk_mul_f32 {vr(B_T+2*i,2)}, {vr(B_T+2*i,2)}, v[12:13]
        v_pk_mul_f32 {vr(B_T+2*i,2)}, {vr(B_T+2*i,2)}, v[10:11] op_sel_hi:[1,0]
        """)
    e(f"""
    s_lshr_b32 s{T1}, s{S_WAVE}, 2
    s_lshl_b32 s{T1}, s{T1}, 14
    s_add_u32 s{T1}, s{T1}, {L_O}
    v_add_u32 v6, s{T1}, v{V_KO}
    v_add_u32 v7, s{S_MX}, v{V_KO}
    v_xor_b32 v8, 0x10000, v7
    """)
    e.wait(vm="o", ds="*")
    e("s_barrier")
    stamp(e, 16)
    for blk in range(8):
        e.ds(f"of{blk}", f"ds_read_b128 {vr(O_FR+4*blk,4)}, v6 offset:{blk*1024}")
    for blk in range(16):
        e.wait(ds=f"of{blk}")
        c = "0" if blk == 0 else vr(P_ACC, 16)
        e(f"v_mfma_f32_32x32x16_bf16 {vr(P_ACC,16)}, {vr(wfr(blk),4)}, {vr(O_FR+4*blk,4)}, {c}")
        if blk + 8 < 16:
            e.ds(f"of{blk+8}", f"ds_read_b128 {vr(O_FR+4*(blk+8),4)}, v6 offset:{(blk+8)*1024}")
    e(f"s_or_b32 s{T0}, s2, s{S_WAVE}\ns_cbranch_scc1 L_nogen\nv_mov_b32 v12, s{S_TAG}\nv_mov_b32 v13, {WS_GEN}\ns_mov_b64 exec, 1")
    e(f"buffer_store_dword v12, v13, {sr(R_WS,4)}, 0 offen sc0 sc1\ns_mov_b64 exec, -1\nL_nogen:")
    e.ds("pw", f"ds_write_b128 v7, {vr(P_ACC+8,4)} offset:8192")
    e.ds("pw", f"ds_write_b128 v7, {vr(P_ACC+12,4)} offset:9216")
    e.wait(ds="pw")
    e("s_barrier")
    e.ds("pr", f"ds_read_b128 {vr(O_FR,4)}, v8 offset:8192")
    e.ds("pr", f"ds_read_b128 {vr(O_FR+4,4)}, v8 offset:9216")
    e.wait(ds="pr")
    for r in range(0, 8, 2):
        e(f"v_pk_add_f32 {vr(P_ACC+r,2)}, {vr(P_ACC+r,2)}, {vr(O_FR+r,2)}")
    for r in range(0, 8, 2):
        e(f"v_pk_fma_f32 {vr(P_ACC+r,2)}, {vr(P_ACC+r,2)}, {vr(B_G,2)}, {vr(B_T+r,2)} op_sel_hi:[1,0,1]")
    for r in range(4):
        e(f"v_cvt_pk_bf16_f32 v{O_FR+r}, v{P_ACC+2*r}, v{P_ACC+2*r+1}")
    e.vm("st", f"buffer_store_dwordx4 {vr(O_FR,4)}, v{V_OUT}, {sr(R_OUT,4)}, 0 offen")
    stamp_flush(e, 17)


def kernel():
    e = E()
    prologue(e)
    stamp(e, 0)
    e(f"s_cmp_ge_u32 s{S_WAVE}, 4\ns_cbranch_scc1 L_vrole")
    v = e.fork()
    prepass_setup(e)
    stamp(e, 1)
    stamp(e, 2)
    stamp(e, 3)
    gemm_qk(e)
    stamp(e, 8)
    epi_qk(e)
    e.wait(vm="ust")
    flag_store(e, FL_U, 2, 4, 46)
    e.wait(ds="*")
    e("s_barrier")
    stamp(e, 9)
    attn_setup(e)
    zero_o(e)
    e.wait(ds="*")
    attn_steps(e, 0, 1, lambda j, i: conv_u_flag_load(e) if i == 1 else None)
    e.wait(vm="st")
    flag_store(e, FL_KV, S_BLK, 8, V_MK - 1)
    conv_u_loads(e)
    conv_addresses(e)
    e.wait(vm="u")
    e("s_waitcnt lgkmcnt(0)\ns_barrier")
    e.dsq = []
    stamp(e, 18)
    conv_mfma(e)
    e("s_barrier")
    for j in (1, 2, 3):
        kv_load(e, j)
    e("s_branch L_join\nL_vrole:")
    loader_setup(v)
    gemm_v(v)
    stamp(v, 8)
    epi_v(v)
    v.wait(ds="*")
    v("s_barrier")
    stamp(v, 9)
    attn_setup(v)
    conv_addresses(v)
    zero_o(v)
    v.wait(vm="*")
    flag_store(v, FL_KV, S_BLK, 8, V_MK - 1)
    v("s_waitcnt lgkmcnt(0)")
    v.dsq = []
    attn_steps(v, 0, 1)
    v("s_barrier")
    stamp(v, 18)
    kv_wait_and_decide(v)
    v("s_barrier\nL_join:")
    j = E()
    j.vmq = [f"kv{k}" for k in (1, 2, 3) for _ in range(3)]
    assert e.vmq[-9:] == j.vmq and v.vmq[-9:] == j.vmq
    stamp(j, 10)
    conv_final(j)
    j("s_cbranch_vccz L_slow" if not OPT.get("slow") else "s_branch L_slow")
    s = j.fork()
    stamp(j, 11)
    attn_fast(j)
    stamp(j, 12)
    attn_combine(j, False)
    j("L_tail:")
    j.vmq = ["o"]
    tail(j)
    j("L_end:\ns_endpgm\nL_slow:")
    attn_slow(s)
    attn_combine(s, True)
    s("s_branch L_tail")
    return e.l + v.l + j.l + s.l


def build():
    hdr = open(__file__.replace("gen/gen_v3.py", "cdna_kernels/" + NAME.replace("_kernel", ".s.ref")).replace("gen_v3.py", "../cdna_kernels/" + NAME.replace("_kernel", ".s.ref"))).read()
    head = hdr[:hdr.index("; @launch")]
    out = [head + f"; @launch grid=(256,1,1) block=(512,1,1) lds={LDS}", '.amdgcn_target "amdgcn-amd-amdhsa--gfx950"', ".text",
           f".globl {NAME}", ".p2align 8", f".type {NAME},@function", f"{NAME}:"]
    out += pad(kernel())
    out.append(f""".section .rodata,"a"
.p2align 6
.amdhsa_kernel {NAME}
  .amdhsa_next_free_vgpr 256
  .amdhsa_next_free_sgpr 96
  .amdhsa_accum_offset 256
  .amdhsa_group_segment_fixed_size 0
  .amdhsa_kernarg_size 104
  .amdhsa_user_sgpr_count 2
  .amdhsa_user_sgpr_kernarg_segment_ptr 1
  .amdhsa_system_sgpr_workgroup_id_x 1
  .amdhsa_float_denorm_mode_32 3
.end_amdhsa_kernel""")
    return "\n".join(out) + "\n"


if __name__ == "__main__":
    for a in sys.argv[2:]:
        OPT[a] = True
    open(sys.argv[1], "w").write(build())
```

```python
import sys
from asmlib import E, vr, sr, pad, check_seq

NAME = "gated_mix__mha_block__ssm_conv_h3__prompt_kernel"
OPT = {}

TILE = 2176
BLK = 8 * TILE
WS_KV = 0x0000000
WS_U = 0x0600000
WS_Y = 0x0A00000
WS_OF = 0x0C00000
WS_G = 0x0E00000
WS_FL = 0x0E10000
FL_U, FL_KV, FL_Y = WS_FL, WS_FL + 0x8000, WS_FL + 0x10000
WS_GEN = WS_FL + 0x50000
WS_ST = 0x0F00000
WS_SIZE = 0x1000000
OOB = 0x7F000000

QSCALE = 0x3EB8AA3B
NLOG2E = 0xBFB8AA3B
BOUND2 = 0x44610000
SPIN_MAX = 1 << 18

P_X, P_W, P_WO, P_K, P_V, P_SH, P_H, P_D, P_GW, P_OUT, P_WS = 16, 18, 20, 24, 26, 28, 30, 32, 34, 36, 40
S_WAVE, S_HP, S_J, S_CG, S_TB = 3, 4, 5, 6, 7
T0, T1, T2, T3 = 8, 9, 10, 11
S_MX, S_MW, S_ROW, S_W4 = 12, 13, 14, 15
S_D, S_TAG = 42, 43
R_X, R_W, R_K, R_V, R_SH, R_GW, R_WS, R_H, R_OUT = 44, 48, 52, 56, 60, 64, 68, 72, 76
S_STEP = 52
S_BLK, S_ROT, S_SPIN, S_QT, S_NQ = 80, 81, 82, 84, 85

SLOT = 28672
L_Z = 4 * SLOT
L_PRE, L_A, A_COPY = L_Z, L_Z, 4160
L_STG = L_Z + 128 * 144
L_Q = L_Z + 8 * A_COPY
L_MISC = L_Q + 8192
L_B, B_COPY = 0, 4576
L_KVO = SLOT
L_P = 2 * SLOT
L_WO, L_O = 0, 131072
LDS = 163840
XCH = 2560

SC = " sc1"


def srd(e, r, p, size):
    e(f"s_mov_b32 s{r}, s{p}\ns_mov_b32 s{r+1}, s{p+1}\ns_mov_b32 s{r+2}, {size}\ns_mov_b32 s{r+3}, 0x20000")


def stamp(e, i):
    if OPT.get("stamp"):
        e(f"s_memrealtime s[86:87]\ns_waitcnt lgkmcnt(0)\nv_writelane_b32 v255, s86, {i}")
        e(f"s_memtime s[86:87]\ns_waitcnt lgkmcnt(0)\nv_writelane_b32 v255, s86, {32+i}")
        e.dsq = []


def stamp_flush(e, n):
    if OPT.get("stamp"):
        e.wait(vm="*")
        stamp(e, n)
        e(f"""
        s_lshl_b32 s86, s2, 3
        s_add_u32 s86, s86, s{S_WAVE}
        s_lshl_b32 s86, s86, 8
        s_add_u32 s86, s86, {WS_ST}
        v_lshlrev_b32 v11, 2, v1
        buffer_store_dword v255, v11, {sr(R_WS,4)}, s86 offen
        """)


def wave_reduce(e, op, regs):
    for ctl in ("row_shr:1 row_mask:0xf", "row_shr:2 row_mask:0xf", "row_shr:4 row_mask:0xf", "row_shr:8 row_mask:0xf",
                "row_bcast:15 row_mask:0xa", "row_bcast:31 row_mask:0xc"):
        for r in regs:
            e(f"{op}_dpp v{r}, v{r}, v{r} {ctl} bank_mask:0xf")


def poll(e, label, loads, words, first=None):
    e(f"s_mov_b32 s{S_SPIN}, {SPIN_MAX}")
    if first:
        e.wait(vm=first)
        e(f"s_branch {label}_chk")
    e(f"{label}:")
    for ld in loads:
        e(ld)
    e("s_waitcnt vmcnt(0)")
    if first:
        e(f"{label}_chk:")
    else:
        e.vmq = []
    e(f"v_cmp_ne_u32 vcc, s{S_TAG}, v{words[0]}")
    for w in words[1:]:
        e(f"v_cmp_ne_u32 s[{T0}:{T1}], s{S_TAG}, v{w}\ns_or_b64 vcc, vcc, s[{T0}:{T1}]")
    e(f"""
    s_cbranch_vccz {label}_ok
    s_sub_u32 s{S_SPIN}, s{S_SPIN}, 1
    s_cbranch_scc0 {label}
    {label}_ok:
    """)


def flag_store(e, base, idx_sreg, data, per_wave=False, width=4, only=None):
    if only is not None:
        e(f"s_cmp_lg_u32 s{S_WAVE}, {only}\ns_cbranch_scc1 L_nofl{base & 0xfffff:x}")
    if per_wave:
        e(f"s_lshl_b32 s{T0}, s{idx_sreg}, 3\ns_add_u32 s{T0}, s{T0}, s{S_WAVE}\ns_lshl_b32 s{T0}, s{T0}, 7")
    else:
        e(f"s_lshl_b32 s{T0}, s{idx_sreg}, 7")
    e(f"""
    s_add_u32 s{T0}, s{T0}, {base}
    v_mov_b32 v{data}, s{S_TAG}
    v_mov_b32 v2, 0
    s_lshl_b64 exec, 1, 63
    """)
    op = "dword" if width == 4 else "dwordx2"
    st = f"buffer_store_{op} {vr(data, width // 4)}, v2, {sr(R_WS,4)}, s{T0} offen{SC}"
    if only is None:
        e.vm("fl", st)
    else:
        assert not e.vmq, e.vmq
        e(st)
    e("s_mov_b64 exec, -1")
    if only is not None:
        e(f"L_nofl{base & 0xfffff:x}:")


def make_tag(e):
    e.wait(vm="gen")
    e(f"""
    v_readfirstlane_b32 s{S_TAG}, v254
    s_mul_i32 s{S_TAG}, s{S_TAG}, 0x9e3779b1
    s_add_u32 s{S_TAG}, s{S_TAG}, 0x7f4a7c15
    """)


def prologue(e):
    e(f"""
    s_cmp_ge_u32 s2, 256
    s_cbranch_scc1 L_end
    s_load_dwordx16 s[16:31], s[0:1], 0
    s_load_dwordx8 s[32:39], s[0:1], 64
    s_load_dwordx2 s[40:41], s[0:1], 96
    v_lshrrev_b32 v1, 6, v0
    v_readfirstlane_b32 s{S_WAVE}, v1
    v_and_b32 v1, 63, v0
    s_bfe_u32 s{T0}, s2, 0x20001
    s_bfe_u32 s{T1}, s2, 0x20003
    s_lshl_b32 s{S_J}, s{T0}, 2
    s_add_u32 s{S_J}, s{S_J}, s{T1}
    s_and_b32 s{T0}, s2, 1
    s_lshr_b32 s{T2}, s2, 5
    s_lshl_b32 s{S_HP}, s{T0}, 3
    s_add_u32 s{S_HP}, s{S_HP}, s{T2}
    s_lshl_b32 s{T1}, s{T1}, 1
    s_add_u32 s{S_ROT}, s{T2}, s{T1}
    s_lshl_b32 s{S_BLK}, s{S_HP}, 4
    s_add_u32 s{S_BLK}, s{S_BLK}, s{S_J}
    s_and_b32 s{S_CG}, s2, 7
    s_lshr_b32 s{S_TB}, s2, 3
    s_and_b32 s{S_W4}, s{S_WAVE}, 3
    v_mov_b32 v2, {WS_GEN}
    """)
    if OPT.get("norot"):
        e(f"s_mov_b32 s{S_ROT}, 0")
    if OPT.get("rot2"):
        e(f"s_and_b32 s{S_ROT}, s{S_ROT}, 1\ns_lshl_b32 s{S_ROT}, s{S_ROT}, 2")


V_XD, V_WD = 4, 3
V_ADR = 128
ACC0, ACC1 = 96, 112
FR = 144


def frag_addresses(e):
    e(f"""
    v_and_b32 v56, 31, v1
    v_lshrrev_b32 v57, 5, v1
    v_bfe_u32 v58, v1, 1, 3
    v_xor_b32 v58, v58, v57
    v_lshlrev_b32 v58, 4, v58
    v_lshl_add_u32 v58, v56, 7, v58
    s_lshl_b32 s{T0}, s{S_W4}, 12
    v_add_u32 v{V_ADR}, s{T0}, v58
    v_xor_b32 v{V_ADR+1}, 32, v{V_ADR}
    v_xor_b32 v{V_ADR+2}, 64, v{V_ADR}
    v_xor_b32 v{V_ADR+3}, 0x60, v{V_ADR}
    v_bfe_u32 v58, v1, 2, 2
    v_lshl_add_u32 v58, v57, 3, v58
    v_lshlrev_b32 v58, 6, v58
    v_bfe_u32 v59, v1, 4, 1
    v_lshl_add_u32 v58, v59, 5, v58
    v_and_b32 v59, 3, v1
    v_lshl_add_u32 v58, v59, 3, v58
    v_add_u32 v{V_ADR+4}, 0x4000, v58
    """)
    for i in range(5):
        e(f"v_add_u32 v{V_ADR+5+i}, {2*SLOT}, v{V_ADR+i}")


def chunk_dma_steps(e, c):
    slot = (c % 4) * SLOT

    def x(i):
        if i == 0:
            e(f"s_add_u32 s{T1}, s{S_ROT}, {c}\ns_and_b32 s{T1}, s{T1}, 7\ns_add_u32 m0, s{S_MX}, {slot}\ns_lshl_b32 s{T0}, s{T1}, 7")
        e.vm(f"c{c}", f"buffer_load_dwordx4 v{V_XD+i}, {sr(R_X,4)}, s{T0} offen offset:{i*1024} lds")

    def w(part):
        if part == 0:
            e(f"s_add_u32 m0, s{S_MW}, {slot}\ns_mul_i32 s{T0}, s{T1}, 196608")
        e.vm(f"c{c}", f"buffer_load_dwordx4 v{V_WD}, {sr(R_W,4)}, s{T0} offen offset:{part*1024} lds")

    return [lambda i=i: x(i) for i in range(4)] + [lambda p=p: w(p) for p in range(3)]


def frag_reads(e, c, ks, parts, f):
    a, imm = V_ADR + 5 * ((c % 4) // 2), (c % 2) * SLOT
    e.ds(f"r{c}_{ks}", f"ds_read_b128 {vr(f,4)}, v{a+ks} offset:{imm}")
    for n, part in enumerate(parts):
        for j in range(2):
            e.ds(f"r{c}_{ks}", f"ds_read_b64_tr_b16 {vr(f+4+4*n+2*j,2)}, v{a+4} offset:{imm + (ks*3+part)*1024 + j*256}")


KR, VR, SH, GX, GW = 8, 20, 32, 36, 44
KF, VF, WF, U_, PK = 192, 216, 234, 60, 192


def prepass_setup(e):
    e(f"""
    s_lshl_b32 s{T0}, s{S_TB}, 2
    s_add_u32 s{T0}, s{T0}, s{S_WAVE}
    s_lshl_b32 s{T0}, s{T0}, 14
    s_lshl_b32 s{T1}, s{S_CG}, 7
    s_add_u32 s{T0}, s{T0}, s{T1}
    v_lshrrev_b32 v48, 3, v1
    v_and_b32 v49, 7, v1
    v_lshlrev_b32 v49, 4, v49
    v_lshl_add_u32 v4, v48, 10, v49
    v_add_u32 v4, s{T0}, v4
    v_add_u32 v3, 0xffffe000, v4
    v_add_u32 v5, 0x2000, v4
    v_and_b32 v53, 31, v1
    s_lshl_b32 s{T1}, s{S_CG}, 9
    v_lshl_add_u32 v6, v53, 4, s{T1}
    v_lshlrev_b32 v7, 4, v1
    s_lshl_b32 s{S_ROW}, s{S_J}, 4
    s_add_u32 s{S_ROW}, s{S_ROW}, s{S_HP}
    s_lshl_b32 s{S_ROW}, s{S_ROW}, 2
    s_add_u32 s{S_ROW}, s{S_ROW}, s{S_WAVE}
    s_mul_i32 s{S_MX}, s{S_WAVE}, 6144
    s_add_u32 s{S_MX}, s{S_MX}, {L_STG}
    v_lshrrev_b32 v54, 5, v0
    v_mul_u32_u24 v50, 288, v53
    v_lshlrev_b32 v55, 4, v54
    v_sub_u32 v50, v50, v55
    v_add_u32 v50, {L_PRE + 112}, v50
    v_and_b32 v54, 1, v54
    v_lshlrev_b32 v53, 2, v53
    v_lshl_add_u32 v53, v54, 10, v53
    v_add_u32 v53, s{S_MX}, v53
    v_lshrrev_b32 v48, 3, v0
    v_mul_u32_u24 v51, 144, v48
    v_add_u32 v51, v51, v49
    v_add_u32 v51, {L_PRE}, v51
    v_lshl_add_u32 v52, v48, 13, v49
    s_lshl_b32 s{S_MW}, s{S_CG}, 19
    s_lshl_b32 s{T3}, s{S_TB}, 7
    s_sub_u32 s{S_MW}, s{S_MW}, s{T3}
    s_add_u32 s{S_MW}, s{S_MW}, {WS_U + 3968}
    """)
    frag_addresses(e)
    e("s_waitcnt lgkmcnt(0)")
    srd(e, R_K, P_K, 0x200000)
    srd(e, R_V, P_V, 0x200000)
    srd(e, R_SH, P_SH, 4096)
    srd(e, R_X, P_X, 0x200000)
    srd(e, R_GW, P_GW, 1024)
    srd(e, R_WS, P_WS, WS_SIZE)
    e.vm("gen", f"buffer_load_dword v254, v2, {sr(R_WS,4)}, 0 offen sc0 sc1")


def prepass_items(e):
    it = []

    def add(c, cost, fn):
        it.append((c, cost, fn))

    def text(c, lines):
        for t in lines:
            add(c, 1, lambda t=t: e(t))

    for n, r in enumerate((R_K, R_V)):
        for i in range(3):
            def dma(n=n, r=r, i=i):
                e(f"s_add_u32 m0, s{S_MX}, {n*3072 + i*1024}")
                e.vm("pre", f"buffer_load_dwordx4 v{3+i}, {sr(r,4)}, 0 offen lds")
            add(-1, 4, dma)
    add(-1, 3, lambda: e.vm("pre", f"buffer_load_dwordx4 {vr(SH,4)}, v6, {sr(R_SH,4)}, 0 offen"))
    add(-1, 1, lambda: e(f"s_lshl_b32 s{T2}, s{S_ROW}, 11"))
    add(-1, 3, lambda: e.vm("gate", f"buffer_load_dwordx4 {vr(GX,4)}, v7, {sr(R_X,4)}, s{T2} offen"))
    add(-1, 3, lambda: e.vm("gate", f"buffer_load_dwordx4 {vr(GX+4,4)}, v7, {sr(R_X,4)}, s{T2} offen offset:1024"))
    add(-1, 3, lambda: e.vm("gate", f"buffer_load_dwordx4 {vr(GW,4)}, v7, {sr(R_GW,4)}, 0 offen"))
    c0 = -1
    add(c0, 1, lambda: e.wait(vm="pre"))
    for i in range(12):
        add(c0, 1, lambda i=i: e.ds(f"pk{i//4}", f"ds_read_b32 v{KR+i}, v53 offset:{(4+i)*128}"))
        if i == 5:
            for j in range(4):
                if j % 2 == 0:
                    text(c0, [f"v_lshlrev_b32 v{WF+2*j}, 16, v{SH+j//2}", f"v_lshlrev_b32 v{WF+2*j+1}, 16, v{SH+2+j//2}"])
                else:
                    text(c0, [f"v_and_b32 v{WF+2*j}, 0xffff0000, v{SH+j//2}", f"v_and_b32 v{WF+2*j+1}, 0xffff0000, v{SH+2+j//2}"])
    for g in range(3):
        add(c0, 0, lambda g=g: e.wait(ds=f"pk{g}"))
        for i in range(4 * g, 4 * g + 4):
            text(c0, [f"v_lshlrev_b32 v{KF+2*i}, 16, v{KR+i}", f"v_and_b32 v{KF+2*i+1}, 0xffff0000, v{KR+i}"])
        for i in range(3 * g, 3 * g + 3):
            add(c0, 1, lambda i=i: e.ds("pv", f"ds_read_b32 v{VR+i}, v53 offset:{3072 + (7+i)*128}"))
    for j in (3, 2, 1, 0):
        for o in range(9):
            kr = KF + 2 * (o + 3 - j)
            if j == 3:
                text(c0, [f"v_pk_mul_f32 {vr(U_+2*o,2)}, {vr(kr,2)}, {vr(WF+2*j,2)}"])
            else:
                text(c0, [f"v_pk_fma_f32 {vr(U_+2*o,2)}, {vr(kr,2)}, {vr(WF+2*j,2)}, {vr(U_+2*o,2)}"])
    add(c0, 0, lambda: e.wait(ds="pv"))
    for i in range(9):
        text(c0, [f"v_lshlrev_b32 v{VF+2*i}, 16, v{VR+i}", f"v_and_b32 v{VF+2*i+1}, 0xffff0000, v{VR+i}"])
    for o in range(9):
        text(c0, [f"v_pk_mul_f32 {vr(U_+2*o,2)}, {vr(U_+2*o,2)}, {vr(VF+2*o,2)}"])
    for ch in range(2):
        for p in range(2):
            d = PK + 8 * ch + 4 * p
            for q in range(4):
                o = 7 + p - 2 * q
                text(c0, [f"v_cvt_pk_bf16_f32 v{d+q}, v{U_+2*o+ch}, v{U_+2*(o-1)+ch}"])
            add(c0, 2, lambda d=d, p=p, ch=ch: e.ds("pw", f"ds_write_b128 v50, {vr(d,4)} offset:{p*64*144 + ch*144}"))
    add(c0, 0, lambda: e.wait(vm="gate"))
    for i in range(4):
        for r in range(2):
            text(c0, [f"v_dot2_f32_bf16 v{54+r}, v{GX+4*r+i}, v{GW+i}, {'0' if i == 0 else f'v{54+r}'}"])
    add(c0, 0, lambda: wave_reduce(e, "v_add_f32", [54, 55]))
    for op in (f"v_mul_f32 v{{0}}, {NLOG2E}, v{{0}}", "v_exp_f32 v{0}, v{0}", "v_add_f32 v{0}, 1.0, v{0}", "v_rcp_f32 v{0}, v{0}"):
        text(c0, [op.format(54), op.format(55)])
    add(c0, 0, lambda: make_tag(e))
    c1 = 0
    for i in range(4):
        add(c1, 1, lambda i=i: e.ds(f"pr{i}", f"ds_read_b128 {vr(8+4*i,4)}, v51 offset:{i*32*144}"))
    for i in range(4):
        def ust(i=i):
            e.wait(ds=f"pr{i}")
            e(f"s_add_u32 s{T0}, s{S_MW}, {(i%2)*32*8192 + (i//2)*4096}")
            e.vm("ust", f"buffer_store_dwordx4 {vr(8+4*i,4)}, v52, {sr(R_WS,4)}, s{T0} offen{SC}")
        add(c1, 5, ust)

    def gst():
        e(f"s_lshl_b32 s{T2}, s{S_ROW}, 3\ns_add_u32 s{T2}, s{T2}, {WS_G}\nv_mov_b32 v2, 0\ns_lshl_b64 exec, 1, 63")
        e.vm("ust", f"buffer_store_dwordx2 v[54:55], v2, {sr(R_WS,4)}, s{T2} offen{SC}")
        e("s_mov_b64 exec, -1")
    add(c1, 5, gst)

    def poison():
        of_slot(e, T2, False)
        for i in range(4):
            e(f"v_mov_b32 v{24+i}, -1")
        for i in range(2):
            e.vm("ust", f"buffer_store_dwordx4 v[24:27], v7, {sr(R_WS,4)}, s{T2} offen offset:{i*1024}{SC}")
    add(1, 5, poison)
    return it


def of_slot(e, s, with_head):
    e(f"""
    s_lshl_b32 s{s}, s{S_J}, 2
    s_add_u32 s{s}, s{s}, s{S_W4}
    s_lshl_b32 s{s}, s{s}, 4
    s_add_u32 s{s}, s{s}, s{S_HP}
    s_lshl_b32 s{s}, s{s}, 1
    """)
    if with_head:
        e(f"s_lshr_b32 s{T1}, s{S_WAVE}, 2\ns_add_u32 s{s}, s{s}, s{T1}")
    e(f"s_lshl_b32 s{s}, s{s}, 10\ns_add_u32 s{s}, s{s}, {WS_OF}")


def gemm_qk(e):
    items = prepass_items(e)
    while items[0][0] < 0:
        items.pop(0)[2]()
    e.wait(ds="pw")
    stamp(e, 3)

    def fill(c, last):
        b = 100 if last else 5
        while items and items[0][0] <= c and b > 0:
            _, cost, fn = items.pop(0)
            fn()
            b -= cost

    def fr(ks):
        return FR + 12 * ks

    def mm(c, ks, cc, last=False):
        e.wait(ds=f"r{c}_{ks}")
        f = fr(ks)
        first = c == 0 and ks == 0
        e(f"v_mfma_f32_32x32x16_bf16 {vr(ACC0,16)}, {vr(f+4,4)}, {vr(f,4)}, {'0' if first else vr(ACC0,16)}")
        fill(cc, False)
        e(f"v_mfma_f32_32x32x16_bf16 {vr(ACC1,16)}, {vr(f+8,4)}, {vr(f,4)}, {'0' if first else vr(ACC1,16)}")
        fill(cc, last)

    for c in range(8):
        if c == 3:
            e.wait(vm="*")
        if c and OPT.get("d3"):
            e.wait(ds=f"r{c-1}_3")
        e("s_barrier")
        stamp(e, 20 + c)
        if c == 3:
            flag_store(e, FL_U, 2, 8, only=0)
        frag_reads(e, c, 0, (0, 1), fr(0))
        if c:
            mm(c - 1, 2, c)
        frag_reads(e, c, 1, (0, 1), fr(1))
        if c:
            mm(c - 1, 3, c)
        else:
            fill(0, False)
        frag_reads(e, c, 2, (0, 1), fr(2))
        mm(c, 0, c)
        frag_reads(e, c, 3, (0, 1), fr(3))
        mm(c, 1, c, True)
    assert not items
    mm(7, 2, 7)
    mm(7, 3, 7)


def loader_setup(e):
    e(f"""
    v_lshrrev_b32 v36, 3, v1
    v_lshrrev_b32 v37, 4, v1
    v_xor_b32 v37, v37, v1
    v_and_b32 v37, 7, v37
    v_lshlrev_b32 v37, 4, v37
    v_lshl_add_u32 v37, v36, 10, v37
    s_lshl_b32 s{T0}, s{S_J}, 2
    s_add_u32 s{T0}, s{T0}, s{S_W4}
    s_lshl_b32 s{T0}, s{T0}, 15
    v_add_u32 v{V_XD}, s{T0}, v37
    v_xor_b32 v{V_XD+1}, 64, v{V_XD}
    v_add_u32 v{V_XD+2}, {16384-2048}, v{V_XD}
    v_add_u32 v{V_XD+3}, {24576-3072}, v{V_XD+1}
    v_add_u32 v{V_XD+1}, {8192-1024}, v{V_XD+1}
    s_lshl_b32 s{S_MX}, s{S_W4}, 12
    v_bfe_u32 v36, v0, 2, 6
    v_mul_u32_u24 v36, 0xc00, v36
    v_and_b32 v37, 3, v1
    v_lshl_add_u32 v36, v37, 4, v36
    s_lshl_b32 s{T0}, s{S_HP}, 6
    v_add_u32 v{V_WD}, s{T0}, v36
    s_mul_i32 s{S_MW}, s{S_W4}, 3072
    s_add_u32 s{S_MW}, s{S_MW}, 16384
    s_waitcnt lgkmcnt(0)
    """)
    srd(e, R_X, P_X, 0x200000)
    srd(e, R_W, P_W, 0x180000)


def conv_h_steps(e):
    e(f"""
    s_lshr_b32 s{T0}, s{S_W4}, 1
    s_lshl_b32 s{T1}, s2, 1
    s_add_u32 s{T1}, s{T1}, s{T0}
    s_lshl_b32 s{T2}, s{T1}, 12
    s_add_u32 s{R_H}, s{P_H}, s{T2}
    s_addc_u32 s{R_H+1}, s{P_H+1}, 0
    s_mov_b32 s{R_H+2}, 4096
    s_mov_b32 s{R_H+3}, 0x20000
    s_and_b32 s{T0}, s{S_W4}, 1
    s_lshl_b32 s{T0}, s{T0}, 3
    v_lshl_add_u32 v8, v1, 4, s{T0}
    v_lshl_add_u32 v9, v1, 2, s{T0}
    s_mul_i32 s{T2}, s{S_W4}, {2*A_COPY}
    """)
    steps = []
    for cc in range(2):
        def big(i, cc=cc):
            if i == 0:
                e(f"v_add_u32 v10, {4+4*cc}, v8\nv_add_u32 v11, {-60+4*cc}, v9\ns_add_u32 m0, s{T2}, {L_A + cc*A_COPY + 64}")
            e.vm("h", f"buffer_load_dwordx4 v10, {sr(R_H,4)}, 0 offen offset:{i*1024} lds")

        def head(cc=cc):
            e(f"s_add_u32 m0, s{T2}, {L_A + cc*A_COPY}\ns_mov_b64 exec, 0xffff")
            e.vm("h", f"buffer_load_dword v11, {sr(R_H,4)}, 0 offen lds")
            e("s_mov_b64 exec, -1")
        steps += [lambda i=i, big=big: big(i) for i in range(4)] + [head]
    return steps


def conv_u_flag_load(e, text_only=False):
    ld = f"buffer_load_dword v12, v10, {sr(R_WS,4)}, s{S_MW} offen{SC}"
    if text_only:
        return ld
    e(f"""
    v_and_b32 v10, 31, v1
    v_lshlrev_b32 v10, 10, v10
    s_lshr_b32 s{S_MW}, s2, 5
    s_lshl_b32 s{S_MW}, s{S_MW}, 7
    s_add_u32 s{S_MW}, s{S_MW}, {FL_U}
    """)
    e.vm("uf", ld)


def conv_u_loads(e):
    poll(e, "L_pollu", [conv_u_flag_load(e, True)], [12], first="uf")
    e(f"""
    s_mul_i32 s{T2}, s{S_W4}, {B_COPY}
    s_add_u32 m0, s{T2}, {L_B}
    s_lshl_b32 s{T1}, s2, 2
    s_add_u32 s{T1}, s{T1}, s{S_W4}
    s_lshl_b32 s{T1}, s{T1}, 12
    s_add_u32 s{T1}, s{T1}, {WS_U}
    """)
    for i in range(4):
        e.vm("u", f"buffer_load_dwordx4 v{V_KO}, {sr(R_WS,4)}, s{T1} offen offset:{i*1024}{SC} lds")
    e(f"""
    v_lshl_add_u32 v12, v1, 3, s{T2}
    v_mov_b32 v10, 0
    v_mov_b32 v11, 0
    s_lshr_b64 exec, -1, 4
    """)
    e.ds("cz", f"ds_write_b64 v12, v[10:11] offset:{L_B + 4096}")
    e("s_mov_b64 exec, -1")


def gemm_v(e):
    for c in range(2):
        for st in chunk_dma_steps(e, c):
            st()
    srd(e, R_WS, P_WS, WS_SIZE)
    e.vm("gen", f"buffer_load_dword v254, v2, {sr(R_WS,4)}, 0 offen sc0 sc1")
    stamp(e, 1)
    frag_addresses(e)
    stamp(e, 2)
    for c in range(8):
        e.wait(vm=f"c{c}")
        if c == 0:
            stamp(e, 3)
        e("s_barrier")
        stamp(e, 20 + c)
        if OPT.get("d3"):
            steps = chunk_dma_steps(e, c + 3) if c + 3 < 8 else conv_h_steps(e) if c == 5 else []
            per = 2 if c in (0, 5) else 1
            if c == 0:
                steps = chunk_dma_steps(e, 2) + steps
        else:
            steps = chunk_dma_steps(e, c + 2) if c + 2 < 8 else conv_h_steps(e) if c == 6 else []
            per = 2 if c == 6 else 1

        def step():
            for _ in range(per):
                if steps:
                    steps.pop(0)()
        for ks in range(4):
            step()
            frag_reads(e, c, ks, (2,), FR + 8 * ks)
        for ks in range(4):
            e.wait(ds=f"r{c}_{ks}")
            f = FR + 8 * ks
            e(f"v_mfma_f32_32x32x16_bf16 {vr(ACC0,16)}, {vr(f,4)}, {vr(f+4,4)}, {'0' if c + ks == 0 else vr(ACC0,16)}")
            step()
        assert not steps
        if c == 3:
            make_tag(e)


def tile_base(e, s):
    e(f"s_mul_i32 s{s}, s{S_BLK}, {BLK}\ns_mul_i32 s{T3}, s{S_W4}, {TILE}\ns_add_u32 s{s}, s{s}, s{T3}")


V_MK = 41


def epi_qk(e):
    QP, KP = 8, 16
    tile_base(e, T0)
    e(f"""
    v_and_b32 v36, 0x33, v1
    v_bfe_u32 v37, v1, 2, 1
    v_lshl_or_b32 v36, v37, 3, v36
    v_bfe_u32 v37, v1, 3, 1
    v_lshl_or_b32 v36, v37, 2, v36
    v_lshlrev_b32 v36, 4, v36
    s_add_u32 s{T1}, s{T0}, {4*TILE}
    s_lshl_b32 s{T2}, s{S_W4}, 11
    v_add_u32 v38, s{T2}, v36
    s_mov_b32 s{S_MX}, {QSCALE}
    s_mov_b32 s{S_MW}, {QSCALE}
    s_lshl_b32 s{T2}, s{S_W4}, 10
    v_lshl_add_u32 v37, v1, 4, s{T2}
    """)
    for i in range(8):
        e(f"v_cvt_pk_bf16_f32 v{KP+i}, v{ACC1+2*i}, v{ACC1+2*i+1}")
    e.vm("st", f"buffer_store_dwordx4 {vr(KP,4)}, v36, {sr(R_WS,4)}, s{T0} offen{SC}")
    e.vm("st", f"buffer_store_dwordx4 {vr(KP+4,4)}, v36, {sr(R_WS,4)}, s{T1} offen{SC}")
    e.ds("ew", f"ds_write_b128 v38, {vr(KP,4)} offset:{L_KVO}")
    e.ds("ew", f"ds_write_b128 v38, {vr(KP+4,4)} offset:{L_KVO + 8192}")
    for i in range(8):
        e(f"v_pk_mul_f32 {vr(ACC0+2*i,2)}, {vr(ACC0+2*i,2)}, s[{S_MX}:{S_MW}]")
    for i in range(8):
        e(f"v_cvt_pk_bf16_f32 v{QP+i}, v{ACC0+2*i}, v{ACC0+2*i+1}")
    e(f"v_add_u32 v37, {L_Q}, v37")
    e.ds("ew", f"ds_write_b128 v37, {vr(QP,4)}")
    e.ds("ew", f"ds_write_b128 v37, {vr(QP+4,4)} offset:4096")
    for i in range(4):
        for d, s in ((42, QP), (43, QP + 4), (V_MK, KP), (44, KP + 4)):
            e(f"v_dot2_f32_bf16 v{d}, v{s+i}, v{s+i}, {'0' if i == 0 else f'v{d}'}")
    e(f"v_max_f32 v42, v42, v43\nv_max_f32 v{V_MK}, v{V_MK}, v44")
    wave_reduce(e, "v_max_f32", [42, V_MK])
    e(f"s_lshl_b32 s{T2}, s{S_W4}, 2\ns_add_u32 s{T2}, s{T2}, {L_MISC}\nv_mov_b32 v37, s{T2}\ns_lshl_b64 exec, 1, 63")
    e.ds("ew", f"ds_write_b32 v37, v42")
    e.ds("ew", f"ds_write_b32 v37, v{V_MK} offset:32")
    e("s_mov_b64 exec, -1")


def epi_v(e):
    VP = 16
    tile_base(e, T0)
    e(f"""
    v_bfe_u32 v38, v1, 4, 1
    v_lshrrev_b32 v37, 5, v1
    v_lshlrev_b32 v37, 8, v37
    v_and_b32 v39, 15, v1
    v_lshl_add_u32 v37, v39, 4, v37
    v_mad_u32_u24 v36, v38, s{S_MX}, v37
    v_lshl_add_u32 v37, v38, 13, v37
    s_lshl_b32 s{T2}, s{S_W4}, 11
    v_add_u32 v37, s{T2}, v37
    v_mul_u32_u24 v39, {4*TILE}, v1
    """.replace(f"v_mad_u32_u24 v36, v38, s{S_MX}, v37", f"s_movk_i32 s{S_MX}, {4*TILE}\nv_mad_u32_u24 v36, v38, s{S_MX}, v37"))
    for i in range(4):
        e(f"v_mov_b32 v{24+i}, 0x3f803f80")
    for i in range(8):
        e(f"v_cvt_pk_bf16_f32 v{VP+i}, v{ACC0+2*i}, v{ACC0+2*i+1}")
    e.vm("st", f"buffer_store_dwordx4 {vr(VP,4)}, v36, {sr(R_WS,4)}, s{T0} offen offset:1024{SC}")
    e.vm("st", f"buffer_store_dwordx4 {vr(VP+4,4)}, v36, {sr(R_WS,4)}, s{T0} offen offset:1536{SC}")
    e("s_mov_b64 exec, 3")
    e.vm("st", f"buffer_store_dwordx4 v[24:27], v39, {sr(R_WS,4)}, s{T0} offen offset:2048{SC}")
    e("s_mov_b64 exec, -1")
    e.ds("ew", f"ds_write_b128 v37, {vr(VP,4)} offset:{L_KVO + 1024}")
    e.ds("ew", f"ds_write_b128 v37, {vr(VP+4,4)} offset:{L_KVO + 1536}")


O_ACC, S_BUF, Q_FR, KV_ST = 64, 128, 192, 208
V_IDX, V_KO, V_V0, V_V1 = 244, 245, 246, 247
NS = 3
C_ACC, C_A, C_B = 16, 128, 160


def kv_regs(j):
    b = KV_ST + 12 * (j % NS)
    return b, b + 4, b + 8


def attn_setup(e):
    k, v0, v1 = kv_regs(0)
    e(f"""
    v_lshlrev_b32 v{V_KO}, 4, v1
    v_lshrrev_b32 v12, 5, v1
    v_lshlrev_b32 v12, 4, v12
    v_and_or_b32 v12, v1, 15, v12
    v_lshlrev_b32 v12, 4, v12
    s_lshl_b32 s{T2}, s{S_WAVE}, 11
    v_add_u32 v13, s{T2}, v{V_KO}
    v_add_u32 v14, s{T2}, v12
    v_and_b32 v15, 27, v1
    v_cmp_eq_u32 vcc, 16, v15
    v_mov_b32 v15, 0x3f803f80
    v_cndmask_b32 v15, 0, v15, vcc
    """)
    e.ds("aq", f"ds_read_b128 {vr(k,4)}, v13 offset:{L_KVO}")
    for i in range(8):
        e(f"v_mov_b32 v{v0+i}, v15")
    e(f"s_lshr_b32 s{T2}, s{S_WAVE}, 2\ns_lshl_b32 s{T2}, s{T2}, 12\ns_add_u32 s{T2}, s{T2}, {L_Q}")
    for i in range(4):
        e(f"s_add_u32 s{T0}, s{S_W4}, {i}\ns_and_b32 s{T0}, s{T0}, 3\ns_lshl_b32 s{T0}, s{T0}, 10\ns_add_u32 s{T0}, s{T0}, s{T2}")
        e(f"v_add_u32 v13, s{T0}, v{V_KO}")
        e.ds("aq", f"ds_read_b128 {vr(Q_FR+4*i,4)}, v13")
    e("s_mov_b32 exec_lo, 0xffff\ns_mov_b32 exec_hi, 0xffff")
    e.ds("aq", f"ds_read_b128 {vr(v0,4)}, v14 offset:{L_KVO + 1024}")
    e.ds("aq", f"ds_read_b128 {vr(v1,4)}, v14 offset:{L_KVO + 1536}")
    e(f"""
    s_mov_b64 exec, -1
    v_mov_b32 v13, {OOB}
    v_mov_b32 v14, 1024
    v_cndmask_b32 v{V_V0}, v13, v14, vcc
    v_mov_b32 v14, 512
    v_cndmask_b32 v{V_V1}, v13, v14, vcc
    v_and_b32 v13, 16, v1
    v_cmp_eq_u32 vcc, 0, v13
    v_mov_b32 v{V_IDX}, 0xdddddddd
    v_cndmask_b32 v{V_V0}, v{V_V0}, v12, vcc
    v_cndmask_b32 v{V_V1}, v{V_V1}, v12, vcc
    s_mul_i32 s{T1}, s{S_WAVE}, {TILE}
    s_mul_i32 s{T0}, s{S_HP}, {16*BLK}
    s_add_u32 s{T1}, s{T1}, s{T0}
    """)
    for j in range(16):
        e(f"s_add_u32 s{T0}, s{S_J}, {j}\ns_and_b32 s{T0}, s{T0}, 15\ns_mul_i32 s{T0}, s{T0}, {BLK}\ns_add_u32 s{S_STEP+j}, s{T0}, s{T1}")


def kv_load(e, j, soff=None):
    k, v0, v1 = kv_regs(j)
    so = soff or f"s{S_STEP+j}"
    e.vm(f"kv{j}", f"buffer_load_dwordx4 {vr(k,4)}, v{V_KO}, {sr(R_WS,4)}, {so} offen{SC}")
    e.vm(f"kv{j}", f"buffer_load_dwordx4 {vr(v0,4)}, v{V_V0}, {sr(R_WS,4)}, {so} offen offset:1024{SC}")
    e.vm(f"kv{j}", f"buffer_load_dwordx4 {vr(v1,4)}, v{V_V1}, {sr(R_WS,4)}, {so} offen offset:1536{SC}")


def conv_pair(e, a):
    e(f"ds_read_b128 {vr(C_A+4*a,4)}, v6 offset:{a*512}")
    e(f"ds_read_b128 {vr(C_B+4*(7-a),4)}, v7 offset:{a*512}")


def conv_body(first=False):
    b = E()
    b("v_add_u32 v6, 64, v6\nv_add_u32 v7, 64, v7")
    for a in range(8):
        for bb in range(7 - a, -1, -1):
            if a == 0:
                b(f"s_waitcnt lgkmcnt({2*bb})")
            n = a + bb
            c = "0" if first and a == 0 else vr(C_ACC + 4 * n, 4)
            b(f"v_mfma_f32_16x16x32_bf16 {vr(C_ACC+4*n,4)}, {vr(C_A+4*a,4)}, {vr(C_B+4*bb,4)}, {c}")
        conv_pair(b, a)
    return b.l


def conv_addresses(e):
    e(f"""
    s_lshl_b32 s{T2}, s2, 2
    s_load_dword s{S_D}, s[{P_D}:{P_D+1}], s{T2}
    v_and_b32 v2, 3, v1
    v_mul_u32_u24 v6, {A_COPY}, v2
    v_bfe_u32 v2, v1, 2, 2
    v_lshrrev_b32 v3, 4, v1
    v_add_u32 v2, v2, v3
    v_lshl_add_u32 v6, v2, 4, v6
    s_lshr_b32 s{T0}, s{S_WAVE}, 1
    s_and_b32 s{T1}, s{S_WAVE}, 1
    s_lshl_b32 s{T1}, s{T1}, 8
    s_mul_i32 s{T2}, s{T0}, {4*A_COPY}
    s_add_u32 s{T2}, s{T2}, s{T1}
    s_add_u32 s{T2}, s{T2}, {L_A}
    v_add_u32 v6, s{T2}, v6
    v_and_b32 v2, 1, v1
    v_mul_u32_u24 v7, {B_COPY}, v2
    v_lshl_add_u32 v7, v3, 4, v7
    v_bfe_u32 v2, v1, 1, 3
    v_lshlrev_b32 v2, 6, v2
    v_sub_u32 v7, v7, v2
    v_add_u32 v8, {L_B + 4080}, v7
    v_lshlrev_b32 v9, 5, v3
    v_sub_u32 v8, v8, v9
    s_lshl_b32 s{T3}, s{S_WAVE}, 9
    v_subrev_u32 v8, s{T3}, v8
    s_mul_i32 s{T2}, s{T0}, {2*B_COPY}
    s_add_u32 s{T2}, s{T2}, s{T1}
    s_add_u32 s{T2}, s{T2}, {L_B + 448}
    v_add_u32 v7, s{T2}, v7
    v_lshlrev_b32 v9, 4, v1
    """)


def conv_mfma(e):
    for a in range(8):
        conv_pair(e, a)
    body = conv_body()
    e("\n".join(conv_body(True)))
    tail = [f"    s_sub_u32 s{T0}, s{T0}, 1", f"    s_cmp_lg_u32 s{T0}, 0", "    s_cbranch_scc1 L_cvloop"]
    check_seq(body + tail + body, "conv loop")
    e(f"s_mov_b32 s{T0}, 3\nL_cvloop:")
    e("\n".join(body + tail))
    e(f"s_lshl_b32 s{T1}, s{S_WAVE}, 13\ns_add_u32 s{T1}, s{T1}, {L_P}\nv_add_u32 v2, s{T1}, v9\ns_waitcnt lgkmcnt(0)")
    for n in range(8):
        e(f"ds_write_b128 v2, {vr(C_ACC+4*n,4)} offset:{n*1024}")
    e("s_waitcnt lgkmcnt(0)")


def norms_read(e):
    e(f"v_and_b32 v10, 3, v1\nv_lshlrev_b32 v10, 2, v10\nv_add_u32 v10, {L_MISC}, v10")
    e.ds("mq", "ds_read_b32 v42, v10")
    e.ds("mq", f"ds_read_b32 v{V_MK}, v10 offset:32")
    e.wait(ds="mq")
    for ctl in ("row_shr:1", "row_shr:2"):
        for r in (42, V_MK):
            e(f"v_max_f32_dpp v{r}, v{r}, v{r} {ctl} row_mask:0xf bank_mask:0xf")


def kv_wait_and_decide(e):
    flag_store(e, FL_KV, S_BLK, V_MK - 1, width=8, only=4)
    e(f"""
    s_lshl_b32 s{T2}, s{S_HP}, 11
    s_add_u32 s{T2}, s{T2}, {FL_KV}
    v_and_b32 v10, 15, v1
    v_lshlrev_b32 v10, 7, v10
    """)
    poll(e, "L_pollkv", [f"buffer_load_dwordx2 v[12:13], v10, {sr(R_WS,4)}, s{T2} offen{SC}"], [12])
    for j in (1, 2, 3):
        kv_load(e, j)
    for ctl in ("row_shr:1", "row_shr:2", "row_shr:4", "row_shr:8"):
        e(f"v_max_f32_dpp v13, v13, v13 {ctl} row_mask:0xf bank_mask:0xf")
    e(f"v_mul_f32 v11, v42, v13\nv_mov_b32 v10, {L_MISC + 16}\ns_lshl_b64 exec, 1, 63")
    e.ds("dw", "ds_write_b32 v10, v11")
    e("s_mov_b64 exec, -1")
    e.wait(ds="*")


def conv_final(e):
    e(f"""
    s_lshl_b32 s{T1}, s{S_WAVE}, 10
    s_add_u32 s{T1}, s{T1}, {L_P}
    v_add_u32 v2, s{T1}, v9
    v_mov_b32 v10, {L_MISC + 16}
    """)
    for q in range(4):
        e.ds("cp", f"ds_read_b128 {vr(C_A+4*q,4)}, v2 offset:{q*8192}")
    for ch in range(2):
        e.ds("cp", f"ds_read_b128 {vr(C_B+4*ch,4)}, v8 offset:{ch*2*B_COPY}")
    e.ds("cp", "ds_read_b32 v11, v10")
    e(f"""
    v_bfe_u32 v2, v1, 1, 3
    v_lshlrev_b32 v2, 7, v2
    v_lshl_add_u32 v2, v3, 5, v2
    v_and_b32 v4, 1, v1
    v_lshl_add_u32 v2, v4, 4, v2
    s_lshl_b32 s{T0}, s2, 3
    s_add_u32 s{T0}, s{T0}, s{S_WAVE}
    s_lshl_b32 s{T0}, s{T0}, 10
    s_add_u32 s{T0}, s{T0}, {WS_Y}
    s_lshl_b32 s{T1}, s{S_D}, 16
    s_and_b32 s{T2}, s{S_D}, 0xffff0000
    v_mov_b32 v10, {BOUND2}
    """)
    e.wait(ds="*")
    e("s_barrier")
    for ch in range(2):
        for r in range(4):
            e(f"v_add_f32 v{C_A+8*ch+r}, v{C_A+8*ch+r}, v{C_A+8*ch+4+r}")
            e(f"v_lshlrev_b32 v{C_B+4*ch+3-r}, 16, v{C_B+4*ch+3-r}")
        for r in range(4):
            e(f"v_fmac_f32 v{C_A+8*ch+r}, s{T1+ch}, v{C_B+4*ch+3-r}")
    for r in range(4):
        e(f"v_cvt_pk_bf16_f32 v{12+r}, v{C_A+r}, v{C_A+8+r}")
    e.vm("y", f"buffer_store_dwordx4 v[12:15], v2, {sr(R_WS,4)}, s{T0} offen{SC}")
    e("v_cmp_le_f32 vcc, v11, v10")


W_FR = 16
W_FR2 = 208
N_EARLY = 7


def wfr(blk):
    return W_FR + 4 * blk if blk < N_EARLY else W_FR2 + 4 * (blk - N_EARLY)


def qk(e, j, i):
    e(f"v_mfma_f32_32x32x16_bf16 {vr(S_BUF+16*i,16)}, {vr(kv_regs(j)[0],4)}, {vr(Q_FR+4*i,4)}, 0")


def pv(e, j, i, half):
    e(f"v_smfmac_f32_32x32x32_bf16 {vr(O_ACC+16*i,16)}, {vr(kv_regs(j)[1+half],4)}, {vr(S_BUF+16*i+8*half,8)}, v{V_IDX}")


def p3_setup(e):
    srd(e, R_W, P_WO, 0x80000)
    e(f"""
    s_lshr_b32 s{T0}, s2, 5
    s_lshl_b32 s{T0}, s{T0}, 3
    s_and_b32 s{S_QT}, s2, 7
    s_add_u32 s{S_QT}, s{S_QT}, s{T0}
    s_bfe_u32 s{S_NQ}, s2, 0x20003
    s_lshr_b32 s{T3}, s{S_WAVE}, 2
    s_lshl_b32 s{T1}, s{T3}, 18
    s_lshl_b32 s{T2}, s{S_W4}, 6
    s_add_u32 s{T1}, s{T1}, s{T2}
    s_lshl_b32 s{T2}, s{S_NQ}, 8
    s_add_u32 s{T1}, s{T1}, s{T2}
    v_lshrrev_b32 v4, 2, v1
    v_lshlrev_b32 v4, 10, v4
    v_and_b32 v3, 3, v1
    v_lshl_add_u32 v4, v3, 4, v4
    v_add_u32 v4, s{T1}, v4
    s_lshl_b32 s{S_MX}, s{S_WAVE}, 14
    v_lshrrev_b32 v5, 5, v1
    v_bfe_u32 v6, v1, 2, 2
    v_lshl_add_u32 v5, v5, 2, v6
    v_lshlrev_b32 v5, 6, v5
    v_bfe_u32 v6, v1, 4, 1
    v_xor_b32 v6, s{T3}, v6
    v_lshl_add_u32 v5, v6, 5, v5
    v_and_b32 v6, 1, v1
    v_lshl_add_u32 v5, v6, 4, v5
    v_bfe_u32 v6, v1, 1, 1
    v_lshl_add_u32 v5, v6, 3, v5
    v_add_u32 v5, s{S_MX}, v5
    """)


def wo_dma(e, blk):
    if blk % 4 == 0:
        e(f"s_add_u32 m0, s{S_MX}, {L_WO + blk*1024}")
    e(f"s_mov_b32 s{T0}, {blk*16384 - (blk%4)*1024}")
    e.vm("wo", f"buffer_load_dwordx4 v4, {sr(R_W,4)}, s{T0} offen offset:{(blk%4)*1024} lds")


def wo_frag(e, blk):
    for j in range(2):
        e.ds("wf", f"ds_read_b64_tr_b16 {vr(wfr(blk)+2*j,2)}, v5 offset:{L_WO + blk*1024 + j*512}")


def zero_o(e):
    for i in range(4):
        e(f"v_mov_b32 v{12+i}, 0")
    for i in range(4):
        e(f"v_mfma_f32_32x32x16_bf16 {vr(O_ACC+16*i,16)}, v[12:15], v[12:15], 0")


def attn_steps(e, j0, j1, extra=None):
    tiles = [(j, i) for j in range(j0, j1) for i in range(4)]
    e.wait(vm=f"kv{j0}")
    qk(e, j0, 0)
    for t, (j, i) in enumerate(tiles):
        s = S_BUF + 16 * i
        ex = [f"v_exp_f32 v{s+r}, v{s+r}" for r in range(16)]
        nxt = tiles[t + 1] if t + 1 < len(tiles) else None
        prv = tiles[t - 1] if t else None
        if nxt:
            if nxt[1] == 0:
                e.wait(vm=f"kv{nxt[0]}")
            qk(e, *nxt)
        e("\n".join(ex[0:4]))
        if prv:
            pv(e, prv[0], prv[1], 1)
        e("\n".join(ex[4:8]))
        if i == 0 and j > j0 and j - 1 + NS < j1:
            kv_load(e, j - 1 + NS)
        e("\n".join(ex[8:10]))
        pv(e, j, i, 0)
        e("\n".join(ex[10:14]))
        if extra:
            extra(j, i)
        e("\n".join(ex[14:16]))
    pv(e, j1 - 1, 3, 1)


def attn_fast(e):
    def extra(j, i):
        if (j, i) == (1, 0):
            p3_setup(e)
        if (j, i) == (3, 3):
            flag_store(e, FL_Y, 2, 12, per_wave=True)
        if 2 <= j <= 5:
            wo_dma(e, (j - 2) * 4 + i)
        if j in (10, 11) and (j - 10) * 4 + i < N_EARLY:
            wo_frag(e, (j - 10) * 4 + i)
    attn_steps(e, 1, 16, extra)


def attn_slow(e):
    M = 44
    p3_setup(e)
    for blk in range(16):
        wo_dma(e, blk)
    for i in range(4):
        e(f"v_mov_b32 v{M+i}, 0xff7fffff")
    e.wait(vm="*")
    zero_o(e)
    flag_store(e, FL_Y, 2, 12, per_wave=True)
    for blk in range(N_EARLY):
        wo_frag(e, blk)
    e(f"""
    s_mul_i32 s{T2}, s{S_WAVE}, {TILE}
    s_mul_i32 s{T0}, s{S_HP}, {16*BLK}
    s_add_u32 s{T2}, s{T2}, s{T0}
    s_mov_b32 s{T3}, 0
    L_slowloop:
    """)
    kv_load(e, 0, f"s{T2}")
    e.wait(vm="*")
    for i in range(4):
        qk(e, 0, i)
    for i in range(4):
        s, o = S_BUF + 16 * i, O_ACC + 16 * i
        e(f"v_max3_f32 v10, v{s}, v{s+1}, v{M+i}")
        for r in range(2, 16, 2):
            e(f"v_max3_f32 v10, v{s+r}, v{s+r+1}, v10")
        e(f"""
        v_mov_b32 v11, v10
        v_permlane32_swap_b32 v10, v11
        v_max_f32 v10, v10, v11
        v_sub_f32 v11, v{M+i}, v10
        v_exp_f32 v11, v11
        v_mov_b32 v{M+i}, v10
        """)
        for r in range(16):
            e(f"v_sub_f32 v{s+r}, v{s+r}, v10\nv_exp_f32 v{s+r}, v{s+r}")
        for r in range(16):
            e(f"v_mul_f32 v{o+r}, v{o+r}, v11")
        pv(e, 0, i, 0)
        pv(e, 0, i, 1)
    e(f"""
    s_add_u32 s{T2}, s{T2}, {BLK}
    s_add_u32 s{T3}, s{T3}, 1
    s_cmp_lt_u32 s{T3}, 16
    s_nop 7
    s_nop 7
    s_cbranch_scc1 L_slowloop
    """)


def attn_combine(e, slow):
    M, R = 44, S_BUF
    e(f"v_add_u32 v12, s{S_MX}, v{V_KO}\nv_lshl_add_u32 v13, v1, 2, s{S_MX}")
    e.wait(ds="wf")
    order = (1, 2, 3)
    for i in order:
        o, off = O_ACC + 16 * i, (i - 1) * 2304
        e.ds("xw", f"ds_write_b128 v12, {vr(o,4)} offset:{off}")
        e.ds("xw", f"ds_write_b128 v12, {vr(o+4,4)} offset:{off+1024}")
        e.ds("xw", f"ds_write_b32 v13, v{o+8} offset:{off+2048}")
    if slow:
        e(f"s_lshl_b32 s{T0}, s{S_WAVE}, 10\ns_add_u32 s{T0}, s{T0}, {L_O}\nv_lshl_add_u32 v14, v1, 2, s{T0}")
        for i in order:
            e.ds("xw", f"ds_write_b32 v14, v{M+i} offset:{(i-1)*256}")
    e(f"s_and_b32 s{T1}, s{S_WAVE}, 4")
    for i in order:
        e(f"""
        s_sub_u32 s{T0}, s{S_W4}, {i}
        s_and_b32 s{T0}, s{T0}, 3
        s_add_u32 s{T0}, s{T0}, s{T1}
        s_lshl_b32 s{T2}, s{T0}, 14
        v_add_u32 v{48+i}, s{T2}, v{V_KO}
        v_lshl_add_u32 v{52+i}, v1, 2, s{T2}
        """)
        if slow:
            e(f"s_lshl_b32 s{T0}, s{T0}, 10\ns_add_u32 s{T0}, s{T0}, {L_O}\nv_lshl_add_u32 v{56+i}, v1, 2, s{T0}")
    sfx = "s" if slow else "f"
    e(f"""
    s_cmp_lg_u32 s{S_WAVE}, 0
    s_cbranch_scc1 L_noy{sfx}
    v_lshlrev_b32 v9, 10, v1
    s_lshl_b32 s{T2}, s{S_NQ}, 16
    s_lshr_b32 s{T3}, s{S_QT}, 3
    s_lshl_b32 s{T3}, s{T3}, 7
    s_add_u32 s{T2}, s{T2}, s{T3}
    s_add_u32 s{T2}, s{T2}, {FL_Y}
    v_and_b32 v10, 15, v1
    v_lshlrev_b32 v10, 11, v10
    s_lshr_b32 s{T3}, s{S_QT}, 2
    s_lshl_b32 s{T3}, s{T3}, 7
    s_add_u32 s{T3}, s{T3}, {FL_KV}
    """)
    poll(e, "L_polly" + sfx, [f"buffer_load_dword v14, v9, {sr(R_WS,4)}, s{T2} offen{SC}",
                              f"buffer_load_dword v15, v10, {sr(R_WS,4)}, s{T3} offen{SC}"], [14, 15])
    e(f"L_noy{sfx}:")
    of_slot(e, T0, True)
    e.wait(ds="xw")
    e("s_barrier")
    for n, i in enumerate(order):
        off = (i - 1) * 2304
        e.ds(f"xr{n}", f"ds_read_b128 {vr(R+12*n,4)}, v{48+i} offset:{off}")
        e.ds(f"xr{n}", f"ds_read_b128 {vr(R+12*n+4,4)}, v{48+i} offset:{off+1024}")
        e.ds(f"xr{n}", f"ds_read_b32 v{R+12*n+8}, v{52+i} offset:{off+2048}")
        if slow:
            e.ds(f"xr{n}", f"ds_read_b32 v{R+12*n+9}, v{56+i} offset:{(i-1)*256}")
    if slow:
        e.wait(ds="*")
        e("s_barrier")
        e(f"v_max3_f32 v10, v{M}, v{R+9}, v{R+21}\nv_max_f32 v10, v10, v{R+33}")
        for src, base in ((M, O_ACC), (R + 9, R), (R + 21, R + 12), (R + 33, R + 24)):
            e(f"v_sub_f32 v11, v{src}, v10\nv_exp_f32 v11, v11")
            for r in range(9):
                e(f"v_mul_f32 v{base+r}, v{base+r}, v11")
    for n in range(3):
        e.wait(ds=f"xr{n}")
        e(f"v_add_f32 v{O_ACC+8}, v{O_ACC+8}, v{R+12*n+8}")
        for r in range(0, 8, 2):
            e(f"v_pk_add_f32 {vr(O_ACC+r,2)}, {vr(O_ACC+r,2)}, {vr(R+12*n+r,2)}")
    e(f"v_rcp_f32 v{O_ACC+8}, v{O_ACC+8}")
    for r in range(0, 8, 2):
        e(f"v_pk_mul_f32 {vr(O_ACC+r,2)}, {vr(O_ACC+r,2)}, {vr(O_ACC+8,2)} op_sel_hi:[1,0]")
    for r in range(4):
        e(f"v_cvt_pk_bf16_f32 v{O_ACC+12+r}, v{O_ACC+2*r}, v{O_ACC+2*r+1}")
    for r in range(4):
        e(f"v_min_u32 v{O_ACC+12+r}, -2, v{O_ACC+12+r}")
    e.vm("o", f"buffer_store_dwordx4 {vr(O_ACC+12,4)}, v{V_KO}, {sr(R_WS,4)}, s{T0} offen{SC}")


B_X, B_Y, B_G, V_OUT, B_T = 96, 100, 104, 105, 112
O_FR, P_ACC = 128, 80


def tail(e):
    OP = Q_FR
    stamp(e, 13)
    srd(e, R_X, P_X, 0x200000)
    srd(e, R_OUT, P_OUT, 0x200000)
    e(f"""
    s_lshl_b32 s{T1}, s{S_W4}, 1
    s_lshr_b32 s{T2}, s{S_WAVE}, 2
    s_add_u32 s{T1}, s{T1}, s{T2}
    s_lshl_b32 s{T2}, s{S_NQ}, 3
    s_add_u32 s{S_ROW}, s{T1}, s{T2}
    v_and_b32 v8, 31, v1
    v_lshrrev_b32 v6, 5, v1
    v_lshlrev_b32 v{V_OUT}, 10, v8
    v_lshl_add_u32 v{V_OUT}, v6, 4, v{V_OUT}
    s_lshl_b32 s{T2}, s{S_QT}, 15
    s_lshl_b32 s{T3}, s{S_ROW}, 5
    s_add_u32 s{T2}, s{T2}, s{T3}
    v_add_u32 v{V_OUT}, s{T2}, v{V_OUT}
    """)
    e.vm("b", f"buffer_load_dwordx4 {vr(B_X,4)}, v{V_OUT}, {sr(R_X,4)}, 0 offen")
    e(f"""
    v_bfe_u32 v7, v1, 3, 2
    v_lshlrev_b32 v7, 5, v7
    v_and_b32 v9, 1, v1
    v_lshl_add_u32 v7, v9, 4, v7
    v_bfe_u32 v9, v1, 1, 2
    v_lshl_add_u32 v7, v9, 2, v7
    v_lshl_add_u32 v7, v6, 15, v7
    s_lshl_b32 s{T2}, s{S_ROW}, 16
    s_lshl_b32 s{T3}, s{S_QT}, 7
    s_add_u32 s{T2}, s{T2}, s{T3}
    s_add_u32 s{T2}, s{T2}, {WS_Y}
    """)
    for jj in range(4):
        e.vm("b", f"buffer_load_dword v{B_Y+jj}, v7, {sr(R_WS,4)}, s{T2} offen{SC}")
        if jj < 3:
            e(f"s_add_u32 s{T2}, s{T2}, 8192")
    e(f"v_lshlrev_b32 v8, 2, v8\ns_add_u32 s{T3}, s{T3}, {WS_G}")
    e.vm("b", f"buffer_load_dword v{B_G}, v8, {sr(R_WS,4)}, s{T3} offen{SC}")
    for blk in range(N_EARLY, 16):
        wo_frag(e, blk)
    e(f"""
    s_lshl_b32 s{T3}, s{S_WAVE}, 12
    s_add_u32 s{T2}, s{T3}, {L_O}
    v_add_u32 v9, s{T2}, v{V_KO}
    s_lshl_b32 s{T2}, s{S_QT}, 15
    s_add_u32 s{T3}, s{T3}, s{T2}
    s_add_u32 s{T3}, s{T3}, {WS_OF}
    s_lshr_b32 s{T1}, s{S_WAVE}, 2
    s_lshl_b32 s{T1}, s{T1}, 14
    s_add_u32 s{T1}, s{T1}, {L_O}
    v_add_u32 v6, s{T1}, v{V_KO}
    v_add_u32 v7, s{S_MX}, v{V_KO}
    v_xor_b32 v8, 0x10000, v7
    s_mov_b32 s{S_SPIN}, {SPIN_MAX}
    """)
    e.wait(vm="o")
    stamp(e, 14)
    loads = [f"buffer_load_dwordx4 {vr(OP+4*i,4)}, v{V_KO}, {sr(R_WS,4)}, s{T3} offen offset:{i*1024}{SC}" for i in range(4)]
    for ld in loads:
        e.vm("op", ld)
    e.wait(vm="b")
    e(f"v_sub_f32 v10, 1.0, v{B_G}")
    for i in range(4):
        e(f"""
        v_lshlrev_b32 v{B_T+2*i}, 16, v{B_X+i}
        v_and_b32 v{B_T+2*i+1}, 0xffff0000, v{B_X+i}
        v_lshlrev_b32 v12, 16, v{B_Y+i}
        v_and_b32 v13, 0xffff0000, v{B_Y+i}
        v_pk_mul_f32 {vr(B_T+2*i,2)}, {vr(B_T+2*i,2)}, v[12:13]
        v_pk_mul_f32 {vr(B_T+2*i,2)}, {vr(B_T+2*i,2)}, v[10:11] op_sel_hi:[1,0]
        """)
    e("s_branch L_pollo_chk\nL_pollo:")
    e("\n".join(loads))
    e(f"L_pollo_chk:\ns_waitcnt vmcnt(0)\nv_max3_u32 v12, v{OP}, v{OP+1}, v{OP+2}")
    e.vmq = []
    for i in range(3, 15, 2):
        e(f"v_max3_u32 v12, v12, v{OP+i}, v{OP+i+1}")
    e(f"""
    v_max_u32 v12, v12, v{OP+15}
    v_cmp_eq_u32 vcc, -1, v12
    s_cbranch_vccz L_pollo_ok
    s_sub_u32 s{S_SPIN}, s{S_SPIN}, 1
    s_cbranch_scc0 L_pollo
    L_pollo_ok:
    """)
    for i in range(4):
        e.ds("ow", f"ds_write_b128 v9, {vr(OP+4*i,4)} offset:{i*1024}")
    stamp(e, 15)
    e.wait(ds="*")
    e("s_barrier")
    stamp(e, 16)
    for blk in range(8):
        e.ds(f"of{blk}", f"ds_read_b128 {vr(O_FR+4*blk,4)}, v6 offset:{blk*1024}")
    for blk in range(16):
        e.wait(ds=f"of{blk}")
        c = "0" if blk == 0 else vr(P_ACC, 16)
        e(f"v_mfma_f32_32x32x16_bf16 {vr(P_ACC,16)}, {vr(wfr(blk),4)}, {vr(O_FR+4*blk,4)}, {c}")
        if blk + 8 < 16:
            e.ds(f"of{blk+8}", f"ds_read_b128 {vr(O_FR+4*(blk+8),4)}, v6 offset:{(blk+8)*1024}")
    e(f"s_or_b32 s{T0}, s2, s{S_WAVE}\ns_cbranch_scc1 L_nogen\nv_mov_b32 v12, s{S_TAG}\nv_mov_b32 v13, {WS_GEN}\ns_mov_b64 exec, 1")
    e(f"buffer_store_dword v12, v13, {sr(R_WS,4)}, 0 offen sc0 sc1\ns_mov_b64 exec, -1\nL_nogen:")
    e.ds("pw", f"ds_write_b128 v7, {vr(P_ACC+8,4)} offset:8192")
    e.ds("pw", f"ds_write_b128 v7, {vr(P_ACC+12,4)} offset:9216")
    e.wait(ds="pw")
    e("s_barrier")
    e.ds("pr", f"ds_read_b128 {vr(O_FR,4)}, v8 offset:8192")
    e.ds("pr", f"ds_read_b128 {vr(O_FR+4,4)}, v8 offset:9216")
    e.wait(ds="pr")
    for r in range(0, 8, 2):
        e(f"v_pk_add_f32 {vr(P_ACC+r,2)}, {vr(P_ACC+r,2)}, {vr(O_FR+r,2)}")
    for r in range(0, 8, 2):
        e(f"v_pk_fma_f32 {vr(P_ACC+r,2)}, {vr(P_ACC+r,2)}, {vr(B_G,2)}, {vr(B_T+r,2)} op_sel_hi:[1,0,1]")
    for r in range(4):
        e(f"v_cvt_pk_bf16_f32 v{O_FR+r}, v{P_ACC+2*r}, v{P_ACC+2*r+1}")
    e.vm("st", f"buffer_store_dwordx4 {vr(O_FR,4)}, v{V_OUT}, {sr(R_OUT,4)}, 0 offen")
    stamp_flush(e, 17)


def kernel():
    e = E()
    prologue(e)
    stamp(e, 0)
    e(f"s_cmp_ge_u32 s{S_WAVE}, 4\ns_cbranch_scc1 L_vrole")
    v = e.fork()
    prepass_setup(e)
    stamp(e, 1)
    gemm_qk(e)
    stamp(e, 8)
    epi_qk(e)
    e.wait(ds="*")
    e("s_barrier")
    stamp(e, 9)
    attn_setup(e)
    zero_o(e)
    e.wait(ds="*")
    attn_steps(e, 0, 1, lambda j, i: conv_u_flag_load(e) if i == 1 else None)
    conv_u_loads(e)
    conv_addresses(e)
    e.wait(vm="u")
    e("s_waitcnt lgkmcnt(0)\ns_barrier")
    e.dsq = []
    stamp(e, 18)
    conv_mfma(e)
    e("s_barrier")
    for j in (1, 2, 3):
        kv_load(e, j)
    e("s_branch L_join\nL_vrole:")
    loader_setup(v)
    gemm_v(v)
    stamp(v, 8)
    epi_v(v)
    v.wait(ds="*")
    v("s_barrier")
    stamp(v, 9)
    attn_setup(v)
    conv_addresses(v)
    zero_o(v)
    v("s_waitcnt lgkmcnt(0)")
    v.dsq = []
    norms_read(v)
    attn_steps(v, 0, 1)
    v.wait(vm="*")
    v("s_barrier")
    stamp(v, 18)
    kv_wait_and_decide(v)
    v("s_barrier\nL_join:")
    j = E()
    j.vmq = [f"kv{k}" for k in (1, 2, 3) for _ in range(3)]
    assert e.vmq[-9:] == j.vmq and v.vmq[-9:] == j.vmq
    stamp(j, 10)
    conv_final(j)
    j("s_cbranch_vccz L_slow" if not OPT.get("slow") else "s_branch L_slow")
    s = j.fork()
    stamp(j, 11)
    attn_fast(j)
    stamp(j, 12)
    attn_combine(j, False)
    j("L_tail:")
    j.vmq = ["o"]
    tail(j)
    j("L_end:\ns_endpgm\nL_slow:")
    attn_slow(s)
    attn_combine(s, True)
    s("s_branch L_tail")
    return e.l + v.l + j.l + s.l


def build():
    hdr = open(__file__.replace("gen/gen_v4.py", "cdna_kernels/" + NAME.replace("_kernel", ".s.ref")).replace("gen_v4.py", "../cdna_kernels/" + NAME.replace("_kernel", ".s.ref"))).read()
    head = hdr[:hdr.index("; @launch")]
    out = [head + f"; @launch grid=(256,1,1) block=(512,1,1) lds={LDS}", '.amdgcn_target "amdgcn-amd-amdhsa--gfx950"', ".text",
           f".globl {NAME}", ".p2align 8", f".type {NAME},@function", f"{NAME}:"]
    out += pad(kernel())
    out.append(f""".section .rodata,"a"
.p2align 6
.amdhsa_kernel {NAME}
  .amdhsa_next_free_vgpr 256
  .amdhsa_next_free_sgpr 96
  .amdhsa_accum_offset 256
  .amdhsa_group_segment_fixed_size 0
  .amdhsa_kernarg_size 104
  .amdhsa_user_sgpr_count 2
  .amdhsa_user_sgpr_kernarg_segment_ptr 1
  .amdhsa_system_sgpr_workgroup_id_x 1
  .amdhsa_float_denorm_mode_32 3
.end_amdhsa_kernel""")
    return "\n".join(out) + "\n"


if __name__ == "__main__":
    for a in sys.argv[2:]:
        OPT[a] = True
    open(sys.argv[1], "w").write(build())
```

```python
import re

TRANS = ("v_exp_f32", "v_log_f32", "v_rcp_f32", "v_rsq_f32", "v_sqrt_f32", "v_sin_f32", "v_cos_f32")
REG_RE = re.compile(r"\b([vs])\[(\d+):(\d+)\]|\b([vs])(\d+)\b|\b(vcc|exec|m0)(?:_lo|_hi)?\b")


def regs_of(tok):
    out = set()
    for m in REG_RE.finditer(tok):
        if m.group(1):
            out |= {(m.group(1), i) for i in range(int(m.group(2)), int(m.group(3)) + 1)}
        elif m.group(4):
            out.add((m.group(4), int(m.group(5))))
        else:
            out.add((m.group(6), 0))
    return out


def split_ops(rest):
    ops, depth, cur = [], 0, ""
    for ch in rest:
        if ch == "[":
            depth += 1
        if ch == "]":
            depth -= 1
        if ch == "," and depth == 0:
            ops.append(cur.strip())
            cur = ""
        else:
            cur += ch
    if cur.strip():
        ops.append(cur.strip())
    return ops


class Ins:
    def __init__(self, text):
        self.text = text
        t = text.split(";")[0].strip()
        self.label = t.endswith(":")
        self.directive = t.startswith(".")
        self.op = "" if (self.label or self.directive or not t) else t.split()[0]
        rest = t[len(self.op):].strip() if self.op else ""
        ops = split_ops(rest)
        self.ops = ops
        op = self.op
        self.kind = "none"
        self.defs, self.uses = set(), set()
        self.srcc = set()
        self.srcab = set()
        self.passes = 0
        self.states = 1 if op else 0
        self.wide_store = set()
        if not op:
            return
        allr = [regs_of(o) for o in ops]
        if op.startswith("v_mfma") or op.startswith("v_smfmac"):
            self.kind = "mfma"
            self.passes = 4 if "16x16" in op else 8
            self.defs = allr[0]
            if op.startswith("v_smfmac"):
                self.srcc = allr[0]
                self.srcab = allr[1] | allr[2] | allr[3]
            else:
                self.srcc = allr[3]
                self.srcab = allr[1] | allr[2]
            self.uses = self.srcc | self.srcab
        elif op.startswith("v_"):
            self.kind = "valu"
            self.trans = op.replace("_e32", "").replace("_e64", "") in TRANS
            self.dpp = "dpp" in op or "row_" in t or "quad_perm" in t
            self.defs = set(allr[0])
            srcs = allr[1:]
            if op.startswith("v_permlane"):
                self.defs = allr[0] | allr[1]
                srcs = allr
            elif "_co_" in op:
                self.defs |= allr[1]
                srcs = allr[2:]
            if op.startswith(("v_fmac", "v_dot2c", "v_pk_fmac", "v_writelane")) or self.dpp:
                srcs = allr
            for s in srcs:
                self.uses |= s
            if op.startswith("v_cmpx"):
                self.defs.add(("exec", 0))
            if op.startswith("v_cndmask") and len(ops) == 3:
                self.uses.add(("vcc", 0))
        elif op.startswith("ds_"):
            self.kind = "ds"
            if op.startswith(("ds_read", "ds_bpermute", "ds_permute", "ds_swizzle")) or "_rtn_" in op:
                self.defs = allr[0]
                for s in allr[1:]:
                    self.uses |= s
            else:
                for s in allr:
                    self.uses |= s
        elif op.startswith(("buffer_", "global_")):
            self.kind = "vmem"
            self.lds = bool(re.search(r"\blds\b", t)) or "_lds_" in op
            if "load" in op and not self.lds:
                self.defs = allr[0]
                for s in allr[1:]:
                    self.uses |= s
                if "d16" in op:
                    self.uses |= allr[0]
            else:
                for s in allr:
                    self.uses |= s
                if "store" in op and ("x4" in op or "x3" in op):
                    self.wide_store = allr[0] if op.startswith("buffer_") else allr[1]
            if self.lds:
                self.uses.add(("m0", 0))
        elif op == "s_nop":
            self.kind = "nop"
            self.states = int(ops[0]) + 1
        elif op.startswith("s_"):
            self.kind = "salu"
            if op.startswith(("s_cmp", "s_waitcnt", "s_barrier", "s_cbranch", "s_branch", "s_endpgm", "s_setprio", "s_sleep", "s_bitcmp")):
                for s in allr:
                    self.uses |= s
            else:
                self.defs = set(allr[0]) if allr else set()
                for s in allr[1:]:
                    self.uses |= s
                if "saveexec" in op:
                    self.defs.add(("exec", 0))


def vg(rs):
    return {r for r in rs if r[0] == "v"}


def sg(rs):
    return {r for r in rs if r[0] != "v"}


MFMA_RD = {4: 8, 8: 12}
MFMA_OVL = {4: 6, 8: 10}
MFMA_WAR = {4: 3, 8: 7}


def need(p, c):
    n = 0
    if p.kind == "valu":
        pv, ps = vg(p.defs), sg(p.defs)
        if c.kind == "mfma" and pv & c.uses:
            n = max(n, 2)
        if c.kind == "mfma" and ("exec", 0) in ps:
            n = max(n, 4)
        if c.kind == "valu":
            if c.dpp and pv & c.uses:
                n = max(n, 2)
            if c.op.startswith("v_permlane") and pv & c.uses:
                n = max(n, 2)
            if c.op.startswith(("v_readlane", "v_readfirstlane")) and pv & c.uses:
                n = max(n, 1)
            if p.trans and pv & (c.uses | c.defs):
                n = max(n, 1)
            if ps & c.uses:
                n = max(n, 4 if c.op.startswith(("v_readlane", "v_writelane")) else 2)
            if ("exec", 0) in ps:
                n = max(n, 5 if c.dpp else 4 if c.op.startswith(("v_readlane", "v_readfirstlane", "v_writelane", "v_permlane")) else 0)
        if c.kind == "vmem" and ps & c.uses:
            n = max(n, 5)
        if c.kind == "salu" and ps & c.uses:
            n = max(n, 2)
        if p.trans and c.kind in ("ds", "vmem") and pv & c.uses:
            n = max(n, 1)
        if p.op.startswith("v_dot") and pv & (c.uses | c.defs):
            chain = c.op == p.op and pv == vg(c.defs) and not (pv & regs_of(",".join(c.ops[1:3])))
            if not chain:
                n = max(n, 3)
    if p.kind == "mfma":
        d = p.defs
        if c.kind == "mfma":
            if d & c.srcab:
                n = max(n, MFMA_RD[p.passes])
            if d & c.srcc and not (d == c.srcc and p.passes == c.passes):
                n = max(n, MFMA_OVL[p.passes])
            if d & c.defs and not (d & c.srcc) and not (d == c.defs and p.passes == c.passes):
                n = max(n, MFMA_OVL[p.passes])
        elif c.kind in ("valu", "ds", "vmem"):
            if d & (c.uses | c.defs):
                n = max(n, MFMA_RD[p.passes])
            if c.kind == "valu" and p.srcc & c.defs:
                n = max(n, MFMA_WAR[p.passes])
    if p.kind == "salu" and ("m0", 0) in p.defs and c.kind == "vmem" and getattr(c, "lds", False):
        n = max(n, 1)
    if p.kind == "vmem" and p.wide_store and (c.defs & p.wide_store):
        n = max(n, 2)
    return n


def pad(lines, window=24):
    out = []
    for t in lines:
        c = Ins(t)
        if c.op:
            dist, short = 0, 0
            for p in reversed(out[-3 * window:]):
                if dist >= window:
                    break
                if p.op:
                    short = max(short, need(p, c) - dist)
                    dist += p.states
                if p.op in ("s_branch", "s_endpgm", "s_setpc_b64"):
                    break
            while short > 0:
                k = min(short, 16)
                out.append(Ins(f"    s_nop {k - 1}"))
                short -= k
        out.append(c)
    return [i.text for i in out]


def check_seq(lines, what):
    padded = pad(lines)
    if len(padded) != len(lines):
        for a, b in zip(padded, lines):
            if a != b:
                raise AssertionError(f"hazard across edge in {what}: needs '{a.strip()}' before '{b.strip()}'")
        raise AssertionError(f"hazard across edge in {what}")


class E:
    def __init__(self):
        self.l = []
        self.vmq = []
        self.dsq = []

    def __call__(self, text):
        for t in text.strip().split("\n"):
            t = t.strip()
            if t:
                self.l.append(t if t.endswith(":") else "    " + t)

    def vm(self, tag, text):
        self(text)
        self.vmq.append(tag)

    def ds(self, tag, text):
        self(text)
        self.dsq.append(tag)

    @staticmethod
    def _count(q, tags):
        tags = (tags,) if isinstance(tags, str) else tuple(tags)
        last = max((i for i, t in enumerate(q) if t in tags), default=-1)
        return last, len(q) - 1 - last

    def wait(self, vm=None, ds=None):
        parts = []
        if vm is not None:
            last, n = self._count(self.vmq, vm) if vm != "*" else (len(self.vmq) - 1, 0)
            if last >= 0:
                assert n <= 63, n
                parts.append(f"vmcnt({n})")
                self.vmq = self.vmq[last + 1:]
        if ds is not None:
            last, n = self._count(self.dsq, ds) if ds != "*" else (len(self.dsq) - 1, 0)
            if last >= 0:
                n = min(n, 14)
                parts.append(f"lgkmcnt({n})")
                self.dsq = self.dsq[len(self.dsq) - n:] if n else []
        if parts:
            self("s_waitcnt " + " ".join(parts))

    def fork(self):
        e = E()
        e.vmq, e.dsq = list(self.vmq), list(self.dsq)
        return e


def vr(a, n):
    return f"v{a}" if n == 1 else f"v[{a}:{a + n - 1}]"


def sr(a, n):
    return f"s{a}" if n == 1 else f"s[{a}:{a + n - 1}]"


def check_edges(lines, window=40):
    labels = {t.strip()[:-1]: i for i, t in enumerate(lines) if t.strip().endswith(":")}
    bad = []
    for i, t in enumerate(lines):
        p = t.split()
        if p and p[0].startswith(("s_cbranch", "s_branch")) and p[1] in labels:
            head = lines[max(0, i - window):i] + ["    s_nop 0"]
            seq = head + lines[labels[p[1]] + 1:labels[p[1]] + 1 + window]
            padded = pad(seq)
            if len(padded) != len(seq):
                k = next(n for n, (a, b) in enumerate(zip(padded, seq)) if a != b)
                bad.append(f"edge '{t.strip()}': needs '{padded[k].strip()}' before '{seq[k].strip()}'")
    assert not bad, "\n".join(bad)
```

```python
import sys
from asmlib import E, vr, sr, pad, check_seq, check_edges

NAME = "gated_mix__mha_block__ssm_conv_h3__prompt_kernel"
OPT = {}

TILE = 2176
BLK = 32768
WS_KV = 0x0000000
WS_U = 0x1000000
WS_Y = 0x0A00000
WS_OF = 0x0C00000
WS_G = 0x0E00000
WS_FL = 0x0E10000
FL_KV, FL_U, FL_Y = WS_FL, WS_FL + 0x8000, WS_FL + 0x10000
WS_GEN = WS_FL + 0x50000
WS_ST = 0x0F00000
WS_SIZE = 0x1400000
OOB = 0x7F000000

QSCALE = 0x3EB8AA3B
NLOG2E = 0xBFB8AA3B
BOUND2 = 0x44610000
SPIN_MAX = 1 << 18

P_X, P_W, P_WO, P_K, P_V, P_SH, P_H, P_D, P_GW, P_OUT, P_WS = 16, 18, 20, 24, 26, 28, 30, 32, 34, 36, 40
S_WAVE, S_HP, S_J, S_CG, S_TB = 3, 4, 5, 6, 7
T0, T1, T2, T3 = 8, 9, 10, 11
S_MX, S_MW, S_ROW, S_W4 = 12, 13, 14, 15
S_D, S_TAG = 42, 43
R_X, R_W, R_K, R_V, R_SH, R_GW, R_WS, R_H, R_OUT = 44, 48, 52, 56, 60, 64, 68, 72, 76
S_KVB, S_KVN, S_KVO, S_IT, S_WOS, S_XB, S_KF, S_WOM = 88, 89, 90, 91, 92, 93, 94, 95
S_BLK, S_ROT, S_SPIN, S_MODE, S_QT, S_NQ = 80, 81, 82, 83, 84, 85

SLOT = 28672
L_Z = 4 * SLOT
L_A, A_COPY = L_Z, 4160
L_PRE = L_Z
L_STG = L_PRE + 64 * 144
L_Q = L_A + 8 * 4160
L_MISC = L_Q + 8192
L_B, B_COPY = 0, 4576
L_KVO = SLOT
L_P = 2 * SLOT
L_WO, L_O = 0, 131072
LDS = 163840
XCH = 2560

SC = " sc1"


def srd(e, r, p, size):
    e(f"s_mov_b32 s{r}, s{p}\ns_mov_b32 s{r+1}, s{p+1}\ns_mov_b32 s{r+2}, {size}\ns_mov_b32 s{r+3}, 0x20000")


def stamp(e, i):
    if OPT.get("stamp"):
        e(f"s_memrealtime s[86:87]\ns_waitcnt lgkmcnt(0)\nv_writelane_b32 v255, s86, {i}")
        e(f"s_memtime s[86:87]\ns_waitcnt lgkmcnt(0)\nv_writelane_b32 v255, s86, {32+i}")
        e.dsq = []


def stamp_flush(e, n):
    if OPT.get("stamp"):
        e.wait(vm="*")
        stamp(e, n)
        e(f"""
        s_lshl_b32 s86, s2, 3
        s_add_u32 s86, s86, s{S_WAVE}
        s_lshl_b32 s86, s86, 8
        s_add_u32 s86, s86, {WS_ST}
        v_lshlrev_b32 v11, 2, v1
        buffer_store_dword v255, v11, {sr(R_WS,4)}, s86 offen
        """)


def wave_reduce(e, op, regs):
    for ctl in ("row_shr:1 row_mask:0xf", "row_shr:2 row_mask:0xf", "row_shr:4 row_mask:0xf", "row_shr:8 row_mask:0xf",
                "row_bcast:15 row_mask:0xa", "row_bcast:31 row_mask:0xc"):
        for r in regs:
            e(f"{op}_dpp v{r}, v{r}, v{r} {ctl} bank_mask:0xf")


def poll(e, label, loads, words, first=None):
    e(f"s_mov_b32 s{S_SPIN}, {SPIN_MAX}")
    if first:
        e.wait(vm=first)
        e(f"s_branch {label}_chk")
    e(f"{label}:")
    for ld in loads:
        e(ld)
    e("s_waitcnt vmcnt(0)")
    if first:
        e(f"{label}_chk:")
    else:
        e.vmq = []
    e(f"v_cmp_ne_u32 vcc, s{S_TAG}, v{words[0]}")
    for w in words[1:]:
        e(f"v_cmp_ne_u32 s[{T0}:{T1}], s{S_TAG}, v{w}\ns_or_b64 vcc, vcc, s[{T0}:{T1}]")
    e(f"""
    s_cbranch_vccz {label}_ok
    s_sub_u32 s{S_SPIN}, s{S_SPIN}, 1
    s_cbranch_scc0 {label}
    {label}_ok:
    """)


def flag_store(e, base, idx_sreg, data, per_wave=False, width=4, only=None):
    if only is not None:
        e(f"s_cmp_lg_u32 s{S_WAVE}, {only}\ns_cbranch_scc1 L_nofl{base & 0xfffff:x}")
    if per_wave:
        e(f"s_lshl_b32 s{T0}, s{idx_sreg}, 3\ns_add_u32 s{T0}, s{T0}, s{S_WAVE}\ns_lshl_b32 s{T0}, s{T0}, 7")
    else:
        e(f"s_lshl_b32 s{T0}, s{idx_sreg}, 7")
    e(f"""
    s_add_u32 s{T0}, s{T0}, {base}
    v_mov_b32 v{data}, s{S_TAG}
    v_mov_b32 v2, 0
    s_lshl_b64 exec, 1, 63
    """)
    op = "dword" if width == 4 else "dwordx2"
    st = f"buffer_store_{op} {vr(data, width // 4)}, v2, {sr(R_WS,4)}, s{T0} offen{SC}"
    if only is None:
        e.vm("fl", st)
    else:
        assert not e.vmq, e.vmq
        e(st)
    e("s_mov_b64 exec, -1")
    if only is not None:
        e(f"L_nofl{base & 0xfffff:x}:")


def make_tag(e):
    e.wait(vm="gen")
    e(f"""
    v_readfirstlane_b32 s{S_TAG}, v254
    s_mul_i32 s{S_TAG}, s{S_TAG}, 0x9e3779b1
    s_add_u32 s{S_TAG}, s{S_TAG}, 0x7f4a7c15
    """)


def prologue(e):
    e(f"""
    s_cmp_ge_u32 s2, 256
    s_cbranch_scc1 L_end
    s_load_dwordx16 s[16:31], s[0:1], 0
    s_load_dwordx8 s[32:39], s[0:1], 64
    s_load_dwordx2 s[40:41], s[0:1], 96
    v_lshrrev_b32 v1, 6, v0
    v_readfirstlane_b32 s{S_WAVE}, v1
    v_and_b32 v1, 63, v0
    s_bfe_u32 s{T0}, s2, 0x20001
    s_bfe_u32 s{T1}, s2, 0x20003
    s_lshl_b32 s{S_J}, s{T0}, 2
    s_add_u32 s{S_J}, s{S_J}, s{T1}
    s_and_b32 s{T0}, s2, 1
    s_lshr_b32 s{T2}, s2, 5
    s_lshl_b32 s{S_HP}, s{T0}, 3
    s_add_u32 s{S_HP}, s{S_HP}, s{T2}
    s_lshl_b32 s{T1}, s{T1}, 1
    s_add_u32 s{S_ROT}, s{T2}, s{T1}
    s_lshl_b32 s{S_BLK}, s{S_HP}, 4
    s_add_u32 s{S_BLK}, s{S_BLK}, s{S_J}
    s_and_b32 s{S_CG}, s2, 7
    s_lshr_b32 s{S_TB}, s2, 3
    s_and_b32 s{S_W4}, s{S_WAVE}, 3
    v_mov_b32 v2, {WS_GEN}
    """)
    if OPT.get("codepf"):
        e(f"""
        s_cmp_lg_u32 s{S_WAVE}, 7
        s_cbranch_scc1 L_nocpf
        s_getpc_b64 s[{T0}:{T1}]
        L_pc:
        s_mul_hi_u32 s{T2}, s{S_TB}, 0x55555556
        s_mul_i32 s{T2}, s{T2}, 3
        s_sub_u32 s{T2}, s{S_TB}, s{T2}
        s_lshl_b32 s{T2}, s{T2}, 13
        v_lshl_add_u32 v8, v1, 7, s{T2}
        v_min_u32 v8, L_last - L_pc, v8
        v_mov_b32 v9, s{T1}
        v_add_co_u32 v8, vcc, s{T0}, v8
        v_addc_co_u32 v9, vcc, 0, v9, vcc
        global_load_dword v253, v[8:9], off
        L_nocpf:
        """)
    if OPT.get("rot3"):
        e(f"s_lshr_b32 s{T2}, s2, 5\ns_and_b32 s{T2}, s{T2}, 1\ns_sub_u32 s{S_ROT}, s{S_ROT}, s{T2}")
    if OPT.get("norot"):
        e(f"s_mov_b32 s{S_ROT}, 0")
    if OPT.get("rot2"):
        e(f"s_and_b32 s{S_ROT}, s{S_ROT}, 1\ns_lshl_b32 s{S_ROT}, s{S_ROT}, 2")


V_XD, V_WD = 4, 3
V_ADR = 128
ACC0, ACC1 = 96, 112
FR = 144


def frag_addresses(e):
    e(f"""
    v_and_b32 v56, 31, v1
    v_lshrrev_b32 v57, 5, v1
    v_bfe_u32 v58, v1, 1, 3
    v_xor_b32 v58, v58, v57
    v_lshlrev_b32 v58, 4, v58
    v_lshl_add_u32 v58, v56, 7, v58
    s_lshl_b32 s{T0}, s{S_W4}, 12
    v_add_u32 v{V_ADR}, s{T0}, v58
    v_xor_b32 v{V_ADR+1}, 32, v{V_ADR}
    v_xor_b32 v{V_ADR+2}, 64, v{V_ADR}
    v_xor_b32 v{V_ADR+3}, 0x60, v{V_ADR}
    v_bfe_u32 v58, v1, 2, 2
    v_lshl_add_u32 v58, v57, 3, v58
    v_lshlrev_b32 v58, 6, v58
    v_bfe_u32 v59, v1, 4, 1
    v_lshl_add_u32 v58, v59, 5, v58
    v_and_b32 v59, 3, v1
    v_lshl_add_u32 v58, v59, 3, v58
    v_add_u32 v{V_ADR+4}, 0x4000, v58
    """)
    for i in range(5):
        e(f"v_add_u32 v{V_ADR+5+i}, {2*SLOT}, v{V_ADR+i}")


def chunk_dma_steps(e, c):
    slot = (c % 4) * SLOT

    def x(i):
        if i == 0:
            e(f"s_add_u32 s{T1}, s{S_ROT}, {c}\ns_and_b32 s{T1}, s{T1}, 7\ns_add_u32 m0, s{S_MX}, {slot}\ns_lshl_b32 s{T0}, s{T1}, 7")
        e.vm(f"c{c}", f"buffer_load_dwordx4 v{V_XD+i}, {sr(R_X,4)}, s{T0} offen offset:{i*1024} lds")

    def w(part):
        if part == 0:
            e(f"s_add_u32 m0, s{S_MW}, {slot}\ns_mul_i32 s{T0}, s{T1}, 196608")
        e.vm(f"c{c}", f"buffer_load_dwordx4 v{V_WD}, {sr(R_W,4)}, s{T0} offen offset:{part*1024} lds")

    return [lambda i=i: x(i) for i in range(4)] + [lambda p=p: w(p) for p in range(3)]


def frag_reads(e, c, ks, parts, f):
    a, imm = V_ADR + 5 * ((c % 4) // 2), (c % 2) * SLOT
    e.ds(f"r{c}_{ks}", f"ds_read_b128 {vr(f,4)}, v{a+ks} offset:{imm}")
    for n, part in enumerate(parts):
        for j in range(2):
            e.ds(f"r{c}_{ks}", f"ds_read_b64_tr_b16 {vr(f+4+4*n+2*j,2)}, v{a+4} offset:{imm + (ks*3+part)*1024 + j*256}")


SH, GX, GW = 32, 48, 56


def gate_loads(e):
    srd(e, R_GW, P_GW, 1024)
    e(f"""
    s_lshl_b32 s{S_ROW}, s{S_J}, 2
    s_add_u32 s{S_ROW}, s{S_ROW}, s{S_W4}
    s_lshl_b32 s{S_ROW}, s{S_ROW}, 4
    s_add_u32 s{S_ROW}, s{S_ROW}, s{S_HP}
    s_lshl_b32 s{T2}, s{S_ROW}, 11
    """)
    e.vm("gate", f"buffer_load_dwordx4 {vr(GX,4)}, v{V_KO}, {sr(R_X,4)}, s{T2} offen")
    e.vm("gate", f"buffer_load_dwordx4 {vr(GX+4,4)}, v{V_KO}, {sr(R_X,4)}, s{T2} offen offset:1024")
    e.vm("gate", f"buffer_load_dwordx4 {vr(GW,4)}, v{V_KO}, {sr(R_GW,4)}, 0 offen")


def gate_compute(e):
    e.wait(vm="gate")
    for i in range(4):
        for r in range(2):
            e(f"v_dot2_f32_bf16 v{10+r}, v{GX+4*r+i}, v{GW+i}, {'0' if i == 0 else f'v{10+r}'}")
    wave_reduce(e, "v_add_f32", [10, 11])
    for op in (f"v_mul_f32 v{{0}}, {NLOG2E}, v{{0}}", "v_exp_f32 v{0}, v{0}", "v_add_f32 v{0}, 1.0, v{0}", "v_rcp_f32 v{0}, v{0}"):
        e(op.format(10) + "\n" + op.format(11))
    e(f"s_lshl_b32 s{T2}, s{S_ROW}, 3\ns_add_u32 s{T2}, s{T2}, {WS_G}\nv_mov_b32 v2, 0\ns_lshl_b64 exec, 1, 63")
    e.vm("g", f"buffer_store_dwordx2 v[10:11], v2, {sr(R_WS,4)}, s{T2} offen{SC}")
    e("s_mov_b64 exec, -1")


def staging(e):
    e(f"""
    s_lshl_b32 s{T0}, s{S_TB}, 2
    s_add_u32 s{T0}, s{T0}, s{S_WAVE}
    s_lshl_b32 s{T0}, s{T0}, 14
    s_lshl_b32 s{T1}, s{S_CG}, 7
    s_add_u32 s{T0}, s{T0}, s{T1}
    v_lshrrev_b32 v54, 3, v1
    v_and_b32 v55, 7, v1
    v_lshlrev_b32 v55, 4, v55
    v_lshl_add_u32 v54, v54, 10, v55
    v_add_u32 v54, s{T0}, v54
    v_add_u32 v53, 0xffffe000, v54
    v_add_u32 v55, 0x2000, v54
    s_mul_i32 s{S_MX}, s{S_WAVE}, 5120
    s_add_u32 s{S_MX}, s{S_MX}, {L_STG}
    s_cmp_ge_u32 s{S_WAVE}, 4
    s_waitcnt lgkmcnt(0)
    s_cbranch_scc1 L_vrole
    """)
    srd(e, R_SH, P_SH, 4096)
    e(f"v_and_b32 v49, 31, v1\ns_lshl_b32 s{T1}, s{S_CG}, 9\nv_lshl_add_u32 v6, v49, 4, s{T1}")
    e.vm("pre", f"buffer_load_dwordx4 {vr(SH,4)}, v6, {sr(R_SH,4)}, 0 offen")
    srd(e, R_K, P_K, 0x200000)
    srd(e, R_V, P_V, 0x200000)
    for n, (r, v) in enumerate(((R_K, 53), (R_K, 54), (R_K, 55), (R_V, 54), (R_V, 55))):
        e(f"s_add_u32 m0, s{S_MX}, {n*1024}")
        e.vm("pre", f"buffer_load_dwordx4 v{v}, {sr(r,4)}, 0 offen lds")


def wo_prefetch(e):
    e(f"""
    s_cmp_ge_u32 s{S_WAVE}, 6
    s_cbranch_scc1 L_nowopf
    s_lshr_b32 s{T0}, s2, 5
    s_lshl_b32 s{T0}, s{T0}, 1
    s_add_u32 s{T0}, s{T0}, s{S_W4}
    s_lshl_b32 s{T0}, s{T0}, 15
    s_lshl_b32 s{T1}, s{S_NQ}, 8
    s_add_u32 s{T0}, s{T0}, s{T1}
    v_lshrrev_b32 v10, 1, v1
    v_lshlrev_b32 v10, 10, v10
    v_and_b32 v11, 1, v1
    v_lshl_add_u32 v10, v11, 7, v10
    buffer_load_dword v252, v10, {sr(R_W,4)}, s{T0} offen
    L_nowopf:
    """)


def prepass_compute(e):
    KR, VR, KF, VF, WF, U, PK = 8, 20, 144, 166, 182, 190, 144
    e(f"""
    v_lshrrev_b32 v48, 5, v0
    v_lshrrev_b32 v53, 5, v1
    v_lshlrev_b32 v53, 10, v53
    v_lshl_add_u32 v53, v49, 2, v53
    v_add_u32 v53, s{S_MX}, v53
    """)
    for i in range(11):
        e.ds(f"pk{i//4}", f"ds_read_b32 v{KR+i}, v53 offset:{(5+i)*128}")
    e(f"""
    v_mul_u32_u24 v50, 288, v49
    v_lshlrev_b32 v48, 4, v48
    v_sub_u32 v50, v50, v48
    v_add_u32 v50, {L_PRE + 112}, v50
    """)
    for j in range(4):
        if j % 2 == 0:
            e(f"v_lshlrev_b32 v{WF+2*j}, 16, v{SH+j//2}\nv_lshlrev_b32 v{WF+2*j+1}, 16, v{SH+2+j//2}")
        else:
            e(f"v_and_b32 v{WF+2*j}, 0xffff0000, v{SH+j//2}\nv_and_b32 v{WF+2*j+1}, 0xffff0000, v{SH+2+j//2}")
    for i in range(11):
        if i % 4 == 0:
            e.wait(ds=f"pk{i//4}")
        if i == 4:
            for k in range(8):
                e.ds("pv", f"ds_read_b32 v{VR+k}, v53 offset:{3072 + k*128}")
        e(f"v_lshlrev_b32 v{KF+2*i}, 16, v{KR+i}\nv_and_b32 v{KF+2*i+1}, 0xffff0000, v{KR+i}")
    for j in (3, 2, 1, 0):
        for o in range(8):
            kr = KF + 2 * (o + 3 - j)
            if j == 3:
                e(f"v_pk_mul_f32 {vr(U+2*o,2)}, {vr(kr,2)}, {vr(WF+2*j,2)}")
            else:
                e(f"v_pk_fma_f32 {vr(U+2*o,2)}, {vr(kr,2)}, {vr(WF+2*j,2)}, {vr(U+2*o,2)}")
    e.wait(ds="pv")
    for i in range(8):
        e(f"v_lshlrev_b32 v{VF+2*i}, 16, v{VR+i}\nv_and_b32 v{VF+2*i+1}, 0xffff0000, v{VR+i}")
    for o in range(8):
        e(f"v_pk_mul_f32 {vr(U+2*o,2)}, {vr(U+2*o,2)}, {vr(VF+2*o,2)}")
    for ch in range(2):
        for q in range(4):
            e(f"v_cvt_pk_bf16_f32 v{PK+4*ch+q}, v{U+2*(7-2*q)+ch}, v{U+2*(6-2*q)+ch}")
        e.ds("pw", f"ds_write_b128 v50, {vr(PK+4*ch,4)} offset:{ch*144}")
    e(f"""
    v_lshrrev_b32 v48, 3, v0
    v_and_b32 v52, 7, v0
    v_lshlrev_b32 v52, 4, v52
    v_mul_u32_u24 v51, 144, v48
    v_add_u32 v51, v51, v52
    v_add_u32 v51, {L_PRE}, v51
    v_lshl_add_u32 v52, v48, 12, v52
    s_lshl_b32 s{S_MW}, s{S_CG}, 18
    s_lshl_b32 s{T3}, s{S_TB}, 7
    s_sub_u32 s{S_MW}, s{S_MW}, s{T3}
    s_add_u32 s{S_MW}, s{S_MW}, {WS_U + 3968}
    """)


def prepass_read(e):
    e.ds("pr", "ds_read_b128 v[8:11], v51")
    e.ds("pr", f"ds_read_b128 v[12:15], v51 offset:{32*144}")


def prepass_out(e):
    e(f"s_add_u32 s{T1}, s{S_MW}, {32*4096}")
    e.wait(ds="pr")
    e.vm("ust", f"buffer_store_dwordx4 v[8:11], v52, {sr(R_WS,4)}, s{S_MW} offen{SC}")
    e.vm("ust", f"buffer_store_dwordx4 v[12:15], v52, {sr(R_WS,4)}, s{T1} offen{SC}")


def of_slot(e, s, with_head, tmp=T1):
    e(f"""
    s_lshl_b32 s{s}, s{S_J}, 2
    s_add_u32 s{s}, s{s}, s{S_W4}
    s_lshl_b32 s{s}, s{s}, 4
    s_add_u32 s{s}, s{s}, s{S_HP}
    s_lshl_b32 s{s}, s{s}, 1
    """)
    if with_head:
        e(f"s_lshr_b32 s{tmp}, s{S_WAVE}, 2\ns_add_u32 s{s}, s{s}, s{tmp}")
    e(f"s_lshl_b32 s{s}, s{s}, 10\ns_add_u32 s{s}, s{s}, {WS_OF}")


UFLAG_AT = 4


def gemm_qk(e):
    srd(e, R_X, P_X, 0x200000)
    srd(e, R_WS, P_WS, WS_SIZE)
    e.vm("gen", f"buffer_load_dword v254, v2, {sr(R_WS,4)}, 0 offen sc0 sc1")
    frag_addresses(e)
    e(f"v_mov_b32 v8, {L_MISC + 64}\nv_mov_b32 v9, 0")
    e.ds("cnt", "ds_write_b32 v8, v9")
    stamp(e, 1)
    e.wait(vm="pre")
    stamp(e, 2)
    prepass_compute(e)
    make_tag(e)
    attn_addresses(e)
    conv_addresses(e)
    u_flag_load(e)
    e("s_waitcnt lgkmcnt(0)")
    e.dsq = []
    stamp(e, 3)

    if OPT.get("qprio"):
        e("s_setprio 1")

    def fr(ks):
        return FR + 12 * ks

    def mm(c, ks):
        e.wait(ds=f"r{c}_{ks}")
        f = fr(ks)
        first = c == 0 and ks == 0
        e(f"v_mfma_f32_32x32x16_bf16 {vr(ACC0,16)}, {vr(f+4,4)}, {vr(f,4)}, {'0' if first else vr(ACC0,16)}")
        e(f"v_mfma_f32_32x32x16_bf16 {vr(ACC1,16)}, {vr(f+8,4)}, {vr(f,4)}, {'0' if first else vr(ACC1,16)}")

    for c in range(8):
        if c == UFLAG_AT:
            e.wait(vm="*")
        e("s_barrier")
        if c in (0, 1, 4, 7):
            stamp(e, 20 + c)
        if c == UFLAG_AT:
            flag_store(e, FL_U, 2, 8, only=0)
        if c == 0:
            prepass_read(e)
        frag_reads(e, c, 0, (0, 1), fr(0))
        if c:
            mm(c - 1, 2)
        frag_reads(e, c, 1, (0, 1), fr(1))
        if c:
            mm(c - 1, 3)
        frag_reads(e, c, 2, (0, 1), fr(2))
        mm(c, 0)
        frag_reads(e, c, 3, (0, 1), fr(3))
        mm(c, 1)
        if c == 0:
            prepass_out(e)
    e.vm("uf", u_flag_load(e, True))
    mm(7, 2)
    mm(7, 3)


def loader_setup(e):
    e(f"""
    v_lshrrev_b32 v36, 3, v1
    v_lshrrev_b32 v37, 4, v1
    v_xor_b32 v37, v37, v1
    v_and_b32 v37, 7, v37
    v_lshlrev_b32 v37, 4, v37
    v_lshl_add_u32 v37, v36, 10, v37
    s_lshl_b32 s{T0}, s{S_J}, 2
    s_add_u32 s{T0}, s{T0}, s{S_W4}
    s_lshl_b32 s{T0}, s{T0}, 15
    v_add_u32 v{V_XD}, s{T0}, v37
    v_xor_b32 v{V_XD+1}, 64, v{V_XD}
    v_add_u32 v{V_XD+2}, {16384-2048}, v{V_XD}
    v_add_u32 v{V_XD+3}, {24576-3072}, v{V_XD+1}
    v_add_u32 v{V_XD+1}, {8192-1024}, v{V_XD+1}
    s_lshl_b32 s{S_MX}, s{S_W4}, 12
    v_bfe_u32 v36, v0, 2, 6
    v_mul_u32_u24 v36, 0xc00, v36
    v_and_b32 v37, 3, v1
    v_lshl_add_u32 v36, v37, 4, v36
    s_lshl_b32 s{T0}, s{S_HP}, 6
    v_add_u32 v{V_WD}, s{T0}, v36
    s_mul_i32 s{S_MW}, s{S_W4}, 3072
    s_add_u32 s{S_MW}, s{S_MW}, 16384
    """)
    srd(e, R_X, P_X, 0x200000)
    srd(e, R_W, P_W, 0x180000)


def conv_h_steps(e):
    e(f"""
    s_lshr_b32 s{T0}, s{S_W4}, 1
    s_lshl_b32 s{T1}, s2, 1
    s_add_u32 s{T1}, s{T1}, s{T0}
    s_lshl_b32 s{T2}, s{T1}, 12
    s_add_u32 s{R_H}, s{P_H}, s{T2}
    s_addc_u32 s{R_H+1}, s{P_H+1}, 0
    s_mov_b32 s{R_H+2}, 4096
    s_mov_b32 s{R_H+3}, 0x20000
    s_and_b32 s{T0}, s{S_W4}, 1
    s_lshl_b32 s{T0}, s{T0}, 3
    v_lshl_add_u32 v8, v1, 4, s{T0}
    v_lshl_add_u32 v9, v1, 2, s{T0}
    s_mul_i32 s{T2}, s{S_W4}, {2*A_COPY}
    """)
    steps = []
    for cc in range(2):
        def big(i, cc=cc):
            if i == 0:
                e(f"v_add_u32 v10, {4+4*cc}, v8\nv_add_u32 v11, {-60+4*cc}, v9\ns_add_u32 m0, s{T2}, {L_A + cc*A_COPY + 64}")
            e.vm("h", f"buffer_load_dwordx4 v10, {sr(R_H,4)}, 0 offen offset:{i*1024} lds")

        def head(cc=cc):
            e(f"s_add_u32 m0, s{T2}, {L_A + cc*A_COPY}\ns_mov_b64 exec, 0xffff")
            e.vm("h", f"buffer_load_dword v11, {sr(R_H,4)}, 0 offen lds")
            e("s_mov_b64 exec, -1")
        steps += [lambda i=i, big=big: big(i) for i in range(4)] + [head]
    return steps


def u_flag_load(e, text_only=False):
    ld = f"buffer_load_dword v28, v29, {sr(R_WS,4)}, s{S_WOS} offen{SC}"
    if text_only:
        return ld
    e(f"""
    v_and_b32 v29, 31, v1
    v_lshlrev_b32 v29, 10, v29
    s_lshr_b32 s{S_WOS}, s2, 5
    s_lshl_b32 s{S_WOS}, s{S_WOS}, 7
    s_add_u32 s{S_WOS}, s{S_WOS}, {FL_U}
    s_lshr_b32 s{T0}, s{S_W4}, 1
    s_lshl_b32 s{S_KF}, s2, 1
    s_add_u32 s{S_KF}, s{S_KF}, s{T0}
    s_lshl_b32 s{S_KF}, s{S_KF}, 12
    s_and_b32 s{T0}, s{S_W4}, 1
    s_lshl_b32 s{T0}, s{T0}, 1
    s_sub_u32 s{S_KF}, s{S_KF}, s{T0}
    s_add_u32 s{S_KF}, s{S_KF}, {WS_U + 2}
    """)


def conv_u_loads(e):
    poll(e, "L_pollu", [u_flag_load(e, True)], [28], first="uf")
    e(f"s_mul_i32 s{S_WOS}, s{S_W4}, {B_COPY}\ns_add_u32 m0, s{S_WOS}, {L_B}")
    for i in range(4):
        e.vm("u", f"buffer_load_dwordx4 v{V_KO}, {sr(R_WS,4)}, s{S_KF} offen offset:{i*1024}{SC} lds")


def conv_u_pad(e):
    e.wait(vm="u")
    e(f"""
    v_lshl_add_u32 v12, v1, 3, s{S_WOS}
    v_mov_b32 v10, 0
    v_mov_b32 v11, 0
    s_lshr_b64 exec, -1, 4
    ds_write_b64 v12, v[10:11] offset:{L_B + 4096}
    s_and_b32 s{T0}, s{S_WAVE}, 1
    s_xor_b32 exec_lo, s{T0}, 1
    s_mov_b32 exec_hi, 0
    ds_write_b16 v12, v10 offset:{L_B + 4094}
    s_mov_b64 exec, -1
    """)


def gemm_v(e):
    for c in range(2):
        for st in chunk_dma_steps(e, c):
            st()
    srd(e, R_WS, P_WS, WS_SIZE)
    e.vm("gen", f"buffer_load_dword v254, v2, {sr(R_WS,4)}, 0 offen sc0 sc1")
    stamp(e, 1)
    stamp(e, 2)
    frag_addresses(e)
    for c in range(8):
        e.wait(vm=f"c{c}")
        if c == 0:
            stamp(e, 3)
        e("s_barrier")
        if c in (0, 1, 4, 7):
            stamp(e, 20 + c)
        steps = chunk_dma_steps(e, c + 2) if c + 2 < 8 else conv_h_steps(e) if c == 6 else []
        per = 2 if c == 6 else 1

        def step():
            for _ in range(per):
                if steps:
                    steps.pop(0)()
        if c == 7:
            attn_addresses(e)
        if OPT.get("vclu"):
            while steps:
                step()
        for ks in range(4):
            step()
            frag_reads(e, c, ks, (2,), FR + 8 * ks)
        for ks in range(4):
            e.wait(ds=f"r{c}_{ks}")
            f = FR + 8 * ks
            e(f"v_mfma_f32_32x32x16_bf16 {vr(ACC0,16)}, {vr(f,4)}, {vr(f+4,4)}, {'0' if c + ks == 0 else vr(ACC0,16)}")
            step()
        assert not steps
        if c == 3:
            make_tag(e)


def tile_base(e, s):
    e(f"s_mul_i32 s{s}, s{S_BLK}, {BLK}\ns_mul_i32 s{T3}, s{S_W4}, {TILE}\ns_add_u32 s{s}, s{s}, s{T3}")


V_MK = 41


def epi_qk(e):
    QP, KP = 8, 16
    tile_base(e, T0)
    e(f"""
    v_and_b32 v36, 0x33, v1
    v_bfe_u32 v37, v1, 2, 1
    v_lshl_or_b32 v36, v37, 3, v36
    v_bfe_u32 v37, v1, 3, 1
    v_lshl_or_b32 v36, v37, 2, v36
    v_lshlrev_b32 v36, 4, v36
    s_add_u32 s{T1}, s{T0}, {4*TILE}
    s_lshl_b32 s{T2}, s{S_W4}, 11
    v_add_u32 v38, s{T2}, v36
    s_mov_b32 s{S_MX}, {QSCALE}
    s_mov_b32 s{S_MW}, {QSCALE}
    s_lshl_b32 s{T2}, s{S_W4}, 10
    v_lshl_add_u32 v37, v1, 4, s{T2}
    """)
    for i in range(8):
        e(f"v_cvt_pk_bf16_f32 v{KP+i}, v{ACC1+2*i}, v{ACC1+2*i+1}")
    e.vm("st", f"buffer_store_dwordx4 {vr(KP,4)}, v36, {sr(R_WS,4)}, s{T0} offen{SC}")
    e.vm("st", f"buffer_store_dwordx4 {vr(KP+4,4)}, v36, {sr(R_WS,4)}, s{T1} offen{SC}")
    e.ds("ew", f"ds_write_b128 v38, {vr(KP,4)} offset:{L_KVO}")
    e.ds("ew", f"ds_write_b128 v38, {vr(KP+4,4)} offset:{L_KVO + 8192}")
    for i in range(8):
        e(f"v_pk_mul_f32 {vr(ACC0+2*i,2)}, {vr(ACC0+2*i,2)}, s[{S_MX}:{S_MW}]")
    for i in range(8):
        e(f"v_cvt_pk_bf16_f32 v{QP+i}, v{ACC0+2*i}, v{ACC0+2*i+1}")
    e(f"v_add_u32 v37, {L_Q}, v37")
    e.ds("ew", f"ds_write_b128 v37, {vr(QP,4)}")
    e.ds("ew", f"ds_write_b128 v37, {vr(QP+4,4)} offset:4096")
    for i in range(4):
        for d, s in ((42, QP), (43, QP + 4), (V_MK, KP), (44, KP + 4)):
            e(f"v_dot2_f32_bf16 v{d}, v{s+i}, v{s+i}, {'0' if i == 0 else f'v{d}'}")
    e(f"v_max_f32 v42, v42, v43\nv_max_f32 v{V_MK}, v{V_MK}, v44")
    wave_reduce(e, "v_max_f32", [42, V_MK])
    e(f"s_lshl_b32 s{T2}, s{S_W4}, 2\ns_add_u32 s{T2}, s{T2}, {L_MISC}\nv_mov_b32 v37, s{T2}\ns_lshl_b64 exec, 1, 63")
    e.ds("ew", f"ds_write_b32 v37, v42")
    e.ds("ew", f"ds_write_b32 v37, v{V_MK} offset:32")
    e("s_mov_b64 exec, -1")


def epi_v(e):
    VP = 16
    tile_base(e, T0)
    e(f"""
    v_bfe_u32 v38, v1, 4, 1
    v_lshrrev_b32 v37, 5, v1
    v_lshlrev_b32 v37, 8, v37
    v_and_b32 v39, 15, v1
    v_lshl_add_u32 v37, v39, 4, v37
    v_mad_u32_u24 v36, v38, s{S_MX}, v37
    v_lshl_add_u32 v37, v38, 13, v37
    s_lshl_b32 s{T2}, s{S_W4}, 11
    v_add_u32 v37, s{T2}, v37
    v_mul_u32_u24 v39, {4*TILE}, v1
    """.replace(f"v_mad_u32_u24 v36, v38, s{S_MX}, v37", f"s_movk_i32 s{S_MX}, {4*TILE}\nv_mad_u32_u24 v36, v38, s{S_MX}, v37"))
    for i in range(4):
        e(f"v_mov_b32 v{24+i}, 0x3f803f80")
    for i in range(8):
        e(f"v_cvt_pk_bf16_f32 v{VP+i}, v{ACC0+2*i}, v{ACC0+2*i+1}")
    e.vm("st", f"buffer_store_dwordx4 {vr(VP,4)}, v36, {sr(R_WS,4)}, s{T0} offen offset:1024{SC}")
    e.vm("st", f"buffer_store_dwordx4 {vr(VP+4,4)}, v36, {sr(R_WS,4)}, s{T0} offen offset:1536{SC}")
    e("s_mov_b64 exec, 3")
    e.vm("st", f"buffer_store_dwordx4 v[24:27], v39, {sr(R_WS,4)}, s{T0} offen offset:2048{SC}")
    e("s_mov_b64 exec, -1")
    e.ds("ew", f"ds_write_b128 v37, {vr(VP,4)} offset:{L_KVO + 1024}")
    e.ds("ew", f"ds_write_b128 v37, {vr(VP+4,4)} offset:{L_KVO + 1536}")


O_ACC, S_BUF, Q_FR, KV_ST = 64, 128, 192, 208
V_IDX, V_KO, V_V0, V_V1 = 244, 245, 246, 247
NS = 3
C_ACC, C_B = 16, 144
C_A = 32


def ca(a):
    return 48 + 4 * a if a < 4 else 128 + 4 * (a - 4)


def kv_regs(j):
    b = KV_ST + 12 * (j % NS)
    return b, b + 4, b + 8


V_AQ = 64


def attn_addresses(e):
    k, v0, v1 = kv_regs(0)
    e(f"""
    v_lshlrev_b32 v{V_KO}, 4, v1
    v_lshrrev_b32 v60, 5, v1
    v_lshlrev_b32 v60, 4, v60
    v_and_or_b32 v60, v1, 15, v60
    v_lshlrev_b32 v60, 4, v60
    s_lshl_b32 s{T2}, s{S_WAVE}, 11
    v_add_u32 v{V_AQ+4}, s{T2}, v{V_KO}
    v_add_u32 v{V_AQ+5}, s{T2}, v60
    v_and_b32 v61, 27, v1
    v_cmp_eq_u32 vcc, 16, v61
    v_mov_b32 v61, 0x3f803f80
    v_mov_b32 v62, {OOB}
    v_cndmask_b32 v61, 0, v61, vcc
    v_mov_b32 v63, 1024
    v_cndmask_b32 v{V_V0}, v62, v63, vcc
    v_mov_b32 v63, 512
    v_cndmask_b32 v{V_V1}, v62, v63, vcc
    v_and_b32 v62, 16, v1
    v_cmp_eq_u32 vcc, 0, v62
    v_mov_b32 v{V_IDX}, 0xdddddddd
    s_mul_i32 s{T2}, s{S_WAVE}, {TILE}
    v_cndmask_b32 v{V_V0}, v{V_V0}, v60, vcc
    v_cndmask_b32 v{V_V1}, v{V_V1}, v60, vcc
    s_lshl_b32 s{T3}, s{S_BLK}, 15
    s_add_u32 s{S_KVB}, s{T2}, s{T3}
    s_mov_b32 s{S_KVN}, 0
    """)
    for i in range(8):
        e(f"v_mov_b32 v{v0+i}, v61")
    e(f"s_lshr_b32 s{T2}, s{S_WAVE}, 2\ns_lshl_b32 s{T2}, s{T2}, 12\ns_add_u32 s{T2}, s{T2}, {L_Q}")
    for i in range(4):
        e(f"s_add_u32 s{T3}, s{S_W4}, {i}\ns_and_b32 s{T3}, s{T3}, 3\ns_lshl_b32 s{T3}, s{T3}, 10\ns_add_u32 s{T3}, s{T3}, s{T2}")
        e(f"v_add_u32 v{V_AQ+i}, s{T3}, v{V_KO}")
    e(f"v_and_b32 v70, 3, v1\nv_lshlrev_b32 v70, 2, v70\nv_add_u32 v70, {L_MISC}, v70")


def attn_reads(e):
    k, v0, v1 = kv_regs(0)
    e.ds("aq", f"ds_read_b128 {vr(k,4)}, v{V_AQ+4} offset:{L_KVO}")
    for i in range(4):
        e.ds("aq", f"ds_read_b128 {vr(Q_FR+4*i,4)}, v{V_AQ+i}")
    e("s_mov_b32 exec_lo, 0xffff\ns_mov_b32 exec_hi, 0xffff")
    e.ds("aq", f"ds_read_b128 {vr(v0,4)}, v{V_AQ+5} offset:{L_KVO + 1024}")
    e.ds("aq", f"ds_read_b128 {vr(v1,4)}, v{V_AQ+5} offset:{L_KVO + 1536}")
    e("s_mov_b64 exec, -1")
    e.ds("mq", "ds_read_b32 v42, v70")
    e.ds("mq", f"ds_read_b32 v{V_MK}, v70 offset:32")


def kv_load(e, j, soff=None):
    k, v0, v1 = kv_regs(j)
    so = soff or f"s{S_KVO}"
    if not soff:
        e(f"s_add_u32 s{S_KVN}, s{S_KVN}, {BLK}\ns_xor_b32 s{S_KVO}, s{S_KVB}, s{S_KVN}")
    e.vm(f"kv{j}", f"buffer_load_dwordx4 {vr(k,4)}, v{V_KO}, {sr(R_WS,4)}, {so} offen{SC}")
    e.vm(f"kv{j}", f"buffer_load_dwordx4 {vr(v0,4)}, v{V_V0}, {sr(R_WS,4)}, {so} offen offset:1024{SC}")
    e.vm(f"kv{j}", f"buffer_load_dwordx4 {vr(v1,4)}, v{V_V1}, {sr(R_WS,4)}, {so} offen offset:1536{SC}")


def conv_pair(e, a):
    e(f"ds_read_b128 {vr(ca(a),4)}, v248 offset:{a*512}")
    e(f"ds_read_b128 {vr(C_B+4*(7-a),4)}, v249 offset:{a*512}")


def conv_body(first=False):
    b = E()
    b("v_add_u32 v248, 64, v248\nv_add_u32 v249, 64, v249")
    for a in range(8):
        for bb in range(7 - a, -1, -1):
            if a == 0:
                b(f"s_waitcnt lgkmcnt({2*bb})")
            n = a + bb
            c = "0" if first and a == 0 else vr(C_ACC + 4 * n, 4)
            b(f"v_mfma_f32_16x16x32_bf16 {vr(C_ACC+4*n,4)}, {vr(ca(a),4)}, {vr(C_B+4*bb,4)}, {c}")
        conv_pair(b, a)
    return b.l


def conv_mfma(e):
    for a in range(8):
        conv_pair(e, a)
    body = conv_body()
    e("\n".join(conv_body(True)))
    tail = [f"    s_sub_u32 s{T0}, s{T0}, 1", f"    s_cmp_lg_u32 s{T0}, 0", "    s_cbranch_scc1 L_cvloop"]
    check_seq(body + tail + body, "conv loop")
    e(f"s_mov_b32 s{T0}, 3\nL_cvloop:")
    e("\n".join(body + tail))
    e(f"s_lshl_b32 s{T1}, s{S_WAVE}, 13\ns_add_u32 s{T1}, s{T1}, {L_P}\nv_add_u32 v2, s{T1}, v{V_KO}\ns_waitcnt lgkmcnt(0)")
    for n in range(8):
        e(f"ds_write_b128 v2, {vr(C_ACC+4*n,4)} offset:{n*1024}")
    e("s_waitcnt lgkmcnt(0)")


def conv_addresses(e):
    e(f"""
    s_lshl_b32 s{T2}, s2, 2
    s_load_dword s{S_D}, s[{P_D}:{P_D+1}], s{T2}
    v_and_b32 v60, 3, v1
    v_mul_u32_u24 v248, {A_COPY}, v60
    v_bfe_u32 v60, v1, 2, 2
    v_lshrrev_b32 v61, 4, v1
    v_add_u32 v60, v60, v61
    v_lshl_add_u32 v248, v60, 4, v248
    s_lshr_b32 s{T0}, s{S_W4}, 1
    s_and_b32 s{T1}, s{S_WAVE}, 1
    s_lshl_b32 s{T1}, s{T1}, 8
    s_mul_i32 s{T2}, s{T0}, {4*A_COPY}
    s_add_u32 s{T2}, s{T2}, s{T1}
    s_add_u32 s{T2}, s{T2}, {L_A}
    v_add_u32 v248, s{T2}, v248
    v_and_b32 v60, 1, v1
    v_mul_u32_u24 v249, {B_COPY}, v60
    v_lshl_add_u32 v249, v61, 4, v249
    v_bfe_u32 v60, v1, 1, 3
    v_lshlrev_b32 v60, 6, v60
    v_sub_u32 v249, v249, v60
    v_add_u32 v250, {L_B + 4080}, v249
    v_lshlrev_b32 v62, 5, v61
    v_sub_u32 v250, v250, v62
    s_lshl_b32 s{T3}, s{S_WAVE}, 9
    v_subrev_u32 v250, s{T3}, v250
    s_mul_i32 s{T2}, s{T0}, {2*B_COPY}
    s_add_u32 s{T2}, s{T2}, s{T1}
    s_add_u32 s{T2}, s{T2}, {L_B + 448}
    v_add_u32 v249, s{T2}, v249
    """)


def norms_max(e):
    e.wait(ds="mq")
    for ctl in ("row_shr:1", "row_shr:2"):
        for r in (42, V_MK):
            e(f"v_max_f32_dpp v{r}, v{r}, v{r} {ctl} row_mask:0xf bank_mask:0xf")


def kv_signal(e, sfx):
    e.wait(vm="st")
    e(f"""
    v_mov_b32 v10, {L_MISC + 64}
    v_mov_b32 v11, 1
    s_lshl_b64 exec, 1, 63
    ds_add_rtn_u32 v11, v10, v11
    s_waitcnt lgkmcnt(0)
    v_cmp_eq_u32 vcc, 7, v11
    s_cbranch_vccz L_sig{sfx}
    s_lshl_b32 s{T0}, s{S_BLK}, 7
    s_add_u32 s{T0}, s{T0}, {FL_KV}
    v_mov_b32 v{V_MK-1}, s{S_TAG}
    v_mov_b32 v10, 0
    buffer_store_dwordx2 {vr(V_MK-1,2)}, v10, {sr(R_WS,4)}, s{T0} offen{SC}
    L_sig{sfx}:
    s_mov_b64 exec, -1
    """)
    e.dsq = []


def kv_wait_and_decide(e):
    wo_prefetch(e)
    e(f"""
    s_lshl_b32 s{T2}, s{S_HP}, 11
    s_add_u32 s{T2}, s{T2}, {FL_KV}
    v_and_b32 v10, 15, v1
    v_lshlrev_b32 v10, 7, v10
    """)
    poll(e, "L_pollkv", [f"buffer_load_dwordx2 v[12:13], v10, {sr(R_WS,4)}, s{T2} offen{SC}"], [12])
    for j in (1, 2):
        kv_load(e, j)
    for ctl in ("row_shr:1", "row_shr:2", "row_shr:4", "row_shr:8"):
        e(f"v_max_f32_dpp v13, v13, v13 {ctl} row_mask:0xf bank_mask:0xf")
    e(f"v_mul_f32 v11, v42, v13\nv_mov_b32 v10, {L_MISC + 16}\ns_lshl_b64 exec, 1, 63")
    e.ds("dw", "ds_write_b32 v10, v11")
    e("s_mov_b64 exec, -1")
    e.wait(ds="*")


def conv_final(e):
    e(f"""
    s_lshl_b32 s{T1}, s{S_WAVE}, 10
    s_add_u32 s{T1}, s{T1}, {L_P}
    v_add_u32 v2, s{T1}, v{V_KO}
    v_mov_b32 v10, {L_MISC + 16}
    """)
    e.ds("cp", "ds_read_b32 v11, v10")
    for q in range(4):
        e.ds("cp", f"ds_read_b128 {vr(C_A+4*q,4)}, v2 offset:{q*8192}")
    for ch in range(2):
        e.ds("cp", f"ds_read_b128 {vr(C_B+4*ch,4)}, v250 offset:{ch*2*B_COPY}")
    e(f"""
    v_bfe_u32 v2, v1, 1, 3
    v_lshlrev_b32 v2, 7, v2
    v_lshrrev_b32 v3, 4, v1
    v_lshl_add_u32 v2, v3, 5, v2
    v_and_b32 v10, 1, v1
    v_lshl_add_u32 v2, v10, 4, v2
    s_lshl_b32 s{T0}, s2, 3
    s_add_u32 s{T0}, s{T0}, s{S_WAVE}
    s_lshl_b32 s{T0}, s{T0}, 10
    s_add_u32 s{T0}, s{T0}, {WS_Y}
    s_lshl_b32 s{T1}, s{S_D}, 16
    s_and_b32 s{T2}, s{S_D}, 0xffff0000
    v_mov_b32 v10, {BOUND2}
    """)
    for i in range(4):
        e(f"v_mov_b32 v{16+i}, -1")
    of_slot(e, T3, True, S_KF)
    e.vm("y", f"buffer_store_dwordx4 v[16:19], v{V_KO}, {sr(R_WS,4)}, s{T3} offen{SC}")
    e.wait(ds="*")
    e("s_barrier")
    for ch in range(2):
        for r in range(4):
            e(f"v_add_f32 v{C_A+8*ch+r}, v{C_A+8*ch+r}, v{C_A+8*ch+4+r}")
            e(f"v_lshlrev_b32 v{C_B+4*ch+3-r}, 16, v{C_B+4*ch+3-r}")
        for r in range(4):
            e(f"v_fmac_f32 v{C_A+8*ch+r}, s{T1+ch}, v{C_B+4*ch+3-r}")
    for r in range(4):
        e(f"v_cvt_pk_bf16_f32 v{12+r}, v{C_A+r}, v{C_A+8+r}")
    e.vm("y", f"buffer_store_dwordx4 v[12:15], v2, {sr(R_WS,4)}, s{T0} offen{SC}")
    e("v_cmp_le_f32 vcc, v11, v10")


W_FR = 16
W_FR2 = 208
N_EARLY = 7


def wfr(blk):
    return W_FR + 4 * blk if blk < N_EARLY else W_FR2 + 4 * (blk - N_EARLY)


def qk(e, j, i):
    e(f"v_mfma_f32_32x32x16_bf16 {vr(S_BUF+16*i,16)}, {vr(kv_regs(j)[0],4)}, {vr(Q_FR+4*i,4)}, 0")


def pv(e, j, i, half):
    e(f"v_smfmac_f32_32x32x32_bf16 {vr(O_ACC+16*i,16)}, {vr(kv_regs(j)[1+half],4)}, {vr(S_BUF+16*i+8*half,8)}, v{V_IDX}")


def p3_setup(e):
    srd(e, R_W, P_WO, 0x80000)
    e(f"""
    s_lshr_b32 s{T0}, s2, 5
    s_lshl_b32 s{T0}, s{T0}, 3
    s_and_b32 s{S_QT}, s2, 7
    s_add_u32 s{S_QT}, s{S_QT}, s{T0}
    s_bfe_u32 s{S_NQ}, s2, 0x20003
    s_lshr_b32 s{T3}, s{S_WAVE}, 2
    s_lshl_b32 s{S_MX}, s{S_WAVE}, 14
    v_lshrrev_b32 v5, 5, v1
    v_bfe_u32 v6, v1, 2, 2
    v_lshl_add_u32 v5, v5, 2, v6
    v_lshlrev_b32 v5, 6, v5
    v_bfe_u32 v6, v1, 4, 1
    v_xor_b32 v6, s{T3}, v6
    v_lshl_add_u32 v5, v6, 5, v5
    v_and_b32 v6, 1, v1
    v_lshl_add_u32 v5, v6, 4, v5
    v_bfe_u32 v6, v1, 1, 1
    v_lshl_add_u32 v5, v6, 3, v5
    v_add_u32 v5, s{S_MX}, v5
    s_mul_i32 s{T1}, s{S_W4}, 6912
    s_add_u32 s{T1}, s{T1}, {L_O}
    s_cmp_ge_u32 s{S_WAVE}, 4
    s_cselect_b32 s{S_XB}, s{T1}, s{S_MX}
    """)


V_WO = 248


def wo_stage(e, sfx):
    p3_setup(e)
    e(f"""
    s_lshl_b32 s{T1}, s{S_W4}, 6
    s_lshl_b32 s{T2}, s{S_NQ}, 8
    s_add_u32 s{T1}, s{T1}, s{T2}
    v_lshrrev_b32 v4, 2, v1
    v_lshlrev_b32 v4, 10, v4
    v_and_b32 v3, 3, v1
    v_lshl_add_u32 v4, v3, 4, v4
    v_add_u32 v248, s{T1}, v4
    v_add_u32 v249, 15360, v248
    v_add_u32 v250, 30720, v248
    v_add_u32 v251, 46080, v248
    s_mov_b32 s{S_WOM}, s{S_MX}
    s_mov_b32 s{S_WOS}, 0
    L_wo{sfx}:
    """)
    for g in range(2):
        e(f"s_add_u32 m0, s{S_WOM}, {g*65536}\ns_add_u32 s{T0}, s{S_WOS}, {g*262144}")
        for i in range(4):
            e(f"buffer_load_dwordx4 v{V_WO+i}, {sr(R_W,4)}, s{T0} offen offset:{i*1024} lds")
    e(f"""
    s_add_u32 s{S_WOM}, s{S_WOM}, 4096
    s_add_u32 s{S_WOS}, s{S_WOS}, 65536
    s_cmp_lt_u32 s{S_WOS}, 262144
    s_waitcnt vmcnt(0)
    s_cbranch_scc1 L_wo{sfx}
    """)


def wo_frag(e, blk):
    for j in range(2):
        e.ds("wf", f"ds_read_b64_tr_b16 {vr(wfr(blk)+2*j,2)}, v5 offset:{L_WO + blk*1024 + j*512}")


def zero_o(e):
    for i in range(4):
        e(f"v_mov_b32 v{12+i}, 0")
    for i in range(4):
        e(f"v_mfma_f32_32x32x16_bf16 {vr(O_ACC+16*i,16)}, v[12:15], v[12:15], 0")


def tile(e, j, i, before_qk=None, cluster=None, with_qk=True, with_prev=True):
    s = S_BUF + 16 * i
    ex = [f"v_exp_f32 v{s+r}, v{s+r}" for r in range(16)]
    if with_qk:
        if before_qk:
            e(before_qk)
        qk(e, j + (i == 3), (i + 1) % 4)
    e("\n".join(ex[0:4]))
    if with_prev:
        pv(e, j - (i == 0), (i + 3) % 4, 1)
    e("\n".join(ex[4:8]))
    if cluster:
        cluster()
    e("\n".join(ex[8:10]))
    pv(e, j, i, 0)
    e("\n".join(ex[10:16]))


def attn_step0(e):
    qk(e, 0, 0)
    for i in range(4):
        tile(e, 0, i, with_qk=i < 3, with_prev=i > 0)


def attn_loop(e):
    b = E()

    def third():
        b(f"s_cmp_eq_u32 s{S_IT}, 4\ns_cbranch_scc1 L_yflag\nL_third:")
        kv_load(b, 5)

    for j in (1, 2, 3):
        for i in range(4):
            cl = None if i else third if j == 3 else (lambda j=j: kv_load(b, j + 2))
            tile(b, j, i, ("s_waitcnt vmcnt(40)" if OPT.get("nowait") else "s_waitcnt vmcnt(3)") if i == 3 else None, cl)
    b(f"s_sub_u32 s{S_IT}, s{S_IT}, 1\ns_cbranch_scc0 L_loop")
    check_seq(b.l + b.l, "attention loop")
    e.wait(vm="kv1")
    qk(e, 1, 0)
    stamp(e, 4)
    e(f"s_mov_b32 s{S_IT}, 4\ns_nop 10\nL_loop:")
    e("\n".join(b.l))
    e.vmq = []
    pv(e, 3, 3, 1)


def attn_slow(e):
    M = 44
    for i in range(4):
        e(f"v_mov_b32 v{M+i}, 0xff7fffff")
    e.wait(vm="*")
    zero_o(e)
    flag_store(e, FL_Y, 2, 12, per_wave=True)
    e(f"""
    s_mul_i32 s{T2}, s{S_WAVE}, {TILE}
    s_mul_i32 s{T0}, s{S_HP}, {16*BLK}
    s_add_u32 s{T2}, s{T2}, s{T0}
    s_mov_b32 s{T3}, 0
    L_slowloop:
    """)
    kv_load(e, 0, f"s{T2}")
    e.wait(vm="*")
    for i in range(4):
        qk(e, 0, i)
    for i in range(4):
        s, o = S_BUF + 16 * i, O_ACC + 16 * i
        e(f"v_max3_f32 v10, v{s}, v{s+1}, v{M+i}")
        for r in range(2, 16, 2):
            e(f"v_max3_f32 v10, v{s+r}, v{s+r+1}, v10")
        e(f"""
        v_mov_b32 v11, v10
        v_permlane32_swap_b32 v10, v11
        v_max_f32 v10, v10, v11
        v_sub_f32 v11, v{M+i}, v10
        v_exp_f32 v11, v11
        v_mov_b32 v{M+i}, v10
        """)
        for r in range(16):
            e(f"v_sub_f32 v{s+r}, v{s+r}, v10\nv_exp_f32 v{s+r}, v{s+r}")
        for r in range(16):
            e(f"v_mul_f32 v{o+r}, v{o+r}, v11")
        pv(e, 0, i, 0)
        pv(e, 0, i, 1)
    e(f"""
    s_add_u32 s{T2}, s{T2}, {BLK}
    s_add_u32 s{T3}, s{T3}, 1
    s_cmp_lt_u32 s{T3}, 16
    s_nop 7
    s_nop 7
    s_cbranch_scc1 L_slowloop
    """)


def attn_combine(e, slow):
    M, R = 44, S_BUF
    XM = L_O + 4 * 6912
    e(f"s_cmp_ge_u32 s{S_WAVE}, 4\ns_cbranch_scc1 L_nofr{int(slow)}")
    wo_stage(e, int(slow))
    for blk in range(N_EARLY):
        wo_frag(e, blk)
    e.wait(ds="*")
    e(f"L_nofr{int(slow)}:\ns_nop 1\nv_add_u32 v12, s{S_XB}, v{V_KO}\nv_lshl_add_u32 v13, v1, 2, s{S_XB}")
    order = (1, 2, 3)
    for i in order:
        o, off = O_ACC + 16 * i, (i - 1) * 2304
        e.ds("xw", f"ds_write_b128 v12, {vr(o,4)} offset:{off}")
        e.ds("xw", f"ds_write_b128 v12, {vr(o+4,4)} offset:{off+1024}")
        e.ds("xw", f"ds_write_b32 v13, v{o+8} offset:{off+2048}")
    if slow:
        e(f"s_mul_i32 s{T0}, s{S_WAVE}, 384\ns_add_u32 s{T0}, s{T0}, {XM}\nv_and_b32 v15, 31, v1\nv_lshl_add_u32 v14, v15, 2, s{T0}")
        for i in order:
            e.ds("xw", f"ds_write_b32 v14, v{M+i} offset:{(i-1)*128}")
    e(f"s_movk_i32 s{T1}, 0x4000\ns_cmp_ge_u32 s{S_WAVE}, 4\ns_cselect_b32 s{T1}, 6912, s{T1}\ns_cselect_b32 s{T3}, {L_O}, 0")
    for i in order:
        e(f"""
        s_sub_u32 s{T0}, s{S_W4}, {i}
        s_and_b32 s{T0}, s{T0}, 3
        s_mul_i32 s{T2}, s{T0}, s{T1}
        s_add_u32 s{T2}, s{T2}, s{T3}
        v_add_u32 v{48+i}, s{T2}, v{V_KO}
        v_lshl_add_u32 v{52+i}, v1, 2, s{T2}
        """)
        if slow:
            e(f"s_and_b32 s{T2}, s{S_WAVE}, 4\ns_add_u32 s{T0}, s{T0}, s{T2}\ns_mul_i32 s{T0}, s{T0}, 384\ns_add_u32 s{T0}, s{T0}, {XM}\nv_lshl_add_u32 v{56+i}, v15, 2, s{T0}")
    sfx = "s" if slow else "f"
    e(f"""
    s_cmp_lg_u32 s{S_WAVE}, 0
    s_cbranch_scc1 L_noy{sfx}
    v_lshlrev_b32 v9, 10, v1
    s_lshl_b32 s{T2}, s{S_NQ}, 16
    s_lshr_b32 s{T3}, s{S_QT}, 3
    s_lshl_b32 s{T3}, s{T3}, 7
    s_add_u32 s{T2}, s{T2}, s{T3}
    s_add_u32 s{T2}, s{T2}, {FL_Y}
    v_bfe_u32 v10, v1, 1, 3
    v_lshlrev_b32 v10, 15, v10
    v_bfe_u32 v11, v1, 4, 1
    v_lshl_add_u32 v10, v11, 10, v10
    v_and_b32 v11, 1, v1
    v_lshl_add_u32 v10, v11, 9, v10
    s_bfe_u32 s{T3}, s{S_QT}, 0x20002
    s_lshl_b32 s{T3}, s{T3}, 13
    s_lshr_b32 s{T0}, s{S_QT}, 4
    s_lshl_b32 s{T0}, s{T0}, 11
    s_add_u32 s{T3}, s{T3}, s{T0}
    s_and_b32 s{T0}, s{S_QT}, 3
    s_lshl_b32 s{T0}, s{T0}, 7
    s_add_u32 s{T3}, s{T3}, s{T0}
    s_add_u32 s{T3}, s{T3}, {FL_Y}
    """)
    poll(e, "L_polly" + sfx, [f"buffer_load_dword v14, v9, {sr(R_WS,4)}, s{T2} offen{SC}",
                              f"buffer_load_dword v11, v10, {sr(R_WS,4)}, s{T3} offen{SC}"], [14, 11])
    e(f"L_noy{sfx}:")
    of_slot(e, T0, True)
    e.wait(ds="xw")
    e("s_barrier")
    for n, i in enumerate(order):
        off = (i - 1) * 2304
        e.ds(f"xr{n}", f"ds_read_b128 {vr(R+12*n,4)}, v{48+i} offset:{off}")
        e.ds(f"xr{n}", f"ds_read_b128 {vr(R+12*n+4,4)}, v{48+i} offset:{off+1024}")
        e.ds(f"xr{n}", f"ds_read_b32 v{R+12*n+8}, v{52+i} offset:{off+2048}")
        if slow:
            e.ds(f"xr{n}", f"ds_read_b32 v{R+12*n+9}, v{56+i} offset:{(i-1)*128}")
    if slow:
        e.wait(ds="*")
        e(f"v_max3_f32 v10, v{M}, v{R+9}, v{R+21}\nv_max_f32 v10, v10, v{R+33}")
        for src, base in ((M, O_ACC), (R + 9, R), (R + 21, R + 12), (R + 33, R + 24)):
            e(f"v_sub_f32 v11, v{src}, v10\nv_exp_f32 v11, v11")
            for r in range(9):
                e(f"v_mul_f32 v{base+r}, v{base+r}, v11")
    for n in range(3):
        e.wait(ds=f"xr{n}")
        e(f"v_add_f32 v{O_ACC+8}, v{O_ACC+8}, v{R+12*n+8}")
        for r in range(0, 8, 2):
            e(f"v_pk_add_f32 {vr(O_ACC+r,2)}, {vr(O_ACC+r,2)}, {vr(R+12*n+r,2)}")
    e(f"v_rcp_f32 v{O_ACC+8}, v{O_ACC+8}")
    for r in range(0, 8, 2):
        e(f"v_pk_mul_f32 {vr(O_ACC+r,2)}, {vr(O_ACC+r,2)}, {vr(O_ACC+8,2)} op_sel_hi:[1,0]")
    for r in range(4):
        e(f"v_cvt_pk_bf16_f32 v{O_ACC+12+r}, v{O_ACC+2*r}, v{O_ACC+2*r+1}")
    for r in range(4):
        e(f"v_min_u32 v{O_ACC+12+r}, -2, v{O_ACC+12+r}")
    e.vm("o", f"buffer_store_dwordx4 {vr(O_ACC+12,4)}, v{V_KO}, {sr(R_WS,4)}, s{T0} offen{SC}")


B_X, B_Y, B_G, V_OUT, B_T = 96, 100, 104, 105, 112
O_FR, P_ACC = 128, 80


def ofo(blk):
    return (blk // 4) * 16384 + 8192 + (blk % 4) * 1024


def tail(e):
    OP = Q_FR
    stamp(e, 13)
    srd(e, R_X, P_X, 0x200000)
    srd(e, R_OUT, P_OUT, 0x200000)
    e(f"""
    s_lshl_b32 s{T1}, s{S_W4}, 1
    s_lshr_b32 s{T2}, s{S_WAVE}, 2
    s_add_u32 s{T1}, s{T1}, s{T2}
    s_lshl_b32 s{T2}, s{S_NQ}, 3
    s_add_u32 s{S_ROW}, s{T1}, s{T2}
    v_and_b32 v8, 31, v1
    v_lshrrev_b32 v6, 5, v1
    v_lshlrev_b32 v{V_OUT}, 10, v8
    v_lshl_add_u32 v{V_OUT}, v6, 4, v{V_OUT}
    s_lshl_b32 s{T2}, s{S_QT}, 15
    s_lshl_b32 s{T3}, s{S_ROW}, 5
    s_add_u32 s{T2}, s{T2}, s{T3}
    v_add_u32 v{V_OUT}, s{T2}, v{V_OUT}
    """)
    e.vm("b", f"buffer_load_dwordx4 {vr(B_X,4)}, v{V_OUT}, {sr(R_X,4)}, 0 offen")
    e(f"""
    v_bfe_u32 v7, v1, 3, 2
    v_lshlrev_b32 v7, 5, v7
    v_and_b32 v9, 1, v1
    v_lshl_add_u32 v7, v9, 4, v7
    v_bfe_u32 v9, v1, 1, 2
    v_lshl_add_u32 v7, v9, 2, v7
    v_lshl_add_u32 v7, v6, 15, v7
    s_lshl_b32 s{T2}, s{S_ROW}, 16
    s_lshl_b32 s{T3}, s{S_QT}, 7
    s_add_u32 s{T2}, s{T2}, s{T3}
    s_add_u32 s{T2}, s{T2}, {WS_Y}
    """)
    for jj in range(4):
        e.vm("b", f"buffer_load_dword v{B_Y+jj}, v7, {sr(R_WS,4)}, s{T2} offen{SC}")
        if jj < 3:
            e(f"s_add_u32 s{T2}, s{T2}, 8192")
    e(f"v_lshlrev_b32 v8, 2, v8\ns_add_u32 s{T3}, s{T3}, {WS_G}")
    e.vm("b", f"buffer_load_dword v{B_G}, v8, {sr(R_WS,4)}, s{T3} offen{SC}")
    e.wait(vm="wo")
    for blk in range(N_EARLY, 16):
        wo_frag(e, blk)
    e(f"s_cmp_lt_u32 s{S_WAVE}, 4\ns_cbranch_scc1 L_nofr2")
    for blk in range(N_EARLY):
        wo_frag(e, blk)
    e(f"""
    L_nofr2:
    s_lshl_b32 s{T3}, s{S_WAVE}, 12
    s_lshl_b32 s{T2}, s{S_QT}, 15
    s_add_u32 s{T3}, s{T3}, s{T2}
    s_add_u32 s{T3}, s{T3}, {WS_OF}
    s_lshr_b32 s{T1}, s{S_WAVE}, 2
    s_lshl_b32 s{T1}, s{T1}, 16
    v_add_u32 v6, s{T1}, v{V_KO}
    v_add_u32 v7, s{S_MX}, v{V_KO}
    v_xor_b32 v8, 0x10000, v7
    s_mov_b32 s{S_SPIN}, {SPIN_MAX}
    """)
    e.wait(vm="o")
    stamp(e, 14)
    loads = [f"buffer_load_dwordx4 {vr(OP+4*i,4)}, v{V_KO}, {sr(R_WS,4)}, s{T3} offen offset:{i*1024}{SC}" for i in range(4)]
    for ld in loads:
        e.vm("op", ld)
    e.wait(vm="b")
    e(f"v_sub_f32 v10, 1.0, v{B_G}")
    for i in range(4):
        e(f"""
        v_lshlrev_b32 v{B_T+2*i}, 16, v{B_X+i}
        v_and_b32 v{B_T+2*i+1}, 0xffff0000, v{B_X+i}
        v_lshlrev_b32 v12, 16, v{B_Y+i}
        v_and_b32 v13, 0xffff0000, v{B_Y+i}
        v_pk_mul_f32 {vr(B_T+2*i,2)}, {vr(B_T+2*i,2)}, v[12:13]
        v_pk_mul_f32 {vr(B_T+2*i,2)}, {vr(B_T+2*i,2)}, v[10:11] op_sel_hi:[1,0]
        """)
    e("s_branch L_pollo_chk\nL_pollo:")
    e("\n".join(loads))
    e(f"L_pollo_chk:\ns_waitcnt vmcnt(0)\nv_max3_u32 v12, v{OP}, v{OP+1}, v{OP+2}")
    e.vmq = []
    for i in range(3, 15, 2):
        e(f"v_max3_u32 v12, v12, v{OP+i}, v{OP+i+1}")
    e(f"""
    v_max_u32 v12, v12, v{OP+15}
    v_cmp_eq_u32 vcc, -1, v12
    s_cbranch_vccz L_pollo_ok
    s_sub_u32 s{S_SPIN}, s{S_SPIN}, 1
    s_cbranch_scc0 L_pollo
    L_pollo_ok:
    """)
    e.wait(ds="*")
    for i in range(4):
        e.ds("ow", f"ds_write_b128 v7, {vr(OP+4*i,4)} offset:{8192 + i*1024}")
    stamp(e, 15)
    e.wait(ds="*")
    e("s_barrier")
    stamp(e, 16)
    for blk in range(8):
        e.ds(f"of{blk}", f"ds_read_b128 {vr(O_FR+4*blk,4)}, v6 offset:{ofo(blk)}")
    for blk in range(16):
        e.wait(ds=f"of{blk}")
        c = "0" if blk == 0 else vr(P_ACC, 16)
        e(f"v_mfma_f32_32x32x16_bf16 {vr(P_ACC,16)}, {vr(wfr(blk),4)}, {vr(O_FR+4*blk,4)}, {c}")
        if blk + 8 < 16:
            e.ds(f"of{blk+8}", f"ds_read_b128 {vr(O_FR+4*(blk+8),4)}, v6 offset:{ofo(blk+8)}")
    e.ds("pw", f"ds_write_b128 v7, {vr(P_ACC+8,4)} offset:12288")
    e.ds("pw", f"ds_write_b128 v7, {vr(P_ACC+12,4)} offset:13312")
    e.wait(ds="pw")
    e("s_barrier")
    e.ds("pr", f"ds_read_b128 {vr(O_FR,4)}, v8 offset:12288")
    e.ds("pr", f"ds_read_b128 {vr(O_FR+4,4)}, v8 offset:13312")
    e.wait(ds="pr")
    for r in range(0, 8, 2):
        e(f"v_pk_add_f32 {vr(P_ACC+r,2)}, {vr(P_ACC+r,2)}, {vr(O_FR+r,2)}")
    for r in range(0, 8, 2):
        e(f"v_pk_fma_f32 {vr(P_ACC+r,2)}, {vr(P_ACC+r,2)}, {vr(B_G,2)}, {vr(B_T+r,2)} op_sel_hi:[1,0,1]")
    for r in range(4):
        e(f"v_cvt_pk_bf16_f32 v{O_FR+r}, v{P_ACC+2*r}, v{P_ACC+2*r+1}")
    e.vm("st", f"buffer_store_dwordx4 {vr(O_FR,4)}, v{V_OUT}, {sr(R_OUT,4)}, 0 offen")
    e(f"s_or_b32 s{T0}, s2, s{S_WAVE}\ns_cbranch_scc1 L_nogen\nv_mov_b32 v12, s{S_TAG}\nv_mov_b32 v13, {WS_GEN}\ns_mov_b64 exec, 1")
    e(f"buffer_store_dword v12, v13, {sr(R_WS,4)}, 0 offen sc0 sc1\ns_mov_b64 exec, -1\nL_nogen:")
    stamp_flush(e, 17)


def kernel():
    q = E()
    prologue(q)
    stamp(q, 0)
    e = E()
    staging(q)
    loader_setup(e)
    gemm_v(e)
    stamp(e, 8)
    epi_v(e)
    e.wait(ds="*")
    e("s_barrier")
    stamp(e, 9)
    attn_reads(e)
    zero_o(e)
    norms_max(e)
    if not OPT.get("late"):
        kv_signal(e, "v")
    stamp(e, 28)
    attn_step0(e)
    if OPT.get("late"):
        kv_signal(e, "v")
    stamp(e, 29)
    e("s_barrier")
    e.vmq, e.dsq = [], []
    stamp(e, 18)
    p3_setup(e)
    conv_addresses(e)
    e("s_waitcnt lgkmcnt(0)")
    kv_wait_and_decide(e)
    stamp(e, 19)
    e("s_barrier\nL_join:")
    gemm_qk(q)
    if OPT.get("qprio"):
        q("s_setprio 0")
    stamp(q, 8)
    epi_qk(q)
    q.wait(ds="*")
    q("s_barrier")
    stamp(q, 9)
    attn_reads(q)
    conv_u_loads(q)
    gate_loads(q)
    zero_o(q)
    norms_max(q)
    stamp(q, 28)
    attn_step0(q)
    kv_signal(q, "q")
    stamp(q, 29)
    conv_u_pad(q)
    gate_compute(q)
    q("s_waitcnt lgkmcnt(0)\ns_barrier")
    q.dsq = []
    stamp(q, 18)
    conv_mfma(q)
    stamp(q, 19)
    q("s_barrier")
    for jj in (1, 2):
        kv_load(q, jj)
    q("s_branch L_join\nL_vrole:")
    j = E()
    j.vmq = [f"kv{k}" for k in (1, 2) for _ in range(3)]
    assert e.vmq == j.vmq and q.vmq[-6:] == j.vmq
    stamp(j, 10)
    conv_final(j)
    j("s_cbranch_vccz L_slow" if not OPT.get("slow") else "s_branch L_slow")
    stamp(j, 11)
    attn_loop(j)
    stamp(j, 12)
    attn_combine(j, False)
    j("L_tail:")
    j.vmq = ["wo", "o"]
    tail(j)
    j("L_end:\ns_endpgm")
    x = E()
    x("L_yflag:")
    flag_store(x, FL_Y, 2, 12, per_wave=True)
    x("s_branch L_third\nL_slow:")
    x.vmq = ["y"]
    attn_slow(x)
    attn_combine(x, True)
    x("L_last:\ns_branch L_tail")
    return q.l + e.l + j.l + x.l


def build():
    hdr = open(__file__.replace("gen/gen_v14.py", "cdna_kernels/" + NAME.replace("_kernel", ".s.ref")).replace("gen_v14.py", "../cdna_kernels/" + NAME.replace("_kernel", ".s.ref"))).read()
    head = hdr[:hdr.index("; @launch")]
    out = [head + f"; @launch grid=(256,1,1) block=(512,1,1) lds={LDS}", '.amdgcn_target "amdgcn-amd-amdhsa--gfx950"', ".text",
           f".globl {NAME}", ".p2align 8", f".type {NAME},@function", f"{NAME}:"]
    body = pad(kernel())
    check_edges(body)
    out += body
    out.append(f""".section .rodata,"a"
.p2align 6
.amdhsa_kernel {NAME}
  .amdhsa_next_free_vgpr 256
  .amdhsa_next_free_sgpr 96
  .amdhsa_accum_offset 256
  .amdhsa_group_segment_fixed_size 0
  .amdhsa_kernarg_size 104
  .amdhsa_user_sgpr_count 2
  .amdhsa_user_sgpr_kernarg_segment_ptr 1
  .amdhsa_system_sgpr_workgroup_id_x 1
  .amdhsa_float_denorm_mode_32 3
.end_amdhsa_kernel""")
    return "\n".join(out) + "\n"


if __name__ == "__main__":
    for a in sys.argv[2:]:
        OPT[a] = True
    open(sys.argv[1], "w").write(build())
```

```python
import sys
from asmlib import E, vr, sr, pad, check_seq, check_edges

NAME = "gated_mix__mha_block__ssm_conv_h3__prompt_kernel"
OPT = {}

TILE = 2176
BLK = 32768
WS_KV = 0x0000000
WS_U = 0x1000000
WS_Y = 0x0A00000
WS_OF = 0x0C00000
WS_G = 0x0E00000
WS_FL = 0x0E10000
FL_KV, FL_U, FL_Y = WS_FL, WS_FL + 0x8000, WS_FL + 0x10000
WS_GEN = WS_FL + 0x50000
WS_ST = 0x0F00000
WS_SIZE = 0x1400000
OOB = 0x7F000000

QSCALE = 0x3EB8AA3B
NLOG2E = 0xBFB8AA3B
BOUND2 = 0x44610000
SPIN_MAX = 1 << 18

P_X, P_W, P_WO, P_K, P_V, P_SH, P_H, P_D, P_GW, P_OUT, P_WS = 16, 18, 20, 24, 26, 28, 30, 32, 34, 36, 40
S_WAVE, S_HP, S_J, S_CG, S_TB = 3, 4, 5, 6, 7
T0, T1, T2, T3 = 8, 9, 10, 11
S_MX, S_MW, S_ROW, S_W4 = 12, 13, 14, 15
S_D, S_TAG = 42, 43
R_X, R_W, R_K, R_V, R_SH, R_GW, R_WS, R_H, R_OUT = 44, 48, 52, 56, 60, 64, 68, 72, 76
S_KVB, S_KVN, S_KVO, S_IT, S_WOS, S_XB, S_KF, S_WOM = 88, 89, 90, 91, 92, 93, 94, 95
S_BLK, S_ROT, S_SPIN, S_MODE, S_QT, S_NQ = 80, 81, 82, 83, 84, 85

SLOT = 28672
L_Z = 4 * SLOT
L_A, A_COPY = L_Z, 4160
L_PRE = L_Z
L_STG = L_PRE + 64 * 144
L_Q = L_A + 8 * 4160
L_MISC = L_Q + 8192
L_B, B_COPY = 0, 4576
L_KVO = SLOT
L_P = 2 * SLOT
L_WO, L_O = 0, 131072
LDS = 163840
XCH = 2560

SC = " sc1"


def srd(e, r, p, size):
    e(f"s_mov_b32 s{r}, s{p}\ns_mov_b32 s{r+1}, s{p+1}\ns_mov_b32 s{r+2}, {size}\ns_mov_b32 s{r+3}, 0x20000")


def stamp(e, i):
    if OPT.get("stamp"):
        e(f"s_memrealtime s[86:87]\ns_waitcnt lgkmcnt(0)\nv_writelane_b32 v255, s86, {i}")
        e(f"s_memtime s[86:87]\ns_waitcnt lgkmcnt(0)\nv_writelane_b32 v255, s86, {32+i}")
        e.dsq = []


def stamp_flush(e, n):
    if OPT.get("stamp"):
        e.wait(vm="*")
        stamp(e, n)
        e(f"""
        s_lshl_b32 s86, s2, 3
        s_add_u32 s86, s86, s{S_WAVE}
        s_lshl_b32 s86, s86, 8
        s_add_u32 s86, s86, {WS_ST}
        v_lshlrev_b32 v11, 2, v1
        buffer_store_dword v255, v11, {sr(R_WS,4)}, s86 offen
        """)
        if OPT.get("dbg"):
            order = [0, 20, 24, 8, 9, 18, 10, 11, 12, 13, 14, 15, 16, 17]
            e(f"s_cmp_lg_u32 s2, 100\ns_cbranch_scc1 L_nodbg\ns_cmp_lg_u32 s{S_WAVE}, 4\ns_cbranch_scc1 L_nodbg")
            srd(e, R_K, 38, 256)
            e("v_readlane_b32 s87, v255, 0")
            for n, i in enumerate(order):
                e(f"v_readlane_b32 s86, v255, {i}\ns_sub_u32 s86, s86, s87\nv_writelane_b32 v254, s86, {n}")
            e("v_readlane_b32 s86, v255, 44\nv_readlane_b32 s87, v255, 43\ns_sub_u32 s86, s86, s87\nv_writelane_b32 v254, s86, 14")
            e("v_readlane_b32 s86, v255, 49\nv_readlane_b32 s87, v255, 32\ns_sub_u32 s86, s86, s87\nv_writelane_b32 v254, s86, 15")
            e(f"s_mov_b64 exec, 0xffff\nbuffer_store_dword v254, v11, {sr(R_K,4)}, 0 offen\ns_mov_b64 exec, -1\nL_nodbg:")


def wave_reduce(e, op, regs):
    for ctl in ("row_shr:1 row_mask:0xf", "row_shr:2 row_mask:0xf", "row_shr:4 row_mask:0xf", "row_shr:8 row_mask:0xf",
                "row_bcast:15 row_mask:0xa", "row_bcast:31 row_mask:0xc"):
        for r in regs:
            e(f"{op}_dpp v{r}, v{r}, v{r} {ctl} bank_mask:0xf")


def poll(e, label, loads, words, first=None):
    e(f"s_mov_b32 s{S_SPIN}, {SPIN_MAX}")
    if first:
        e.wait(vm=first)
        e(f"s_branch {label}_chk")
    e(f"{label}:")
    for ld in loads:
        e(ld)
    e("s_waitcnt vmcnt(0)")
    if first:
        e(f"{label}_chk:")
    else:
        e.vmq = []
    e(f"v_cmp_ne_u32 vcc, s{S_TAG}, v{words[0]}")
    for w in words[1:]:
        e(f"v_cmp_ne_u32 s[{T0}:{T1}], s{S_TAG}, v{w}\ns_or_b64 vcc, vcc, s[{T0}:{T1}]")
    e(f"""
    s_cbranch_vccz {label}_ok
    s_sub_u32 s{S_SPIN}, s{S_SPIN}, 1
    s_cbranch_scc0 {label}
    {label}_ok:
    """)


def flag_store(e, base, idx_sreg, data, per_wave=False, width=4, only=None):
    if only is not None:
        e(f"s_cmp_lg_u32 s{S_WAVE}, {only}\ns_cbranch_scc1 L_nofl{base & 0xfffff:x}")
    if per_wave:
        e(f"s_lshl_b32 s{T0}, s{idx_sreg}, 3\ns_add_u32 s{T0}, s{T0}, s{S_WAVE}\ns_lshl_b32 s{T0}, s{T0}, 7")
    else:
        e(f"s_lshl_b32 s{T0}, s{idx_sreg}, 7")
    e(f"""
    s_add_u32 s{T0}, s{T0}, {base}
    v_mov_b32 v{data}, s{S_TAG}
    v_mov_b32 v2, 0
    s_lshl_b64 exec, 1, 63
    """)
    op = "dword" if width == 4 else "dwordx2"
    st = f"buffer_store_{op} {vr(data, width // 4)}, v2, {sr(R_WS,4)}, s{T0} offen{SC}"
    if only is None:
        e.vm("fl", st)
    else:
        assert not e.vmq, e.vmq
        e(st)
    e("s_mov_b64 exec, -1")
    if only is not None:
        e(f"L_nofl{base & 0xfffff:x}:")


def make_tag(e):
    e.wait(vm="gen")
    e(f"""
    v_readfirstlane_b32 s{S_TAG}, v254
    s_mul_i32 s{S_TAG}, s{S_TAG}, 0x9e3779b1
    s_add_u32 s{S_TAG}, s{S_TAG}, 0x7f4a7c15
    """)


def prologue(e):
    e(f"""
    s_cmp_ge_u32 s2, 256
    s_cbranch_scc1 L_end
    s_load_dwordx16 s[16:31], s[0:1], 0
    s_load_dwordx8 s[32:39], s[0:1], 64
    s_load_dwordx2 s[40:41], s[0:1], 96
    v_lshrrev_b32 v1, 6, v0
    v_readfirstlane_b32 s{S_WAVE}, v1
    v_and_b32 v1, 63, v0
    s_bfe_u32 s{T0}, s2, 0x20001
    s_bfe_u32 s{T1}, s2, 0x20003
    s_lshl_b32 s{S_J}, s{T0}, 2
    s_add_u32 s{S_J}, s{S_J}, s{T1}
    s_and_b32 s{T0}, s2, 1
    s_lshr_b32 s{T2}, s2, 5
    s_lshl_b32 s{S_HP}, s{T0}, 3
    s_add_u32 s{S_HP}, s{S_HP}, s{T2}
    s_lshl_b32 s{T1}, s{T1}, 1
    s_add_u32 s{S_ROT}, s{T2}, s{T1}
    s_lshl_b32 s{S_BLK}, s{S_HP}, 4
    s_add_u32 s{S_BLK}, s{S_BLK}, s{S_J}
    s_and_b32 s{S_CG}, s2, 7
    s_lshr_b32 s{S_TB}, s2, 3
    s_and_b32 s{S_W4}, s{S_WAVE}, 3
    v_mov_b32 v2, {WS_GEN}
    """)
    if OPT.get("codepf"):
        e(f"""
        s_cmp_lg_u32 s{S_WAVE}, 7
        s_cbranch_scc1 L_nocpf
        s_getpc_b64 s[{T0}:{T1}]
        L_pc:
        s_mul_hi_u32 s{T2}, s{S_TB}, 0x55555556
        s_mul_i32 s{T2}, s{T2}, 3
        s_sub_u32 s{T2}, s{S_TB}, s{T2}
        s_lshl_b32 s{T2}, s{T2}, 13
        v_lshl_add_u32 v8, v1, 7, s{T2}
        v_min_u32 v8, L_last - L_pc, v8
        v_mov_b32 v9, s{T1}
        v_add_co_u32 v8, vcc, s{T0}, v8
        v_addc_co_u32 v9, vcc, 0, v9, vcc
        global_load_dword v253, v[8:9], off
        L_nocpf:
        """)
    if OPT.get("rot3"):
        e(f"s_lshr_b32 s{T2}, s2, 5\ns_and_b32 s{T2}, s{T2}, 1\ns_sub_u32 s{S_ROT}, s{S_ROT}, s{T2}")
    if OPT.get("norot"):
        e(f"s_mov_b32 s{S_ROT}, 0")
    if OPT.get("rot2"):
        e(f"s_and_b32 s{S_ROT}, s{S_ROT}, 1\ns_lshl_b32 s{S_ROT}, s{S_ROT}, 2")


V_XD, V_WD = 4, 3
V_ADR = 128
ACC0, ACC1 = 96, 112
FR = 144


def frag_addresses(e):
    e(f"""
    v_and_b32 v56, 31, v1
    v_lshrrev_b32 v57, 5, v1
    v_bfe_u32 v58, v1, 1, 3
    v_xor_b32 v58, v58, v57
    v_lshlrev_b32 v58, 4, v58
    v_lshl_add_u32 v58, v56, 7, v58
    s_lshl_b32 s{T0}, s{S_W4}, 12
    v_add_u32 v{V_ADR}, s{T0}, v58
    v_xor_b32 v{V_ADR+1}, 32, v{V_ADR}
    v_xor_b32 v{V_ADR+2}, 64, v{V_ADR}
    v_xor_b32 v{V_ADR+3}, 0x60, v{V_ADR}
    v_bfe_u32 v58, v1, 2, 2
    v_lshl_add_u32 v58, v57, 3, v58
    v_lshlrev_b32 v58, 6, v58
    v_bfe_u32 v59, v1, 4, 1
    v_lshl_add_u32 v58, v59, 5, v58
    v_and_b32 v59, 3, v1
    v_lshl_add_u32 v58, v59, 3, v58
    v_add_u32 v{V_ADR+4}, 0x4000, v58
    """)
    for i in range(5):
        e(f"v_add_u32 v{V_ADR+5+i}, {2*SLOT}, v{V_ADR+i}")


def chunk_dma_steps(e, c):
    slot = (c % 4) * SLOT

    def x(i):
        if i == 0:
            e(f"s_add_u32 s{T1}, s{S_ROT}, {c}\ns_and_b32 s{T1}, s{T1}, 7\ns_add_u32 m0, s{S_MX}, {slot}\ns_lshl_b32 s{T0}, s{T1}, 7")
        e.vm(f"c{c}", f"buffer_load_dwordx4 v{V_XD+i}, {sr(R_X,4)}, s{T0} offen offset:{i*1024} lds")

    def w(part):
        if part == 0:
            e(f"s_add_u32 m0, s{S_MW}, {slot}\ns_mul_i32 s{T0}, s{T1}, 196608")
        e.vm(f"c{c}", f"buffer_load_dwordx4 v{V_WD}, {sr(R_W,4)}, s{T0} offen offset:{part*1024} lds")

    return [lambda i=i: x(i) for i in range(4)] + [lambda p=p: w(p) for p in range(3)]


def frag_reads(e, c, ks, parts, f):
    a, imm = V_ADR + 5 * ((c % 4) // 2), (c % 2) * SLOT
    e.ds(f"r{c}_{ks}", f"ds_read_b128 {vr(f,4)}, v{a+ks} offset:{imm}")
    for n, part in enumerate(parts):
        for j in range(1 if OPT.get("xhalfw") else 2):
            e.ds(f"r{c}_{ks}", f"ds_read_b64_tr_b16 {vr(f+4+4*n+2*j,2)}, v{a+4} offset:{imm + (ks*3+part)*1024 + j*256}")


SH, GX, GW = 32, 48, 56


def gate_loads(e):
    srd(e, R_GW, P_GW, 1024)
    e(f"""
    s_lshl_b32 s{S_ROW}, s{S_J}, 2
    s_add_u32 s{S_ROW}, s{S_ROW}, s{S_W4}
    s_lshl_b32 s{S_ROW}, s{S_ROW}, 4
    s_add_u32 s{S_ROW}, s{S_ROW}, s{S_HP}
    s_lshl_b32 s{T2}, s{S_ROW}, 11
    """)
    e.vm("gate", f"buffer_load_dwordx4 {vr(GX,4)}, v{V_KO}, {sr(R_X,4)}, s{T2} offen")
    e.vm("gate", f"buffer_load_dwordx4 {vr(GX+4,4)}, v{V_KO}, {sr(R_X,4)}, s{T2} offen offset:1024")
    e.vm("gate", f"buffer_load_dwordx4 {vr(GW,4)}, v{V_KO}, {sr(R_GW,4)}, 0 offen")


def gate_compute(e):
    e.wait(vm="gate")
    for i in range(4):
        for r in range(2):
            e(f"v_dot2_f32_bf16 v{10+r}, v{GX+4*r+i}, v{GW+i}, {'0' if i == 0 else f'v{10+r}'}")
    wave_reduce(e, "v_add_f32", [10, 11])
    for op in (f"v_mul_f32 v{{0}}, {NLOG2E}, v{{0}}", "v_exp_f32 v{0}, v{0}", "v_add_f32 v{0}, 1.0, v{0}", "v_rcp_f32 v{0}, v{0}"):
        e(op.format(10) + "\n" + op.format(11))
    e(f"s_lshl_b32 s{T2}, s{S_ROW}, 3\ns_add_u32 s{T2}, s{T2}, {WS_G}\nv_mov_b32 v2, 0\ns_lshl_b64 exec, 1, 63")
    e.vm("g", f"buffer_store_dwordx2 v[10:11], v2, {sr(R_WS,4)}, s{T2} offen{SC}")
    e("s_mov_b64 exec, -1")


def staging(e):
    e(f"""
    s_lshl_b32 s{T0}, s{S_TB}, 2
    s_add_u32 s{T0}, s{T0}, s{S_WAVE}
    s_lshl_b32 s{T0}, s{T0}, 14
    s_lshl_b32 s{T1}, s{S_CG}, 7
    s_add_u32 s{T0}, s{T0}, s{T1}
    v_lshrrev_b32 v54, 3, v1
    v_and_b32 v55, 7, v1
    v_lshlrev_b32 v55, 4, v55
    v_lshl_add_u32 v54, v54, 10, v55
    v_add_u32 v54, s{T0}, v54
    v_add_u32 v53, 0xffffe000, v54
    v_add_u32 v55, 0x2000, v54
    s_mul_i32 s{S_MX}, s{S_WAVE}, 5120
    s_add_u32 s{S_MX}, s{S_MX}, {L_STG}
    s_cmp_ge_u32 s{S_WAVE}, 4
    s_waitcnt lgkmcnt(0)
    s_cbranch_scc1 L_vrole
    """)
    srd(e, R_SH, P_SH, 4096)
    e(f"v_and_b32 v49, 31, v1\ns_lshl_b32 s{T1}, s{S_CG}, 9\nv_lshl_add_u32 v6, v49, 4, s{T1}")
    e.vm("pre", f"buffer_load_dwordx4 {vr(SH,4)}, v6, {sr(R_SH,4)}, 0 offen")
    srd(e, R_K, P_K, 0x200000)
    srd(e, R_V, P_V, 0x200000)
    for n, (r, v) in enumerate(((R_K, 53), (R_K, 54), (R_K, 55), (R_V, 54), (R_V, 55))):
        e(f"s_add_u32 m0, s{S_MX}, {n*1024}")
        e.vm("pre", f"buffer_load_dwordx4 v{v}, {sr(r,4)}, 0 offen lds")


def wo_prefetch(e):
    e(f"""
    s_cmp_ge_u32 s{S_WAVE}, 6
    s_cbranch_scc1 L_nowopf
    s_lshr_b32 s{T0}, s2, 5
    s_lshl_b32 s{T0}, s{T0}, 1
    s_add_u32 s{T0}, s{T0}, s{S_W4}
    s_lshl_b32 s{T0}, s{T0}, 15
    s_lshl_b32 s{T1}, s{S_NQ}, 8
    s_add_u32 s{T0}, s{T0}, s{T1}
    v_lshrrev_b32 v10, 1, v1
    v_lshlrev_b32 v10, 10, v10
    v_and_b32 v11, 1, v1
    v_lshl_add_u32 v10, v11, 7, v10
    buffer_load_dword v252, v10, {sr(R_W,4)}, s{T0} offen
    L_nowopf:
    """)


def prepass_compute(e):
    KR, VR, KF, VF, WF, U, PK = 8, 20, 144, 166, 182, 190, 144
    e(f"""
    v_lshrrev_b32 v48, 5, v0
    v_lshrrev_b32 v53, 5, v1
    v_lshlrev_b32 v53, 10, v53
    v_lshl_add_u32 v53, v49, 2, v53
    v_add_u32 v53, s{S_MX}, v53
    """)
    for i in range(11):
        e.ds(f"pk{i//4}", f"ds_read_b32 v{KR+i}, v53 offset:{(5+i)*128}")
    e(f"""
    v_mul_u32_u24 v50, 288, v49
    v_lshlrev_b32 v48, 4, v48
    v_sub_u32 v50, v50, v48
    v_add_u32 v50, {L_PRE + 112}, v50
    """)
    for j in range(4):
        if j % 2 == 0:
            e(f"v_lshlrev_b32 v{WF+2*j}, 16, v{SH+j//2}\nv_lshlrev_b32 v{WF+2*j+1}, 16, v{SH+2+j//2}")
        else:
            e(f"v_and_b32 v{WF+2*j}, 0xffff0000, v{SH+j//2}\nv_and_b32 v{WF+2*j+1}, 0xffff0000, v{SH+2+j//2}")
    for i in range(11):
        if i % 4 == 0:
            e.wait(ds=f"pk{i//4}")
        if i == 4:
            for k in range(8):
                e.ds("pv", f"ds_read_b32 v{VR+k}, v53 offset:{3072 + k*128}")
        e(f"v_lshlrev_b32 v{KF+2*i}, 16, v{KR+i}\nv_and_b32 v{KF+2*i+1}, 0xffff0000, v{KR+i}")
    for j in (3, 2, 1, 0):
        for o in range(8):
            kr = KF + 2 * (o + 3 - j)
            if j == 3:
                e(f"v_pk_mul_f32 {vr(U+2*o,2)}, {vr(kr,2)}, {vr(WF+2*j,2)}")
            else:
                e(f"v_pk_fma_f32 {vr(U+2*o,2)}, {vr(kr,2)}, {vr(WF+2*j,2)}, {vr(U+2*o,2)}")
    e.wait(ds="pv")
    for i in range(8):
        e(f"v_lshlrev_b32 v{VF+2*i}, 16, v{VR+i}\nv_and_b32 v{VF+2*i+1}, 0xffff0000, v{VR+i}")
    for o in range(8):
        e(f"v_pk_mul_f32 {vr(U+2*o,2)}, {vr(U+2*o,2)}, {vr(VF+2*o,2)}")
    for ch in range(2):
        for q in range(4):
            e(f"v_cvt_pk_bf16_f32 v{PK+4*ch+q}, v{U+2*(7-2*q)+ch}, v{U+2*(6-2*q)+ch}")
        e.ds("pw", f"ds_write_b128 v50, {vr(PK+4*ch,4)} offset:{ch*144}")
    e(f"""
    v_lshrrev_b32 v48, 3, v0
    v_and_b32 v52, 7, v0
    v_lshlrev_b32 v52, 4, v52
    v_mul_u32_u24 v51, 144, v48
    v_add_u32 v51, v51, v52
    v_add_u32 v51, {L_PRE}, v51
    v_lshl_add_u32 v52, v48, 12, v52
    s_lshl_b32 s{S_MW}, s{S_CG}, 18
    s_lshl_b32 s{T3}, s{S_TB}, 7
    s_sub_u32 s{S_MW}, s{S_MW}, s{T3}
    s_add_u32 s{S_MW}, s{S_MW}, {WS_U + 3968}
    """)


def prepass_read(e):
    e.ds("pr", "ds_read_b128 v[8:11], v51")
    e.ds("pr", f"ds_read_b128 v[12:15], v51 offset:{32*144}")


def prepass_out(e):
    e(f"s_add_u32 s{T1}, s{S_MW}, {32*4096}")
    e.wait(ds="pr")
    e.vm("ust", f"buffer_store_dwordx4 v[8:11], v52, {sr(R_WS,4)}, s{S_MW} offen{SC}")
    e.vm("ust", f"buffer_store_dwordx4 v[12:15], v52, {sr(R_WS,4)}, s{T1} offen{SC}")


def of_slot(e, s, with_head, tmp=T1):
    e(f"""
    s_lshl_b32 s{s}, s{S_J}, 2
    s_add_u32 s{s}, s{s}, s{S_W4}
    s_lshl_b32 s{s}, s{s}, 4
    s_add_u32 s{s}, s{s}, s{S_HP}
    s_lshl_b32 s{s}, s{s}, 1
    """)
    if with_head:
        e(f"s_lshr_b32 s{tmp}, s{S_WAVE}, 2\ns_add_u32 s{s}, s{s}, s{tmp}")
    e(f"s_lshl_b32 s{s}, s{s}, 10\ns_add_u32 s{s}, s{s}, {WS_OF}")


UFLAG_AT = 4


def gemm_qk(e):
    srd(e, R_X, P_X, 0x200000)
    srd(e, R_WS, P_WS, WS_SIZE)
    e.vm("gen", f"buffer_load_dword v254, v2, {sr(R_WS,4)}, 0 offen sc0 sc1")
    frag_addresses(e)
    e(f"v_mov_b32 v8, {L_MISC + 64}\nv_mov_b32 v9, 0")
    e.ds("cnt", "ds_write_b32 v8, v9")
    stamp(e, 1)
    e.wait(vm="pre")
    stamp(e, 2)
    prepass_compute(e)
    make_tag(e)
    attn_addresses(e)
    conv_addresses(e)
    u_flag_load(e)
    e("s_waitcnt lgkmcnt(0)")
    e.dsq = []
    stamp(e, 3)

    if OPT.get("qprio"):
        e("s_setprio 1")

    def fr(ks):
        return FR + 12 * ks

    def mm(c, ks):
        e.wait(ds=f"r{c}_{ks}")
        f = fr(ks)
        first = c == 0 and ks == 0
        e(f"v_mfma_f32_32x32x16_bf16 {vr(ACC0,16)}, {vr(f+4,4)}, {vr(f,4)}, {'0' if first else vr(ACC0,16)}")
        e(f"v_mfma_f32_32x32x16_bf16 {vr(ACC1,16)}, {vr(f+8,4)}, {vr(f,4)}, {'0' if first else vr(ACC1,16)}")

    for c in range(8):
        if c == UFLAG_AT:
            e.wait(vm="*")
        if not (OPT.get("xnobar") and c in (5, 6)):
            e("s_barrier")
        if c in (0, 1, 4, 7):
            stamp(e, 20 + c)
        if c == UFLAG_AT:
            flag_store(e, FL_U, 2, 8, only=0)
        if c == 0:
            prepass_read(e)
        frag_reads(e, c, 0, (0, 1), fr(0))
        if c:
            mm(c - 1, 2)
        frag_reads(e, c, 1, (0, 1), fr(1))
        if c:
            mm(c - 1, 3)
        frag_reads(e, c, 2, (0, 1), fr(2))
        mm(c, 0)
        frag_reads(e, c, 3, (0, 1), fr(3))
        mm(c, 1)
        if c == 0:
            prepass_out(e)
    e.vm("uf", u_flag_load(e, True))
    mm(7, 2)
    mm(7, 3)


def loader_setup(e):
    e(f"""
    v_lshrrev_b32 v36, 3, v1
    v_lshrrev_b32 v37, 4, v1
    v_xor_b32 v37, v37, v1
    v_and_b32 v37, 7, v37
    v_lshlrev_b32 v37, 4, v37
    v_lshl_add_u32 v37, v36, 10, v37
    s_lshl_b32 s{T0}, s{S_J}, 2
    s_add_u32 s{T0}, s{T0}, s{S_W4}
    s_lshl_b32 s{T0}, s{T0}, 15
    v_add_u32 v{V_XD}, s{T0}, v37
    v_xor_b32 v{V_XD+1}, 64, v{V_XD}
    v_add_u32 v{V_XD+2}, {16384-2048}, v{V_XD}
    v_add_u32 v{V_XD+3}, {24576-3072}, v{V_XD+1}
    v_add_u32 v{V_XD+1}, {8192-1024}, v{V_XD+1}
    s_lshl_b32 s{S_MX}, s{S_W4}, 12
    v_bfe_u32 v36, v0, 2, 6
    v_mul_u32_u24 v36, 0xc00, v36
    v_and_b32 v37, 3, v1
    v_lshl_add_u32 v36, v37, 4, v36
    s_lshl_b32 s{T0}, s{S_HP}, 6
    v_add_u32 v{V_WD}, s{T0}, v36
    s_mul_i32 s{S_MW}, s{S_W4}, 3072
    s_add_u32 s{S_MW}, s{S_MW}, 16384
    """)
    srd(e, R_X, P_X, 0x200000)
    srd(e, R_W, P_W, 0x180000)


def conv_h_steps(e):
    e(f"""
    s_lshr_b32 s{T0}, s{S_W4}, 1
    s_lshl_b32 s{T1}, s2, 1
    s_add_u32 s{T1}, s{T1}, s{T0}
    s_lshl_b32 s{T2}, s{T1}, 12
    s_add_u32 s{R_H}, s{P_H}, s{T2}
    s_addc_u32 s{R_H+1}, s{P_H+1}, 0
    s_mov_b32 s{R_H+2}, 4096
    s_mov_b32 s{R_H+3}, 0x20000
    s_and_b32 s{T0}, s{S_W4}, 1
    s_lshl_b32 s{T0}, s{T0}, 3
    v_lshl_add_u32 v8, v1, 4, s{T0}
    v_lshl_add_u32 v9, v1, 2, s{T0}
    s_mul_i32 s{T2}, s{S_W4}, {2*A_COPY}
    """)
    steps = []
    for cc in range(2):
        def big(i, cc=cc):
            if i == 0:
                e(f"v_add_u32 v10, {4+4*cc}, v8\nv_add_u32 v11, {-60+4*cc}, v9\ns_add_u32 m0, s{T2}, {L_A + cc*A_COPY + 64}")
            e.vm("h", f"buffer_load_dwordx4 v10, {sr(R_H,4)}, 0 offen offset:{i*1024} lds")

        def head(cc=cc):
            e(f"s_add_u32 m0, s{T2}, {L_A + cc*A_COPY}\ns_mov_b64 exec, 0xffff")
            e.vm("h", f"buffer_load_dword v11, {sr(R_H,4)}, 0 offen lds")
            e("s_mov_b64 exec, -1")
        steps += [lambda i=i, big=big: big(i) for i in range(4)] + [head]
    return steps


def u_flag_load(e, text_only=False):
    ld = f"buffer_load_dword v28, v29, {sr(R_WS,4)}, s{S_WOS} offen{SC}"
    if text_only:
        return ld
    e(f"""
    v_and_b32 v29, 31, v1
    v_lshlrev_b32 v29, 10, v29
    s_lshr_b32 s{S_WOS}, s2, 5
    s_lshl_b32 s{S_WOS}, s{S_WOS}, 7
    s_add_u32 s{S_WOS}, s{S_WOS}, {FL_U}
    s_lshr_b32 s{T0}, s{S_W4}, 1
    s_lshl_b32 s{S_KF}, s2, 1
    s_add_u32 s{S_KF}, s{S_KF}, s{T0}
    s_lshl_b32 s{S_KF}, s{S_KF}, 12
    s_and_b32 s{T0}, s{S_W4}, 1
    s_lshl_b32 s{T0}, s{T0}, 1
    s_sub_u32 s{S_KF}, s{S_KF}, s{T0}
    s_add_u32 s{S_KF}, s{S_KF}, {WS_U + 2}
    """)


def conv_u_loads(e):
    poll(e, "L_pollu", [u_flag_load(e, True)], [28], first="uf")
    e(f"s_mul_i32 s{S_WOS}, s{S_W4}, {B_COPY}\ns_add_u32 m0, s{S_WOS}, {L_B}")
    for i in range(4):
        e.vm("u", f"buffer_load_dwordx4 v{V_KO}, {sr(R_WS,4)}, s{S_KF} offen offset:{i*1024}{SC} lds")


def conv_u_pad(e):
    e.wait(vm="u")
    e(f"""
    v_lshl_add_u32 v12, v1, 3, s{S_WOS}
    v_mov_b32 v10, 0
    v_mov_b32 v11, 0
    s_lshr_b64 exec, -1, 4
    ds_write_b64 v12, v[10:11] offset:{L_B + 4096}
    s_and_b32 s{T0}, s{S_WAVE}, 1
    s_xor_b32 exec_lo, s{T0}, 1
    s_mov_b32 exec_hi, 0
    ds_write_b16 v12, v10 offset:{L_B + 4094}
    s_mov_b64 exec, -1
    """)


def gemm_v(e):
    for c in range(2):
        for st in chunk_dma_steps(e, c):
            st()
    srd(e, R_WS, P_WS, WS_SIZE)
    e.vm("gen", f"buffer_load_dword v254, v2, {sr(R_WS,4)}, 0 offen sc0 sc1")
    stamp(e, 1)
    stamp(e, 2)
    frag_addresses(e)
    for c in range(8):
        e.wait(vm=f"c{c}")
        if c == 0:
            stamp(e, 3)
        if not (OPT.get("xnobar") and c in (5, 6)):
            e("s_barrier")
        if c in (0, 1, 4, 7):
            stamp(e, 20 + c)
        steps = chunk_dma_steps(e, c + 2) if c + 2 < 8 else conv_h_steps(e) if c == 6 else []
        if OPT.get("xnodma") and 2 <= c < 6:
            steps = []
        per = 2 if c == 6 else 1

        def step():
            for _ in range(per):
                if steps:
                    steps.pop(0)()
        if c == 7:
            attn_addresses(e)
        if OPT.get("vclu"):
            while steps:
                step()
        for ks in range(4):
            step()
            frag_reads(e, c, ks, (2,), FR + 8 * ks)
        for ks in range(4):
            e.wait(ds=f"r{c}_{ks}")
            f = FR + 8 * ks
            e(f"v_mfma_f32_32x32x16_bf16 {vr(ACC0,16)}, {vr(f,4)}, {vr(f+4,4)}, {'0' if c + ks == 0 else vr(ACC0,16)}")
            step()
        assert not steps
        if c == 3:
            make_tag(e)


def tile_base(e, s):
    e(f"s_mul_i32 s{s}, s{S_BLK}, {BLK}\ns_mul_i32 s{T3}, s{S_W4}, {TILE}\ns_add_u32 s{s}, s{s}, s{T3}")


V_MK = 41


def epi_qk(e):
    QP, KP = 8, 16
    tile_base(e, T0)
    e(f"""
    v_and_b32 v36, 0x33, v1
    v_bfe_u32 v37, v1, 2, 1
    v_lshl_or_b32 v36, v37, 3, v36
    v_bfe_u32 v37, v1, 3, 1
    v_lshl_or_b32 v36, v37, 2, v36
    v_lshlrev_b32 v36, 4, v36
    s_add_u32 s{T1}, s{T0}, {4*TILE}
    s_lshl_b32 s{T2}, s{S_W4}, 11
    v_add_u32 v38, s{T2}, v36
    s_mov_b32 s{S_MX}, {QSCALE}
    s_mov_b32 s{S_MW}, {QSCALE}
    s_lshl_b32 s{T2}, s{S_W4}, 10
    v_lshl_add_u32 v37, v1, 4, s{T2}
    """)
    for i in range(8):
        e(f"v_cvt_pk_bf16_f32 v{KP+i}, v{ACC1+2*i}, v{ACC1+2*i+1}")
    e.vm("st", f"buffer_store_dwordx4 {vr(KP,4)}, v36, {sr(R_WS,4)}, s{T0} offen{SC}")
    e.vm("st", f"buffer_store_dwordx4 {vr(KP+4,4)}, v36, {sr(R_WS,4)}, s{T1} offen{SC}")
    e.ds("ew", f"ds_write_b128 v38, {vr(KP,4)} offset:{L_KVO}")
    e.ds("ew", f"ds_write_b128 v38, {vr(KP+4,4)} offset:{L_KVO + 8192}")
    for i in range(8):
        e(f"v_pk_mul_f32 {vr(ACC0+2*i,2)}, {vr(ACC0+2*i,2)}, s[{S_MX}:{S_MW}]")
    for i in range(8):
        e(f"v_cvt_pk_bf16_f32 v{QP+i}, v{ACC0+2*i}, v{ACC0+2*i+1}")
    e(f"v_add_u32 v37, {L_Q}, v37")
    e.ds("ew", f"ds_write_b128 v37, {vr(QP,4)}")
    e.ds("ew", f"ds_write_b128 v37, {vr(QP+4,4)} offset:4096")
    for i in range(4):
        for d, s in ((42, QP), (43, QP + 4), (V_MK, KP), (44, KP + 4)):
            e(f"v_dot2_f32_bf16 v{d}, v{s+i}, v{s+i}, {'0' if i == 0 else f'v{d}'}")
    e(f"v_max_f32 v42, v42, v43\nv_max_f32 v{V_MK}, v{V_MK}, v44")
    wave_reduce(e, "v_max_f32", [42, V_MK])
    e(f"s_lshl_b32 s{T2}, s{S_W4}, 2\ns_add_u32 s{T2}, s{T2}, {L_MISC}\nv_mov_b32 v37, s{T2}\ns_lshl_b64 exec, 1, 63")
    e.ds("ew", f"ds_write_b32 v37, v42")
    e.ds("ew", f"ds_write_b32 v37, v{V_MK} offset:32")
    e("s_mov_b64 exec, -1")


def epi_v(e):
    VP = 16
    tile_base(e, T0)
    e(f"""
    v_bfe_u32 v38, v1, 4, 1
    v_lshrrev_b32 v37, 5, v1
    v_lshlrev_b32 v37, 8, v37
    v_and_b32 v39, 15, v1
    v_lshl_add_u32 v37, v39, 4, v37
    v_mad_u32_u24 v36, v38, s{S_MX}, v37
    v_lshl_add_u32 v37, v38, 13, v37
    s_lshl_b32 s{T2}, s{S_W4}, 11
    v_add_u32 v37, s{T2}, v37
    v_mul_u32_u24 v39, {4*TILE}, v1
    """.replace(f"v_mad_u32_u24 v36, v38, s{S_MX}, v37", f"s_movk_i32 s{S_MX}, {4*TILE}\nv_mad_u32_u24 v36, v38, s{S_MX}, v37"))
    for i in range(4):
        e(f"v_mov_b32 v{24+i}, 0x3f803f80")
    for i in range(8):
        e(f"v_cvt_pk_bf16_f32 v{VP+i}, v{ACC0+2*i}, v{ACC0+2*i+1}")
    e.vm("st", f"buffer_store_dwordx4 {vr(VP,4)}, v36, {sr(R_WS,4)}, s{T0} offen offset:1024{SC}")
    e.vm("st", f"buffer_store_dwordx4 {vr(VP+4,4)}, v36, {sr(R_WS,4)}, s{T0} offen offset:1536{SC}")
    e("s_mov_b64 exec, 3")
    e.vm("st", f"buffer_store_dwordx4 v[24:27], v39, {sr(R_WS,4)}, s{T0} offen offset:2048{SC}")
    e("s_mov_b64 exec, -1")
    e.ds("ew", f"ds_write_b128 v37, {vr(VP,4)} offset:{L_KVO + 1024}")
    e.ds("ew", f"ds_write_b128 v37, {vr(VP+4,4)} offset:{L_KVO + 1536}")


O_ACC, S_BUF, Q_FR, KV_ST = 64, 128, 192, 208
V_IDX, V_KO, V_V0, V_V1 = 244, 245, 246, 247
NS = 3
C_ACC, C_B = 16, 144
C_A = 32


def ca(a):
    return 48 + 4 * a if a < 4 else 128 + 4 * (a - 4)


def kv_regs(j):
    b = KV_ST + 12 * (j % NS)
    return b, b + 4, b + 8


V_AQ = 64


def attn_addresses(e):
    k, v0, v1 = kv_regs(0)
    e(f"""
    v_lshlrev_b32 v{V_KO}, 4, v1
    v_lshrrev_b32 v60, 5, v1
    v_lshlrev_b32 v60, 4, v60
    v_and_or_b32 v60, v1, 15, v60
    v_lshlrev_b32 v60, 4, v60
    s_lshl_b32 s{T2}, s{S_WAVE}, 11
    v_add_u32 v{V_AQ+4}, s{T2}, v{V_KO}
    v_add_u32 v{V_AQ+5}, s{T2}, v60
    v_and_b32 v61, 27, v1
    v_cmp_eq_u32 vcc, 16, v61
    v_mov_b32 v61, 0x3f803f80
    v_mov_b32 v62, {OOB}
    v_cndmask_b32 v61, 0, v61, vcc
    v_mov_b32 v63, 1024
    v_cndmask_b32 v{V_V0}, v62, v63, vcc
    v_mov_b32 v63, 512
    v_cndmask_b32 v{V_V1}, v62, v63, vcc
    v_and_b32 v62, 16, v1
    v_cmp_eq_u32 vcc, 0, v62
    v_mov_b32 v{V_IDX}, 0xdddddddd
    s_mul_i32 s{T2}, s{S_WAVE}, {TILE}
    v_cndmask_b32 v{V_V0}, v{V_V0}, v60, vcc
    v_cndmask_b32 v{V_V1}, v{V_V1}, v60, vcc
    s_lshl_b32 s{T3}, s{S_BLK}, 15
    s_add_u32 s{S_KVB}, s{T2}, s{T3}
    s_mov_b32 s{S_KVN}, 0
    """)
    for i in range(8):
        e(f"v_mov_b32 v{v0+i}, v61")
    e(f"s_lshr_b32 s{T2}, s{S_WAVE}, 2\ns_lshl_b32 s{T2}, s{T2}, 12\ns_add_u32 s{T2}, s{T2}, {L_Q}")
    for i in range(4):
        e(f"s_add_u32 s{T3}, s{S_W4}, {i}\ns_and_b32 s{T3}, s{T3}, 3\ns_lshl_b32 s{T3}, s{T3}, 10\ns_add_u32 s{T3}, s{T3}, s{T2}")
        e(f"v_add_u32 v{V_AQ+i}, s{T3}, v{V_KO}")
    e(f"v_and_b32 v70, 3, v1\nv_lshlrev_b32 v70, 2, v70\nv_add_u32 v70, {L_MISC}, v70")


def attn_reads(e):
    k, v0, v1 = kv_regs(0)
    e.ds("aq", f"ds_read_b128 {vr(k,4)}, v{V_AQ+4} offset:{L_KVO}")
    for i in range(4):
        e.ds("aq", f"ds_read_b128 {vr(Q_FR+4*i,4)}, v{V_AQ+i}")
    e("s_mov_b32 exec_lo, 0xffff\ns_mov_b32 exec_hi, 0xffff")
    e.ds("aq", f"ds_read_b128 {vr(v0,4)}, v{V_AQ+5} offset:{L_KVO + 1024}")
    e.ds("aq", f"ds_read_b128 {vr(v1,4)}, v{V_AQ+5} offset:{L_KVO + 1536}")
    e("s_mov_b64 exec, -1")
    e.ds("mq", "ds_read_b32 v42, v70")
    e.ds("mq", f"ds_read_b32 v{V_MK}, v70 offset:32")


def kv_load(e, j, soff=None):
    k, v0, v1 = kv_regs(j)
    so = soff or f"s{S_KVO}"
    if not soff:
        e(f"s_add_u32 s{S_KVN}, s{S_KVN}, {BLK}\ns_xor_b32 s{S_KVO}, s{S_KVB}, s{S_KVN}")
    e.vm(f"kv{j}", f"buffer_load_dwordx4 {vr(k,4)}, v{V_KO}, {sr(R_WS,4)}, {so} offen{SC}")
    e.vm(f"kv{j}", f"buffer_load_dwordx4 {vr(v0,4)}, v{V_V0}, {sr(R_WS,4)}, {so} offen offset:1024{SC}")
    e.vm(f"kv{j}", f"buffer_load_dwordx4 {vr(v1,4)}, v{V_V1}, {sr(R_WS,4)}, {so} offen offset:1536{SC}")


def conv_pair(e, a):
    e(f"ds_read_b128 {vr(ca(a),4)}, v248 offset:{a*512}")
    e(f"ds_read_b128 {vr(C_B+4*(7-a),4)}, v249 offset:{a*512}")


def conv_body(first=False):
    b = E()
    b("v_add_u32 v248, 64, v248\nv_add_u32 v249, 64, v249")
    for a in range(8):
        for bb in range(7 - a, -1, -1):
            if a == 0:
                b(f"s_waitcnt lgkmcnt({2*bb})")
            n = a + bb
            c = "0" if first and a == 0 else vr(C_ACC + 4 * n, 4)
            b(f"v_mfma_f32_16x16x32_bf16 {vr(C_ACC+4*n,4)}, {vr(ca(a),4)}, {vr(C_B+4*bb,4)}, {c}")
        conv_pair(b, a)
    return b.l


def conv_mfma(e):
    for a in range(8):
        conv_pair(e, a)
    body = conv_body()
    e("\n".join(conv_body(True)))
    tail = [f"    s_sub_u32 s{T0}, s{T0}, 1", f"    s_cmp_lg_u32 s{T0}, 0", "    s_cbranch_scc1 L_cvloop"]
    check_seq(body + tail + body, "conv loop")
    e(f"s_mov_b32 s{T0}, 3\nL_cvloop:")
    e("\n".join(body + tail))
    e(f"s_lshl_b32 s{T1}, s{S_WAVE}, 13\ns_add_u32 s{T1}, s{T1}, {L_P}\nv_add_u32 v2, s{T1}, v{V_KO}\ns_waitcnt lgkmcnt(0)")
    for n in range(8):
        e(f"ds_write_b128 v2, {vr(C_ACC+4*n,4)} offset:{n*1024}")
    e("s_waitcnt lgkmcnt(0)")


def conv_addresses(e):
    e(f"""
    s_lshl_b32 s{T2}, s2, 2
    s_load_dword s{S_D}, s[{P_D}:{P_D+1}], s{T2}
    v_and_b32 v60, 3, v1
    v_mul_u32_u24 v248, {A_COPY}, v60
    v_bfe_u32 v60, v1, 2, 2
    v_lshrrev_b32 v61, 4, v1
    v_add_u32 v60, v60, v61
    v_lshl_add_u32 v248, v60, 4, v248
    s_lshr_b32 s{T0}, s{S_W4}, 1
    s_and_b32 s{T1}, s{S_WAVE}, 1
    s_lshl_b32 s{T1}, s{T1}, 8
    s_mul_i32 s{T2}, s{T0}, {4*A_COPY}
    s_add_u32 s{T2}, s{T2}, s{T1}
    s_add_u32 s{T2}, s{T2}, {L_A}
    v_add_u32 v248, s{T2}, v248
    v_and_b32 v60, 1, v1
    v_mul_u32_u24 v249, {B_COPY}, v60
    v_lshl_add_u32 v249, v61, 4, v249
    v_bfe_u32 v60, v1, 1, 3
    v_lshlrev_b32 v60, 6, v60
    v_sub_u32 v249, v249, v60
    v_add_u32 v250, {L_B + 4080}, v249
    v_lshlrev_b32 v62, 5, v61
    v_sub_u32 v250, v250, v62
    s_lshl_b32 s{T3}, s{S_WAVE}, 9
    v_subrev_u32 v250, s{T3}, v250
    s_mul_i32 s{T2}, s{T0}, {2*B_COPY}
    s_add_u32 s{T2}, s{T2}, s{T1}
    s_add_u32 s{T2}, s{T2}, {L_B + 448}
    v_add_u32 v249, s{T2}, v249
    """)


def norms_max(e):
    e.wait(ds="mq")
    for ctl in ("row_shr:1", "row_shr:2"):
        for r in (42, V_MK):
            e(f"v_max_f32_dpp v{r}, v{r}, v{r} {ctl} row_mask:0xf bank_mask:0xf")


def kv_signal(e, sfx):
    e.wait(vm="st")
    e(f"""
    v_mov_b32 v10, {L_MISC + 64}
    v_mov_b32 v11, 1
    s_lshl_b64 exec, 1, 63
    ds_add_rtn_u32 v11, v10, v11
    s_waitcnt lgkmcnt(0)
    v_cmp_eq_u32 vcc, 7, v11
    s_cbranch_vccz L_sig{sfx}
    s_lshl_b32 s{T0}, s{S_BLK}, 7
    s_add_u32 s{T0}, s{T0}, {FL_KV}
    v_mov_b32 v{V_MK-1}, s{S_TAG}
    v_mov_b32 v10, 0
    buffer_store_dwordx2 {vr(V_MK-1,2)}, v10, {sr(R_WS,4)}, s{T0} offen{SC}
    L_sig{sfx}:
    s_mov_b64 exec, -1
    """)
    e.dsq = []


def kv_wait_and_decide(e):
    wo_prefetch(e)
    e(f"""
    s_lshl_b32 s{T2}, s{S_HP}, 11
    s_add_u32 s{T2}, s{T2}, {FL_KV}
    v_and_b32 v10, 15, v1
    v_lshlrev_b32 v10, 7, v10
    """)
    poll(e, "L_pollkv", [f"buffer_load_dwordx2 v[12:13], v10, {sr(R_WS,4)}, s{T2} offen{SC}"], [12])
    for j in (1, 2):
        kv_load(e, j)
    for ctl in ("row_shr:1", "row_shr:2", "row_shr:4", "row_shr:8"):
        e(f"v_max_f32_dpp v13, v13, v13 {ctl} row_mask:0xf bank_mask:0xf")
    e(f"v_mul_f32 v11, v42, v13\nv_mov_b32 v10, {L_MISC + 16}\ns_lshl_b64 exec, 1, 63")
    e.ds("dw", "ds_write_b32 v10, v11")
    e("s_mov_b64 exec, -1")
    e.wait(ds="*")


def conv_final(e):
    e(f"""
    s_lshl_b32 s{T1}, s{S_WAVE}, 10
    s_add_u32 s{T1}, s{T1}, {L_P}
    v_add_u32 v2, s{T1}, v{V_KO}
    v_mov_b32 v10, {L_MISC + 16}
    """)
    e.ds("cp", "ds_read_b32 v11, v10")
    for q in range(4):
        e.ds("cp", f"ds_read_b128 {vr(C_A+4*q,4)}, v2 offset:{q*8192}")
    for ch in range(2):
        e.ds("cp", f"ds_read_b128 {vr(C_B+4*ch,4)}, v250 offset:{ch*2*B_COPY}")
    e(f"""
    v_bfe_u32 v2, v1, 1, 3
    v_lshlrev_b32 v2, 7, v2
    v_lshrrev_b32 v3, 4, v1
    v_lshl_add_u32 v2, v3, 5, v2
    v_and_b32 v10, 1, v1
    v_lshl_add_u32 v2, v10, 4, v2
    s_lshl_b32 s{T0}, s2, 3
    s_add_u32 s{T0}, s{T0}, s{S_WAVE}
    s_lshl_b32 s{T0}, s{T0}, 10
    s_add_u32 s{T0}, s{T0}, {WS_Y}
    s_lshl_b32 s{T1}, s{S_D}, 16
    s_and_b32 s{T2}, s{S_D}, 0xffff0000
    v_mov_b32 v10, {BOUND2}
    """)
    for i in range(4):
        e(f"v_mov_b32 v{16+i}, -1")
    of_slot(e, T3, True, S_KF)
    e.vm("y", f"buffer_store_dwordx4 v[16:19], v{V_KO}, {sr(R_WS,4)}, s{T3} offen{SC}")
    e.wait(ds="*")
    e("s_barrier")
    for ch in range(2):
        for r in range(4):
            e(f"v_add_f32 v{C_A+8*ch+r}, v{C_A+8*ch+r}, v{C_A+8*ch+4+r}")
            e(f"v_lshlrev_b32 v{C_B+4*ch+3-r}, 16, v{C_B+4*ch+3-r}")
        for r in range(4):
            e(f"v_fmac_f32 v{C_A+8*ch+r}, s{T1+ch}, v{C_B+4*ch+3-r}")
    for r in range(4):
        e(f"v_cvt_pk_bf16_f32 v{12+r}, v{C_A+r}, v{C_A+8+r}")
    e.vm("y", f"buffer_store_dwordx4 v[12:15], v2, {sr(R_WS,4)}, s{T0} offen{SC}")
    e("v_cmp_le_f32 vcc, v11, v10")


W_FR = 16
W_FR2 = 208
N_EARLY = 7


def wfr(blk):
    return W_FR + 4 * blk if blk < N_EARLY else W_FR2 + 4 * (blk - N_EARLY)


def qk(e, j, i):
    e(f"v_mfma_f32_32x32x16_bf16 {vr(S_BUF+16*i,16)}, {vr(kv_regs(j)[0],4)}, {vr(Q_FR+4*i,4)}, 0")


def pv(e, j, i, half):
    e(f"v_smfmac_f32_32x32x32_bf16 {vr(O_ACC+16*i,16)}, {vr(kv_regs(j)[1+half],4)}, {vr(S_BUF+16*i+8*half,8)}, v{V_IDX}")


def p3_setup(e):
    srd(e, R_W, P_WO, 0x80000)
    e(f"""
    s_lshr_b32 s{T0}, s2, 5
    s_lshl_b32 s{T0}, s{T0}, 3
    s_and_b32 s{S_QT}, s2, 7
    s_add_u32 s{S_QT}, s{S_QT}, s{T0}
    s_bfe_u32 s{S_NQ}, s2, 0x20003
    s_lshr_b32 s{T3}, s{S_WAVE}, 2
    s_lshl_b32 s{S_MX}, s{S_WAVE}, 14
    v_lshrrev_b32 v5, 5, v1
    v_bfe_u32 v6, v1, 2, 2
    v_lshl_add_u32 v5, v5, 2, v6
    v_lshlrev_b32 v5, 6, v5
    v_bfe_u32 v6, v1, 4, 1
    v_xor_b32 v6, s{T3}, v6
    v_lshl_add_u32 v5, v6, 5, v5
    v_and_b32 v6, 1, v1
    v_lshl_add_u32 v5, v6, 4, v5
    v_bfe_u32 v6, v1, 1, 1
    v_lshl_add_u32 v5, v6, 3, v5
    v_add_u32 v5, s{S_MX}, v5
    s_mul_i32 s{T1}, s{S_W4}, 6912
    s_add_u32 s{T1}, s{T1}, {L_O}
    s_cmp_ge_u32 s{S_WAVE}, 4
    s_cselect_b32 s{S_XB}, s{T1}, s{S_MX}
    """)


V_WO = 248


def wo_stage(e, sfx):
    p3_setup(e)
    e(f"""
    s_lshl_b32 s{T1}, s{S_W4}, 6
    s_lshl_b32 s{T2}, s{S_NQ}, 8
    s_add_u32 s{T1}, s{T1}, s{T2}
    v_lshrrev_b32 v4, 2, v1
    v_lshlrev_b32 v4, 10, v4
    v_and_b32 v3, 3, v1
    v_lshl_add_u32 v4, v3, 4, v4
    v_add_u32 v248, s{T1}, v4
    v_add_u32 v249, 15360, v248
    v_add_u32 v250, 30720, v248
    v_add_u32 v251, 46080, v248
    s_mov_b32 s{S_WOM}, s{S_MX}
    s_mov_b32 s{S_WOS}, 0
    L_wo{sfx}:
    """)
    for g in range(2):
        e(f"s_add_u32 m0, s{S_WOM}, {g*65536}\ns_add_u32 s{T0}, s{S_WOS}, {g*262144}")
        for i in range(4):
            e(f"buffer_load_dwordx4 v{V_WO+i}, {sr(R_W,4)}, s{T0} offen offset:{i*1024} lds")
    e(f"""
    s_add_u32 s{S_WOM}, s{S_WOM}, 4096
    s_add_u32 s{S_WOS}, s{S_WOS}, 65536
    s_cmp_lt_u32 s{S_WOS}, 262144
    s_waitcnt vmcnt(0)
    s_cbranch_scc1 L_wo{sfx}
    """)


def wo_frag(e, blk):
    for j in range(2):
        e.ds("wf", f"ds_read_b64_tr_b16 {vr(wfr(blk)+2*j,2)}, v5 offset:{L_WO + blk*1024 + j*512}")


def zero_o(e):
    for i in range(4):
        e(f"v_mov_b32 v{12+i}, 0")
    for i in range(4):
        e(f"v_mfma_f32_32x32x16_bf16 {vr(O_ACC+16*i,16)}, v[12:15], v[12:15], 0")


def tile(e, j, i, before_qk=None, cluster=None, with_qk=True, with_prev=True):
    s = S_BUF + 16 * i
    ex = [f"v_exp_f32 v{s+r}, v{s+r}" for r in range(16)]
    if with_qk:
        if before_qk:
            e(before_qk)
        qk(e, j + (i == 3), (i + 1) % 4)
    e("\n".join(ex[0:4]))
    if with_prev:
        pv(e, j - (i == 0), (i + 3) % 4, 1)
    e("\n".join(ex[4:8]))
    if cluster:
        cluster()
    e("\n".join(ex[8:10]))
    pv(e, j, i, 0)
    e("\n".join(ex[10:16]))


def attn_step0(e):
    qk(e, 0, 0)
    for i in range(4):
        tile(e, 0, i, with_qk=i < 3, with_prev=i > 0)


def attn_loop(e):
    b = E()

    def third():
        b(f"s_cmp_eq_u32 s{S_IT}, 4\ns_cbranch_scc1 L_yflag\nL_third:")
        kv_load(b, 5)

    for j in (1, 2, 3):
        for i in range(4):
            cl = None if i else third if j == 3 else (lambda j=j: kv_load(b, j + 2))
            tile(b, j, i, ("s_waitcnt vmcnt(40)" if OPT.get("nowait") else "s_waitcnt vmcnt(3)") if i == 3 else None, cl)
    b(f"s_sub_u32 s{S_IT}, s{S_IT}, 1\ns_cbranch_scc0 L_loop")
    check_seq(b.l + b.l, "attention loop")
    e.wait(vm="kv1")
    qk(e, 1, 0)
    stamp(e, 4)
    e(f"s_mov_b32 s{S_IT}, 4\ns_nop 10\nL_loop:")
    e("\n".join(b.l))
    e.vmq = []
    pv(e, 3, 3, 1)


def attn_slow(e):
    M = 44
    for i in range(4):
        e(f"v_mov_b32 v{M+i}, 0xff7fffff")
    e.wait(vm="*")
    zero_o(e)
    flag_store(e, FL_Y, 2, 12, per_wave=True)
    e(f"""
    s_mul_i32 s{T2}, s{S_WAVE}, {TILE}
    s_mul_i32 s{T0}, s{S_HP}, {16*BLK}
    s_add_u32 s{T2}, s{T2}, s{T0}
    s_mov_b32 s{T3}, 0
    L_slowloop:
    """)
    kv_load(e, 0, f"s{T2}")
    e.wait(vm="*")
    for i in range(4):
        qk(e, 0, i)
    for i in range(4):
        s, o = S_BUF + 16 * i, O_ACC + 16 * i
        e(f"v_max3_f32 v10, v{s}, v{s+1}, v{M+i}")
        for r in range(2, 16, 2):
            e(f"v_max3_f32 v10, v{s+r}, v{s+r+1}, v10")
        e(f"""
        v_mov_b32 v11, v10
        v_permlane32_swap_b32 v10, v11
        v_max_f32 v10, v10, v11
        v_sub_f32 v11, v{M+i}, v10
        v_exp_f32 v11, v11
        v_mov_b32 v{M+i}, v10
        """)
        for r in range(16):
            e(f"v_sub_f32 v{s+r}, v{s+r}, v10\nv_exp_f32 v{s+r}, v{s+r}")
        for r in range(16):
            e(f"v_mul_f32 v{o+r}, v{o+r}, v11")
        pv(e, 0, i, 0)
        pv(e, 0, i, 1)
    e(f"""
    s_add_u32 s{T2}, s{T2}, {BLK}
    s_add_u32 s{T3}, s{T3}, 1
    s_cmp_lt_u32 s{T3}, 16
    s_nop 7
    s_nop 7
    s_cbranch_scc1 L_slowloop
    """)


def attn_combine(e, slow):
    M, R = 44, S_BUF
    XM = L_O + 4 * 6912
    e(f"s_cmp_ge_u32 s{S_WAVE}, 4\ns_cbranch_scc1 L_nofr{int(slow)}")
    wo_stage(e, int(slow))
    for blk in range(N_EARLY):
        wo_frag(e, blk)
    e.wait(ds="*")
    e(f"L_nofr{int(slow)}:\ns_nop 1\nv_add_u32 v12, s{S_XB}, v{V_KO}\nv_lshl_add_u32 v13, v1, 2, s{S_XB}")
    order = (1, 2, 3)
    for i in order:
        o, off = O_ACC + 16 * i, (i - 1) * 2304
        e.ds("xw", f"ds_write_b128 v12, {vr(o,4)} offset:{off}")
        e.ds("xw", f"ds_write_b128 v12, {vr(o+4,4)} offset:{off+1024}")
        e.ds("xw", f"ds_write_b32 v13, v{o+8} offset:{off+2048}")
    if slow:
        e(f"s_mul_i32 s{T0}, s{S_WAVE}, 384\ns_add_u32 s{T0}, s{T0}, {XM}\nv_and_b32 v15, 31, v1\nv_lshl_add_u32 v14, v15, 2, s{T0}")
        for i in order:
            e.ds("xw", f"ds_write_b32 v14, v{M+i} offset:{(i-1)*128}")
    e(f"s_movk_i32 s{T1}, 0x4000\ns_cmp_ge_u32 s{S_WAVE}, 4\ns_cselect_b32 s{T1}, 6912, s{T1}\ns_cselect_b32 s{T3}, {L_O}, 0")
    for i in order:
        e(f"""
        s_sub_u32 s{T0}, s{S_W4}, {i}
        s_and_b32 s{T0}, s{T0}, 3
        s_mul_i32 s{T2}, s{T0}, s{T1}
        s_add_u32 s{T2}, s{T2}, s{T3}
        v_add_u32 v{48+i}, s{T2}, v{V_KO}
        v_lshl_add_u32 v{52+i}, v1, 2, s{T2}
        """)
        if slow:
            e(f"s_and_b32 s{T2}, s{S_WAVE}, 4\ns_add_u32 s{T0}, s{T0}, s{T2}\ns_mul_i32 s{T0}, s{T0}, 384\ns_add_u32 s{T0}, s{T0}, {XM}\nv_lshl_add_u32 v{56+i}, v15, 2, s{T0}")
    sfx = "s" if slow else "f"
    e(f"""
    s_cmp_lg_u32 s{S_WAVE}, 0
    s_cbranch_scc1 L_noy{sfx}
    v_lshlrev_b32 v9, 10, v1
    s_lshl_b32 s{T2}, s{S_NQ}, 16
    s_lshr_b32 s{T3}, s{S_QT}, 3
    s_lshl_b32 s{T3}, s{T3}, 7
    s_add_u32 s{T2}, s{T2}, s{T3}
    s_add_u32 s{T2}, s{T2}, {FL_Y}
    v_bfe_u32 v10, v1, 1, 3
    v_lshlrev_b32 v10, 15, v10
    v_bfe_u32 v11, v1, 4, 1
    v_lshl_add_u32 v10, v11, 10, v10
    v_and_b32 v11, 1, v1
    v_lshl_add_u32 v10, v11, 9, v10
    s_bfe_u32 s{T3}, s{S_QT}, 0x20002
    s_lshl_b32 s{T3}, s{T3}, 13
    s_lshr_b32 s{T0}, s{S_QT}, 4
    s_lshl_b32 s{T0}, s{T0}, 11
    s_add_u32 s{T3}, s{T3}, s{T0}
    s_and_b32 s{T0}, s{S_QT}, 3
    s_lshl_b32 s{T0}, s{T0}, 7
    s_add_u32 s{T3}, s{T3}, s{T0}
    s_add_u32 s{T3}, s{T3}, {FL_Y}
    """)
    poll(e, "L_polly" + sfx, [f"buffer_load_dword v14, v9, {sr(R_WS,4)}, s{T2} offen{SC}",
                              f"buffer_load_dword v11, v10, {sr(R_WS,4)}, s{T3} offen{SC}"], [14, 11])
    e(f"L_noy{sfx}:")
    of_slot(e, T0, True)
    e.wait(ds="xw")
    e("s_barrier")
    for n, i in enumerate(order):
        off = (i - 1) * 2304
        e.ds(f"xr{n}", f"ds_read_b128 {vr(R+12*n,4)}, v{48+i} offset:{off}")
        e.ds(f"xr{n}", f"ds_read_b128 {vr(R+12*n+4,4)}, v{48+i} offset:{off+1024}")
        e.ds(f"xr{n}", f"ds_read_b32 v{R+12*n+8}, v{52+i} offset:{off+2048}")
        if slow:
            e.ds(f"xr{n}", f"ds_read_b32 v{R+12*n+9}, v{56+i} offset:{(i-1)*128}")
    if slow:
        e.wait(ds="*")
        e(f"v_max3_f32 v10, v{M}, v{R+9}, v{R+21}\nv_max_f32 v10, v10, v{R+33}")
        for src, base in ((M, O_ACC), (R + 9, R), (R + 21, R + 12), (R + 33, R + 24)):
            e(f"v_sub_f32 v11, v{src}, v10\nv_exp_f32 v11, v11")
            for r in range(9):
                e(f"v_mul_f32 v{base+r}, v{base+r}, v11")
    for n in range(3):
        e.wait(ds=f"xr{n}")
        e(f"v_add_f32 v{O_ACC+8}, v{O_ACC+8}, v{R+12*n+8}")
        for r in range(0, 8, 2):
            e(f"v_pk_add_f32 {vr(O_ACC+r,2)}, {vr(O_ACC+r,2)}, {vr(R+12*n+r,2)}")
    e(f"v_rcp_f32 v{O_ACC+8}, v{O_ACC+8}")
    for r in range(0, 8, 2):
        e(f"v_pk_mul_f32 {vr(O_ACC+r,2)}, {vr(O_ACC+r,2)}, {vr(O_ACC+8,2)} op_sel_hi:[1,0]")
    for r in range(4):
        e(f"v_cvt_pk_bf16_f32 v{O_ACC+12+r}, v{O_ACC+2*r}, v{O_ACC+2*r+1}")
    for r in range(4):
        e(f"v_min_u32 v{O_ACC+12+r}, -2, v{O_ACC+12+r}")
    e.vm("o", f"buffer_store_dwordx4 {vr(O_ACC+12,4)}, v{V_KO}, {sr(R_WS,4)}, s{T0} offen{SC}")


B_X, B_Y, B_G, V_OUT, B_T = 96, 100, 104, 105, 112
O_FR, P_ACC = 128, 80


def ofo(blk):
    return (blk // 4) * 16384 + 8192 + (blk % 4) * 1024


def tail(e):
    OP = Q_FR
    stamp(e, 13)
    srd(e, R_X, P_X, 0x200000)
    srd(e, R_OUT, P_OUT, 0x200000)
    e(f"""
    s_lshl_b32 s{T1}, s{S_W4}, 1
    s_lshr_b32 s{T2}, s{S_WAVE}, 2
    s_add_u32 s{T1}, s{T1}, s{T2}
    s_lshl_b32 s{T2}, s{S_NQ}, 3
    s_add_u32 s{S_ROW}, s{T1}, s{T2}
    v_and_b32 v8, 31, v1
    v_lshrrev_b32 v6, 5, v1
    v_lshlrev_b32 v{V_OUT}, 10, v8
    v_lshl_add_u32 v{V_OUT}, v6, 4, v{V_OUT}
    s_lshl_b32 s{T2}, s{S_QT}, 15
    s_lshl_b32 s{T3}, s{S_ROW}, 5
    s_add_u32 s{T2}, s{T2}, s{T3}
    v_add_u32 v{V_OUT}, s{T2}, v{V_OUT}
    """)
    e.vm("b", f"buffer_load_dwordx4 {vr(B_X,4)}, v{V_OUT}, {sr(R_X,4)}, 0 offen")
    e(f"""
    v_bfe_u32 v7, v1, 3, 2
    v_lshlrev_b32 v7, 5, v7
    v_and_b32 v9, 1, v1
    v_lshl_add_u32 v7, v9, 4, v7
    v_bfe_u32 v9, v1, 1, 2
    v_lshl_add_u32 v7, v9, 2, v7
    v_lshl_add_u32 v7, v6, 15, v7
    s_lshl_b32 s{T2}, s{S_ROW}, 16
    s_lshl_b32 s{T3}, s{S_QT}, 7
    s_add_u32 s{T2}, s{T2}, s{T3}
    s_add_u32 s{T2}, s{T2}, {WS_Y}
    """)
    for jj in range(4):
        e.vm("b", f"buffer_load_dword v{B_Y+jj}, v7, {sr(R_WS,4)}, s{T2} offen{SC}")
        if jj < 3:
            e(f"s_add_u32 s{T2}, s{T2}, 8192")
    e(f"v_lshlrev_b32 v8, 2, v8\ns_add_u32 s{T3}, s{T3}, {WS_G}")
    e.vm("b", f"buffer_load_dword v{B_G}, v8, {sr(R_WS,4)}, s{T3} offen{SC}")
    e.wait(vm="wo")
    for blk in range(N_EARLY, 16):
        wo_frag(e, blk)
    e(f"s_cmp_lt_u32 s{S_WAVE}, 4\ns_cbranch_scc1 L_nofr2")
    for blk in range(N_EARLY):
        wo_frag(e, blk)
    e(f"""
    L_nofr2:
    s_lshl_b32 s{T3}, s{S_WAVE}, 12
    s_lshl_b32 s{T2}, s{S_QT}, 15
    s_add_u32 s{T3}, s{T3}, s{T2}
    s_add_u32 s{T3}, s{T3}, {WS_OF}
    s_lshr_b32 s{T1}, s{S_WAVE}, 2
    s_lshl_b32 s{T1}, s{T1}, 16
    v_add_u32 v6, s{T1}, v{V_KO}
    v_add_u32 v7, s{S_MX}, v{V_KO}
    v_xor_b32 v8, 0x10000, v7
    s_mov_b32 s{S_SPIN}, {SPIN_MAX}
    """)
    e.wait(vm="o")
    stamp(e, 14)
    loads = [f"buffer_load_dwordx4 {vr(OP+4*i,4)}, v{V_KO}, {sr(R_WS,4)}, s{T3} offen offset:{i*1024}{SC}" for i in range(4)]
    for ld in loads:
        e.vm("op", ld)
    e.wait(vm="b")
    e(f"v_sub_f32 v10, 1.0, v{B_G}")
    for i in range(4):
        e(f"""
        v_lshlrev_b32 v{B_T+2*i}, 16, v{B_X+i}
        v_and_b32 v{B_T+2*i+1}, 0xffff0000, v{B_X+i}
        v_lshlrev_b32 v12, 16, v{B_Y+i}
        v_and_b32 v13, 0xffff0000, v{B_Y+i}
        v_pk_mul_f32 {vr(B_T+2*i,2)}, {vr(B_T+2*i,2)}, v[12:13]
        v_pk_mul_f32 {vr(B_T+2*i,2)}, {vr(B_T+2*i,2)}, v[10:11] op_sel_hi:[1,0]
        """)
    e("s_branch L_pollo_chk\nL_pollo:")
    e("\n".join(loads))
    e(f"L_pollo_chk:\ns_waitcnt vmcnt(0)\nv_max3_u32 v12, v{OP}, v{OP+1}, v{OP+2}")
    e.vmq = []
    for i in range(3, 15, 2):
        e(f"v_max3_u32 v12, v12, v{OP+i}, v{OP+i+1}")
    e(f"""
    v_max_u32 v12, v12, v{OP+15}
    v_cmp_eq_u32 vcc, -1, v12
    s_cbranch_vccz L_pollo_ok
    s_sub_u32 s{S_SPIN}, s{S_SPIN}, 1
    s_cbranch_scc0 L_pollo
    L_pollo_ok:
    """)
    e.wait(ds="*")
    for i in range(4):
        e.ds("ow", f"ds_write_b128 v7, {vr(OP+4*i,4)} offset:{8192 + i*1024}")
    stamp(e, 15)
    e.wait(ds="*")
    e("s_barrier")
    stamp(e, 16)
    for blk in range(8):
        e.ds(f"of{blk}", f"ds_read_b128 {vr(O_FR+4*blk,4)}, v6 offset:{ofo(blk)}")
    for blk in range(16):
        e.wait(ds=f"of{blk}")
        c = "0" if blk == 0 else vr(P_ACC, 16)
        e(f"v_mfma_f32_32x32x16_bf16 {vr(P_ACC,16)}, {vr(wfr(blk),4)}, {vr(O_FR+4*blk,4)}, {c}")
        if blk + 8 < 16:
            e.ds(f"of{blk+8}", f"ds_read_b128 {vr(O_FR+4*(blk+8),4)}, v6 offset:{ofo(blk+8)}")
    e.ds("pw", f"ds_write_b128 v7, {vr(P_ACC+8,4)} offset:12288")
    e.ds("pw", f"ds_write_b128 v7, {vr(P_ACC+12,4)} offset:13312")
    e.wait(ds="pw")
    e("s_barrier")
    e.ds("pr", f"ds_read_b128 {vr(O_FR,4)}, v8 offset:12288")
    e.ds("pr", f"ds_read_b128 {vr(O_FR+4,4)}, v8 offset:13312")
    e.wait(ds="pr")
    for r in range(0, 8, 2):
        e(f"v_pk_add_f32 {vr(P_ACC+r,2)}, {vr(P_ACC+r,2)}, {vr(O_FR+r,2)}")
    for r in range(0, 8, 2):
        e(f"v_pk_fma_f32 {vr(P_ACC+r,2)}, {vr(P_ACC+r,2)}, {vr(B_G,2)}, {vr(B_T+r,2)} op_sel_hi:[1,0,1]")
    for r in range(4):
        e(f"v_cvt_pk_bf16_f32 v{O_FR+r}, v{P_ACC+2*r}, v{P_ACC+2*r+1}")
    e.vm("st", f"buffer_store_dwordx4 {vr(O_FR,4)}, v{V_OUT}, {sr(R_OUT,4)}, 0 offen")
    e(f"s_or_b32 s{T0}, s2, s{S_WAVE}\ns_cbranch_scc1 L_nogen\nv_mov_b32 v12, s{S_TAG}\nv_mov_b32 v13, {WS_GEN}\ns_mov_b64 exec, 1")
    e(f"buffer_store_dword v12, v13, {sr(R_WS,4)}, 0 offen sc0 sc1\ns_mov_b64 exec, -1\nL_nogen:")
    stamp_flush(e, 17)


def kernel():
    q = E()
    prologue(q)
    stamp(q, 0)
    e = E()
    staging(q)
    loader_setup(e)
    gemm_v(e)
    stamp(e, 8)
    epi_v(e)
    e.wait(ds="*")
    e("s_barrier")
    stamp(e, 9)
    attn_reads(e)
    zero_o(e)
    norms_max(e)
    if not OPT.get("late"):
        kv_signal(e, "v")
    stamp(e, 28)
    attn_step0(e)
    if OPT.get("late"):
        kv_signal(e, "v")
    stamp(e, 29)
    e("s_barrier")
    e.vmq, e.dsq = [], []
    stamp(e, 18)
    p3_setup(e)
    conv_addresses(e)
    e("s_waitcnt lgkmcnt(0)")
    kv_wait_and_decide(e)
    stamp(e, 19)
    e("s_barrier\nL_join:")
    gemm_qk(q)
    if OPT.get("qprio"):
        q("s_setprio 0")
    stamp(q, 8)
    epi_qk(q)
    q.wait(ds="*")
    q("s_barrier")
    stamp(q, 9)
    attn_reads(q)
    conv_u_loads(q)
    gate_loads(q)
    zero_o(q)
    norms_max(q)
    stamp(q, 28)
    attn_step0(q)
    kv_signal(q, "q")
    stamp(q, 29)
    conv_u_pad(q)
    gate_compute(q)
    q("s_waitcnt lgkmcnt(0)\ns_barrier")
    q.dsq = []
    stamp(q, 18)
    conv_mfma(q)
    stamp(q, 19)
    q("s_barrier")
    for jj in (1, 2):
        kv_load(q, jj)
    q("s_branch L_join\nL_vrole:")
    j = E()
    j.vmq = [f"kv{k}" for k in (1, 2) for _ in range(3)]
    assert e.vmq == j.vmq and q.vmq[-6:] == j.vmq
    stamp(j, 10)
    conv_final(j)
    j("s_cbranch_vccz L_slow" if not OPT.get("slow") else "s_branch L_slow")
    stamp(j, 11)
    attn_loop(j)
    stamp(j, 12)
    attn_combine(j, False)
    j("L_tail:")
    j.vmq = ["wo", "o"]
    tail(j)
    j("L_end:\ns_endpgm")
    x = E()
    x("L_yflag:")
    flag_store(x, FL_Y, 2, 12, per_wave=True)
    x("s_branch L_third\nL_slow:")
    x.vmq = ["y"]
    attn_slow(x)
    attn_combine(x, True)
    x("L_last:\ns_branch L_tail")
    return q.l + e.l + j.l + x.l


def build():
    hdr = open(__file__.replace("gen/gen_v14.py", "cdna_kernels/" + NAME.replace("_kernel", ".s.ref")).replace("gen_v14.py", "../cdna_kernels/" + NAME.replace("_kernel", ".s.ref"))).read()
    head = hdr[:hdr.index("; @launch")]
    out = [head + f"; @launch grid=(256,1,1) block=(512,1,1) lds={LDS}", '.amdgcn_target "amdgcn-amd-amdhsa--gfx950"', ".text",
           f".globl {NAME}", ".p2align 8", f".type {NAME},@function", f"{NAME}:"]
    body = pad(kernel())
    check_edges(body)
    out += body
    out.append(f""".section .rodata,"a"
.p2align 6
.amdhsa_kernel {NAME}
  .amdhsa_next_free_vgpr 256
  .amdhsa_next_free_sgpr 96
  .amdhsa_accum_offset 256
  .amdhsa_group_segment_fixed_size 0
  .amdhsa_kernarg_size 104
  .amdhsa_user_sgpr_count 2
  .amdhsa_user_sgpr_kernarg_segment_ptr 1
  .amdhsa_system_sgpr_workgroup_id_x 1
  .amdhsa_float_denorm_mode_32 3
.end_amdhsa_kernel""")
    return "\n".join(out) + "\n"


if __name__ == "__main__":
    for a in sys.argv[2:]:
        OPT[a] = True
    open(sys.argv[1], "w").write(build())
```

```python
import sys
from asmlib import E, vr, sr, pad, check_seq, check_edges

NAME = "gated_mix__mha_block__ssm_conv_h3__prompt_kernel"
OPT = {}

TILE = 2176
BLK = 32768
WS_KV = 0x0000000
WS_U = 0x1000000
WS_Y = 0x0A00000
WS_OF = 0x0C00000
WS_G = 0x0E00000
WS_FL = 0x0E10000
FL_KV, FL_U, FL_Y = WS_FL, WS_FL + 0x8000, WS_FL + 0x10000
WS_GEN = WS_FL + 0x50000
WS_ST = 0x0F00000
WS_SIZE = 0x1400000
OOB = 0x7F000000

QSCALE = 0x3EB8AA3B
NLOG2E = 0xBFB8AA3B
BOUND2 = 0x44610000
SPIN_MAX = 1 << 18

P_X, P_W, P_WO, P_K, P_V, P_SH, P_H, P_D, P_GW, P_OUT, P_WS = 16, 18, 20, 24, 26, 28, 30, 32, 34, 36, 40
S_WAVE, S_HP, S_J, S_CG, S_TB = 3, 4, 5, 6, 7
T0, T1, T2, T3 = 8, 9, 10, 11
S_MX, S_MW, S_ROW, S_W4 = 12, 13, 14, 15
S_D, S_TAG = 42, 43
R_X, R_W, R_K, R_V, R_SH, R_GW, R_WS, R_H, R_OUT = 44, 48, 52, 56, 60, 64, 68, 72, 76
S_KVB, S_KVN, S_KVO, S_IT, S_WOS, S_XB, S_KF, S_WOM = 88, 89, 90, 91, 92, 93, 94, 95
S_BLK, S_ROT, S_SPIN, S_MODE, S_QT, S_NQ = 80, 81, 82, 83, 84, 85

SLOT = 28672
L_Z = 4 * SLOT
L_A, A_COPY = L_Z, 4160
L_PRE = L_Z
L_STG = L_PRE + 64 * 144
L_Q = L_A + 8 * 4160
L_MISC = L_Q + 8192
L_B, B_COPY = 0, 4576
L_KVO = SLOT
L_P = 2 * SLOT
L_WO, L_O = 0, 131072
LDS = 163840
XCH = 2560

SC = " sc1"


def srd(e, r, p, size):
    e(f"s_mov_b32 s{r}, s{p}\ns_mov_b32 s{r+1}, s{p+1}\ns_mov_b32 s{r+2}, {size}\ns_mov_b32 s{r+3}, 0x20000")


def stamp(e, i):
    if OPT.get("stamp"):
        e(f"s_memrealtime s[86:87]\ns_waitcnt lgkmcnt(0)\nv_writelane_b32 v255, s86, {i}")
        e(f"s_memtime s[86:87]\ns_waitcnt lgkmcnt(0)\nv_writelane_b32 v255, s86, {32+i}")
        e.dsq = []


def stamp_flush(e, n):
    if OPT.get("stamp"):
        e.wait(vm="*")
        stamp(e, n)
        e(f"""
        s_lshl_b32 s86, s2, 3
        s_add_u32 s86, s86, s{S_WAVE}
        s_lshl_b32 s86, s86, 8
        s_add_u32 s86, s86, {WS_ST}
        v_lshlrev_b32 v11, 2, v1
        buffer_store_dword v255, v11, {sr(R_WS,4)}, s86 offen
        """)


def wave_reduce(e, op, regs):
    for ctl in ("row_shr:1 row_mask:0xf", "row_shr:2 row_mask:0xf", "row_shr:4 row_mask:0xf", "row_shr:8 row_mask:0xf",
                "row_bcast:15 row_mask:0xa", "row_bcast:31 row_mask:0xc"):
        for r in regs:
            e(f"{op}_dpp v{r}, v{r}, v{r} {ctl} bank_mask:0xf")


def poll(e, label, loads, words, first=None):
    e(f"s_mov_b32 s{S_SPIN}, {SPIN_MAX}")
    if first:
        e.wait(vm=first)
        e(f"s_branch {label}_chk")
    e(f"{label}:")
    for ld in loads:
        e(ld)
    e("s_waitcnt vmcnt(0)")
    if first:
        e(f"{label}_chk:")
    else:
        e.vmq = []
    e(f"v_cmp_ne_u32 vcc, s{S_TAG}, v{words[0]}")
    for w in words[1:]:
        e(f"v_cmp_ne_u32 s[{T0}:{T1}], s{S_TAG}, v{w}\ns_or_b64 vcc, vcc, s[{T0}:{T1}]")
    e(f"""
    s_cbranch_vccz {label}_ok
    s_sub_u32 s{S_SPIN}, s{S_SPIN}, 1
    s_cbranch_scc0 {label}
    {label}_ok:
    """)


def flag_store(e, base, idx_sreg, data, per_wave=False, width=4, only=None):
    if only is not None:
        e(f"s_cmp_lg_u32 s{S_WAVE}, {only}\ns_cbranch_scc1 L_nofl{base & 0xfffff:x}")
    if per_wave:
        e(f"s_lshl_b32 s{T0}, s{idx_sreg}, 3\ns_add_u32 s{T0}, s{T0}, s{S_WAVE}\ns_lshl_b32 s{T0}, s{T0}, 7")
    else:
        e(f"s_lshl_b32 s{T0}, s{idx_sreg}, 7")
    e(f"""
    s_add_u32 s{T0}, s{T0}, {base}
    v_mov_b32 v{data}, s{S_TAG}
    v_mov_b32 v2, 0
    s_lshl_b64 exec, 1, 63
    """)
    op = "dword" if width == 4 else "dwordx2"
    st = f"buffer_store_{op} {vr(data, width // 4)}, v2, {sr(R_WS,4)}, s{T0} offen{SC}"
    if only is None:
        e.vm("fl", st)
    else:
        assert not e.vmq, e.vmq
        e(st)
    e("s_mov_b64 exec, -1")
    if only is not None:
        e(f"L_nofl{base & 0xfffff:x}:")


def make_tag(e):
    e.wait(vm="gen")
    e(f"""
    v_readfirstlane_b32 s{S_TAG}, v254
    s_mul_i32 s{S_TAG}, s{S_TAG}, 0x9e3779b1
    s_add_u32 s{S_TAG}, s{S_TAG}, 0x7f4a7c15
    """)


def prologue(e):
    e(f"""
    s_cmp_ge_u32 s2, 256
    s_cbranch_scc1 L_end
    s_load_dwordx16 s[16:31], s[0:1], 0
    s_load_dwordx8 s[32:39], s[0:1], 64
    s_load_dwordx2 s[40:41], s[0:1], 96
    v_lshrrev_b32 v1, 6, v0
    v_readfirstlane_b32 s{S_WAVE}, v1
    v_and_b32 v1, 63, v0
    s_bfe_u32 s{T0}, s2, 0x20001
    s_bfe_u32 s{T1}, s2, 0x20003
    s_lshl_b32 s{S_J}, s{T0}, 2
    s_add_u32 s{S_J}, s{S_J}, s{T1}
    s_and_b32 s{T0}, s2, 1
    s_lshr_b32 s{T2}, s2, 5
    s_lshl_b32 s{S_HP}, s{T0}, 3
    s_add_u32 s{S_HP}, s{S_HP}, s{T2}
    s_lshl_b32 s{T1}, s{T1}, 1
    s_add_u32 s{S_ROT}, s{T2}, s{T1}
    s_lshl_b32 s{S_BLK}, s{S_HP}, 4
    s_add_u32 s{S_BLK}, s{S_BLK}, s{S_J}
    s_and_b32 s{S_CG}, s2, 7
    s_lshr_b32 s{S_TB}, s2, 3
    s_and_b32 s{S_W4}, s{S_WAVE}, 3
    v_mov_b32 v2, {WS_GEN}
    """)
    if OPT.get("codepf"):
        e(f"""
        s_cmp_lg_u32 s{S_WAVE}, 7
        s_cbranch_scc1 L_nocpf
        s_getpc_b64 s[{T0}:{T1}]
        L_pc:
        s_mul_hi_u32 s{T2}, s{S_TB}, 0x55555556
        s_mul_i32 s{T2}, s{T2}, 3
        s_sub_u32 s{T2}, s{S_TB}, s{T2}
        s_lshl_b32 s{T2}, s{T2}, 13
        v_lshl_add_u32 v8, v1, 7, s{T2}
        v_min_u32 v8, L_last - L_pc, v8
        v_mov_b32 v9, s{T1}
        v_add_co_u32 v8, vcc, s{T0}, v8
        v_addc_co_u32 v9, vcc, 0, v9, vcc
        global_load_dword v253, v[8:9], off
        L_nocpf:
        """)
    if OPT.get("norot"):
        e(f"s_mov_b32 s{S_ROT}, 0")
    if OPT.get("rot2"):
        e(f"s_and_b32 s{S_ROT}, s{S_ROT}, 1\ns_lshl_b32 s{S_ROT}, s{S_ROT}, 2")


V_XD, V_WD = 4, 3
V_ADR = 128
ACC0, ACC1 = 96, 112
FR = 144


def frag_addresses(e):
    e(f"""
    v_and_b32 v56, 31, v1
    v_lshrrev_b32 v57, 5, v1
    v_bfe_u32 v58, v1, 1, 3
    v_xor_b32 v58, v58, v57
    v_lshlrev_b32 v58, 4, v58
    v_lshl_add_u32 v58, v56, 7, v58
    s_lshl_b32 s{T0}, s{S_W4}, 12
    v_add_u32 v{V_ADR}, s{T0}, v58
    v_xor_b32 v{V_ADR+1}, 32, v{V_ADR}
    v_xor_b32 v{V_ADR+2}, 64, v{V_ADR}
    v_xor_b32 v{V_ADR+3}, 0x60, v{V_ADR}
    v_bfe_u32 v58, v1, 2, 2
    v_lshl_add_u32 v58, v57, 3, v58
    v_lshlrev_b32 v58, 6, v58
    v_bfe_u32 v59, v1, 4, 1
    v_lshl_add_u32 v58, v59, 5, v58
    v_and_b32 v59, 3, v1
    v_lshl_add_u32 v58, v59, 3, v58
    v_add_u32 v{V_ADR+4}, 0x4000, v58
    """)
    for i in range(5):
        e(f"v_add_u32 v{V_ADR+5+i}, {2*SLOT}, v{V_ADR+i}")


def chunk_dma_steps(e, c):
    slot = (c % 4) * SLOT

    def x(i):
        if i == 0:
            e(f"s_add_u32 s{T1}, s{S_ROT}, {c}\ns_and_b32 s{T1}, s{T1}, 7\ns_add_u32 m0, s{S_MX}, {slot}\ns_lshl_b32 s{T0}, s{T1}, 7")
        e.vm(f"c{c}", f"buffer_load_dwordx4 v{V_XD+i}, {sr(R_X,4)}, s{T0} offen offset:{i*1024} lds")

    def w(part):
        if part == 0:
            e(f"s_add_u32 m0, s{S_MW}, {slot}\ns_mul_i32 s{T0}, s{T1}, 196608")
        e.vm(f"c{c}", f"buffer_load_dwordx4 v{V_WD}, {sr(R_W,4)}, s{T0} offen offset:{part*1024} lds")

    return [lambda i=i: x(i) for i in range(4)] + [lambda p=p: w(p) for p in range(3)]


def frag_reads(e, c, ks, parts, f):
    a, imm = V_ADR + 5 * ((c % 4) // 2), (c % 2) * SLOT
    e.ds(f"r{c}_{ks}", f"ds_read_b128 {vr(f,4)}, v{a+ks} offset:{imm}")
    for n, part in enumerate(parts):
        for j in range(2):
            e.ds(f"r{c}_{ks}", f"ds_read_b64_tr_b16 {vr(f+4+4*n+2*j,2)}, v{a+4} offset:{imm + (ks*3+part)*1024 + j*256}")


SH, GX, GW = 32, 48, 56


def gate_loads(e):
    srd(e, R_GW, P_GW, 1024)
    e(f"""
    s_lshl_b32 s{S_ROW}, s{S_J}, 2
    s_add_u32 s{S_ROW}, s{S_ROW}, s{S_W4}
    s_lshl_b32 s{S_ROW}, s{S_ROW}, 4
    s_add_u32 s{S_ROW}, s{S_ROW}, s{S_HP}
    s_lshl_b32 s{T2}, s{S_ROW}, 11
    """)
    e.vm("gate", f"buffer_load_dwordx4 {vr(GX,4)}, v{V_KO}, {sr(R_X,4)}, s{T2} offen")
    e.vm("gate", f"buffer_load_dwordx4 {vr(GX+4,4)}, v{V_KO}, {sr(R_X,4)}, s{T2} offen offset:1024")
    e.vm("gate", f"buffer_load_dwordx4 {vr(GW,4)}, v{V_KO}, {sr(R_GW,4)}, 0 offen")


def gate_compute(e):
    e.wait(vm="gate")
    for i in range(4):
        for r in range(2):
            e(f"v_dot2_f32_bf16 v{10+r}, v{GX+4*r+i}, v{GW+i}, {'0' if i == 0 else f'v{10+r}'}")
    wave_reduce(e, "v_add_f32", [10, 11])
    for op in (f"v_mul_f32 v{{0}}, {NLOG2E}, v{{0}}", "v_exp_f32 v{0}, v{0}", "v_add_f32 v{0}, 1.0, v{0}", "v_rcp_f32 v{0}, v{0}"):
        e(op.format(10) + "\n" + op.format(11))
    e(f"s_lshl_b32 s{T2}, s{S_ROW}, 3\ns_add_u32 s{T2}, s{T2}, {WS_G}\nv_mov_b32 v2, 0\ns_lshl_b64 exec, 1, 63")
    e.vm("g", f"buffer_store_dwordx2 v[10:11], v2, {sr(R_WS,4)}, s{T2} offen{SC}")
    e("s_mov_b64 exec, -1")


def staging(e):
    e(f"""
    s_lshl_b32 s{T0}, s{S_TB}, 2
    s_add_u32 s{T0}, s{T0}, s{S_WAVE}
    s_lshl_b32 s{T0}, s{T0}, 14
    s_lshl_b32 s{T1}, s{S_CG}, 7
    s_add_u32 s{T0}, s{T0}, s{T1}
    v_lshrrev_b32 v54, 3, v1
    v_and_b32 v55, 7, v1
    v_lshlrev_b32 v55, 4, v55
    v_lshl_add_u32 v54, v54, 10, v55
    v_add_u32 v54, s{T0}, v54
    v_add_u32 v53, 0xffffe000, v54
    v_add_u32 v55, 0x2000, v54
    s_mul_i32 s{S_MX}, s{S_WAVE}, 5120
    s_add_u32 s{S_MX}, s{S_MX}, {L_STG}
    s_cmp_ge_u32 s{S_WAVE}, 4
    s_waitcnt lgkmcnt(0)
    s_cbranch_scc1 L_vrole
    """)
    srd(e, R_SH, P_SH, 4096)
    e(f"v_and_b32 v49, 31, v1\ns_lshl_b32 s{T1}, s{S_CG}, 9\nv_lshl_add_u32 v6, v49, 4, s{T1}")
    e.vm("pre", f"buffer_load_dwordx4 {vr(SH,4)}, v6, {sr(R_SH,4)}, 0 offen")
    srd(e, R_K, P_K, 0x200000)
    srd(e, R_V, P_V, 0x200000)
    for n, (r, v) in enumerate(((R_K, 53), (R_K, 54), (R_K, 55), (R_V, 54), (R_V, 55))):
        e(f"s_add_u32 m0, s{S_MX}, {n*1024}")
        e.vm("pre", f"buffer_load_dwordx4 v{v}, {sr(r,4)}, 0 offen lds")


def wo_prefetch(e):
    e(f"""
    s_cmp_ge_u32 s{S_WAVE}, 6
    s_cbranch_scc1 L_nowopf
    s_lshr_b32 s{T0}, s2, 5
    s_lshl_b32 s{T0}, s{T0}, 1
    s_add_u32 s{T0}, s{T0}, s{S_W4}
    s_lshl_b32 s{T0}, s{T0}, 15
    s_lshl_b32 s{T1}, s{S_NQ}, 8
    s_add_u32 s{T0}, s{T0}, s{T1}
    v_lshrrev_b32 v10, 1, v1
    v_lshlrev_b32 v10, 10, v10
    v_and_b32 v11, 1, v1
    v_lshl_add_u32 v10, v11, 7, v10
    buffer_load_dword v252, v10, {sr(R_W,4)}, s{T0} offen
    L_nowopf:
    """)


def prepass_compute(e):
    KR, VR, KF, VF, WF, U, PK = 8, 20, 144, 166, 182, 190, 144
    e(f"""
    v_lshrrev_b32 v48, 5, v0
    v_lshrrev_b32 v53, 5, v1
    v_lshlrev_b32 v53, 10, v53
    v_lshl_add_u32 v53, v49, 2, v53
    v_add_u32 v53, s{S_MX}, v53
    """)
    for i in range(11):
        e.ds(f"pk{i//4}", f"ds_read_b32 v{KR+i}, v53 offset:{(5+i)*128}")
    e(f"""
    v_mul_u32_u24 v50, 288, v49
    v_lshlrev_b32 v48, 4, v48
    v_sub_u32 v50, v50, v48
    v_add_u32 v50, {L_PRE + 112}, v50
    """)
    for j in range(4):
        if j % 2 == 0:
            e(f"v_lshlrev_b32 v{WF+2*j}, 16, v{SH+j//2}\nv_lshlrev_b32 v{WF+2*j+1}, 16, v{SH+2+j//2}")
        else:
            e(f"v_and_b32 v{WF+2*j}, 0xffff0000, v{SH+j//2}\nv_and_b32 v{WF+2*j+1}, 0xffff0000, v{SH+2+j//2}")
    for i in range(11):
        if i % 4 == 0:
            e.wait(ds=f"pk{i//4}")
        if i == 4:
            for k in range(8):
                e.ds("pv", f"ds_read_b32 v{VR+k}, v53 offset:{3072 + k*128}")
        e(f"v_lshlrev_b32 v{KF+2*i}, 16, v{KR+i}\nv_and_b32 v{KF+2*i+1}, 0xffff0000, v{KR+i}")
    for j in (3, 2, 1, 0):
        for o in range(8):
            kr = KF + 2 * (o + 3 - j)
            if j == 3:
                e(f"v_pk_mul_f32 {vr(U+2*o,2)}, {vr(kr,2)}, {vr(WF+2*j,2)}")
            else:
                e(f"v_pk_fma_f32 {vr(U+2*o,2)}, {vr(kr,2)}, {vr(WF+2*j,2)}, {vr(U+2*o,2)}")
    e.wait(ds="pv")
    for i in range(8):
        e(f"v_lshlrev_b32 v{VF+2*i}, 16, v{VR+i}\nv_and_b32 v{VF+2*i+1}, 0xffff0000, v{VR+i}")
    for o in range(8):
        e(f"v_pk_mul_f32 {vr(U+2*o,2)}, {vr(U+2*o,2)}, {vr(VF+2*o,2)}")
    for ch in range(2):
        for q in range(4):
            e(f"v_cvt_pk_bf16_f32 v{PK+4*ch+q}, v{U+2*(7-2*q)+ch}, v{U+2*(6-2*q)+ch}")
        e.ds("pw", f"ds_write_b128 v50, {vr(PK+4*ch,4)} offset:{ch*144}")
    e(f"""
    v_lshrrev_b32 v48, 3, v0
    v_and_b32 v52, 7, v0
    v_lshlrev_b32 v52, 4, v52
    v_mul_u32_u24 v51, 144, v48
    v_add_u32 v51, v51, v52
    v_add_u32 v51, {L_PRE}, v51
    v_lshl_add_u32 v52, v48, 12, v52
    s_lshl_b32 s{S_MW}, s{S_CG}, 18
    s_lshl_b32 s{T3}, s{S_TB}, 7
    s_sub_u32 s{S_MW}, s{S_MW}, s{T3}
    s_add_u32 s{S_MW}, s{S_MW}, {WS_U + 3968}
    """)


def prepass_read(e):
    e.ds("pr", "ds_read_b128 v[8:11], v51")
    e.ds("pr", f"ds_read_b128 v[12:15], v51 offset:{32*144}")


def prepass_out(e):
    e(f"s_add_u32 s{T1}, s{S_MW}, {32*4096}")
    e.wait(ds="pr")
    e.vm("ust", f"buffer_store_dwordx4 v[8:11], v52, {sr(R_WS,4)}, s{S_MW} offen{SC}")
    e.vm("ust", f"buffer_store_dwordx4 v[12:15], v52, {sr(R_WS,4)}, s{T1} offen{SC}")


def of_slot(e, s, with_head, tmp=T1):
    e(f"""
    s_lshl_b32 s{s}, s{S_J}, 2
    s_add_u32 s{s}, s{s}, s{S_W4}
    s_lshl_b32 s{s}, s{s}, 4
    s_add_u32 s{s}, s{s}, s{S_HP}
    s_lshl_b32 s{s}, s{s}, 1
    """)
    if with_head:
        e(f"s_lshr_b32 s{tmp}, s{S_WAVE}, 2\ns_add_u32 s{s}, s{s}, s{tmp}")
    e(f"s_lshl_b32 s{s}, s{s}, 10\ns_add_u32 s{s}, s{s}, {WS_OF}")


UFLAG_AT = 4


def gemm_qk(e):
    srd(e, R_X, P_X, 0x200000)
    srd(e, R_WS, P_WS, WS_SIZE)
    e.vm("gen", f"buffer_load_dword v254, v2, {sr(R_WS,4)}, 0 offen sc0 sc1")
    frag_addresses(e)
    e(f"v_mov_b32 v8, {L_MISC + 64}\nv_mov_b32 v9, 0")
    e.ds("cnt", "ds_write_b32 v8, v9")
    stamp(e, 1)
    e.wait(vm="pre")
    stamp(e, 2)
    prepass_compute(e)
    make_tag(e)
    attn_addresses(e)
    conv_addresses(e)
    u_flag_load(e)
    e("s_waitcnt lgkmcnt(0)")
    e.dsq = []
    stamp(e, 3)

    if OPT.get("qprio"):
        e("s_setprio 1")

    def fr(ks):
        return FR + 12 * ks

    def mm(c, ks):
        e.wait(ds=f"r{c}_{ks}")
        f = fr(ks)
        first = c == 0 and ks == 0
        e(f"v_mfma_f32_32x32x16_bf16 {vr(ACC0,16)}, {vr(f+4,4)}, {vr(f,4)}, {'0' if first else vr(ACC0,16)}")
        e(f"v_mfma_f32_32x32x16_bf16 {vr(ACC1,16)}, {vr(f+8,4)}, {vr(f,4)}, {'0' if first else vr(ACC1,16)}")

    for c in range(8):
        if c == UFLAG_AT:
            e.wait(vm="*")
        e("s_barrier")
        if c in (0, 1, 4, 7):
            stamp(e, 20 + c)
        if c == UFLAG_AT:
            flag_store(e, FL_U, 2, 8, only=0)
        if c == 0:
            prepass_read(e)
        frag_reads(e, c, 0, (0, 1), fr(0))
        if c:
            mm(c - 1, 2)
        frag_reads(e, c, 1, (0, 1), fr(1))
        if c:
            mm(c - 1, 3)
        frag_reads(e, c, 2, (0, 1), fr(2))
        mm(c, 0)
        frag_reads(e, c, 3, (0, 1), fr(3))
        mm(c, 1)
        if c == 0:
            prepass_out(e)
    e.vm("uf", u_flag_load(e, True))
    mm(7, 2)
    mm(7, 3)


def loader_setup(e):
    e(f"""
    v_lshrrev_b32 v36, 3, v1
    v_lshrrev_b32 v37, 4, v1
    v_xor_b32 v37, v37, v1
    v_and_b32 v37, 7, v37
    v_lshlrev_b32 v37, 4, v37
    v_lshl_add_u32 v37, v36, 10, v37
    s_lshl_b32 s{T0}, s{S_J}, 2
    s_add_u32 s{T0}, s{T0}, s{S_W4}
    s_lshl_b32 s{T0}, s{T0}, 15
    v_add_u32 v{V_XD}, s{T0}, v37
    v_xor_b32 v{V_XD+1}, 64, v{V_XD}
    v_add_u32 v{V_XD+2}, {16384-2048}, v{V_XD}
    v_add_u32 v{V_XD+3}, {24576-3072}, v{V_XD+1}
    v_add_u32 v{V_XD+1}, {8192-1024}, v{V_XD+1}
    s_lshl_b32 s{S_MX}, s{S_W4}, 12
    v_bfe_u32 v36, v0, 2, 6
    v_mul_u32_u24 v36, 0xc00, v36
    v_and_b32 v37, 3, v1
    v_lshl_add_u32 v36, v37, 4, v36
    s_lshl_b32 s{T0}, s{S_HP}, 6
    v_add_u32 v{V_WD}, s{T0}, v36
    s_mul_i32 s{S_MW}, s{S_W4}, 3072
    s_add_u32 s{S_MW}, s{S_MW}, 16384
    """)
    srd(e, R_X, P_X, 0x200000)
    srd(e, R_W, P_W, 0x180000)


def conv_h_steps(e):
    e(f"""
    s_lshr_b32 s{T0}, s{S_W4}, 1
    s_lshl_b32 s{T1}, s2, 1
    s_add_u32 s{T1}, s{T1}, s{T0}
    s_lshl_b32 s{T2}, s{T1}, 12
    s_add_u32 s{R_H}, s{P_H}, s{T2}
    s_addc_u32 s{R_H+1}, s{P_H+1}, 0
    s_mov_b32 s{R_H+2}, 4096
    s_mov_b32 s{R_H+3}, 0x20000
    s_and_b32 s{T0}, s{S_W4}, 1
    s_lshl_b32 s{T0}, s{T0}, 3
    v_lshl_add_u32 v8, v1, 4, s{T0}
    v_lshl_add_u32 v9, v1, 2, s{T0}
    s_mul_i32 s{T2}, s{S_W4}, {2*A_COPY}
    """)
    steps = []
    for cc in range(2):
        def big(i, cc=cc):
            if i == 0:
                e(f"v_add_u32 v10, {4+4*cc}, v8\nv_add_u32 v11, {-60+4*cc}, v9\ns_add_u32 m0, s{T2}, {L_A + cc*A_COPY + 64}")
            e.vm("h", f"buffer_load_dwordx4 v10, {sr(R_H,4)}, 0 offen offset:{i*1024} lds")

        def head(cc=cc):
            e(f"s_add_u32 m0, s{T2}, {L_A + cc*A_COPY}\ns_mov_b64 exec, 0xffff")
            e.vm("h", f"buffer_load_dword v11, {sr(R_H,4)}, 0 offen lds")
            e("s_mov_b64 exec, -1")
        steps += [lambda i=i, big=big: big(i) for i in range(4)] + [head]
    return steps


def u_flag_load(e, text_only=False):
    ld = f"buffer_load_dword v28, v29, {sr(R_WS,4)}, s{S_WOS} offen{SC}"
    if text_only:
        return ld
    e(f"""
    v_and_b32 v29, 31, v1
    v_lshlrev_b32 v29, 10, v29
    s_lshr_b32 s{S_WOS}, s2, 5
    s_lshl_b32 s{S_WOS}, s{S_WOS}, 7
    s_add_u32 s{S_WOS}, s{S_WOS}, {FL_U}
    s_lshr_b32 s{T0}, s{S_W4}, 1
    s_lshl_b32 s{S_KF}, s2, 1
    s_add_u32 s{S_KF}, s{S_KF}, s{T0}
    s_lshl_b32 s{S_KF}, s{S_KF}, 12
    s_and_b32 s{T0}, s{S_W4}, 1
    s_lshl_b32 s{T0}, s{T0}, 1
    s_sub_u32 s{S_KF}, s{S_KF}, s{T0}
    s_add_u32 s{S_KF}, s{S_KF}, {WS_U + 2}
    """)


def conv_u_loads(e):
    poll(e, "L_pollu", [u_flag_load(e, True)], [28], first="uf")
    e(f"s_mul_i32 s{S_WOS}, s{S_W4}, {B_COPY}\ns_add_u32 m0, s{S_WOS}, {L_B}")
    for i in range(4):
        e.vm("u", f"buffer_load_dwordx4 v{V_KO}, {sr(R_WS,4)}, s{S_KF} offen offset:{i*1024}{SC} lds")


def conv_u_pad(e):
    e.wait(vm="u")
    e(f"""
    v_lshl_add_u32 v12, v1, 3, s{S_WOS}
    v_mov_b32 v10, 0
    v_mov_b32 v11, 0
    s_lshr_b64 exec, -1, 4
    ds_write_b64 v12, v[10:11] offset:{L_B + 4096}
    s_and_b32 s{T0}, s{S_WAVE}, 1
    s_xor_b32 exec_lo, s{T0}, 1
    s_mov_b32 exec_hi, 0
    ds_write_b16 v12, v10 offset:{L_B + 4094}
    s_mov_b64 exec, -1
    """)


def gemm_v(e):
    for c in range(2):
        for st in chunk_dma_steps(e, c):
            st()
    srd(e, R_WS, P_WS, WS_SIZE)
    e.vm("gen", f"buffer_load_dword v254, v2, {sr(R_WS,4)}, 0 offen sc0 sc1")
    stamp(e, 1)
    stamp(e, 2)
    frag_addresses(e)
    for c in range(8):
        e.wait(vm=f"c{c}")
        if c == 0:
            stamp(e, 3)
        e("s_barrier")
        if c in (0, 1, 4, 7):
            stamp(e, 20 + c)
        steps = chunk_dma_steps(e, c + 2) if c + 2 < 8 else conv_h_steps(e) if c == 6 else []
        per = 2 if c == 6 else 1

        def step():
            for _ in range(per):
                if steps:
                    steps.pop(0)()
        if c == 7:
            attn_addresses(e)
        if OPT.get("vclu"):
            while steps:
                step()
        for ks in range(4):
            step()
            frag_reads(e, c, ks, (2,), FR + 8 * ks)
        for ks in range(4):
            e.wait(ds=f"r{c}_{ks}")
            f = FR + 8 * ks
            e(f"v_mfma_f32_32x32x16_bf16 {vr(ACC0,16)}, {vr(f,4)}, {vr(f+4,4)}, {'0' if c + ks == 0 else vr(ACC0,16)}")
            step()
        assert not steps
        if c == 3:
            make_tag(e)


def tile_base(e, s):
    e(f"s_mul_i32 s{s}, s{S_BLK}, {BLK}\ns_mul_i32 s{T3}, s{S_W4}, {TILE}\ns_add_u32 s{s}, s{s}, s{T3}")


V_MK = 41


def epi_qk(e):
    QP, KP = 8, 16
    tile_base(e, T0)
    e(f"""
    v_and_b32 v36, 0x33, v1
    v_bfe_u32 v37, v1, 2, 1
    v_lshl_or_b32 v36, v37, 3, v36
    v_bfe_u32 v37, v1, 3, 1
    v_lshl_or_b32 v36, v37, 2, v36
    v_lshlrev_b32 v36, 4, v36
    s_add_u32 s{T1}, s{T0}, {4*TILE}
    s_lshl_b32 s{T2}, s{S_W4}, 11
    v_add_u32 v38, s{T2}, v36
    s_mov_b32 s{S_MX}, {QSCALE}
    s_mov_b32 s{S_MW}, {QSCALE}
    s_lshl_b32 s{T2}, s{S_W4}, 10
    v_lshl_add_u32 v37, v1, 4, s{T2}
    """)
    for i in range(8):
        e(f"v_cvt_pk_bf16_f32 v{KP+i}, v{ACC1+2*i}, v{ACC1+2*i+1}")
    e.vm("st", f"buffer_store_dwordx4 {vr(KP,4)}, v36, {sr(R_WS,4)}, s{T0} offen{SC}")
    e.vm("st", f"buffer_store_dwordx4 {vr(KP+4,4)}, v36, {sr(R_WS,4)}, s{T1} offen{SC}")
    e.ds("ew", f"ds_write_b128 v38, {vr(KP,4)} offset:{L_KVO}")
    e.ds("ew", f"ds_write_b128 v38, {vr(KP+4,4)} offset:{L_KVO + 8192}")
    for i in range(8):
        e(f"v_pk_mul_f32 {vr(ACC0+2*i,2)}, {vr(ACC0+2*i,2)}, s[{S_MX}:{S_MW}]")
    for i in range(8):
        e(f"v_cvt_pk_bf16_f32 v{QP+i}, v{ACC0+2*i}, v{ACC0+2*i+1}")
    e(f"v_add_u32 v37, {L_Q}, v37")
    e.ds("ew", f"ds_write_b128 v37, {vr(QP,4)}")
    e.ds("ew", f"ds_write_b128 v37, {vr(QP+4,4)} offset:4096")
    for i in range(4):
        for d, s in ((42, QP), (43, QP + 4), (V_MK, KP), (44, KP + 4)):
            e(f"v_dot2_f32_bf16 v{d}, v{s+i}, v{s+i}, {'0' if i == 0 else f'v{d}'}")
    e(f"v_max_f32 v42, v42, v43\nv_max_f32 v{V_MK}, v{V_MK}, v44")
    wave_reduce(e, "v_max_f32", [42, V_MK])
    e(f"s_lshl_b32 s{T2}, s{S_W4}, 2\ns_add_u32 s{T2}, s{T2}, {L_MISC}\nv_mov_b32 v37, s{T2}\ns_lshl_b64 exec, 1, 63")
    e.ds("ew", f"ds_write_b32 v37, v42")
    e.ds("ew", f"ds_write_b32 v37, v{V_MK} offset:32")
    e("s_mov_b64 exec, -1")


def epi_v(e):
    VP = 16
    tile_base(e, T0)
    e(f"""
    v_bfe_u32 v38, v1, 4, 1
    v_lshrrev_b32 v37, 5, v1
    v_lshlrev_b32 v37, 8, v37
    v_and_b32 v39, 15, v1
    v_lshl_add_u32 v37, v39, 4, v37
    v_mad_u32_u24 v36, v38, s{S_MX}, v37
    v_lshl_add_u32 v37, v38, 13, v37
    s_lshl_b32 s{T2}, s{S_W4}, 11
    v_add_u32 v37, s{T2}, v37
    v_mul_u32_u24 v39, {4*TILE}, v1
    """.replace(f"v_mad_u32_u24 v36, v38, s{S_MX}, v37", f"s_movk_i32 s{S_MX}, {4*TILE}\nv_mad_u32_u24 v36, v38, s{S_MX}, v37"))
    for i in range(4):
        e(f"v_mov_b32 v{24+i}, 0x3f803f80")
    for i in range(8):
        e(f"v_cvt_pk_bf16_f32 v{VP+i}, v{ACC0+2*i}, v{ACC0+2*i+1}")
    e.vm("st", f"buffer_store_dwordx4 {vr(VP,4)}, v36, {sr(R_WS,4)}, s{T0} offen offset:1024{SC}")
    e.vm("st", f"buffer_store_dwordx4 {vr(VP+4,4)}, v36, {sr(R_WS,4)}, s{T0} offen offset:1536{SC}")
    e("s_mov_b64 exec, 3")
    e.vm("st", f"buffer_store_dwordx4 v[24:27], v39, {sr(R_WS,4)}, s{T0} offen offset:2048{SC}")
    e("s_mov_b64 exec, -1")
    e.ds("ew", f"ds_write_b128 v37, {vr(VP,4)} offset:{L_KVO + 1024}")
    e.ds("ew", f"ds_write_b128 v37, {vr(VP+4,4)} offset:{L_KVO + 1536}")


O_ACC, S_BUF, Q_FR, KV_ST = 64, 128, 192, 208
V_IDX, V_KO, V_V0, V_V1 = 244, 245, 246, 247
NS = 3
C_ACC, C_B = 16, 144
C_A = 32


def ca(a):
    return 48 + 4 * a if a < 4 else 128 + 4 * (a - 4)


def kv_regs(j):
    b = KV_ST + 12 * (j % NS)
    return b, b + 4, b + 8


V_AQ = 64


def attn_addresses(e):
    k, v0, v1 = kv_regs(0)
    e(f"""
    v_lshlrev_b32 v{V_KO}, 4, v1
    v_lshrrev_b32 v60, 5, v1
    v_lshlrev_b32 v60, 4, v60
    v_and_or_b32 v60, v1, 15, v60
    v_lshlrev_b32 v60, 4, v60
    s_lshl_b32 s{T2}, s{S_WAVE}, 11
    v_add_u32 v{V_AQ+4}, s{T2}, v{V_KO}
    v_add_u32 v{V_AQ+5}, s{T2}, v60
    v_and_b32 v61, 27, v1
    v_cmp_eq_u32 vcc, 16, v61
    v_mov_b32 v61, 0x3f803f80
    v_mov_b32 v62, {OOB}
    v_cndmask_b32 v61, 0, v61, vcc
    v_mov_b32 v63, 1024
    v_cndmask_b32 v{V_V0}, v62, v63, vcc
    v_mov_b32 v63, 512
    v_cndmask_b32 v{V_V1}, v62, v63, vcc
    v_and_b32 v62, 16, v1
    v_cmp_eq_u32 vcc, 0, v62
    v_mov_b32 v{V_IDX}, 0xdddddddd
    s_mul_i32 s{T2}, s{S_WAVE}, {TILE}
    v_cndmask_b32 v{V_V0}, v{V_V0}, v60, vcc
    v_cndmask_b32 v{V_V1}, v{V_V1}, v60, vcc
    s_lshl_b32 s{T3}, s{S_BLK}, 15
    s_add_u32 s{S_KVB}, s{T2}, s{T3}
    s_mov_b32 s{S_KVN}, 0
    """)
    for i in range(8):
        e(f"v_mov_b32 v{v0+i}, v61")
    e(f"s_lshr_b32 s{T2}, s{S_WAVE}, 2\ns_lshl_b32 s{T2}, s{T2}, 12\ns_add_u32 s{T2}, s{T2}, {L_Q}")
    for i in range(4):
        e(f"s_add_u32 s{T3}, s{S_W4}, {i}\ns_and_b32 s{T3}, s{T3}, 3\ns_lshl_b32 s{T3}, s{T3}, 10\ns_add_u32 s{T3}, s{T3}, s{T2}")
        e(f"v_add_u32 v{V_AQ+i}, s{T3}, v{V_KO}")
    e(f"v_and_b32 v70, 3, v1\nv_lshlrev_b32 v70, 2, v70\nv_add_u32 v70, {L_MISC}, v70")


def attn_reads(e):
    k, v0, v1 = kv_regs(0)
    e.ds("aq", f"ds_read_b128 {vr(k,4)}, v{V_AQ+4} offset:{L_KVO}")
    for i in range(4):
        e.ds("aq", f"ds_read_b128 {vr(Q_FR+4*i,4)}, v{V_AQ+i}")
    e("s_mov_b32 exec_lo, 0xffff\ns_mov_b32 exec_hi, 0xffff")
    e.ds("aq", f"ds_read_b128 {vr(v0,4)}, v{V_AQ+5} offset:{L_KVO + 1024}")
    e.ds("aq", f"ds_read_b128 {vr(v1,4)}, v{V_AQ+5} offset:{L_KVO + 1536}")
    e("s_mov_b64 exec, -1")
    e.ds("mq", "ds_read_b32 v42, v70")
    e.ds("mq", f"ds_read_b32 v{V_MK}, v70 offset:32")


def kv_load(e, j, soff=None):
    k, v0, v1 = kv_regs(j)
    so = soff or f"s{S_KVO}"
    if not soff:
        e(f"s_add_u32 s{S_KVN}, s{S_KVN}, {BLK}\ns_xor_b32 s{S_KVO}, s{S_KVB}, s{S_KVN}")
    e.vm(f"kv{j}", f"buffer_load_dwordx4 {vr(k,4)}, v{V_KO}, {sr(R_WS,4)}, {so} offen{SC}")
    e.vm(f"kv{j}", f"buffer_load_dwordx4 {vr(v0,4)}, v{V_V0}, {sr(R_WS,4)}, {so} offen offset:1024{SC}")
    e.vm(f"kv{j}", f"buffer_load_dwordx4 {vr(v1,4)}, v{V_V1}, {sr(R_WS,4)}, {so} offen offset:1536{SC}")


def conv_pair(e, a):
    e(f"ds_read_b128 {vr(ca(a),4)}, v248 offset:{a*512}")
    e(f"ds_read_b128 {vr(C_B+4*(7-a),4)}, v249 offset:{a*512}")


def conv_body(first=False):
    b = E()
    b("v_add_u32 v248, 64, v248\nv_add_u32 v249, 64, v249")
    for a in range(8):
        for bb in range(7 - a, -1, -1):
            if a == 0:
                b(f"s_waitcnt lgkmcnt({2*bb})")
            n = a + bb
            c = "0" if first and a == 0 else vr(C_ACC + 4 * n, 4)
            b(f"v_mfma_f32_16x16x32_bf16 {vr(C_ACC+4*n,4)}, {vr(ca(a),4)}, {vr(C_B+4*bb,4)}, {c}")
        conv_pair(b, a)
    return b.l


def conv_mfma(e):
    for a in range(8):
        conv_pair(e, a)
    body = conv_body()
    e("\n".join(conv_body(True)))
    tail = [f"    s_sub_u32 s{T0}, s{T0}, 1", f"    s_cmp_lg_u32 s{T0}, 0", "    s_cbranch_scc1 L_cvloop"]
    check_seq(body + tail + body, "conv loop")
    e(f"s_mov_b32 s{T0}, 3\nL_cvloop:")
    e("\n".join(body + tail))
    e(f"s_lshl_b32 s{T1}, s{S_WAVE}, 13\ns_add_u32 s{T1}, s{T1}, {L_P}\nv_add_u32 v2, s{T1}, v{V_KO}\ns_waitcnt lgkmcnt(0)")
    for n in range(8):
        e(f"ds_write_b128 v2, {vr(C_ACC+4*n,4)} offset:{n*1024}")
    e("s_waitcnt lgkmcnt(0)")


def conv_addresses(e):
    e(f"""
    s_lshl_b32 s{T2}, s2, 2
    s_load_dword s{S_D}, s[{P_D}:{P_D+1}], s{T2}
    v_and_b32 v60, 3, v1
    v_mul_u32_u24 v248, {A_COPY}, v60
    v_bfe_u32 v60, v1, 2, 2
    v_lshrrev_b32 v61, 4, v1
    v_add_u32 v60, v60, v61
    v_lshl_add_u32 v248, v60, 4, v248
    s_lshr_b32 s{T0}, s{S_W4}, 1
    s_and_b32 s{T1}, s{S_WAVE}, 1
    s_lshl_b32 s{T1}, s{T1}, 8
    s_mul_i32 s{T2}, s{T0}, {4*A_COPY}
    s_add_u32 s{T2}, s{T2}, s{T1}
    s_add_u32 s{T2}, s{T2}, {L_A}
    v_add_u32 v248, s{T2}, v248
    v_and_b32 v60, 1, v1
    v_mul_u32_u24 v249, {B_COPY}, v60
    v_lshl_add_u32 v249, v61, 4, v249
    v_bfe_u32 v60, v1, 1, 3
    v_lshlrev_b32 v60, 6, v60
    v_sub_u32 v249, v249, v60
    v_add_u32 v250, {L_B + 4080}, v249
    v_lshlrev_b32 v62, 5, v61
    v_sub_u32 v250, v250, v62
    s_lshl_b32 s{T3}, s{S_WAVE}, 9
    v_subrev_u32 v250, s{T3}, v250
    s_mul_i32 s{T2}, s{T0}, {2*B_COPY}
    s_add_u32 s{T2}, s{T2}, s{T1}
    s_add_u32 s{T2}, s{T2}, {L_B + 448}
    v_add_u32 v249, s{T2}, v249
    """)


def norms_max(e):
    e.wait(ds="mq")
    for ctl in ("row_shr:1", "row_shr:2"):
        for r in (42, V_MK):
            e(f"v_max_f32_dpp v{r}, v{r}, v{r} {ctl} row_mask:0xf bank_mask:0xf")


def kv_signal(e, sfx):
    e.wait(vm="st")
    e(f"""
    v_mov_b32 v10, {L_MISC + 64}
    v_mov_b32 v11, 1
    s_lshl_b64 exec, 1, 63
    ds_add_rtn_u32 v11, v10, v11
    s_waitcnt lgkmcnt(0)
    v_cmp_eq_u32 vcc, 7, v11
    s_cbranch_vccz L_sig{sfx}
    s_lshl_b32 s{T0}, s{S_BLK}, 7
    s_add_u32 s{T0}, s{T0}, {FL_KV}
    v_mov_b32 v{V_MK-1}, s{S_TAG}
    v_mov_b32 v10, 0
    buffer_store_dwordx2 {vr(V_MK-1,2)}, v10, {sr(R_WS,4)}, s{T0} offen{SC}
    L_sig{sfx}:
    s_mov_b64 exec, -1
    """)
    e.dsq = []


def kv_wait_and_decide(e):
    wo_prefetch(e)
    e(f"""
    s_lshl_b32 s{T2}, s{S_HP}, 11
    s_add_u32 s{T2}, s{T2}, {FL_KV}
    v_and_b32 v10, 15, v1
    v_lshlrev_b32 v10, 7, v10
    """)
    poll(e, "L_pollkv", [f"buffer_load_dwordx2 v[12:13], v10, {sr(R_WS,4)}, s{T2} offen{SC}"], [12])
    for j in (1, 2):
        kv_load(e, j)
    for ctl in ("row_shr:1", "row_shr:2", "row_shr:4", "row_shr:8"):
        e(f"v_max_f32_dpp v13, v13, v13 {ctl} row_mask:0xf bank_mask:0xf")
    e(f"v_mul_f32 v11, v42, v13\nv_mov_b32 v10, {L_MISC + 16}\ns_lshl_b64 exec, 1, 63")
    e.ds("dw", "ds_write_b32 v10, v11")
    e("s_mov_b64 exec, -1")
    e.wait(ds="*")


def conv_final(e):
    e(f"""
    s_lshl_b32 s{T1}, s{S_WAVE}, 10
    s_add_u32 s{T1}, s{T1}, {L_P}
    v_add_u32 v2, s{T1}, v{V_KO}
    v_mov_b32 v10, {L_MISC + 16}
    """)
    e.ds("cp", "ds_read_b32 v11, v10")
    for q in range(4):
        e.ds("cp", f"ds_read_b128 {vr(C_A+4*q,4)}, v2 offset:{q*8192}")
    for ch in range(2):
        e.ds("cp", f"ds_read_b128 {vr(C_B+4*ch,4)}, v250 offset:{ch*2*B_COPY}")
    e(f"""
    v_bfe_u32 v2, v1, 1, 3
    v_lshlrev_b32 v2, 7, v2
    v_lshrrev_b32 v3, 4, v1
    v_lshl_add_u32 v2, v3, 5, v2
    v_and_b32 v10, 1, v1
    v_lshl_add_u32 v2, v10, 4, v2
    s_lshl_b32 s{T0}, s2, 3
    s_add_u32 s{T0}, s{T0}, s{S_WAVE}
    s_lshl_b32 s{T0}, s{T0}, 10
    s_add_u32 s{T0}, s{T0}, {WS_Y}
    s_lshl_b32 s{T1}, s{S_D}, 16
    s_and_b32 s{T2}, s{S_D}, 0xffff0000
    v_mov_b32 v10, {BOUND2}
    """)
    for i in range(4):
        e(f"v_mov_b32 v{16+i}, -1")
    of_slot(e, T3, True, S_KF)
    e.vm("y", f"buffer_store_dwordx4 v[16:19], v{V_KO}, {sr(R_WS,4)}, s{T3} offen{SC}")
    e.wait(ds="*")
    e("s_barrier")
    for ch in range(2):
        for r in range(4):
            e(f"v_add_f32 v{C_A+8*ch+r}, v{C_A+8*ch+r}, v{C_A+8*ch+4+r}")
            e(f"v_lshlrev_b32 v{C_B+4*ch+3-r}, 16, v{C_B+4*ch+3-r}")
        for r in range(4):
            e(f"v_fmac_f32 v{C_A+8*ch+r}, s{T1+ch}, v{C_B+4*ch+3-r}")
    for r in range(4):
        e(f"v_cvt_pk_bf16_f32 v{12+r}, v{C_A+r}, v{C_A+8+r}")
    e.vm("y", f"buffer_store_dwordx4 v[12:15], v2, {sr(R_WS,4)}, s{T0} offen{SC}")
    e("v_cmp_le_f32 vcc, v11, v10")


W_FR = 16
W_FR2 = 208
N_EARLY = 7


def wfr(blk):
    return W_FR + 4 * blk if blk < N_EARLY else W_FR2 + 4 * (blk - N_EARLY)


def qk(e, j, i):
    e(f"v_mfma_f32_32x32x16_bf16 {vr(S_BUF+16*i,16)}, {vr(kv_regs(j)[0],4)}, {vr(Q_FR+4*i,4)}, 0")


def pv(e, j, i, half):
    e(f"v_smfmac_f32_32x32x32_bf16 {vr(O_ACC+16*i,16)}, {vr(kv_regs(j)[1+half],4)}, {vr(S_BUF+16*i+8*half,8)}, v{V_IDX}")


def p3_setup(e):
    srd(e, R_W, P_WO, 0x80000)
    e(f"""
    s_lshr_b32 s{T0}, s2, 5
    s_lshl_b32 s{T0}, s{T0}, 3
    s_and_b32 s{S_QT}, s2, 7
    s_add_u32 s{S_QT}, s{S_QT}, s{T0}
    s_bfe_u32 s{S_NQ}, s2, 0x20003
    s_lshr_b32 s{T3}, s{S_WAVE}, 2
    s_lshl_b32 s{S_MX}, s{S_WAVE}, 14
    v_lshrrev_b32 v5, 5, v1
    v_bfe_u32 v6, v1, 2, 2
    v_lshl_add_u32 v5, v5, 2, v6
    v_lshlrev_b32 v5, 6, v5
    v_bfe_u32 v6, v1, 4, 1
    v_xor_b32 v6, s{T3}, v6
    v_lshl_add_u32 v5, v6, 5, v5
    v_and_b32 v6, 1, v1
    v_lshl_add_u32 v5, v6, 4, v5
    v_bfe_u32 v6, v1, 1, 1
    v_lshl_add_u32 v5, v6, 3, v5
    v_add_u32 v5, s{S_MX}, v5
    s_mul_i32 s{T1}, s{S_W4}, 6912
    s_add_u32 s{T1}, s{T1}, {L_O}
    s_cmp_ge_u32 s{S_WAVE}, 4
    s_cselect_b32 s{S_XB}, s{T1}, s{S_MX}
    """)


V_WO = 248


def wo_stage(e, sfx):
    p3_setup(e)
    e(f"""
    s_lshl_b32 s{T1}, s{S_W4}, 6
    s_lshl_b32 s{T2}, s{S_NQ}, 8
    s_add_u32 s{T1}, s{T1}, s{T2}
    v_lshrrev_b32 v4, 2, v1
    v_lshlrev_b32 v4, 10, v4
    v_and_b32 v3, 3, v1
    v_lshl_add_u32 v4, v3, 4, v4
    v_add_u32 v248, s{T1}, v4
    v_add_u32 v249, 15360, v248
    v_add_u32 v250, 30720, v248
    v_add_u32 v251, 46080, v248
    s_mov_b32 s{S_WOM}, s{S_MX}
    s_mov_b32 s{S_WOS}, 0
    L_wo{sfx}:
    """)
    for g in range(2):
        e(f"s_add_u32 m0, s{S_WOM}, {g*65536}\ns_add_u32 s{T0}, s{S_WOS}, {g*262144}")
        for i in range(4):
            e(f"buffer_load_dwordx4 v{V_WO+i}, {sr(R_W,4)}, s{T0} offen offset:{i*1024} lds")
    e(f"""
    s_add_u32 s{S_WOM}, s{S_WOM}, 4096
    s_add_u32 s{S_WOS}, s{S_WOS}, 65536
    s_cmp_lt_u32 s{S_WOS}, 262144
    s_waitcnt vmcnt(0)
    s_cbranch_scc1 L_wo{sfx}
    """)


def wo_frag(e, blk):
    for j in range(2):
        e.ds("wf", f"ds_read_b64_tr_b16 {vr(wfr(blk)+2*j,2)}, v5 offset:{L_WO + blk*1024 + j*512}")


def zero_o(e):
    for i in range(4):
        e(f"v_mov_b32 v{12+i}, 0")
    for i in range(4):
        e(f"v_mfma_f32_32x32x16_bf16 {vr(O_ACC+16*i,16)}, v[12:15], v[12:15], 0")


def tile(e, j, i, before_qk=None, cluster=None, with_qk=True, with_prev=True):
    s = S_BUF + 16 * i
    ex = [f"v_exp_f32 v{s+r}, v{s+r}" for r in range(16)]
    if with_qk:
        if before_qk:
            e(before_qk)
        qk(e, j + (i == 3), (i + 1) % 4)
    e("\n".join(ex[0:4]))
    if with_prev:
        pv(e, j - (i == 0), (i + 3) % 4, 1)
    e("\n".join(ex[4:8]))
    if cluster:
        cluster()
    e("\n".join(ex[8:10]))
    pv(e, j, i, 0)
    e("\n".join(ex[10:16]))


def attn_step0(e):
    qk(e, 0, 0)
    for i in range(4):
        tile(e, 0, i, with_qk=i < 3, with_prev=i > 0)


def attn_loop(e):
    b = E()

    def third():
        b(f"s_cmp_eq_u32 s{S_IT}, 4\ns_cbranch_scc1 L_yflag\nL_third:")
        kv_load(b, 5)

    for j in (1, 2, 3):
        for i in range(4):
            cl = None if i else third if j == 3 else (lambda j=j: kv_load(b, j + 2))
            tile(b, j, i, ("s_waitcnt vmcnt(40)" if OPT.get("nowait") else "s_waitcnt vmcnt(3)") if i == 3 else None, cl)
    b(f"s_sub_u32 s{S_IT}, s{S_IT}, 1\ns_cbranch_scc0 L_loop")
    check_seq(b.l + b.l, "attention loop")
    e.wait(vm="kv1")
    qk(e, 1, 0)
    stamp(e, 4)
    e(f"s_mov_b32 s{S_IT}, 4\ns_nop 10\nL_loop:")
    e("\n".join(b.l))
    e.vmq = []
    pv(e, 3, 3, 1)


def attn_slow(e):
    M = 44
    for i in range(4):
        e(f"v_mov_b32 v{M+i}, 0xff7fffff")
    e.wait(vm="*")
    zero_o(e)
    flag_store(e, FL_Y, 2, 12, per_wave=True)
    e(f"""
    s_mul_i32 s{T2}, s{S_WAVE}, {TILE}
    s_mul_i32 s{T0}, s{S_HP}, {16*BLK}
    s_add_u32 s{T2}, s{T2}, s{T0}
    s_mov_b32 s{T3}, 0
    L_slowloop:
    """)
    kv_load(e, 0, f"s{T2}")
    e.wait(vm="*")
    for i in range(4):
        qk(e, 0, i)
    for i in range(4):
        s, o = S_BUF + 16 * i, O_ACC + 16 * i
        e(f"v_max3_f32 v10, v{s}, v{s+1}, v{M+i}")
        for r in range(2, 16, 2):
            e(f"v_max3_f32 v10, v{s+r}, v{s+r+1}, v10")
        e(f"""
        v_mov_b32 v11, v10
        v_permlane32_swap_b32 v10, v11
        v_max_f32 v10, v10, v11
        v_sub_f32 v11, v{M+i}, v10
        v_exp_f32 v11, v11
        v_mov_b32 v{M+i}, v10
        """)
        for r in range(16):
            e(f"v_sub_f32 v{s+r}, v{s+r}, v10\nv_exp_f32 v{s+r}, v{s+r}")
        for r in range(16):
            e(f"v_mul_f32 v{o+r}, v{o+r}, v11")
        pv(e, 0, i, 0)
        pv(e, 0, i, 1)
    e(f"""
    s_add_u32 s{T2}, s{T2}, {BLK}
    s_add_u32 s{T3}, s{T3}, 1
    s_cmp_lt_u32 s{T3}, 16
    s_nop 7
    s_nop 7
    s_cbranch_scc1 L_slowloop
    """)


def attn_combine(e, slow):
    M, R = 44, S_BUF
    XM = L_O + 4 * 6912
    e(f"s_cmp_ge_u32 s{S_WAVE}, 4\ns_cbranch_scc1 L_nofr{int(slow)}")
    wo_stage(e, int(slow))
    for blk in range(N_EARLY):
        wo_frag(e, blk)
    e.wait(ds="*")
    e(f"L_nofr{int(slow)}:\ns_nop 1\nv_add_u32 v12, s{S_XB}, v{V_KO}\nv_lshl_add_u32 v13, v1, 2, s{S_XB}")
    order = (1, 2, 3)
    for i in order:
        o, off = O_ACC + 16 * i, (i - 1) * 2304
        e.ds("xw", f"ds_write_b128 v12, {vr(o,4)} offset:{off}")
        e.ds("xw", f"ds_write_b128 v12, {vr(o+4,4)} offset:{off+1024}")
        e.ds("xw", f"ds_write_b32 v13, v{o+8} offset:{off+2048}")
    if slow:
        e(f"s_mul_i32 s{T0}, s{S_WAVE}, 384\ns_add_u32 s{T0}, s{T0}, {XM}\nv_and_b32 v15, 31, v1\nv_lshl_add_u32 v14, v15, 2, s{T0}")
        for i in order:
            e.ds("xw", f"ds_write_b32 v14, v{M+i} offset:{(i-1)*128}")
    e(f"s_movk_i32 s{T1}, 0x4000\ns_cmp_ge_u32 s{S_WAVE}, 4\ns_cselect_b32 s{T1}, 6912, s{T1}\ns_cselect_b32 s{T3}, {L_O}, 0")
    for i in order:
        e(f"""
        s_sub_u32 s{T0}, s{S_W4}, {i}
        s_and_b32 s{T0}, s{T0}, 3
        s_mul_i32 s{T2}, s{T0}, s{T1}
        s_add_u32 s{T2}, s{T2}, s{T3}
        v_add_u32 v{48+i}, s{T2}, v{V_KO}
        v_lshl_add_u32 v{52+i}, v1, 2, s{T2}
        """)
        if slow:
            e(f"s_and_b32 s{T2}, s{S_WAVE}, 4\ns_add_u32 s{T0}, s{T0}, s{T2}\ns_mul_i32 s{T0}, s{T0}, 384\ns_add_u32 s{T0}, s{T0}, {XM}\nv_lshl_add_u32 v{56+i}, v15, 2, s{T0}")
    sfx = "s" if slow else "f"
    e(f"""
    s_cmp_lg_u32 s{S_WAVE}, 0
    s_cbranch_scc1 L_noy{sfx}
    v_lshlrev_b32 v9, 10, v1
    s_lshl_b32 s{T2}, s{S_NQ}, 16
    s_lshr_b32 s{T3}, s{S_QT}, 3
    s_lshl_b32 s{T3}, s{T3}, 7
    s_add_u32 s{T2}, s{T2}, s{T3}
    s_add_u32 s{T2}, s{T2}, {FL_Y}
    v_bfe_u32 v10, v1, 1, 3
    v_lshlrev_b32 v10, 15, v10
    v_bfe_u32 v11, v1, 4, 1
    v_lshl_add_u32 v10, v11, 10, v10
    v_and_b32 v11, 1, v1
    v_lshl_add_u32 v10, v11, 9, v10
    s_bfe_u32 s{T3}, s{S_QT}, 0x20002
    s_lshl_b32 s{T3}, s{T3}, 13
    s_lshr_b32 s{T0}, s{S_QT}, 4
    s_lshl_b32 s{T0}, s{T0}, 11
    s_add_u32 s{T3}, s{T3}, s{T0}
    s_and_b32 s{T0}, s{S_QT}, 3
    s_lshl_b32 s{T0}, s{T0}, 7
    s_add_u32 s{T3}, s{T3}, s{T0}
    s_add_u32 s{T3}, s{T3}, {FL_Y}
    """)
    poll(e, "L_polly" + sfx, [f"buffer_load_dword v14, v9, {sr(R_WS,4)}, s{T2} offen{SC}",
                              f"buffer_load_dword v11, v10, {sr(R_WS,4)}, s{T3} offen{SC}"], [14, 11])
    e(f"L_noy{sfx}:")
    of_slot(e, T0, True)
    e.wait(ds="xw")
    e("s_barrier")
    for n, i in enumerate(order):
        off = (i - 1) * 2304
        e.ds(f"xr{n}", f"ds_read_b128 {vr(R+12*n,4)}, v{48+i} offset:{off}")
        e.ds(f"xr{n}", f"ds_read_b128 {vr(R+12*n+4,4)}, v{48+i} offset:{off+1024}")
        e.ds(f"xr{n}", f"ds_read_b32 v{R+12*n+8}, v{52+i} offset:{off+2048}")
        if slow:
            e.ds(f"xr{n}", f"ds_read_b32 v{R+12*n+9}, v{56+i} offset:{(i-1)*128}")
    if slow:
        e.wait(ds="*")
        e(f"v_max3_f32 v10, v{M}, v{R+9}, v{R+21}\nv_max_f32 v10, v10, v{R+33}")
        for src, base in ((M, O_ACC), (R + 9, R), (R + 21, R + 12), (R + 33, R + 24)):
            e(f"v_sub_f32 v11, v{src}, v10\nv_exp_f32 v11, v11")
            for r in range(9):
                e(f"v_mul_f32 v{base+r}, v{base+r}, v11")
    for n in range(3):
        e.wait(ds=f"xr{n}")
        e(f"v_add_f32 v{O_ACC+8}, v{O_ACC+8}, v{R+12*n+8}")
        for r in range(0, 8, 2):
            e(f"v_pk_add_f32 {vr(O_ACC+r,2)}, {vr(O_ACC+r,2)}, {vr(R+12*n+r,2)}")
    e(f"v_rcp_f32 v{O_ACC+8}, v{O_ACC+8}")
    for r in range(0, 8, 2):
        e(f"v_pk_mul_f32 {vr(O_ACC+r,2)}, {vr(O_ACC+r,2)}, {vr(O_ACC+8,2)} op_sel_hi:[1,0]")
    for r in range(4):
        e(f"v_cvt_pk_bf16_f32 v{O_ACC+12+r}, v{O_ACC+2*r}, v{O_ACC+2*r+1}")
    for r in range(4):
        e(f"v_min_u32 v{O_ACC+12+r}, -2, v{O_ACC+12+r}")
    e.vm("o", f"buffer_store_dwordx4 {vr(O_ACC+12,4)}, v{V_KO}, {sr(R_WS,4)}, s{T0} offen{SC}")


B_X, B_Y, B_G, V_OUT, B_T = 96, 100, 104, 105, 112
O_FR, P_ACC = 128, 80


def ofo(blk):
    return (blk // 4) * 16384 + 8192 + (blk % 4) * 1024


def tail(e):
    OP = Q_FR
    stamp(e, 13)
    srd(e, R_X, P_X, 0x200000)
    srd(e, R_OUT, P_OUT, 0x200000)
    e(f"""
    s_lshl_b32 s{T1}, s{S_W4}, 1
    s_lshr_b32 s{T2}, s{S_WAVE}, 2
    s_add_u32 s{T1}, s{T1}, s{T2}
    s_lshl_b32 s{T2}, s{S_NQ}, 3
    s_add_u32 s{S_ROW}, s{T1}, s{T2}
    v_and_b32 v8, 31, v1
    v_lshrrev_b32 v6, 5, v1
    v_lshlrev_b32 v{V_OUT}, 10, v8
    v_lshl_add_u32 v{V_OUT}, v6, 4, v{V_OUT}
    s_lshl_b32 s{T2}, s{S_QT}, 15
    s_lshl_b32 s{T3}, s{S_ROW}, 5
    s_add_u32 s{T2}, s{T2}, s{T3}
    v_add_u32 v{V_OUT}, s{T2}, v{V_OUT}
    """)
    e.vm("b", f"buffer_load_dwordx4 {vr(B_X,4)}, v{V_OUT}, {sr(R_X,4)}, 0 offen")
    e(f"""
    v_bfe_u32 v7, v1, 3, 2
    v_lshlrev_b32 v7, 5, v7
    v_and_b32 v9, 1, v1
    v_lshl_add_u32 v7, v9, 4, v7
    v_bfe_u32 v9, v1, 1, 2
    v_lshl_add_u32 v7, v9, 2, v7
    v_lshl_add_u32 v7, v6, 15, v7
    s_lshl_b32 s{T2}, s{S_ROW}, 16
    s_lshl_b32 s{T3}, s{S_QT}, 7
    s_add_u32 s{T2}, s{T2}, s{T3}
    s_add_u32 s{T2}, s{T2}, {WS_Y}
    """)
    for jj in range(4):
        e.vm("b", f"buffer_load_dword v{B_Y+jj}, v7, {sr(R_WS,4)}, s{T2} offen{SC}")
        if jj < 3:
            e(f"s_add_u32 s{T2}, s{T2}, 8192")
    e(f"v_lshlrev_b32 v8, 2, v8\ns_add_u32 s{T3}, s{T3}, {WS_G}")
    e.vm("b", f"buffer_load_dword v{B_G}, v8, {sr(R_WS,4)}, s{T3} offen{SC}")
    e.wait(vm="wo")
    for blk in range(N_EARLY, 16):
        wo_frag(e, blk)
    e(f"s_cmp_lt_u32 s{S_WAVE}, 4\ns_cbranch_scc1 L_nofr2")
    for blk in range(N_EARLY):
        wo_frag(e, blk)
    e(f"""
    L_nofr2:
    s_lshl_b32 s{T3}, s{S_WAVE}, 12
    s_lshl_b32 s{T2}, s{S_QT}, 15
    s_add_u32 s{T3}, s{T3}, s{T2}
    s_add_u32 s{T3}, s{T3}, {WS_OF}
    s_lshr_b32 s{T1}, s{S_WAVE}, 2
    s_lshl_b32 s{T1}, s{T1}, 16
    v_add_u32 v6, s{T1}, v{V_KO}
    v_add_u32 v7, s{S_MX}, v{V_KO}
    v_xor_b32 v8, 0x10000, v7
    s_mov_b32 s{S_SPIN}, {SPIN_MAX}
    """)
    e.wait(vm="o")
    stamp(e, 14)
    loads = [f"buffer_load_dwordx4 {vr(OP+4*i,4)}, v{V_KO}, {sr(R_WS,4)}, s{T3} offen offset:{i*1024}{SC}" for i in range(4)]
    for ld in loads:
        e.vm("op", ld)
    e.wait(vm="b")
    e(f"v_sub_f32 v10, 1.0, v{B_G}")
    for i in range(4):
        e(f"""
        v_lshlrev_b32 v{B_T+2*i}, 16, v{B_X+i}
        v_and_b32 v{B_T+2*i+1}, 0xffff0000, v{B_X+i}
        v_lshlrev_b32 v12, 16, v{B_Y+i}
        v_and_b32 v13, 0xffff0000, v{B_Y+i}
        v_pk_mul_f32 {vr(B_T+2*i,2)}, {vr(B_T+2*i,2)}, v[12:13]
        v_pk_mul_f32 {vr(B_T+2*i,2)}, {vr(B_T+2*i,2)}, v[10:11] op_sel_hi:[1,0]
        """)
    e("s_branch L_pollo_chk\nL_pollo:")
    e("\n".join(loads))
    e(f"L_pollo_chk:\ns_waitcnt vmcnt(0)\nv_max3_u32 v12, v{OP}, v{OP+1}, v{OP+2}")
    e.vmq = []
    for i in range(3, 15, 2):
        e(f"v_max3_u32 v12, v12, v{OP+i}, v{OP+i+1}")
    e(f"""
    v_max_u32 v12, v12, v{OP+15}
    v_cmp_eq_u32 vcc, -1, v12
    s_cbranch_vccz L_pollo_ok
    s_sub_u32 s{S_SPIN}, s{S_SPIN}, 1
    s_cbranch_scc0 L_pollo
    L_pollo_ok:
    """)
    e.wait(ds="*")
    for i in range(4):
        e.ds("ow", f"ds_write_b128 v7, {vr(OP+4*i,4)} offset:{8192 + i*1024}")
    stamp(e, 15)
    e.wait(ds="*")
    e("s_barrier")
    stamp(e, 16)
    for blk in range(8):
        e.ds(f"of{blk}", f"ds_read_b128 {vr(O_FR+4*blk,4)}, v6 offset:{ofo(blk)}")
    for blk in range(16):
        e.wait(ds=f"of{blk}")
        c = "0" if blk == 0 else vr(P_ACC, 16)
        e(f"v_mfma_f32_32x32x16_bf16 {vr(P_ACC,16)}, {vr(wfr(blk),4)}, {vr(O_FR+4*blk,4)}, {c}")
        if blk + 8 < 16:
            e.ds(f"of{blk+8}", f"ds_read_b128 {vr(O_FR+4*(blk+8),4)}, v6 offset:{ofo(blk+8)}")
    e.ds("pw", f"ds_write_b128 v7, {vr(P_ACC+8,4)} offset:12288")
    e.ds("pw", f"ds_write_b128 v7, {vr(P_ACC+12,4)} offset:13312")
    e.wait(ds="pw")
    e("s_barrier")
    e.ds("pr", f"ds_read_b128 {vr(O_FR,4)}, v8 offset:12288")
    e.ds("pr", f"ds_read_b128 {vr(O_FR+4,4)}, v8 offset:13312")
    e.wait(ds="pr")
    for r in range(0, 8, 2):
        e(f"v_pk_add_f32 {vr(P_ACC+r,2)}, {vr(P_ACC+r,2)}, {vr(O_FR+r,2)}")
    for r in range(0, 8, 2):
        e(f"v_pk_fma_f32 {vr(P_ACC+r,2)}, {vr(P_ACC+r,2)}, {vr(B_G,2)}, {vr(B_T+r,2)} op_sel_hi:[1,0,1]")
    for r in range(4):
        e(f"v_cvt_pk_bf16_f32 v{O_FR+r}, v{P_ACC+2*r}, v{P_ACC+2*r+1}")
    e.vm("st", f"buffer_store_dwordx4 {vr(O_FR,4)}, v{V_OUT}, {sr(R_OUT,4)}, 0 offen")
    e(f"s_or_b32 s{T0}, s2, s{S_WAVE}\ns_cbranch_scc1 L_nogen\nv_mov_b32 v12, s{S_TAG}\nv_mov_b32 v13, {WS_GEN}\ns_mov_b64 exec, 1")
    e(f"buffer_store_dword v12, v13, {sr(R_WS,4)}, 0 offen sc0 sc1\ns_mov_b64 exec, -1\nL_nogen:")
    stamp_flush(e, 17)


def kernel():
    q = E()
    prologue(q)
    stamp(q, 0)
    e = E()
    staging(q)
    loader_setup(e)
    gemm_v(e)
    stamp(e, 8)
    epi_v(e)
    e.wait(ds="*")
    e("s_barrier")
    stamp(e, 9)
    attn_reads(e)
    zero_o(e)
    norms_max(e)
    kv_signal(e, "v")
    stamp(e, 28)
    attn_step0(e)
    stamp(e, 29)
    e("s_barrier")
    e.vmq, e.dsq = [], []
    stamp(e, 18)
    p3_setup(e)
    conv_addresses(e)
    e("s_waitcnt lgkmcnt(0)")
    kv_wait_and_decide(e)
    stamp(e, 19)
    e("s_barrier\nL_join:")
    gemm_qk(q)
    if OPT.get("qprio"):
        q("s_setprio 0")
    stamp(q, 8)
    epi_qk(q)
    q.wait(ds="*")
    q("s_barrier")
    stamp(q, 9)
    attn_reads(q)
    conv_u_loads(q)
    gate_loads(q)
    zero_o(q)
    norms_max(q)
    stamp(q, 28)
    attn_step0(q)
    kv_signal(q, "q")
    stamp(q, 29)
    conv_u_pad(q)
    gate_compute(q)
    q("s_waitcnt lgkmcnt(0)\ns_barrier")
    q.dsq = []
    stamp(q, 18)
    conv_mfma(q)
    stamp(q, 19)
    q("s_barrier")
    for jj in (1, 2):
        kv_load(q, jj)
    q("s_branch L_join\nL_vrole:")
    j = E()
    j.vmq = [f"kv{k}" for k in (1, 2) for _ in range(3)]
    assert e.vmq == j.vmq and q.vmq[-6:] == j.vmq
    stamp(j, 10)
    conv_final(j)
    j("s_cbranch_vccz L_slow" if not OPT.get("slow") else "s_branch L_slow")
    stamp(j, 11)
    attn_loop(j)
    stamp(j, 12)
    attn_combine(j, False)
    j("L_tail:")
    j.vmq = ["wo", "o"]
    tail(j)
    j("L_end:\ns_endpgm")
    x = E()
    x("L_yflag:")
    flag_store(x, FL_Y, 2, 12, per_wave=True)
    x("s_branch L_third\nL_slow:")
    x.vmq = ["y"]
    attn_slow(x)
    attn_combine(x, True)
    x("L_last:\ns_branch L_tail")
    return q.l + e.l + j.l + x.l


def build():
    hdr = open(__file__.replace("gen/gen_v14.py", "cdna_kernels/" + NAME.replace("_kernel", ".s.ref")).replace("gen_v14.py", "../cdna_kernels/" + NAME.replace("_kernel", ".s.ref"))).read()
    head = hdr[:hdr.index("; @launch")]
    out = [head + f"; @launch grid=(256,1,1) block=(512,1,1) lds={LDS}", '.amdgcn_target "amdgcn-amd-amdhsa--gfx950"', ".text",
           f".globl {NAME}", ".p2align 8", f".type {NAME},@function", f"{NAME}:"]
    body = pad(kernel())
    check_edges(body)
    out += body
    out.append(f""".section .rodata,"a"
.p2align 6
.amdhsa_kernel {NAME}
  .amdhsa_next_free_vgpr 256
  .amdhsa_next_free_sgpr 96
  .amdhsa_accum_offset 256
  .amdhsa_group_segment_fixed_size 0
  .amdhsa_kernarg_size 104
  .amdhsa_user_sgpr_count 2
  .amdhsa_user_sgpr_kernarg_segment_ptr 1
  .amdhsa_system_sgpr_workgroup_id_x 1
  .amdhsa_float_denorm_mode_32 3
.end_amdhsa_kernel""")
    return "\n".join(out) + "\n"


if __name__ == "__main__":
    for a in sys.argv[2:]:
        OPT[a] = True
    open(sys.argv[1], "w").write(build())
```

```python
import sys
from asmlib import E, vr, sr, pad, check_seq, check_edges

NAME = "gated_mix__mha_block__ssm_conv_h3__prompt_kernel"
OPT = {}

TILE = 2176
BLK = 32768
WS_KV = 0x0000000
WS_U = 0x1000000
USTR, YSTR = 4096 + 256, 8192 + 256
WS_Y = 0x0900000
WS_OF = 0x0C00000
WS_G = 0x0E00000
WS_FL = 0x0E10000
FL_KV, FL_U, FL_Y = WS_FL, WS_FL + 0x8000, WS_FL + 0x10000
WS_GEN = WS_FL + 0x50000
WS_ST = 0x0F00000
WS_SIZE = 0x1400000
OOB = 0x7F000000

QSCALE = 0x3EB8AA3B
NLOG2E = 0xBFB8AA3B
BOUND2 = 0x44610000
SPIN_MAX = 1 << 18

P_X, P_W, P_WO, P_K, P_V, P_SH, P_H, P_D, P_GW, P_OUT, P_WS = 16, 18, 20, 24, 26, 28, 30, 32, 34, 36, 40
S_WAVE, S_HP, S_J, S_CG, S_TB = 3, 4, 5, 6, 7
T0, T1, T2, T3 = 8, 9, 10, 11
S_MX, S_MW, S_ROW, S_W4 = 12, 13, 14, 15
S_D, S_TAG = 42, 43
R_X, R_W, R_K, R_V, R_SH, R_GW, R_WS, R_H, R_OUT = 44, 48, 52, 56, 60, 64, 68, 72, 76
S_KVB, S_KVN, S_KVO, S_IT, S_WOS, S_XB, S_KF, S_WOM = 88, 89, 90, 91, 92, 93, 94, 95
S_BLK, S_ROT, S_SPIN, S_MODE, S_QT, S_NQ = 80, 81, 82, 83, 84, 85

SLOT = 28672
L_Z = 4 * SLOT
L_A, A_COPY = L_Z, 4160
L_PRE = L_Z
L_STG = L_PRE + 64 * 144
L_Q = L_A + 8 * 4160
L_MISC = L_Q + 8192
L_B, B_COPY = 0, 4576
L_KVO = SLOT
L_P = 2 * SLOT
L_WO, L_O = 0, 131072
LDS = 163840
L_CNT = LDS - 64
XCH = 2560

SC = " sc1"


def srd(e, r, p, size):
    e(f"s_mov_b32 s{r}, s{p}\ns_mov_b32 s{r+1}, s{p+1}\ns_mov_b32 s{r+2}, {size}\ns_mov_b32 s{r+3}, 0x20000")


def stamp(e, i):
    if OPT.get("stamp"):
        e(f"s_memrealtime s[86:87]\ns_waitcnt lgkmcnt(0)\nv_writelane_b32 v255, s86, {i}")
        e(f"s_memtime s[86:87]\ns_waitcnt lgkmcnt(0)\nv_writelane_b32 v255, s86, {32+i}")
        e.dsq = []


def stamp_flush(e, n, dbg=True):
    if OPT.get("stamp"):
        e.wait(vm="*")
        stamp(e, n)
        e(f"""
        s_lshl_b32 s86, s2, 3
        s_add_u32 s86, s86, s{S_WAVE}
        s_lshl_b32 s86, s86, 8
        s_add_u32 s86, s86, {WS_ST}
        v_lshlrev_b32 v11, 2, v1
        buffer_store_dword v255, v11, {sr(R_WS,4)}, s86 offen
        """)
        if OPT.get("dbg") and dbg:
            order = [0, 20, 24, 8, 9, 18, 10, 11, 12, 13, 14, 15, 16, 17]
            e(f"s_cmp_lg_u32 s2, 100\ns_cbranch_scc1 L_nodbg\ns_cmp_lg_u32 s{S_WAVE}, 4\ns_cbranch_scc1 L_nodbg")
            srd(e, R_K, 38, 256)
            e("v_readlane_b32 s87, v255, 0")
            for n, i in enumerate(order):
                e(f"v_readlane_b32 s86, v255, {i}\ns_sub_u32 s86, s86, s87\nv_writelane_b32 v254, s86, {n}")
            e("v_readlane_b32 s86, v255, 44\nv_readlane_b32 s87, v255, 43\ns_sub_u32 s86, s86, s87\nv_writelane_b32 v254, s86, 14")
            e("v_readlane_b32 s86, v255, 49\nv_readlane_b32 s87, v255, 32\ns_sub_u32 s86, s86, s87\nv_writelane_b32 v254, s86, 15")
            e(f"s_mov_b64 exec, 0xffff\nbuffer_store_dword v254, v11, {sr(R_K,4)}, 0 offen\ns_mov_b64 exec, -1\nL_nodbg:")


def wave_reduce(e, op, regs):
    for ctl in ("row_shr:1 row_mask:0xf", "row_shr:2 row_mask:0xf", "row_shr:4 row_mask:0xf", "row_shr:8 row_mask:0xf",
                "row_bcast:15 row_mask:0xa", "row_bcast:31 row_mask:0xc"):
        for r in regs:
            e(f"{op}_dpp v{r}, v{r}, v{r} {ctl} bank_mask:0xf")


def poll(e, label, loads, words, first=None):
    e(f"s_mov_b32 s{S_SPIN}, {SPIN_MAX}")
    if first:
        e.wait(vm=first)
        e(f"s_branch {label}_chk")
    e(f"{label}:")
    for ld in loads:
        e(ld)
    e("s_waitcnt vmcnt(0)")
    if first:
        e(f"{label}_chk:")
    else:
        e.vmq = []
    e(f"v_cmp_ne_u32 vcc, s{S_TAG}, v{words[0]}")
    for w in words[1:]:
        e(f"v_cmp_ne_u32 s[{T0}:{T1}], s{S_TAG}, v{w}\ns_or_b64 vcc, vcc, s[{T0}:{T1}]")
    e(f"""
    s_cbranch_vccz {label}_ok
    s_sub_u32 s{S_SPIN}, s{S_SPIN}, 1
    s_cbranch_scc0 {label}
    {label}_ok:
    """)


def flag_store(e, base, idx_sreg, data, per_wave=False, width=4, only=None):
    if only is not None:
        e(f"s_cmp_lg_u32 s{S_WAVE}, {only}\ns_cbranch_scc1 L_nofl{base & 0xfffff:x}")
    if per_wave:
        e(f"s_lshl_b32 s{T0}, s{idx_sreg}, 3\ns_add_u32 s{T0}, s{T0}, s{S_WAVE}\ns_lshl_b32 s{T0}, s{T0}, 7")
    else:
        e(f"s_lshl_b32 s{T0}, s{idx_sreg}, 7")
    e(f"""
    s_add_u32 s{T0}, s{T0}, {base}
    v_mov_b32 v{data}, s{S_TAG}
    v_mov_b32 v2, 0
    s_lshl_b64 exec, 1, 63
    """)
    op = "dword" if width == 4 else "dwordx2"
    st = f"buffer_store_{op} {vr(data, width // 4)}, v2, {sr(R_WS,4)}, s{T0} offen{SC}"
    if only is None:
        e.vm("fl", st)
    else:
        assert not e.vmq, e.vmq
        e(st)
    e("s_mov_b64 exec, -1")
    if only is not None:
        e(f"L_nofl{base & 0xfffff:x}:")


def make_tag(e):
    e.wait(vm="gen")
    e(f"""
    v_readfirstlane_b32 s{S_TAG}, v254
    s_mul_i32 s{S_TAG}, s{S_TAG}, 0x9e3779b1
    s_add_u32 s{S_TAG}, s{S_TAG}, 0x7f4a7c15
    """)


def prologue(e):
    e(f"""
    s_cmp_ge_u32 s2, 256
    s_cbranch_scc1 L_end
    s_load_dwordx16 s[16:31], s[0:1], 0
    s_load_dwordx8 s[32:39], s[0:1], 64
    s_load_dwordx2 s[40:41], s[0:1], 96
    v_lshrrev_b32 v1, 6, v0
    v_readfirstlane_b32 s{S_WAVE}, v1
    v_and_b32 v1, 63, v0
    s_bfe_u32 s{T0}, s2, 0x20001
    s_bfe_u32 s{T1}, s2, 0x20003
    s_lshl_b32 s{S_J}, s{T0}, 2
    s_add_u32 s{S_J}, s{S_J}, s{T1}
    s_and_b32 s{T0}, s2, 1
    s_lshr_b32 s{T2}, s2, 5
    s_lshl_b32 s{S_HP}, s{T0}, 3
    s_add_u32 s{S_HP}, s{S_HP}, s{T2}
    s_lshl_b32 s{T1}, s{T1}, 1
    s_add_u32 s{S_ROT}, s{T2}, s{T1}
    s_lshl_b32 s{S_BLK}, s{S_HP}, 4
    s_add_u32 s{S_BLK}, s{S_BLK}, s{S_J}
    s_and_b32 s{S_CG}, s2, 7
    s_lshr_b32 s{S_TB}, s2, 3
    s_and_b32 s{S_W4}, s{S_WAVE}, 3
    v_mov_b32 v2, {WS_GEN}
    """)
    if OPT.get("codepf"):
        e(f"""
        s_cmp_lg_u32 s{S_WAVE}, 7
        s_cbranch_scc1 L_nocpf
        s_getpc_b64 s[{T0}:{T1}]
        L_pc:
        s_mul_hi_u32 s{T2}, s{S_TB}, 0x55555556
        s_mul_i32 s{T2}, s{T2}, 3
        s_sub_u32 s{T2}, s{S_TB}, s{T2}
        s_lshl_b32 s{T2}, s{T2}, 13
        v_lshl_add_u32 v8, v1, 7, s{T2}
        v_min_u32 v8, L_last - L_pc, v8
        v_mov_b32 v9, s{T1}
        v_add_co_u32 v8, vcc, s{T0}, v8
        v_addc_co_u32 v9, vcc, 0, v9, vcc
        global_load_dword v253, v[8:9], off
        L_nocpf:
        """)
    if OPT.get("rot3"):
        e(f"s_lshr_b32 s{T2}, s2, 5\ns_and_b32 s{T2}, s{T2}, 1\ns_sub_u32 s{S_ROT}, s{S_ROT}, s{T2}")
    if OPT.get("norot"):
        e(f"s_mov_b32 s{S_ROT}, 0")
    if OPT.get("rot2"):
        e(f"s_and_b32 s{S_ROT}, s{S_ROT}, 1\ns_lshl_b32 s{S_ROT}, s{S_ROT}, 2")


V_XD, V_WD = 4, 3
V_ADR = 128
ACC0, ACC1 = 96, 112
FR = 144


def frag_addresses(e):
    e(f"""
    v_and_b32 v56, 31, v1
    v_lshrrev_b32 v57, 5, v1
    v_bfe_u32 v58, v1, 1, 3
    v_xor_b32 v58, v58, v57
    v_lshlrev_b32 v58, 4, v58
    v_lshl_add_u32 v58, v56, 7, v58
    s_lshl_b32 s{T0}, s{S_W4}, 12
    v_add_u32 v{V_ADR}, s{T0}, v58
    v_xor_b32 v{V_ADR+1}, 32, v{V_ADR}
    v_xor_b32 v{V_ADR+2}, 64, v{V_ADR}
    v_xor_b32 v{V_ADR+3}, 0x60, v{V_ADR}
    v_bfe_u32 v58, v1, 2, 2
    v_lshl_add_u32 v58, v57, 3, v58
    v_lshlrev_b32 v58, 6, v58
    v_bfe_u32 v59, v1, 4, 1
    v_lshl_add_u32 v58, v59, 5, v58
    v_and_b32 v59, 3, v1
    v_lshl_add_u32 v58, v59, 3, v58
    v_add_u32 v{V_ADR+4}, 0x4000, v58
    """)
    for i in range(5):
        e(f"v_add_u32 v{V_ADR+5+i}, {2*SLOT}, v{V_ADR+i}")


def chunk_dma_steps(e, c):
    slot = (c % 4) * SLOT

    def x(i):
        if i == 0:
            e(f"s_add_u32 s{T1}, s{S_ROT}, {c}\ns_and_b32 s{T1}, s{T1}, 7\ns_add_u32 m0, s{S_MX}, {slot}\ns_lshl_b32 s{T0}, s{T1}, 7")
        e.vm(f"c{c}", f"buffer_load_dwordx4 v{V_XD+i}, {sr(R_X,4)}, s{T0} offen offset:{i*1024} lds")

    def w(part):
        if part == 0:
            e(f"s_add_u32 m0, s{S_MW}, {slot}\ns_mul_i32 s{T0}, s{T1}, 196608")
        e.vm(f"c{c}", f"buffer_load_dwordx4 v{V_WD}, {sr(R_W,4)}, s{T0} offen offset:{part*1024} lds")

    return [lambda i=i: x(i) for i in range(4)] + [lambda p=p: w(p) for p in range(3)]


def frag_reads(e, c, ks, parts, f):
    a, imm = V_ADR + 5 * ((c % 4) // 2), (c % 2) * SLOT
    e.ds(f"r{c}_{ks}", f"ds_read_b128 {vr(f,4)}, v{a+ks} offset:{imm}")
    for n, part in enumerate(parts):
        for j in range(1 if OPT.get("xhalfw") else 2):
            e.ds(f"r{c}_{ks}", f"ds_read_b64_tr_b16 {vr(f+4+4*n+2*j,2)}, v{a+4} offset:{imm + (ks*3+part)*1024 + j*256}")


SH, GX, GW = 32, 48, 56


def gate_loads(e):
    srd(e, R_GW, P_GW, 1024)
    e(f"""
    s_lshl_b32 s{S_ROW}, s{S_J}, 2
    s_add_u32 s{S_ROW}, s{S_ROW}, s{S_W4}
    s_lshl_b32 s{S_ROW}, s{S_ROW}, 4
    s_add_u32 s{S_ROW}, s{S_ROW}, s{S_HP}
    s_lshl_b32 s{T2}, s{S_ROW}, 11
    """)
    e.vm("gate", f"buffer_load_dwordx4 {vr(GX,4)}, v{V_KO}, {sr(R_X,4)}, s{T2} offen")
    e.vm("gate", f"buffer_load_dwordx4 {vr(GX+4,4)}, v{V_KO}, {sr(R_X,4)}, s{T2} offen offset:1024")
    e.vm("gate", f"buffer_load_dwordx4 {vr(GW,4)}, v{V_KO}, {sr(R_GW,4)}, 0 offen")


def gate_compute(e):
    e.wait(vm="gate")
    for i in range(4):
        for r in range(2):
            e(f"v_dot2_f32_bf16 v{10+r}, v{GX+4*r+i}, v{GW+i}, {'0' if i == 0 else f'v{10+r}'}")
    wave_reduce(e, "v_add_f32", [10, 11])
    for op in (f"v_mul_f32 v{{0}}, {NLOG2E}, v{{0}}", "v_exp_f32 v{0}, v{0}", "v_add_f32 v{0}, 1.0, v{0}", "v_rcp_f32 v{0}, v{0}"):
        e(op.format(10) + "\n" + op.format(11))
    e(f"s_lshl_b32 s{T2}, s{S_ROW}, 3\ns_add_u32 s{T2}, s{T2}, {WS_G}\nv_mov_b32 v2, 0\ns_lshl_b64 exec, 1, 63")
    e.vm("g", f"buffer_store_dwordx2 v[10:11], v2, {sr(R_WS,4)}, s{T2} offen{SC}")
    e("s_mov_b64 exec, -1")


def staging(e):
    e(f"""
    s_lshl_b32 s{T0}, s{S_TB}, 2
    s_add_u32 s{T0}, s{T0}, s{S_WAVE}
    s_lshl_b32 s{T0}, s{T0}, 14
    s_lshl_b32 s{T1}, s{S_CG}, 7
    s_add_u32 s{T0}, s{T0}, s{T1}
    v_lshrrev_b32 v54, 3, v1
    v_and_b32 v55, 7, v1
    v_lshlrev_b32 v55, 4, v55
    v_lshl_add_u32 v54, v54, 10, v55
    v_add_u32 v54, s{T0}, v54
    v_add_u32 v53, 0xffffe000, v54
    v_add_u32 v55, 0x2000, v54
    s_mul_i32 s{S_MX}, s{S_WAVE}, 5120
    s_add_u32 s{S_MX}, s{S_MX}, {L_STG}
    s_cmp_ge_u32 s{S_WAVE}, 4
    s_waitcnt lgkmcnt(0)
    s_cbranch_scc1 L_vrole
    """)
    srd(e, R_SH, P_SH, 4096)
    e(f"v_and_b32 v49, 31, v1\ns_lshl_b32 s{T1}, s{S_CG}, 9\nv_lshl_add_u32 v6, v49, 4, s{T1}")
    e.vm("pre", f"buffer_load_dwordx4 {vr(SH,4)}, v6, {sr(R_SH,4)}, 0 offen")
    srd(e, R_K, P_K, 0x200000)
    srd(e, R_V, P_V, 0x200000)
    for n, (r, v) in enumerate(((R_K, 53), (R_K, 54), (R_K, 55), (R_V, 54), (R_V, 55))):
        e(f"s_add_u32 m0, s{S_MX}, {n*1024}")
        e.vm("pre", f"buffer_load_dwordx4 v{v}, {sr(r,4)}, 0 offen lds")


def wo_prefetch(e):
    e(f"""
    s_cmp_ge_u32 s{S_WAVE}, 6
    s_cbranch_scc1 L_nowopf
    s_lshr_b32 s{T0}, s2, 5
    s_lshl_b32 s{T0}, s{T0}, 1
    s_add_u32 s{T0}, s{T0}, s{S_W4}
    s_lshl_b32 s{T0}, s{T0}, 15
    s_lshl_b32 s{T1}, s{S_NQ}, 8
    s_add_u32 s{T0}, s{T0}, s{T1}
    v_lshrrev_b32 v10, 1, v1
    v_lshlrev_b32 v10, 10, v10
    v_and_b32 v11, 1, v1
    v_lshl_add_u32 v10, v11, 7, v10
    buffer_load_dword v252, v10, {sr(R_W,4)}, s{T0} offen
    L_nowopf:
    """)


def prepass_compute(e):
    KR, VR, KF, VF, WF, U, PK = 8, 20, 144, 166, 182, 190, 144
    e(f"""
    v_lshrrev_b32 v48, 5, v0
    v_lshrrev_b32 v53, 5, v1
    v_lshlrev_b32 v53, 10, v53
    v_lshl_add_u32 v53, v49, 2, v53
    v_add_u32 v53, s{S_MX}, v53
    """)
    for i in range(11):
        e.ds(f"pk{i//4}", f"ds_read_b32 v{KR+i}, v53 offset:{(5+i)*128}")
    e(f"""
    v_mul_u32_u24 v50, 288, v49
    v_lshlrev_b32 v48, 4, v48
    v_sub_u32 v50, v50, v48
    v_add_u32 v50, {L_PRE + 112}, v50
    """)
    for j in range(4):
        if j % 2 == 0:
            e(f"v_lshlrev_b32 v{WF+2*j}, 16, v{SH+j//2}\nv_lshlrev_b32 v{WF+2*j+1}, 16, v{SH+2+j//2}")
        else:
            e(f"v_and_b32 v{WF+2*j}, 0xffff0000, v{SH+j//2}\nv_and_b32 v{WF+2*j+1}, 0xffff0000, v{SH+2+j//2}")
    for i in range(11):
        if i % 4 == 0:
            e.wait(ds=f"pk{i//4}")
        if i == 4:
            for k in range(8):
                e.ds("pv", f"ds_read_b32 v{VR+k}, v53 offset:{3072 + k*128}")
        e(f"v_lshlrev_b32 v{KF+2*i}, 16, v{KR+i}\nv_and_b32 v{KF+2*i+1}, 0xffff0000, v{KR+i}")
    for j in (3, 2, 1, 0):
        for o in range(8):
            kr = KF + 2 * (o + 3 - j)
            if j == 3:
                e(f"v_pk_mul_f32 {vr(U+2*o,2)}, {vr(kr,2)}, {vr(WF+2*j,2)}")
            else:
                e(f"v_pk_fma_f32 {vr(U+2*o,2)}, {vr(kr,2)}, {vr(WF+2*j,2)}, {vr(U+2*o,2)}")
    e.wait(ds="pv")
    for i in range(8):
        e(f"v_lshlrev_b32 v{VF+2*i}, 16, v{VR+i}\nv_and_b32 v{VF+2*i+1}, 0xffff0000, v{VR+i}")
    for o in range(8):
        e(f"v_pk_mul_f32 {vr(U+2*o,2)}, {vr(U+2*o,2)}, {vr(VF+2*o,2)}")
    for ch in range(2):
        for q in range(4):
            e(f"v_cvt_pk_bf16_f32 v{PK+4*ch+q}, v{U+2*(7-2*q)+ch}, v{U+2*(6-2*q)+ch}")
        e.ds("pw", f"ds_write_b128 v50, {vr(PK+4*ch,4)} offset:{ch*144}")
    e(f"""
    v_lshrrev_b32 v48, 3, v0
    v_and_b32 v52, 7, v0
    v_lshlrev_b32 v52, 4, v52
    v_mul_u32_u24 v51, 144, v48
    v_add_u32 v51, v51, v52
    v_add_u32 v51, {L_PRE}, v51
    v_mul_u32_u24 v48, {USTR}, v48
    v_add_u32 v52, v48, v52
    s_mul_i32 s{S_MW}, s{S_CG}, {64*USTR}
    s_lshl_b32 s{T3}, s{S_TB}, 7
    s_sub_u32 s{S_MW}, s{S_MW}, s{T3}
    s_add_u32 s{S_MW}, s{S_MW}, {WS_U + 3968}
    """)


def prepass_read(e):
    e.ds("pr", "ds_read_b128 v[8:11], v51")
    e.ds("pr", f"ds_read_b128 v[12:15], v51 offset:{32*144}")


def prepass_out(e):
    e(f"s_add_u32 s{T1}, s{S_MW}, {32*USTR}")
    e.wait(ds="pr")
    e.vm("ust", f"buffer_store_dwordx4 v[8:11], v52, {sr(R_WS,4)}, s{S_MW} offen{SC}")
    e.vm("ust", f"buffer_store_dwordx4 v[12:15], v52, {sr(R_WS,4)}, s{T1} offen{SC}")


def of_slot(e, s, tmp):
    e(f"""
    s_lshl_b32 s{s}, s{S_J}, 2
    s_add_u32 s{s}, s{s}, s{S_W4}
    s_lshl_b32 s{s}, s{s}, 1
    s_lshr_b32 s{tmp}, s{S_WAVE}, 2
    s_add_u32 s{s}, s{s}, s{tmp}
    s_lshl_b32 s{s}, s{s}, 4
    s_add_u32 s{s}, s{s}, s{S_HP}
    s_lshl_b32 s{s}, s{s}, 10
    s_add_u32 s{s}, s{s}, {WS_OF}
    """)


UFLAG_AT = 4


def gemm_qk(e):
    srd(e, R_X, P_X, 0x200000)
    srd(e, R_WS, P_WS, WS_SIZE)
    e.vm("gen", f"buffer_load_dword v254, v2, {sr(R_WS,4)}, 0 offen sc0 sc1")
    frag_addresses(e)
    e(f"v_and_b32 v8, 7, v1\nv_lshlrev_b32 v8, 2, v8\nv_add_u32 v8, {L_CNT}, v8\nv_mov_b32 v9, 0")
    e.ds("cnt", "ds_write_b32 v8, v9")
    stamp(e, 1)
    e.wait(vm="pre")
    stamp(e, 2)
    prepass_compute(e)
    make_tag(e)

    attn_addresses(e)
    conv_addresses(e)
    p3_ids(e)
    u_flag_load(e)
    e("s_waitcnt lgkmcnt(0)")
    e.dsq = []
    stamp(e, 3)

    if OPT.get("qprio"):
        e("s_setprio 1")

    def fr(ks):
        return FR + 12 * ks

    def mm(c, ks):
        e.wait(ds=f"r{c}_{ks}")
        f = fr(ks)
        first = c == 0 and ks == 0
        e(f"v_mfma_f32_32x32x16_bf16 {vr(ACC0,16)}, {vr(f+4,4)}, {vr(f,4)}, {'0' if first else vr(ACC0,16)}")
        e(f"v_mfma_f32_32x32x16_bf16 {vr(ACC1,16)}, {vr(f+8,4)}, {vr(f,4)}, {'0' if first else vr(ACC1,16)}")

    for c in range(8):
        if c == UFLAG_AT:
            e.wait(vm="*")
        if not (OPT.get("xnobar") and c in (5, 6)):
            e("s_barrier")
        if c in (0, 1, 4, 7):
            stamp(e, 20 + c)
        if c == UFLAG_AT:
            flag_store(e, FL_U, 2, 8, only=0)
        if c == 0:
            prepass_read(e)
        frag_reads(e, c, 0, (0, 1), fr(0))
        if c:
            mm(c - 1, 2)
        frag_reads(e, c, 1, (0, 1), fr(1))
        if c:
            mm(c - 1, 3)
        frag_reads(e, c, 2, (0, 1), fr(2))
        mm(c, 0)
        frag_reads(e, c, 3, (0, 1), fr(3))
        mm(c, 1)
        if c == 0:
            prepass_out(e)
    e.vm("uf", u_flag_load(e, True))
    mm(7, 2)
    mm(7, 3)


def loader_setup(e):
    e(f"""
    v_lshrrev_b32 v36, 3, v1
    v_lshrrev_b32 v37, 4, v1
    v_xor_b32 v37, v37, v1
    v_and_b32 v37, 7, v37
    v_lshlrev_b32 v37, 4, v37
    v_lshl_add_u32 v37, v36, 10, v37
    s_lshl_b32 s{T0}, s{S_J}, 2
    s_add_u32 s{T0}, s{T0}, s{S_W4}
    s_lshl_b32 s{T0}, s{T0}, 15
    v_add_u32 v{V_XD}, s{T0}, v37
    v_xor_b32 v{V_XD+1}, 64, v{V_XD}
    v_add_u32 v{V_XD+2}, {16384-2048}, v{V_XD}
    v_add_u32 v{V_XD+3}, {24576-3072}, v{V_XD+1}
    v_add_u32 v{V_XD+1}, {8192-1024}, v{V_XD+1}
    s_lshl_b32 s{S_MX}, s{S_W4}, 12
    v_bfe_u32 v36, v0, 2, 6
    v_mul_u32_u24 v36, 0xc00, v36
    v_and_b32 v37, 3, v1
    v_lshl_add_u32 v36, v37, 4, v36
    s_lshl_b32 s{T0}, s{S_HP}, 6
    v_add_u32 v{V_WD}, s{T0}, v36
    s_mul_i32 s{S_MW}, s{S_W4}, 3072
    s_add_u32 s{S_MW}, s{S_MW}, 16384
    """)
    srd(e, R_X, P_X, 0x200000)
    srd(e, R_W, P_W, 0x180000)


def conv_h_steps(e):
    e(f"""
    s_lshr_b32 s{T0}, s{S_W4}, 1
    s_lshl_b32 s{T1}, s2, 1
    s_add_u32 s{T1}, s{T1}, s{T0}
    s_lshl_b32 s{T2}, s{T1}, 12
    s_add_u32 s{R_H}, s{P_H}, s{T2}
    s_addc_u32 s{R_H+1}, s{P_H+1}, 0
    s_mov_b32 s{R_H+2}, 4096
    s_mov_b32 s{R_H+3}, 0x20000
    s_and_b32 s{T0}, s{S_W4}, 1
    s_lshl_b32 s{T0}, s{T0}, 3
    v_lshl_add_u32 v8, v1, 4, s{T0}
    v_lshl_add_u32 v9, v1, 2, s{T0}
    s_mul_i32 s{T2}, s{S_W4}, {2*A_COPY}
    """)
    steps = []
    for cc in range(2):
        def big(i, cc=cc):
            if i == 0:
                e(f"v_add_u32 v10, {4+4*cc}, v8\nv_add_u32 v11, {-60+4*cc}, v9\ns_add_u32 m0, s{T2}, {L_A + cc*A_COPY + 64}")
            e.vm("h", f"buffer_load_dwordx4 v10, {sr(R_H,4)}, 0 offen offset:{i*1024} lds")

        def head(cc=cc):
            e(f"s_add_u32 m0, s{T2}, {L_A + cc*A_COPY}\ns_mov_b64 exec, 0xffff")
            e.vm("h", f"buffer_load_dword v11, {sr(R_H,4)}, 0 offen lds")
            e("s_mov_b64 exec, -1")
        steps += [lambda i=i, big=big: big(i) for i in range(4)] + [head]
    return steps


def u_flag_load(e, text_only=False):
    ld = f"buffer_load_dword v28, v29, {sr(R_WS,4)}, s{S_WOS} offen{SC}"
    if text_only:
        return ld
    e(f"""
    v_and_b32 v29, 31, v1
    v_lshlrev_b32 v29, 10, v29
    s_lshr_b32 s{S_WOS}, s2, 5
    s_lshl_b32 s{S_WOS}, s{S_WOS}, 7
    s_add_u32 s{S_WOS}, s{S_WOS}, {FL_U}
    s_lshr_b32 s{T0}, s{S_W4}, 1
    s_lshl_b32 s{S_KF}, s2, 1
    s_add_u32 s{S_KF}, s{S_KF}, s{T0}
    s_mul_i32 s{S_KF}, s{S_KF}, {USTR}
    s_and_b32 s{T0}, s{S_W4}, 1
    s_lshl_b32 s{T0}, s{T0}, 1
    s_sub_u32 s{S_KF}, s{S_KF}, s{T0}
    s_add_u32 s{S_KF}, s{S_KF}, {WS_U + 2}
    """)


def conv_u_loads(e):
    poll(e, "L_pollu", [u_flag_load(e, True)], [28], first="uf")
    e(f"s_mul_i32 s{S_WOS}, s{S_W4}, {B_COPY}\ns_add_u32 m0, s{S_WOS}, {L_B}")
    for i in range(4):
        e.vm("u", f"buffer_load_dwordx4 v{V_KO}, {sr(R_WS,4)}, s{S_KF} offen offset:{i*1024}{SC} lds")


def conv_u_pad(e):
    e.wait(vm="u")
    e(f"""
    v_lshl_add_u32 v12, v1, 3, s{S_WOS}
    v_mov_b32 v10, 0
    v_mov_b32 v11, 0
    s_lshr_b64 exec, -1, 4
    ds_write_b64 v12, v[10:11] offset:{L_B + 4096}
    s_and_b32 s{T0}, s{S_WAVE}, 1
    s_xor_b32 exec_lo, s{T0}, 1
    s_mov_b32 exec_hi, 0
    ds_write_b16 v12, v10 offset:{L_B + 4094}
    s_mov_b64 exec, -1
    """)


def gemm_v(e):
    for c in range(2):
        for st in chunk_dma_steps(e, c):
            st()
    srd(e, R_WS, P_WS, WS_SIZE)
    e.vm("gen", f"buffer_load_dword v254, v2, {sr(R_WS,4)}, 0 offen sc0 sc1")
    stamp(e, 1)
    stamp(e, 2)
    frag_addresses(e)
    for c in range(8):
        e.wait(vm=f"c{c}")
        if c == 0:
            stamp(e, 3)
        if not (OPT.get("xnobar") and c in (5, 6)):
            e("s_barrier")
        if c in (0, 1, 4, 7):
            stamp(e, 20 + c)
        steps = chunk_dma_steps(e, c + 2) if c + 2 < 8 else conv_h_steps(e) if c == 6 else []
        if OPT.get("xnodma") and 2 <= c < 6:
            steps = []
        per = 2 if c == 6 else 1

        def step():
            for _ in range(per):
                if steps:
                    steps.pop(0)()
        if c == 7:
            attn_addresses(e)
        if OPT.get("vclu"):
            while steps:
                step()
        for ks in range(4):
            step()
            frag_reads(e, c, ks, (2,), FR + 8 * ks)
        for ks in range(4):
            e.wait(ds=f"r{c}_{ks}")
            f = FR + 8 * ks
            e(f"v_mfma_f32_32x32x16_bf16 {vr(ACC0,16)}, {vr(f,4)}, {vr(f+4,4)}, {'0' if c + ks == 0 else vr(ACC0,16)}")
            step()
        assert not steps
        if c == 3:
            make_tag(e)


def tile_base(e, s):
    e(f"s_mul_i32 s{s}, s{S_BLK}, {BLK}\ns_mul_i32 s{T3}, s{S_W4}, {TILE}\ns_add_u32 s{s}, s{s}, s{T3}")


V_MK = 41


def epi_qk(e):
    QP, KP = 8, 16
    e(f"""
    v_and_b32 v36, 0x33, v1
    v_bfe_u32 v37, v1, 2, 1
    v_lshl_or_b32 v36, v37, 3, v36
    v_bfe_u32 v37, v1, 3, 1
    v_lshl_or_b32 v36, v37, 2, v36
    v_lshlrev_b32 v36, 4, v36
    s_lshl_b32 s{T2}, s{S_W4}, 11
    v_add_u32 v38, s{T2}, v36
    s_mov_b32 s{S_MX}, {QSCALE}
    s_mov_b32 s{S_MW}, {QSCALE}
    s_lshl_b32 s{T2}, s{S_W4}, 10
    v_lshl_add_u32 v37, v1, 4, s{T2}
    """)
    for i in range(8):
        e(f"v_cvt_pk_bf16_f32 v{KP+i}, v{ACC1+2*i}, v{ACC1+2*i+1}")
    e.ds("ew", f"ds_write_b128 v38, {vr(KP,4)} offset:{L_KVO}")
    e.ds("ew", f"ds_write_b128 v38, {vr(KP+4,4)} offset:{L_KVO + 8192}")
    for i in range(8):
        e(f"v_pk_mul_f32 {vr(ACC0+2*i,2)}, {vr(ACC0+2*i,2)}, s[{S_MX}:{S_MW}]")
    for i in range(8):
        e(f"v_cvt_pk_bf16_f32 v{QP+i}, v{ACC0+2*i}, v{ACC0+2*i+1}")
    e(f"v_add_u32 v37, {L_Q}, v37")
    e.ds("ew", f"ds_write_b128 v37, {vr(QP,4)}")
    e.ds("ew", f"ds_write_b128 v37, {vr(QP+4,4)} offset:4096")
    for i in range(4):
        for d, s in ((42, QP), (43, QP + 4), (V_MK, KP), (44, KP + 4)):
            e(f"v_dot2_f32_bf16 v{d}, v{s+i}, v{s+i}, {'0' if i == 0 else f'v{d}'}")
    e(f"v_max_f32 v42, v42, v43\nv_max_f32 v{V_MK}, v{V_MK}, v44")
    wave_reduce(e, "v_max_f32", [42, V_MK])
    e(f"s_lshl_b32 s{T2}, s{S_W4}, 2\ns_add_u32 s{T2}, s{T2}, {L_MISC}\nv_mov_b32 v37, s{T2}\ns_lshl_b64 exec, 1, 63")
    e.ds("ew", f"ds_write_b32 v37, v42")
    e.ds("ew", f"ds_write_b32 v37, v{V_MK} offset:32")
    e("s_mov_b64 exec, -1")


def epi_v(e):
    VP = 16
    tile_base(e, T0)
    e(f"""
    v_bfe_u32 v38, v1, 4, 1
    v_lshrrev_b32 v37, 5, v1
    v_lshlrev_b32 v37, 8, v37
    v_and_b32 v39, 15, v1
    v_lshl_add_u32 v37, v39, 4, v37
    v_mad_u32_u24 v36, v38, s{S_MX}, v37
    v_lshl_add_u32 v37, v38, 13, v37
    s_lshl_b32 s{T2}, s{S_W4}, 11
    v_add_u32 v37, s{T2}, v37
    v_mul_u32_u24 v39, {4*TILE}, v1
    """.replace(f"v_mad_u32_u24 v36, v38, s{S_MX}, v37", f"s_movk_i32 s{S_MX}, {4*TILE}\nv_mad_u32_u24 v36, v38, s{S_MX}, v37"))
    for i in range(4):
        e(f"v_mov_b32 v{24+i}, 0x3f803f80")
    for i in range(8):
        e(f"v_cvt_pk_bf16_f32 v{VP+i}, v{ACC0+2*i}, v{ACC0+2*i+1}")
    e.vm("st", f"buffer_store_dwordx4 {vr(VP,4)}, v36, {sr(R_WS,4)}, s{T0} offen offset:1024{SC}")
    e.vm("st", f"buffer_store_dwordx4 {vr(VP+4,4)}, v36, {sr(R_WS,4)}, s{T0} offen offset:1536{SC}")
    e("s_mov_b64 exec, 3")
    e.vm("st", f"buffer_store_dwordx4 v[24:27], v39, {sr(R_WS,4)}, s{T0} offen offset:2048{SC}")
    e("s_mov_b64 exec, -1")
    e.ds("ew", f"ds_write_b128 v37, {vr(VP,4)} offset:{L_KVO + 1024}")
    e.ds("ew", f"ds_write_b128 v37, {vr(VP+4,4)} offset:{L_KVO + 1536}")


O_ACC, S_BUF, Q_FR, KV_ST = 64, 128, 192, 208
V_IDX, V_KO, V_V0, V_V1 = 244, 245, 246, 247
NS = 3
C_ACC, C_B = 16, 144
C_A = 32


def ca(a):
    return 48 + 4 * a if a < 4 else 128 + 4 * (a - 4)


def kv_regs(j):
    b = KV_ST + 12 * (j % NS)
    return b, b + 4, b + 8


V_AQ = 64


def attn_addresses(e):
    k, v0, v1 = kv_regs(0)
    e(f"""
    v_lshlrev_b32 v{V_KO}, 4, v1
    v_lshrrev_b32 v60, 5, v1
    v_lshlrev_b32 v60, 4, v60
    v_and_or_b32 v60, v1, 15, v60
    v_lshlrev_b32 v60, 4, v60
    s_lshl_b32 s{T2}, s{S_WAVE}, 11
    v_add_u32 v{V_AQ+4}, s{T2}, v{V_KO}
    v_add_u32 v{V_AQ+5}, s{T2}, v60
    v_and_b32 v61, 27, v1
    v_cmp_eq_u32 vcc, 16, v61
    v_mov_b32 v61, 0x3f803f80
    v_mov_b32 v62, {OOB}
    v_cndmask_b32 v61, 0, v61, vcc
    v_mov_b32 v63, 1024
    v_cndmask_b32 v{V_V0}, v62, v63, vcc
    v_mov_b32 v63, 512
    v_cndmask_b32 v{V_V1}, v62, v63, vcc
    v_and_b32 v62, 16, v1
    v_cmp_eq_u32 vcc, 0, v62
    v_mov_b32 v{V_IDX}, 0xdddddddd
    s_mul_i32 s{T2}, s{S_WAVE}, {TILE}
    v_cndmask_b32 v{V_V0}, v{V_V0}, v60, vcc
    v_cndmask_b32 v{V_V1}, v{V_V1}, v60, vcc
    s_lshl_b32 s{T3}, s{S_BLK}, 15
    s_add_u32 s{S_KVB}, s{T2}, s{T3}
    s_mov_b32 s{S_KVN}, 0
    """)
    for i in range(8):
        e(f"v_mov_b32 v{v0+i}, v61")
    e(f"s_lshr_b32 s{T2}, s{S_WAVE}, 2\ns_lshl_b32 s{T2}, s{T2}, 12\ns_add_u32 s{T2}, s{T2}, {L_Q}")
    for i in range(4):
        e(f"s_add_u32 s{T3}, s{S_W4}, {i}\ns_and_b32 s{T3}, s{T3}, 3\ns_lshl_b32 s{T3}, s{T3}, 10\ns_add_u32 s{T3}, s{T3}, s{T2}")
        e(f"v_add_u32 v{V_AQ+i}, s{T3}, v{V_KO}")
    e(f"v_and_b32 v70, 3, v1\nv_lshlrev_b32 v70, 2, v70\nv_add_u32 v70, {L_MISC}, v70")


def attn_reads(e):
    k, v0, v1 = kv_regs(0)
    e.ds("ak", f"ds_read_b128 {vr(k,4)}, v{V_AQ+4} offset:{L_KVO}")
    for i in range(4):
        e.ds("aq", f"ds_read_b128 {vr(Q_FR+4*i,4)}, v{V_AQ+i}")
    e("s_mov_b32 exec_lo, 0xffff\ns_mov_b32 exec_hi, 0xffff")
    e.ds("aq", f"ds_read_b128 {vr(v0,4)}, v{V_AQ+5} offset:{L_KVO + 1024}")
    e.ds("aq", f"ds_read_b128 {vr(v1,4)}, v{V_AQ+5} offset:{L_KVO + 1536}")
    e("s_mov_b64 exec, -1")
    e.ds("mq", "ds_read_b32 v42, v70")
    e.ds("mq", f"ds_read_b32 v{V_MK}, v70 offset:32")


def kv_load(e, j, soff=None):
    k, v0, v1 = kv_regs(j)
    so = soff or f"s{S_KVO}"
    if not soff:
        e(f"s_add_u32 s{S_KVN}, s{S_KVN}, {BLK}\ns_xor_b32 s{S_KVO}, s{S_KVB}, s{S_KVN}")
    e.vm(f"kv{j}", f"buffer_load_dwordx4 {vr(k,4)}, v{V_KO}, {sr(R_WS,4)}, {so} offen{SC}")
    e.vm(f"kv{j}", f"buffer_load_dwordx4 {vr(v0,4)}, v{V_V0}, {sr(R_WS,4)}, {so} offen offset:1024{SC}")
    e.vm(f"kv{j}", f"buffer_load_dwordx4 {vr(v1,4)}, v{V_V1}, {sr(R_WS,4)}, {so} offen offset:1536{SC}")


def conv_pair(e, a):
    e(f"ds_read_b128 {vr(ca(a),4)}, v248 offset:{a*512}")
    e(f"ds_read_b128 {vr(C_B+4*(7-a),4)}, v249 offset:{a*512}")


def conv_body(first=False):
    b = E()
    b("v_add_u32 v248, 64, v248\nv_add_u32 v249, 64, v249")
    for a in range(8):
        for bb in range(7 - a, -1, -1):
            if a == 0:
                b(f"s_waitcnt lgkmcnt({2*bb})")
            n = a + bb
            c = "0" if first and a == 0 else vr(C_ACC + 4 * n, 4)
            b(f"v_mfma_f32_16x16x32_bf16 {vr(C_ACC+4*n,4)}, {vr(ca(a),4)}, {vr(C_B+4*bb,4)}, {c}")
        conv_pair(b, a)
    return b.l


def conv_mfma(e):
    for a in range(8):
        conv_pair(e, a)
    body = conv_body()
    e("\n".join(conv_body(True)))
    tail = [f"    s_sub_u32 s{T0}, s{T0}, 1", f"    s_cmp_lg_u32 s{T0}, 0", "    s_cbranch_scc1 L_cvloop"]
    check_seq(body + tail + body, "conv loop")
    e(f"s_mov_b32 s{T0}, 3\nL_cvloop:")
    e("\n".join(body + tail))
    e(f"s_lshl_b32 s{T1}, s{S_WAVE}, 13\ns_add_u32 s{T1}, s{T1}, {L_P}\nv_add_u32 v2, s{T1}, v{V_KO}\ns_waitcnt lgkmcnt(0)")
    for n in range(8):
        e(f"ds_write_b128 v2, {vr(C_ACC+4*n,4)} offset:{n*1024}")
    e("s_waitcnt lgkmcnt(0)")


def conv_addresses(e):
    e(f"""
    s_lshl_b32 s{T2}, s2, 2
    s_load_dword s{S_D}, s[{P_D}:{P_D+1}], s{T2}
    v_and_b32 v60, 3, v1
    v_mul_u32_u24 v248, {A_COPY}, v60
    v_bfe_u32 v60, v1, 2, 2
    v_lshrrev_b32 v61, 4, v1
    v_add_u32 v60, v60, v61
    v_lshl_add_u32 v248, v60, 4, v248
    s_lshr_b32 s{T0}, s{S_W4}, 1
    s_and_b32 s{T1}, s{S_WAVE}, 1
    s_lshl_b32 s{T1}, s{T1}, 8
    s_mul_i32 s{T2}, s{T0}, {4*A_COPY}
    s_add_u32 s{T2}, s{T2}, s{T1}
    s_add_u32 s{T2}, s{T2}, {L_A}
    v_add_u32 v248, s{T2}, v248
    v_and_b32 v60, 1, v1
    v_mul_u32_u24 v249, {B_COPY}, v60
    v_lshl_add_u32 v249, v61, 4, v249
    v_bfe_u32 v60, v1, 1, 3
    v_lshlrev_b32 v60, 6, v60
    v_sub_u32 v249, v249, v60
    v_add_u32 v250, {L_B + 4080}, v249
    v_lshlrev_b32 v62, 5, v61
    v_sub_u32 v250, v250, v62
    s_lshl_b32 s{T3}, s{S_WAVE}, 9
    v_subrev_u32 v250, s{T3}, v250
    s_mul_i32 s{T2}, s{T0}, {2*B_COPY}
    s_add_u32 s{T2}, s{T2}, s{T1}
    s_add_u32 s{T2}, s{T2}, {L_B + 448}
    v_add_u32 v249, s{T2}, v249
    """)


def k_publish(e):
    e(f"v_add_u32 v28, {-8192 & 0xffffffff}, v{V_AQ+4}")
    e.ds("kp", f"ds_read_b128 v[44:47], v28 offset:{L_KVO}")
    attn_reads(e)
    tile_base(e, T0)
    e(f"s_add_u32 s{T1}, s{T0}, {4*TILE}")
    e.wait(ds="kp")
    e.vm("st", f"buffer_store_dwordx4 v[44:47], v{V_KO}, {sr(R_WS,4)}, s{T0} offen{SC}")
    e.wait(ds="ak")
    e.vm("st", f"buffer_store_dwordx4 {vr(kv_regs(0)[0],4)}, v{V_KO}, {sr(R_WS,4)}, s{T1} offen{SC}")


def norms_max(e):
    e.wait(ds="mq")
    for ctl in ("row_shr:1", "row_shr:2"):
        for r in (42, V_MK):
            e(f"v_max_f32_dpp v{r}, v{r}, v{r} {ctl} row_mask:0xf bank_mask:0xf")


def kv_signal(e, sfx):
    e.wait(vm="st")
    e(f"""
    v_mov_b32 v10, {L_CNT}
    v_mov_b32 v11, 1
    s_lshl_b64 exec, 1, 63
    ds_add_rtn_u32 v11, v10, v11
    s_waitcnt lgkmcnt(0)
    v_cmp_eq_u32 vcc, 3, v11
    s_cbranch_vccz L_sig{sfx}
    s_lshl_b32 s{T0}, s{S_BLK}, 7
    s_add_u32 s{T0}, s{T0}, {FL_KV}
    v_mov_b32 v{V_MK-1}, s{S_TAG}
    v_mov_b32 v10, 0
    buffer_store_dwordx2 {vr(V_MK-1,2)}, v10, {sr(R_WS,4)}, s{T0} offen{SC}
    L_sig{sfx}:
    s_mov_b64 exec, -1
    """)
    e.dsq = []


def kv_wait_and_decide(e):
    wo_prefetch(e)
    wo_addresses(e)
    e(f"""
    s_lshl_b32 s{T2}, s{S_HP}, 11
    s_add_u32 s{T2}, s{T2}, {FL_KV}
    v_and_b32 v10, 15, v1
    v_lshlrev_b32 v10, 7, v10
    """)
    poll(e, "L_pollkv", [f"buffer_load_dwordx2 v[12:13], v10, {sr(R_WS,4)}, s{T2} offen{SC}"], [12])
    for j in (1, 2):
        kv_load(e, j)
    for ctl in ("row_shr:1", "row_shr:2", "row_shr:4", "row_shr:8"):
        e(f"v_max_f32_dpp v13, v13, v13 {ctl} row_mask:0xf bank_mask:0xf")
    e(f"v_mul_f32 v11, v42, v13\nv_mov_b32 v10, {L_MISC + 16}\ns_lshl_b64 exec, 1, 63")
    e.ds("dw", "ds_write_b32 v10, v11")
    e("s_mov_b64 exec, -1")
    e.wait(ds="*")


def conv_final(e):
    e(f"""
    s_lshl_b32 s{T1}, s{S_WAVE}, 10
    s_add_u32 s{T1}, s{T1}, {L_P}
    v_add_u32 v2, s{T1}, v{V_KO}
    v_mov_b32 v10, {L_MISC + 16}
    """)
    e.ds("cp", "ds_read_b32 v11, v10")
    for q in range(4):
        e.ds("cp", f"ds_read_b128 {vr(C_A+4*q,4)}, v2 offset:{q*8192}")
    for ch in range(2):
        e.ds("cp", f"ds_read_b128 {vr(C_B+4*ch,4)}, v250 offset:{ch*2*B_COPY}")
    e(f"""
    v_bfe_u32 v2, v1, 1, 3
    v_lshlrev_b32 v2, 7, v2
    v_lshrrev_b32 v59, 4, v1
    v_lshl_add_u32 v2, v59, 5, v2
    v_and_b32 v10, 1, v1
    v_lshl_add_u32 v2, v10, 4, v2
    s_mul_i32 s{T0}, s2, {YSTR}
    s_lshl_b32 s{T1}, s{S_WAVE}, 10
    s_add_u32 s{T0}, s{T0}, s{T1}
    s_add_u32 s{T0}, s{T0}, {WS_Y}
    s_lshl_b32 s{T1}, s{S_D}, 16
    s_and_b32 s{T2}, s{S_D}, 0xffff0000
    v_mov_b32 v10, {BOUND2}
    """)
    for i in range(4):
        e(f"v_mov_b32 v{16+i}, -1")
    of_slot(e, S_XB, S_KF)
    e.vm("y", f"buffer_store_dwordx4 v[16:19], v{V_KO}, {sr(R_WS,4)}, s{S_XB} offen{SC}")
    e.wait(ds="*")
    e("s_barrier")
    for ch in range(2):
        for r in range(4):
            e(f"v_add_f32 v{C_A+8*ch+r}, v{C_A+8*ch+r}, v{C_A+8*ch+4+r}")
            e(f"v_lshlrev_b32 v{C_B+4*ch+3-r}, 16, v{C_B+4*ch+3-r}")
        for r in range(4):
            e(f"v_fmac_f32 v{C_A+8*ch+r}, s{T1+ch}, v{C_B+4*ch+3-r}")
    for r in range(4):
        e(f"v_cvt_pk_bf16_f32 v{20+r}, v{C_A+r}, v{C_A+8+r}")
    e.vm("y", f"buffer_store_dwordx4 v[20:23], v2, {sr(R_WS,4)}, s{T0} offen{SC}")
    exchange_addresses(e)
    e("s_setprio 1\nv_cmp_le_f32 vcc, v11, v10")


def wfr(h):
    return 16 + 4 * h if h < 12 else 128 + 4 * (h - 12)


V_XW, V_XC = 56, 58
XR4, XR1 = {1: 49, 2: 50, 3: 51}, {1: 53, 2: 54, 3: 55}


def exchange_addresses(e):
    e(f"s_and_b32 s{T0}, s{S_WAVE}, 4\ns_add_u32 s{T0}, s{T0}, {L_CNT}\nv_mov_b32 v{V_XC}, s{T0}")
    for i in range(4):
        e(f"""
        s_sub_u32 s{T0}, s{S_W4}, {i}
        s_and_b32 s{T0}, s{T0}, 3
        s_mul_i32 s{T2}, s{T0}, 6912
        s_add_u32 s{T2}, s{T2}, {L_O}
        v_add_u32 v{XR4[i] if i else V_XW}, s{T2}, v{V_KO}
        v_lshl_add_u32 v{XR1[i] if i else V_XW+1}, v1, 2, s{T2}
        """)


def lds_count(e, addr, off):
    e(f"v_mov_b32 v10, 1\ns_mov_b64 exec, 1\nds_add_u32 v{addr}, v10 offset:{off}\ns_mov_b64 exec, -1")
    e.dsq.append("cnt")


def lds_spin(e, label, addr, off, low=False):
    low = False
    if low:
        e("s_setprio 0")
    e(f"""
    s_mov_b32 s{S_SPIN}, {SPIN_MAX * 8}
    {label}:
    ds_read_b32 v10, v{addr} offset:{off}
    s_waitcnt lgkmcnt(0)
    v_cmp_gt_u32 vcc, 4, v10
    s_cbranch_vccz {label}_ok
    s_sub_u32 s{S_SPIN}, s{S_SPIN}, 1
    s_cbranch_scc0 {label}
    {label}_ok:
    """)
    if low:
        e("s_setprio 1")
    e.dsq = []


def qk(e, j, i):
    e(f"v_mfma_f32_32x32x16_bf16 {vr(S_BUF+16*i,16)}, {vr(kv_regs(j)[0],4)}, {vr(Q_FR+4*i,4)}, 0")


def pv(e, j, i, half):
    e(f"v_smfmac_f32_32x32x32_bf16 {vr(O_ACC+16*i,16)}, {vr(kv_regs(j)[1+half],4)}, {vr(S_BUF+16*i+8*half,8)}, v{V_IDX}")


def p3_ids(e):
    srd(e, R_W, P_WO, 0x80000)
    e(f"""
    s_lshr_b32 s{T0}, s2, 5
    s_lshl_b32 s{T0}, s{T0}, 3
    s_and_b32 s{S_QT}, s2, 7
    s_add_u32 s{S_QT}, s{S_QT}, s{T0}
    s_bfe_u32 s{S_NQ}, s2, 0x20003
    """)


V_WO = 60


def wo_addresses(e):
    e(f"""
    s_lshl_b32 s{T2}, s{S_NQ}, 2
    s_add_u32 s{T2}, s{T2}, s{S_W4}
    s_lshl_b32 s{T1}, s{T2}, 6
    v_lshrrev_b32 v24, 2, v1
    v_lshlrev_b32 v24, 10, v24
    v_and_b32 v25, 3, v1
    v_lshl_add_u32 v24, v25, 4, v24
    v_add_u32 v{V_WO}, s{T1}, v24
    v_add_u32 v{V_WO+1}, 15360, v{V_WO}
    v_add_u32 v{V_WO+2}, 30720, v{V_WO}
    v_add_u32 v{V_WO+3}, 46080, v{V_WO}
    s_lshl_b32 s{S_WOM}, s{S_W4}, 15
    s_mov_b32 s{S_WOS}, 0
    """)


def wo_stage(e, sfx):
    n = int(OPT.get("wgrp", 4))
    e(f"L_wo{sfx}:\ns_mov_b32 m0, s{S_WOM}\ns_add_u32 s{S_WOM}, s{S_WOM}, 4096")
    for i in range(4):
        e(f"buffer_load_dwordx4 v{V_WO+i}, {sr(R_W,4)}, s{S_WOS} offen offset:{i*1024} lds")
        if n == 2 and i == 1:
            e("s_waitcnt vmcnt(0)")
    e(f"""
    s_add_u32 s{S_WOS}, s{S_WOS}, 65536
    s_cmp_lt_u32 s{S_WOS}, {8*65536}
    s_waitcnt vmcnt(0)
    s_cbranch_scc1 L_wo{sfx}
    """)
    lds_count(e, V_XC, 20)
    flag_store(e, FL_Y, 2, 12, per_wave=True)


def zero_o(e):
    for i in range(4):
        e(f"v_mov_b32 v{32+i}, 0")
    for i in range(4):
        e(f"v_mfma_f32_32x32x16_bf16 {vr(O_ACC+16*i,16)}, v[32:35], v[32:35], 0")


def tile(e, j, i, before_qk=None, cluster=None, with_qk=True, with_prev=True):
    s = S_BUF + 16 * i
    ex = [f"v_exp_f32 v{s+r}, v{s+r}" for r in range(16)]
    if with_qk:
        if before_qk:
            e(before_qk)
        qk(e, j + (i == 3), (i + 1) % 4)
    e("\n".join(ex[0:4]))
    if with_prev:
        pv(e, j - (i == 0), (i + 3) % 4, 1)
    e("\n".join(ex[4:8]))
    if cluster:
        cluster()
    e("\n".join(ex[8:10]))
    pv(e, j, i, 0)
    e("\n".join(ex[10:16]))


def attn_step0(e):
    qk(e, 0, 0)
    for i in range(4):
        tile(e, 0, i, with_qk=i < 3, with_prev=i > 0)


def attn_loop(e):
    b = E()

    def first():
        kv_load(b, 3)
        b(f"s_cmp_eq_u32 s{S_IT}, s{T0}\ns_cbranch_scc1 L_hook\nL_back:")

    for j in (1, 2, 3):
        for i in range(4):
            cl = None if i else first if j == 1 else (lambda j=j: kv_load(b, j + 2))
            tile(b, j, i, ("s_waitcnt vmcnt(40)" if OPT.get("nowait") else "s_waitcnt vmcnt(3)") if i == 3 else None, cl)
    b(f"s_sub_u32 s{S_IT}, s{S_IT}, 16\ns_cbranch_scc0 L_loop")
    check_seq(b.l + b.l, "attention loop")
    e(f"s_or_b32 s{S_IT}, s{S_WAVE}, 4\ns_add_u32 s{S_IT}, s{S_IT}, 64\ns_add_u32 s{T0}, s{S_WAVE}, 64")
    e.wait(vm="kv1")
    qk(e, 1, 0)
    stamp(e, 4)
    e(f"s_nop 10\nL_loop:")
    e("\n".join(b.l))
    e.vmq = []
    pv(e, 3, 3, 1)


def attn_slow(e):
    M = 44
    for i in range(4):
        e(f"v_mov_b32 v{M+i}, 0xff7fffff")
    e.wait(vm="*")
    zero_o(e)
    e(f"s_cmp_lt_u32 s{S_WAVE}, 4\ns_cbranch_scc1 L_nostage")
    wo_stage(e, "s")
    e("L_nostage:")
    e(f"""
    s_mul_i32 s{T2}, s{S_WAVE}, {TILE}
    s_mul_i32 s{T0}, s{S_HP}, {16*BLK}
    s_add_u32 s{T2}, s{T2}, s{T0}
    s_mov_b32 s{T3}, 0
    L_slowloop:
    """)
    kv_load(e, 0, f"s{T2}")
    e.wait(vm="*")
    for i in range(4):
        qk(e, 0, i)
    for i in range(4):
        s, o = S_BUF + 16 * i, O_ACC + 16 * i
        e(f"v_max3_f32 v10, v{s}, v{s+1}, v{M+i}")
        for r in range(2, 16, 2):
            e(f"v_max3_f32 v10, v{s+r}, v{s+r+1}, v10")
        e(f"""
        v_mov_b32 v11, v10
        v_permlane32_swap_b32 v10, v11
        v_max_f32 v10, v10, v11
        v_sub_f32 v11, v{M+i}, v10
        v_exp_f32 v11, v11
        v_mov_b32 v{M+i}, v10
        """)
        for r in range(16):
            e(f"v_sub_f32 v{s+r}, v{s+r}, v10\nv_exp_f32 v{s+r}, v{s+r}")
        for r in range(16):
            e(f"v_mul_f32 v{o+r}, v{o+r}, v11")
        pv(e, 0, i, 0)
        pv(e, 0, i, 1)
    e(f"""
    s_add_u32 s{T2}, s{T2}, {BLK}
    s_add_u32 s{T3}, s{T3}, 1
    s_cmp_lt_u32 s{T3}, 16
    s_nop 7
    s_nop 7
    s_cbranch_scc1 L_slowloop
    """)


def attn_combine(e, slow):
    M, R = 44, S_BUF
    XM = L_O + 4 * 6912
    order = (1, 2, 3)
    sfx = "s" if slow else "f"
    e(f"s_cmp_ge_u32 s{S_WAVE}, 4\ns_cbranch_scc1 L_xf{sfx}_go\ns_nop 3\ns_branch L_xf{sfx}_ok\nL_xf{sfx}_go:")
    lds_spin(e, "L_xf" + sfx, V_XC, 8)
    for i in order:
        o, off = O_ACC + 16 * i, (i - 1) * 2304
        e.ds("xw", f"ds_write_b128 v{V_XW}, {vr(o,4)} offset:{off}")
        e.ds("xw", f"ds_write_b128 v{V_XW}, {vr(o+4,4)} offset:{off+1024}")
        e.ds("xw", f"ds_write_b32 v{V_XW+1}, v{o+8} offset:{off+2048}")
    if slow:
        e(f"s_mul_i32 s{T0}, s{S_WAVE}, 384\ns_add_u32 s{T0}, s{T0}, {XM}\nv_and_b32 v63, 31, v1\nv_lshl_add_u32 v59, v63, 2, s{T0}")
        for i in order:
            e.ds("xw", f"ds_write_b32 v59, v{M+i} offset:{(i-1)*128}")
            e(f"""
            s_sub_u32 s{T0}, s{S_W4}, {i}
            s_and_b32 s{T0}, s{T0}, 3
            s_and_b32 s{T2}, s{S_WAVE}, 4
            s_add_u32 s{T0}, s{T0}, s{T2}
            s_mul_i32 s{T0}, s{T0}, 384
            s_add_u32 s{T0}, s{T0}, {XM}
            v_lshl_add_u32 v{59+i}, v63, 2, s{T0}
            """)
    lds_count(e, V_XC, 4)
    if OPT.get("xprio") and not slow:
        e(f"s_cmp_ge_u32 s{S_WAVE}, 4\ns_cbranch_scc1 L_keepprio\ns_setprio 0\nL_keepprio:")
    lds_spin(e, "L_xs" + sfx, V_XC, 4)
    for n, i in enumerate(order):
        off = (i - 1) * 2304
        e.ds(f"xr{n}", f"ds_read_b128 {vr(R+12*n,4)}, v{XR4[i]} offset:{off}")
        e.ds(f"xr{n}", f"ds_read_b128 {vr(R+12*n+4,4)}, v{XR4[i]} offset:{off+1024}")
        e.ds(f"xr{n}", f"ds_read_b32 v{R+12*n+8}, v{XR1[i]} offset:{off+2048}")
        if slow:
            e.ds(f"xr{n}", f"ds_read_b32 v{R+12*n+9}, v{59+i} offset:{(i-1)*128}")
    if slow:
        e.wait(ds="*")
        e(f"v_max3_f32 v10, v{M}, v{R+9}, v{R+21}\nv_max_f32 v10, v10, v{R+33}")
        for src, base in ((M, O_ACC), (R + 9, R), (R + 21, R + 12), (R + 33, R + 24)):
            e(f"v_sub_f32 v11, v{src}, v10\nv_exp_f32 v11, v11")
            for r in range(9):
                e(f"v_mul_f32 v{base+r}, v{base+r}, v11")
    for n in range(3):
        e.wait(ds=f"xr{n}")
        e(f"v_add_f32 v{O_ACC+8}, v{O_ACC+8}, v{R+12*n+8}")
        for r in range(0, 8, 2):
            e(f"v_pk_add_f32 {vr(O_ACC+r,2)}, {vr(O_ACC+r,2)}, {vr(R+12*n+r,2)}")
    e(f"v_rcp_f32 v{O_ACC+8}, v{O_ACC+8}")
    lds_count(e, V_XC, 12)
    for r in range(0, 8, 2):
        e(f"v_pk_mul_f32 {vr(O_ACC+r,2)}, {vr(O_ACC+r,2)}, {vr(O_ACC+8,2)} op_sel_hi:[1,0]")
    for r in range(4):
        e(f"v_cvt_pk_bf16_f32 v{O_ACC+12+r}, v{O_ACC+2*r}, v{O_ACC+2*r+1}")
    for r in range(4):
        e(f"v_min_u32 v{O_ACC+12+r}, -2, v{O_ACC+12+r}")
    e.vm("o", f"buffer_store_dwordx4 {vr(O_ACC+12,4)}, v{V_KO}, {sr(R_WS,4)}, s{S_XB} offen{SC}")


P_ACC, O_FR, B_T, OP, B_X, B_Y, B_G = 64, 80, 112, 208, 224, 232, 240
V_G, V_CNT, V_TR, V_O2, V_STG, V_OUT, V_FA, V_FB, V_Y = 3, 4, 5, 7, 8, 9, 13, 14, 15
S_YB, S_GB = 96, 97


def tail_addresses(e):
    srd(e, R_OUT, P_OUT, 0x200000)
    e(f"""
    v_and_b32 v24, 7, v1
    v_lshlrev_b32 v24, 15, v24
    v_bfe_u32 v25, v1, 3, 1
    v_lshl_add_u32 v24, v25, 10, v24
    s_bfe_u32 s{T3}, s{S_QT}, 0x20002
    s_lshl_b32 s{T3}, s{T3}, 13
    s_lshr_b32 s{T0}, s{S_QT}, 4
    s_lshl_b32 s{T0}, s{T0}, 11
    s_add_u32 s{T3}, s{T3}, s{T0}
    s_and_b32 s{T0}, s{S_QT}, 3
    s_lshl_b32 s{T0}, s{T0}, 7
    s_add_u32 s{T3}, s{T3}, s{T0}
    s_add_u32 s{T3}, s{T3}, {FL_Y}
    v_add_u32 v{V_FA}, s{T3}, v24
    v_add_u32 v{V_FB}, 512, v{V_FA}
    s_lshl_b32 s{T2}, s{S_NQ}, 2
    s_add_u32 s{S_ROW}, s{T2}, s{S_WAVE}
    s_lshl_b32 s{T2}, s{S_ROW}, 14
    s_lshr_b32 s{T3}, s{S_QT}, 3
    s_lshl_b32 s{T3}, s{T3}, 7
    s_add_u32 s{T2}, s{T2}, s{T3}
    s_add_u32 s{T2}, s{T2}, {FL_Y}
    v_and_b32 v24, 15, v1
    v_lshl_add_u32 v24, v24, 10, s{T2}
    s_mov_b32 exec_lo, 0
    v_mov_b32 v{V_FB}, v24
    s_mov_b32 exec_lo, -1
    s_lshl_b32 s{T1}, s{S_ROW}, 6
    s_lshl_b32 s{S_MX}, s{S_WAVE}, 15
    v_lshrrev_b32 v26, 5, v1
    v_bfe_u32 v25, v1, 2, 2
    v_lshl_add_u32 v{V_TR}, v26, 2, v25
    v_lshlrev_b32 v{V_TR}, 6, v{V_TR}
    v_bfe_u32 v25, v1, 4, 1
    v_lshl_add_u32 v{V_TR}, v25, 5, v{V_TR}
    v_and_b32 v24, 1, v1
    v_lshl_add_u32 v{V_TR}, v24, 4, v{V_TR}
    v_bfe_u32 v25, v1, 1, 1
    v_lshl_add_u32 v{V_TR}, v25, 3, v{V_TR}
    v_add_u32 v{V_TR}, s{S_MX}, v{V_TR}
    v_add_u32 v{V_O2}, 0x10000, v{V_KO}
    v_add_u32 v{V_STG}, s{S_MX}, v{V_KO}
    v_mov_b32 v{V_CNT}, {L_CNT}
    s_lshl_b32 s{S_KF}, s{S_QT}, 3
    s_add_u32 s{S_KF}, s{S_KF}, s{S_WAVE}
    s_lshl_b32 s{S_KF}, s{S_KF}, 12
    s_add_u32 s{S_KF}, s{S_KF}, {WS_OF}
    s_add_u32 s{S_MODE}, s{S_KF}, 16384
    v_and_b32 v{V_G}, 31, v1
    v_lshlrev_b32 v{V_OUT}, 10, v{V_G}
    v_lshl_add_u32 v{V_OUT}, v26, 4, v{V_OUT}
    s_lshl_b32 s{T2}, s{S_QT}, 15
    s_add_u32 s{T2}, s{T2}, s{T1}
    v_add_u32 v{V_OUT}, s{T2}, v{V_OUT}
    v_bfe_u32 v{V_Y}, v1, 3, 2
    v_lshlrev_b32 v{V_Y}, 5, v{V_Y}
    v_lshl_add_u32 v{V_Y}, v24, 4, v{V_Y}
    v_bfe_u32 v25, v1, 1, 2
    v_lshl_add_u32 v{V_Y}, v25, 2, v{V_Y}
    v_mul_u32_u24 v25, {4*YSTR}, v26
    v_add_u32 v{V_Y}, v25, v{V_Y}
    s_mul_i32 s{S_YB}, s{S_ROW}, {16*YSTR}
    s_lshl_b32 s{S_GB}, s{S_QT}, 7
    s_add_u32 s{S_YB}, s{S_YB}, s{S_GB}
    s_add_u32 s{S_YB}, s{S_YB}, {WS_Y}
    v_lshlrev_b32 v{V_G}, 2, v{V_G}
    s_add_u32 s{S_GB}, s{S_GB}, {WS_G}
    """)


def o_loads(par):
    return [f"buffer_load_dwordx4 {vr(OP+4*i,4)}, v{V_KO}, {sr(R_WS,4)}, s{S_MODE if par else S_KF} offen offset:{i*1024}{SC}" for i in range(4)]


def o_poll(e, par, issued):
    lab = f"L_pollo{par}"
    e(f"s_mov_b32 s{S_SPIN}, {SPIN_MAX}")
    if issued:
        e(f"s_branch {lab}_chk")
    e(f"{lab}:\n" + "\n".join(o_loads(par)))
    e(f"{lab}_chk:\ns_waitcnt vmcnt(0)\nv_max3_u32 v12, v{OP}, v{OP+1}, v{OP+2}")
    e.vmq = []
    for i in range(3, 15, 2):
        e(f"v_max3_u32 v12, v12, v{OP+i}, v{OP+i+1}")
    e(f"""
    v_max_u32 v12, v12, v{OP+15}
    v_cmp_eq_u32 vcc, -1, v12
    s_cbranch_vccz {lab}_ok
    s_sub_u32 s{S_SPIN}, s{S_SPIN}, 1
    s_cbranch_scc0 {lab}
    {lab}_ok:
    """)
    for i in range(4):
        e.ds("ow", f"ds_write_b128 v{V_STG}, {vr(OP+4*i,4)} offset:{par*4096 + i*1024}")


def half_gemm(e, par):
    def rd(b):
        e.ds(f"of{b}", f"ds_read_b128 {vr(O_FR+4*(b%8),4)}, v{V_O2 if b >= 8 else V_KO} offset:{(b//4%2)*32768 + par*4096 + (b%4)*1024}")
    for b in range(8):
        rd(b)
    for b in range(16):
        e.wait(ds=f"of{b}")
        c = "0" if b == 0 and par == 0 else vr(P_ACC, 16)
        e(f"v_mfma_f32_32x32x16_bf16 {vr(P_ACC,16)}, {vr(wfr(2*b+par),4)}, {vr(O_FR+4*(b%8),4)}, {c}")
        if b + 8 < 16:
            rd(b + 8)


def tail(e):
    stamp(e, 13)
    if OPT.get("stamp"):
        e(f"s_cmp_lt_u32 s{S_WAVE}, 4\ns_cbranch_scc1 L_older")
        for k in (14, 15, 16):
            stamp(e, k)
        stamp_flush(e, 17, False)
        e("s_endpgm\nL_older:")
    else:
        e(f"s_cmp_ge_u32 s{S_WAVE}, 4\ns_cbranch_scc1 L_end")
    if not OPT.get("ap"):
        e("s_setprio 0")
    tail_addresses(e)
    e("s_setprio 0")
    fa = f"buffer_load_dword v11, v{V_FA}, {sr(R_WS,4)}, 0 offen{SC}"
    fb = f"buffer_load_dword v6, v{V_FB}, {sr(R_WS,4)}, 0 offen{SC}"
    flag_store(e, FL_Y, 2, 12, per_wave=True)
    e.vm("fa", fa)
    lds_spin(e, "L_ws", V_CNT, 24)

    def frag(h):
        for j in range(2):
            e.ds("wf", f"ds_read_b64_tr_b16 {vr(wfr(h)+2*j,2)}, v{V_TR} offset:{h*1024 + j*512}")
    for h in range(32):
        frag(h)
    poll(e, "L_pollfa", [fa], [11], first="fa")
    for ld in o_loads(0):
        e.vm("op", ld)
    e.vm("fb", fb)
    e.wait(ds="*")
    o_poll(e, 0, True)
    e.wait(ds="*")
    lds_count(e, V_CNT, 20)
    poll(e, "L_pollfb", [fb], [6], first="none")
    for k in range(2):
        e.vm("b", f"buffer_load_dwordx4 {vr(B_X+4*k,4)}, v{V_OUT}, {sr(R_X,4)}, 0 offen offset:{32*k}")
    for jj in range(8):
        e.vm("b", f"buffer_load_dword v{B_Y+jj}, v{V_Y}, {sr(R_WS,4)}, s{S_YB} offen{SC}")
        if jj < 7:
            e(f"s_add_u32 s{S_YB}, s{S_YB}, {YSTR * (5 if jj == 3 else 1)}")
    e.vm("b", f"buffer_load_dword v{B_G}, v{V_G}, {sr(R_WS,4)}, s{S_GB} offen{SC}")
    if not OPT.get("lateg"):
        lds_spin(e, "L_es", V_CNT, 20)
        if OPT.get("hp"):
            e("s_setprio 2")
        half_gemm(e, 0)
        if OPT.get("hp"):
            e("s_setprio 0")
    stamp(e, 14)
    e("s_barrier")
    if not OPT.get("bfirst"):
        for ld in o_loads(1):
            e.vm("op", ld)
    if OPT.get("lateg"):
        half_gemm(e, 0)
    e.wait(vm="b")
    e(f"v_sub_f32 v10, 1.0, v{B_G}")
    for i in range(8):
        e(f"""
        v_lshlrev_b32 v{B_T+2*i}, 16, v{B_X+i}
        v_and_b32 v{B_T+2*i+1}, 0xffff0000, v{B_X+i}
        v_lshlrev_b32 v12, 16, v{B_Y+i}
        v_and_b32 v13, 0xffff0000, v{B_Y+i}
        v_pk_mul_f32 {vr(B_T+2*i,2)}, {vr(B_T+2*i,2)}, v[12:13]
        v_pk_mul_f32 {vr(B_T+2*i,2)}, {vr(B_T+2*i,2)}, v[10:11] op_sel_hi:[1,0]
        """)
    o_poll(e, 1, not OPT.get("bfirst"))
    stamp(e, 15)
    e.wait(ds="*")
    e("s_barrier")
    stamp(e, 16)
    half_gemm(e, 1)
    for r in range(0, 16, 2):
        e(f"v_pk_fma_f32 {vr(P_ACC+r,2)}, {vr(P_ACC+r,2)}, {vr(B_G,2)}, {vr(B_T+r,2)} op_sel_hi:[1,0,1]")
    for r in range(8):
        e(f"v_cvt_pk_bf16_f32 v{O_FR+r}, v{P_ACC+2*r}, v{P_ACC+2*r+1}")
    for k in range(2):
        e.vm("st", f"buffer_store_dwordx4 {vr(O_FR+4*k,4)}, v{V_OUT}, {sr(R_OUT,4)}, 0 offen offset:{32*k}")
    e(f"s_or_b32 s{T0}, s2, s{S_WAVE}\ns_cbranch_scc1 L_nogen\nv_mov_b32 v12, s{S_TAG}\nv_mov_b32 v13, {WS_GEN}\ns_mov_b64 exec, 1")
    e(f"buffer_store_dword v12, v13, {sr(R_WS,4)}, 0 offen sc0 sc1\ns_mov_b64 exec, -1\nL_nogen:")
    stamp_flush(e, 17)


def kernel():
    q = E()
    prologue(q)
    stamp(q, 0)
    e = E()
    staging(q)
    loader_setup(e)
    gemm_v(e)
    stamp(e, 8)
    epi_v(e)
    e.wait(ds="*")
    e("s_barrier")
    stamp(e, 9)
    k_publish(e)
    zero_o(e)
    norms_max(e)
    stamp(e, 28)
    attn_step0(e)
    stamp(e, 29)
    e.wait(vm="h")
    e("s_barrier")
    stamp(e, 18)
    p3_ids(e)
    conv_addresses(e)
    kv_signal(e, "v")
    e.vmq = []
    kv_wait_and_decide(e)
    stamp(e, 19)
    e("s_barrier\nL_join:")
    gemm_qk(q)
    if OPT.get("qprio"):
        q("s_setprio 0")
    stamp(q, 8)
    epi_qk(q)
    q.wait(ds="*")
    q("s_barrier")
    stamp(q, 9)
    attn_reads(q)
    conv_u_loads(q)
    gate_loads(q)
    zero_o(q)
    q.wait(ds="*")
    stamp(q, 28)
    attn_step0(q)
    stamp(q, 29)
    conv_u_pad(q)
    gate_compute(q)
    q("s_waitcnt lgkmcnt(0)\ns_barrier")
    q.dsq = []
    stamp(q, 18)
    conv_mfma(q)
    stamp(q, 19)
    q("s_barrier")
    for jj in (1, 2):
        kv_load(q, jj)
    q("s_branch L_join\nL_vrole:")
    j = E()
    j.vmq = [f"kv{k}" for k in (1, 2) for _ in range(3)]
    assert e.vmq == j.vmq and q.vmq[-6:] == j.vmq
    stamp(j, 10)
    conv_final(j)
    j("s_cbranch_vccz L_slow" if not OPT.get("slow") else "s_branch L_slow")
    stamp(j, 11)
    attn_loop(j)
    stamp(j, 12)
    attn_combine(j, False)
    j("L_tail:")
    j.vmq = ["o"]
    tail(j)
    j("L_end:\ns_endpgm")
    x = E()
    x("L_hook:")
    wo_stage(x, "f")
    x("s_branch L_back\nL_slow:")
    x.vmq = ["y"]
    attn_slow(x)
    attn_combine(x, True)
    x("L_last:\ns_branch L_tail")
    return q.l + e.l + j.l + x.l


def build():
    hdr = open(__file__.replace("gen/gen_v20.py", "cdna_kernels/" + NAME.replace("_kernel", ".s.ref")).replace("gen_v20.py", "../cdna_kernels/" + NAME.replace("_kernel", ".s.ref"))).read()
    head = hdr[:hdr.index("; @launch")]
    out = [head + f"; @launch grid=(256,1,1) block=(512,1,1) lds={LDS}", '.amdgcn_target "amdgcn-amd-amdhsa--gfx950"', ".text",
           f".globl {NAME}", ".p2align 8", f".type {NAME},@function", f"{NAME}:"]
    body = pad(kernel())
    check_edges(body)
    out += body
    out.append(f""".section .rodata,"a"
.p2align 6
.amdhsa_kernel {NAME}
  .amdhsa_next_free_vgpr 256
  .amdhsa_next_free_sgpr 98
  .amdhsa_accum_offset 256
  .amdhsa_group_segment_fixed_size 0
  .amdhsa_kernarg_size 104
  .amdhsa_user_sgpr_count 2
  .amdhsa_user_sgpr_kernarg_segment_ptr 1
  .amdhsa_system_sgpr_workgroup_id_x 1
  .amdhsa_float_denorm_mode_32 3
.end_amdhsa_kernel""")
    return "\n".join(out) + "\n"


if __name__ == "__main__":
    OPT.update(rot3=True, vclu=True, codepf=True)
    for a in sys.argv[2:]:
        k, _, val = a.partition("=")
        OPT[k] = val or True
    open(sys.argv[1], "w").write(build())
```

```python
import sys
from asmlib import E, vr, sr, pad, check_seq, check_edges

NAME = "gated_mix__mha_block__ssm_conv_h3__prompt_kernel"
OPT = {}

TILE = 2176
BLK = 32768
WS_KV = 0x0000000
WS_U = 0x1000000
USTR, YSTR = 4096 + 256, 8192 + 256
WS_Y = 0x0900000
WS_OF = 0x0C00000
WS_G = 0x0E00000
WS_FL = 0x0E10000
FL_KV, FL_U, FL_Y = WS_FL, WS_FL + 0x8000, WS_FL + 0x10000
WS_GEN = WS_FL + 0x50000
WS_ST = 0x0F00000
WS_SIZE = 0x1400000
OOB = 0x7F000000

QSCALE = 0x3EB8AA3B
NLOG2E = 0xBFB8AA3B
BOUND2 = 0x44610000
SPIN_MAX = 1 << 18

P_X, P_W, P_WO, P_K, P_V, P_SH, P_H, P_D, P_GW, P_OUT, P_WS = 16, 18, 20, 24, 26, 28, 30, 32, 34, 36, 40
S_WAVE, S_HP, S_J, S_CG, S_TB = 3, 4, 5, 6, 7
T0, T1, T2, T3 = 8, 9, 10, 11
S_MX, S_MW, S_ROW, S_W4 = 12, 13, 14, 15
S_D, S_TAG = 42, 43
R_X, R_W, R_K, R_V, R_SH, R_GW, R_WS, R_H, R_OUT = 44, 48, 52, 56, 60, 64, 68, 72, 76
S_KVB, S_KVN, S_KVO, S_IT, S_WOS, S_XB, S_KF, S_WOM = 88, 89, 90, 91, 92, 93, 94, 95
S_BLK, S_ROT, S_SPIN, S_MODE, S_QT, S_NQ = 80, 81, 82, 83, 84, 85

SLOT = 28672
L_Z = 4 * SLOT
L_A, A_COPY = L_Z, 4160
L_PRE = L_Z
L_STG = L_PRE + 64 * 144
L_Q = L_A + 8 * 4160
L_MISC = L_Q + 8192
L_B, B_COPY = 0, 4576
L_KVO = SLOT
L_P = 2 * SLOT
L_WO, L_O = 0, 131072
LDS = 163840
L_CNT = LDS - 64
XCH = 2560

SC = " sc1"


def srd(e, r, p, size):
    e(f"s_mov_b32 s{r}, s{p}\ns_mov_b32 s{r+1}, s{p+1}\ns_mov_b32 s{r+2}, {size}\ns_mov_b32 s{r+3}, 0x20000")


def stamp(e, i):
    if OPT.get("stamp"):
        e(f"s_memrealtime s[86:87]\ns_waitcnt lgkmcnt(0)\nv_writelane_b32 v255, s86, {i}")
        e(f"s_memtime s[86:87]\ns_waitcnt lgkmcnt(0)\nv_writelane_b32 v255, s86, {32+i}")
        e.dsq = []


def stamp_flush(e, n, dbg=True):
    if OPT.get("stamp"):
        e.wait(vm="*")
        stamp(e, n)
        e(f"""
        s_lshl_b32 s86, s2, 3
        s_add_u32 s86, s86, s{S_WAVE}
        s_lshl_b32 s86, s86, 8
        s_add_u32 s86, s86, {WS_ST}
        v_lshlrev_b32 v11, 2, v1
        buffer_store_dword v255, v11, {sr(R_WS,4)}, s86 offen
        """)
        if OPT.get("dbg") and dbg:
            order = [0, 20, 24, 8, 9, 18, 10, 11, 12, 13, 14, 15, 16, 17]
            e(f"s_cmp_lg_u32 s2, 100\ns_cbranch_scc1 L_nodbg\ns_cmp_lg_u32 s{S_WAVE}, 4\ns_cbranch_scc1 L_nodbg")
            srd(e, R_K, 38, 256)
            e("v_readlane_b32 s87, v255, 0")
            for n, i in enumerate(order):
                e(f"v_readlane_b32 s86, v255, {i}\ns_sub_u32 s86, s86, s87\nv_writelane_b32 v254, s86, {n}")
            e("v_readlane_b32 s86, v255, 44\nv_readlane_b32 s87, v255, 43\ns_sub_u32 s86, s86, s87\nv_writelane_b32 v254, s86, 14")
            e("v_readlane_b32 s86, v255, 49\nv_readlane_b32 s87, v255, 32\ns_sub_u32 s86, s86, s87\nv_writelane_b32 v254, s86, 15")
            e(f"s_mov_b64 exec, 0xffff\nbuffer_store_dword v254, v11, {sr(R_K,4)}, 0 offen\ns_mov_b64 exec, -1\nL_nodbg:")


def wave_reduce(e, op, regs):
    for ctl in ("row_shr:1 row_mask:0xf", "row_shr:2 row_mask:0xf", "row_shr:4 row_mask:0xf", "row_shr:8 row_mask:0xf",
                "row_bcast:15 row_mask:0xa", "row_bcast:31 row_mask:0xc"):
        for r in regs:
            e(f"{op}_dpp v{r}, v{r}, v{r} {ctl} bank_mask:0xf")


def poll(e, label, loads, words, first=None):
    e(f"s_mov_b32 s{S_SPIN}, {SPIN_MAX}")
    if first:
        e.wait(vm=first)
        e(f"s_branch {label}_chk")
    e(f"{label}:")
    for ld in loads:
        e(ld)
    e("s_waitcnt vmcnt(0)")
    if first:
        e(f"{label}_chk:")
    else:
        e.vmq = []
    e(f"v_cmp_ne_u32 vcc, s{S_TAG}, v{words[0]}")
    for w in words[1:]:
        e(f"v_cmp_ne_u32 s[{T0}:{T1}], s{S_TAG}, v{w}\ns_or_b64 vcc, vcc, s[{T0}:{T1}]")
    e(f"""
    s_cbranch_vccz {label}_ok
    s_sub_u32 s{S_SPIN}, s{S_SPIN}, 1
    s_cbranch_scc0 {label}
    {label}_ok:
    """)


def flag_store(e, base, idx_sreg, data, per_wave=False, width=4, only=None):
    if only is not None:
        e(f"s_cmp_lg_u32 s{S_WAVE}, {only}\ns_cbranch_scc1 L_nofl{base & 0xfffff:x}")
    if per_wave:
        e(f"s_lshl_b32 s{T0}, s{idx_sreg}, 3\ns_add_u32 s{T0}, s{T0}, s{S_WAVE}\ns_lshl_b32 s{T0}, s{T0}, 7")
    else:
        e(f"s_lshl_b32 s{T0}, s{idx_sreg}, 7")
    e(f"""
    s_add_u32 s{T0}, s{T0}, {base}
    v_mov_b32 v{data}, s{S_TAG}
    v_mov_b32 v2, 0
    s_lshl_b64 exec, 1, 63
    """)
    op = "dword" if width == 4 else "dwordx2"
    st = f"buffer_store_{op} {vr(data, width // 4)}, v2, {sr(R_WS,4)}, s{T0} offen{SC}"
    if only is None:
        e.vm("fl", st)
    else:
        assert not e.vmq, e.vmq
        e(st)
    e("s_mov_b64 exec, -1")
    if only is not None:
        e(f"L_nofl{base & 0xfffff:x}:")


def make_tag(e):
    e.wait(vm="gen")
    e(f"""
    v_readfirstlane_b32 s{S_TAG}, v254
    s_mul_i32 s{S_TAG}, s{S_TAG}, 0x9e3779b1
    s_add_u32 s{S_TAG}, s{S_TAG}, 0x7f4a7c15
    """)


def prologue(e):
    e(f"""
    s_cmp_ge_u32 s2, 256
    s_cbranch_scc1 L_end
    s_load_dwordx16 s[16:31], s[0:1], 0
    s_load_dwordx8 s[32:39], s[0:1], 64
    s_load_dwordx2 s[40:41], s[0:1], 96
    v_lshrrev_b32 v1, 6, v0
    v_readfirstlane_b32 s{S_WAVE}, v1
    v_and_b32 v1, 63, v0
    s_bfe_u32 s{T0}, s2, 0x20001
    s_bfe_u32 s{T1}, s2, 0x20003
    s_lshl_b32 s{S_J}, s{T0}, 2
    s_add_u32 s{S_J}, s{S_J}, s{T1}
    s_and_b32 s{T0}, s2, 1
    s_lshr_b32 s{T2}, s2, 5
    s_lshl_b32 s{S_HP}, s{T0}, 3
    s_add_u32 s{S_HP}, s{S_HP}, s{T2}
    s_lshl_b32 s{T1}, s{T1}, 1
    s_add_u32 s{S_ROT}, s{T2}, s{T1}
    s_lshl_b32 s{S_BLK}, s{S_HP}, 4
    s_add_u32 s{S_BLK}, s{S_BLK}, s{S_J}
    s_and_b32 s{S_CG}, s2, 7
    s_lshr_b32 s{S_TB}, s2, 3
    s_and_b32 s{S_W4}, s{S_WAVE}, 3
    v_mov_b32 v2, {WS_GEN}
    """)
    if OPT.get("codepf"):
        e(f"""
        s_cmp_lg_u32 s{S_WAVE}, 7
        s_cbranch_scc1 L_nocpf
        s_getpc_b64 s[{T0}:{T1}]
        L_pc:
        s_mul_hi_u32 s{T2}, s{S_TB}, 0x55555556
        s_mul_i32 s{T2}, s{T2}, 3
        s_sub_u32 s{T2}, s{S_TB}, s{T2}
        s_lshl_b32 s{T2}, s{T2}, 13
        v_lshl_add_u32 v8, v1, 7, s{T2}
        v_min_u32 v8, L_last - L_pc, v8
        v_mov_b32 v9, s{T1}
        v_add_co_u32 v8, vcc, s{T0}, v8
        v_addc_co_u32 v9, vcc, 0, v9, vcc
        global_load_dword v253, v[8:9], off
        L_nocpf:
        """)
    if OPT.get("rot3"):
        e(f"s_lshr_b32 s{T2}, s2, 5\ns_and_b32 s{T2}, s{T2}, 1\ns_sub_u32 s{S_ROT}, s{S_ROT}, s{T2}")
    if OPT.get("norot"):
        e(f"s_mov_b32 s{S_ROT}, 0")
    if OPT.get("rot2"):
        e(f"s_and_b32 s{S_ROT}, s{S_ROT}, 1\ns_lshl_b32 s{S_ROT}, s{S_ROT}, 2")


V_XD, V_WD = 4, 3
V_ADR = 128
ACC0, ACC1 = 96, 112
FR = 144


def frag_addresses(e):
    e(f"""
    v_and_b32 v56, 31, v1
    v_lshrrev_b32 v57, 5, v1
    v_bfe_u32 v58, v1, 1, 3
    v_xor_b32 v58, v58, v57
    v_lshlrev_b32 v58, 4, v58
    v_lshl_add_u32 v58, v56, 7, v58
    s_lshl_b32 s{T0}, s{S_W4}, 12
    v_add_u32 v{V_ADR}, s{T0}, v58
    v_xor_b32 v{V_ADR+1}, 32, v{V_ADR}
    v_xor_b32 v{V_ADR+2}, 64, v{V_ADR}
    v_xor_b32 v{V_ADR+3}, 0x60, v{V_ADR}
    v_bfe_u32 v58, v1, 2, 2
    v_lshl_add_u32 v58, v57, 3, v58
    v_lshlrev_b32 v58, 6, v58
    v_bfe_u32 v59, v1, 4, 1
    v_lshl_add_u32 v58, v59, 5, v58
    v_and_b32 v59, 3, v1
    v_lshl_add_u32 v58, v59, 3, v58
    v_add_u32 v{V_ADR+4}, 0x4000, v58
    """)
    for i in range(5):
        e(f"v_add_u32 v{V_ADR+5+i}, {2*SLOT}, v{V_ADR+i}")


def chunk_dma_steps(e, c):
    slot = (c % 4) * SLOT

    def x(i):
        if i == 0:
            e(f"s_add_u32 s{T1}, s{S_ROT}, {c}\ns_and_b32 s{T1}, s{T1}, 7\ns_add_u32 m0, s{S_MX}, {slot}\ns_lshl_b32 s{T0}, s{T1}, 7")
        e.vm(f"c{c}", f"buffer_load_dwordx4 v{V_XD+i}, {sr(R_X,4)}, s{T0} offen offset:{i*1024} lds")

    def w(part):
        if part == 0:
            e(f"s_add_u32 m0, s{S_MW}, {slot}\ns_mul_i32 s{T0}, s{T1}, 196608")
        e.vm(f"c{c}", f"buffer_load_dwordx4 v{V_WD}, {sr(R_W,4)}, s{T0} offen offset:{part*1024} lds")

    return [lambda i=i: x(i) for i in range(4)] + [lambda p=p: w(p) for p in range(3)]


def frag_reads(e, c, ks, parts, f):
    a, imm = V_ADR + 5 * ((c % 4) // 2), (c % 2) * SLOT
    e.ds(f"r{c}_{ks}", f"ds_read_b128 {vr(f,4)}, v{a+ks} offset:{imm}")
    for n, part in enumerate(parts):
        for j in range(1 if OPT.get("xhalfw") else 2):
            e.ds(f"r{c}_{ks}", f"ds_read_b64_tr_b16 {vr(f+4+4*n+2*j,2)}, v{a+4} offset:{imm + (ks*3+part)*1024 + j*256}")


SH, GX, GW = 32, 48, 56


def gate_loads(e):
    srd(e, R_GW, P_GW, 1024)
    e(f"""
    s_lshl_b32 s{S_ROW}, s{S_J}, 2
    s_add_u32 s{S_ROW}, s{S_ROW}, s{S_W4}
    s_lshl_b32 s{S_ROW}, s{S_ROW}, 4
    s_add_u32 s{S_ROW}, s{S_ROW}, s{S_HP}
    s_lshl_b32 s{T2}, s{S_ROW}, 11
    """)
    e.vm("gate", f"buffer_load_dwordx4 {vr(GX,4)}, v{V_KO}, {sr(R_X,4)}, s{T2} offen")
    e.vm("gate", f"buffer_load_dwordx4 {vr(GX+4,4)}, v{V_KO}, {sr(R_X,4)}, s{T2} offen offset:1024")
    e.vm("gate", f"buffer_load_dwordx4 {vr(GW,4)}, v{V_KO}, {sr(R_GW,4)}, 0 offen")


def gate_compute(e):
    e.wait(vm="gate")
    for i in range(4):
        for r in range(2):
            e(f"v_dot2_f32_bf16 v{10+r}, v{GX+4*r+i}, v{GW+i}, {'0' if i == 0 else f'v{10+r}'}")
    wave_reduce(e, "v_add_f32", [10, 11])
    for op in (f"v_mul_f32 v{{0}}, {NLOG2E}, v{{0}}", "v_exp_f32 v{0}, v{0}", "v_add_f32 v{0}, 1.0, v{0}", "v_rcp_f32 v{0}, v{0}"):
        e(op.format(10) + "\n" + op.format(11))
    e(f"s_lshl_b32 s{T2}, s{S_ROW}, 3\ns_add_u32 s{T2}, s{T2}, {WS_G}\nv_mov_b32 v2, 0\ns_lshl_b64 exec, 1, 63")
    e.vm("g", f"buffer_store_dwordx2 v[10:11], v2, {sr(R_WS,4)}, s{T2} offen{SC}")
    e("s_mov_b64 exec, -1")


def staging(e):
    e(f"""
    s_cmp_ge_u32 s{S_WAVE}, 4
    s_cbranch_scc1 L_vrole
    s_lshl_b32 s{T0}, s{S_TB}, 2
    s_add_u32 s{T0}, s{T0}, s{S_WAVE}
    s_lshl_b32 s{T0}, s{T0}, 14
    s_lshl_b32 s{T1}, s{S_CG}, 7
    s_add_u32 s{T0}, s{T0}, s{T1}
    v_lshrrev_b32 v54, 3, v1
    v_and_b32 v55, 7, v1
    v_lshlrev_b32 v55, 4, v55
    v_lshl_add_u32 v54, v54, 10, v55
    v_add_u32 v54, s{T0}, v54
    v_add_u32 v53, 0xffffe000, v54
    v_add_u32 v55, 0x2000, v54
    s_mul_i32 s{S_MX}, s{S_WAVE}, 5120
    s_add_u32 s{S_MX}, s{S_MX}, {L_STG}
    v_and_b32 v49, 31, v1
    s_lshl_b32 s{T1}, s{S_CG}, 9
    v_lshl_add_u32 v6, v49, 4, s{T1}
    s_waitcnt lgkmcnt(0)
    """)
    srd(e, R_SH, P_SH, 4096)
    e.vm("pre", f"buffer_load_dwordx4 {vr(SH,4)}, v6, {sr(R_SH,4)}, 0 offen")
    srd(e, R_K, P_K, 0x200000)
    srd(e, R_V, P_V, 0x200000)
    for n, (r, v) in enumerate(((R_K, 53), (R_K, 54), (R_K, 55), (R_V, 54), (R_V, 55))):
        e(f"s_add_u32 m0, s{S_MX}, {n*1024}")
        e.vm("pre", f"buffer_load_dwordx4 v{v}, {sr(r,4)}, 0 offen lds")


def wo_prefetch(e):
    e(f"""
    s_cmp_ge_u32 s{S_WAVE}, 6
    s_cbranch_scc1 L_nowopf
    s_lshr_b32 s{T0}, s2, 5
    s_lshl_b32 s{T0}, s{T0}, 1
    s_add_u32 s{T0}, s{T0}, s{S_W4}
    s_lshl_b32 s{T0}, s{T0}, 15
    s_lshl_b32 s{T1}, s{S_NQ}, 8
    s_add_u32 s{T0}, s{T0}, s{T1}
    v_lshrrev_b32 v10, 1, v1
    v_lshlrev_b32 v10, 10, v10
    v_and_b32 v11, 1, v1
    v_lshl_add_u32 v10, v11, 7, v10
    buffer_load_dword v252, v10, {sr(R_W,4)}, s{T0} offen
    L_nowopf:
    """)


def prepass_compute(e):
    KR, VR, KF, VF, WF, U, PK = 8, 20, 144, 166, 182, 190, 144
    e(f"""
    v_lshrrev_b32 v48, 5, v0
    v_lshrrev_b32 v53, 5, v1
    v_lshlrev_b32 v53, 10, v53
    v_lshl_add_u32 v53, v49, 2, v53
    v_add_u32 v53, s{S_MX}, v53
    """)
    for i in range(11):
        e.ds(f"pk{i//4}", f"ds_read_b32 v{KR+i}, v53 offset:{(5+i)*128}")
    e(f"""
    v_mul_u32_u24 v50, 288, v49
    v_lshlrev_b32 v48, 4, v48
    v_sub_u32 v50, v50, v48
    v_add_u32 v50, {L_PRE + 112}, v50
    """)
    for j in range(4):
        if j % 2 == 0:
            e(f"v_lshlrev_b32 v{WF+2*j}, 16, v{SH+j//2}\nv_lshlrev_b32 v{WF+2*j+1}, 16, v{SH+2+j//2}")
        else:
            e(f"v_and_b32 v{WF+2*j}, 0xffff0000, v{SH+j//2}\nv_and_b32 v{WF+2*j+1}, 0xffff0000, v{SH+2+j//2}")
    for i in range(11):
        if i % 4 == 0:
            e.wait(ds=f"pk{i//4}")
        if i == 4:
            for k in range(8):
                e.ds("pv", f"ds_read_b32 v{VR+k}, v53 offset:{3072 + k*128}")
        e(f"v_lshlrev_b32 v{KF+2*i}, 16, v{KR+i}\nv_and_b32 v{KF+2*i+1}, 0xffff0000, v{KR+i}")
    for j in (3, 2, 1, 0):
        for o in range(8):
            kr = KF + 2 * (o + 3 - j)
            if j == 3:
                e(f"v_pk_mul_f32 {vr(U+2*o,2)}, {vr(kr,2)}, {vr(WF+2*j,2)}")
            else:
                e(f"v_pk_fma_f32 {vr(U+2*o,2)}, {vr(kr,2)}, {vr(WF+2*j,2)}, {vr(U+2*o,2)}")
    e.wait(ds="pv")
    for i in range(8):
        e(f"v_lshlrev_b32 v{VF+2*i}, 16, v{VR+i}\nv_and_b32 v{VF+2*i+1}, 0xffff0000, v{VR+i}")
    for o in range(8):
        e(f"v_pk_mul_f32 {vr(U+2*o,2)}, {vr(U+2*o,2)}, {vr(VF+2*o,2)}")
    for ch in range(2):
        for q in range(4):
            e(f"v_cvt_pk_bf16_f32 v{PK+4*ch+q}, v{U+2*(7-2*q)+ch}, v{U+2*(6-2*q)+ch}")
        e.ds("pw", f"ds_write_b128 v50, {vr(PK+4*ch,4)} offset:{ch*144}")
    e(f"""
    v_lshrrev_b32 v48, 3, v0
    v_and_b32 v52, 7, v0
    v_lshlrev_b32 v52, 4, v52
    v_mul_u32_u24 v51, 144, v48
    v_add_u32 v51, v51, v52
    v_add_u32 v51, {L_PRE}, v51
    v_mul_u32_u24 v48, {USTR}, v48
    v_add_u32 v52, v48, v52
    s_mul_i32 s{S_MW}, s{S_CG}, {64*USTR}
    s_lshl_b32 s{T3}, s{S_TB}, 7
    s_sub_u32 s{S_MW}, s{S_MW}, s{T3}
    s_add_u32 s{S_MW}, s{S_MW}, {WS_U + 3968}
    """)


def prepass_read(e):
    e.ds("pr", "ds_read_b128 v[8:11], v51")
    e.ds("pr", f"ds_read_b128 v[12:15], v51 offset:{32*144}")


def prepass_out(e):
    e(f"s_add_u32 s{T1}, s{S_MW}, {32*USTR}")
    e.wait(ds="pr")
    e.vm("ust", f"buffer_store_dwordx4 v[8:11], v52, {sr(R_WS,4)}, s{S_MW} offen{SC}")
    e.vm("ust", f"buffer_store_dwordx4 v[12:15], v52, {sr(R_WS,4)}, s{T1} offen{SC}")


def of_slot(e, s, tmp):
    e(f"""
    s_lshl_b32 s{s}, s{S_J}, 2
    s_add_u32 s{s}, s{s}, s{S_W4}
    s_lshl_b32 s{s}, s{s}, 1
    s_lshr_b32 s{tmp}, s{S_WAVE}, 2
    s_add_u32 s{s}, s{s}, s{tmp}
    s_lshl_b32 s{s}, s{s}, 4
    s_add_u32 s{s}, s{s}, s{S_HP}
    s_lshl_b32 s{s}, s{s}, 10
    s_add_u32 s{s}, s{s}, {WS_OF}
    """)


UFLAG_AT = 4


def gemm_qk(e):
    srd(e, R_X, P_X, 0x200000)
    srd(e, R_WS, P_WS, WS_SIZE)
    e.vm("gen", f"buffer_load_dword v254, v2, {sr(R_WS,4)}, 0 offen sc0 sc1")
    frag_addresses(e)
    e(f"v_and_b32 v8, 7, v1\nv_lshlrev_b32 v8, 2, v8\nv_add_u32 v8, {L_CNT}, v8\nv_mov_b32 v9, 0")
    e.ds("cnt", "ds_write_b32 v8, v9")
    stamp(e, 1)
    e.wait(vm="pre")
    stamp(e, 2)
    prepass_compute(e)
    make_tag(e)

    attn_addresses(e)
    conv_addresses(e)
    p3_ids(e)
    u_flag_load(e)
    e("s_waitcnt lgkmcnt(0)")
    e.dsq = []
    stamp(e, 3)

    if OPT.get("qprio"):
        e("s_setprio 1")

    def fr(ks):
        return FR + 12 * ks

    def mm(c, ks):
        e.wait(ds=f"r{c}_{ks}")
        f = fr(ks)
        first = c == 0 and ks == 0
        e(f"v_mfma_f32_32x32x16_bf16 {vr(ACC0,16)}, {vr(f+4,4)}, {vr(f,4)}, {'0' if first else vr(ACC0,16)}")
        e(f"v_mfma_f32_32x32x16_bf16 {vr(ACC1,16)}, {vr(f+8,4)}, {vr(f,4)}, {'0' if first else vr(ACC1,16)}")

    for c in range(8):
        if c == int(OPT.get('uf', UFLAG_AT)):
            e.wait(vm="*")
        if not (OPT.get("xnobar") and c in (5, 6)):
            e("s_barrier")
        if c in (0, 1, 4, 7):
            stamp(e, 20 + c)
        if c == int(OPT.get('uf', UFLAG_AT)):
            flag_store(e, FL_U, 2, 8, only=0)
        if c == 0:
            prepass_read(e)
        frag_reads(e, c, 0, (0, 1), fr(0))
        if c:
            mm(c - 1, 2)
        frag_reads(e, c, 1, (0, 1), fr(1))
        if c:
            mm(c - 1, 3)
        frag_reads(e, c, 2, (0, 1), fr(2))
        mm(c, 0)
        frag_reads(e, c, 3, (0, 1), fr(3))
        mm(c, 1)
        if c == 0:
            prepass_out(e)
    e.vm("uf", u_flag_load(e, True))
    mm(7, 2)
    mm(7, 3)


def loader_setup(e):
    e(f"""
    v_lshrrev_b32 v36, 3, v1
    v_lshrrev_b32 v37, 4, v1
    v_xor_b32 v37, v37, v1
    v_and_b32 v37, 7, v37
    v_lshlrev_b32 v37, 4, v37
    v_lshl_add_u32 v37, v36, 10, v37
    s_lshl_b32 s{T0}, s{S_J}, 2
    s_add_u32 s{T0}, s{T0}, s{S_W4}
    s_lshl_b32 s{T0}, s{T0}, 15
    v_add_u32 v{V_XD}, s{T0}, v37
    v_xor_b32 v{V_XD+1}, 64, v{V_XD}
    v_add_u32 v{V_XD+2}, {16384-2048}, v{V_XD}
    v_add_u32 v{V_XD+3}, {24576-3072}, v{V_XD+1}
    v_add_u32 v{V_XD+1}, {8192-1024}, v{V_XD+1}
    s_lshl_b32 s{S_MX}, s{S_W4}, 12
    v_bfe_u32 v36, v0, 2, 6
    v_mul_u32_u24 v36, 0xc00, v36
    v_and_b32 v37, 3, v1
    v_lshl_add_u32 v36, v37, 4, v36
    s_lshl_b32 s{T0}, s{S_HP}, 6
    v_add_u32 v{V_WD}, s{T0}, v36
    s_mul_i32 s{S_MW}, s{S_W4}, 3072
    s_add_u32 s{S_MW}, s{S_MW}, 16384
    s_waitcnt lgkmcnt(0)
    """)
    srd(e, R_X, P_X, 0x200000)
    srd(e, R_W, P_W, 0x180000)


def conv_h_steps(e):
    e(f"""
    s_lshr_b32 s{T0}, s{S_W4}, 1
    s_lshl_b32 s{T1}, s2, 1
    s_add_u32 s{T1}, s{T1}, s{T0}
    s_lshl_b32 s{T2}, s{T1}, 12
    s_add_u32 s{R_H}, s{P_H}, s{T2}
    s_addc_u32 s{R_H+1}, s{P_H+1}, 0
    s_mov_b32 s{R_H+2}, 4096
    s_mov_b32 s{R_H+3}, 0x20000
    s_and_b32 s{T0}, s{S_W4}, 1
    s_lshl_b32 s{T0}, s{T0}, 3
    v_lshl_add_u32 v8, v1, 4, s{T0}
    v_lshl_add_u32 v9, v1, 2, s{T0}
    s_mul_i32 s{T2}, s{S_W4}, {2*A_COPY}
    """)
    steps = []
    for cc in range(2):
        def big(i, cc=cc):
            if i == 0:
                e(f"v_add_u32 v10, {4+4*cc}, v8\nv_add_u32 v11, {-60+4*cc}, v9\ns_add_u32 m0, s{T2}, {L_A + cc*A_COPY + 64}")
            e.vm("h", f"buffer_load_dwordx4 v10, {sr(R_H,4)}, 0 offen offset:{i*1024} lds")

        def head(cc=cc):
            e(f"s_add_u32 m0, s{T2}, {L_A + cc*A_COPY}\ns_mov_b64 exec, 0xffff")
            e.vm("h", f"buffer_load_dword v11, {sr(R_H,4)}, 0 offen lds")
            e("s_mov_b64 exec, -1")
        steps += [lambda i=i, big=big: big(i) for i in range(4)] + [head]
    return steps


def u_flag_load(e, text_only=False):
    ld = f"buffer_load_dword v28, v29, {sr(R_WS,4)}, s{S_WOS} offen{SC}"
    if text_only:
        return ld
    e(f"""
    v_and_b32 v29, 31, v1
    v_lshlrev_b32 v29, 10, v29
    s_lshr_b32 s{S_WOS}, s2, 5
    s_lshl_b32 s{S_WOS}, s{S_WOS}, 7
    s_add_u32 s{S_WOS}, s{S_WOS}, {FL_U}
    s_lshr_b32 s{T0}, s{S_W4}, 1
    s_lshl_b32 s{S_KF}, s2, 1
    s_add_u32 s{S_KF}, s{S_KF}, s{T0}
    s_mul_i32 s{S_KF}, s{S_KF}, {USTR}
    s_and_b32 s{T0}, s{S_W4}, 1
    s_lshl_b32 s{T0}, s{T0}, 1
    s_sub_u32 s{S_KF}, s{S_KF}, s{T0}
    s_add_u32 s{S_KF}, s{S_KF}, {WS_U + 2}
    """)


def conv_u_loads(e):
    poll(e, "L_pollu", [u_flag_load(e, True)], [28], first="uf")
    e(f"s_mul_i32 s{S_WOS}, s{S_W4}, {B_COPY}\ns_add_u32 m0, s{S_WOS}, {L_B}")
    for i in range(4):
        e.vm("u", f"buffer_load_dwordx4 v{V_KO}, {sr(R_WS,4)}, s{S_KF} offen offset:{i*1024}{SC} lds")


def conv_u_pad(e):
    e.wait(vm="u")
    e(f"""
    v_lshl_add_u32 v12, v1, 3, s{S_WOS}
    v_mov_b32 v10, 0
    v_mov_b32 v11, 0
    s_lshr_b64 exec, -1, 4
    ds_write_b64 v12, v[10:11] offset:{L_B + 4096}
    s_and_b32 s{T0}, s{S_WAVE}, 1
    s_xor_b32 exec_lo, s{T0}, 1
    s_mov_b32 exec_hi, 0
    ds_write_b16 v12, v10 offset:{L_B + 4094}
    s_mov_b64 exec, -1
    """)


def gemm_v(e):
    for c in range(2):
        for st in chunk_dma_steps(e, c):
            st()
    srd(e, R_WS, P_WS, WS_SIZE)
    e.vm("gen", f"buffer_load_dword v254, v2, {sr(R_WS,4)}, 0 offen sc0 sc1")
    stamp(e, 1)
    stamp(e, 2)
    frag_addresses(e)
    for c in range(8):
        e.wait(vm=f"c{c}")
        if c == 0:
            stamp(e, 3)
        if not (OPT.get("xnobar") and c in (5, 6)):
            e("s_barrier")
        if c in (0, 1, 4, 7):
            stamp(e, 20 + c)
        steps = chunk_dma_steps(e, c + 2) if c + 2 < 8 else conv_h_steps(e) if c == 6 else []
        if OPT.get("xnodma") and 2 <= c < 6:
            steps = []
        per = 2 if c == 6 else 1

        def step():
            for _ in range(per):
                if steps:
                    steps.pop(0)()
        if c == 7:
            attn_addresses(e)
        if OPT.get("vclu"):
            while steps:
                step()
        for ks in range(4):
            step()
            frag_reads(e, c, ks, (2,), FR + 8 * ks)
        for ks in range(4):
            e.wait(ds=f"r{c}_{ks}")
            f = FR + 8 * ks
            e(f"v_mfma_f32_32x32x16_bf16 {vr(ACC0,16)}, {vr(f,4)}, {vr(f+4,4)}, {'0' if c + ks == 0 else vr(ACC0,16)}")
            step()
        assert not steps
        if c == 3:
            make_tag(e)


def tile_base(e, s):
    e(f"s_mul_i32 s{s}, s{S_BLK}, {BLK}\ns_mul_i32 s{T3}, s{S_W4}, {TILE}\ns_add_u32 s{s}, s{s}, s{T3}")


V_MK = 41


def epi_qk(e):
    QP, KP = 8, 16
    e(f"""
    v_and_b32 v36, 0x33, v1
    v_bfe_u32 v37, v1, 2, 1
    v_lshl_or_b32 v36, v37, 3, v36
    v_bfe_u32 v37, v1, 3, 1
    v_lshl_or_b32 v36, v37, 2, v36
    v_lshlrev_b32 v36, 4, v36
    s_lshl_b32 s{T2}, s{S_W4}, 11
    v_add_u32 v38, s{T2}, v36
    s_mov_b32 s{S_MX}, {QSCALE}
    s_mov_b32 s{S_MW}, {QSCALE}
    s_lshl_b32 s{T2}, s{S_W4}, 10
    v_lshl_add_u32 v37, v1, 4, s{T2}
    """)
    for i in range(8):
        e(f"v_cvt_pk_bf16_f32 v{KP+i}, v{ACC1+2*i}, v{ACC1+2*i+1}")
    e.ds("ew", f"ds_write_b128 v38, {vr(KP,4)} offset:{L_KVO}")
    e.ds("ew", f"ds_write_b128 v38, {vr(KP+4,4)} offset:{L_KVO + 8192}")
    for i in range(8):
        e(f"v_pk_mul_f32 {vr(ACC0+2*i,2)}, {vr(ACC0+2*i,2)}, s[{S_MX}:{S_MW}]")
    for i in range(8):
        e(f"v_cvt_pk_bf16_f32 v{QP+i}, v{ACC0+2*i}, v{ACC0+2*i+1}")
    e(f"v_add_u32 v37, {L_Q}, v37")
    e.ds("ew", f"ds_write_b128 v37, {vr(QP,4)}")
    e.ds("ew", f"ds_write_b128 v37, {vr(QP+4,4)} offset:4096")
    for i in range(4):
        for d, s in ((42, QP), (43, QP + 4), (V_MK, KP), (44, KP + 4)):
            e(f"v_dot2_f32_bf16 v{d}, v{s+i}, v{s+i}, {'0' if i == 0 else f'v{d}'}")
    e(f"v_max_f32 v42, v42, v43\nv_max_f32 v{V_MK}, v{V_MK}, v44")
    wave_reduce(e, "v_max_f32", [42, V_MK])
    e(f"s_lshl_b32 s{T2}, s{S_W4}, 2\ns_add_u32 s{T2}, s{T2}, {L_MISC}\nv_mov_b32 v37, s{T2}\ns_lshl_b64 exec, 1, 63")
    e.ds("ew", f"ds_write_b32 v37, v42")
    e.ds("ew", f"ds_write_b32 v37, v{V_MK} offset:32")
    e("s_mov_b64 exec, -1")


def epi_v(e):
    VP = 16
    tile_base(e, T0)
    e(f"""
    v_bfe_u32 v38, v1, 4, 1
    v_lshrrev_b32 v37, 5, v1
    v_lshlrev_b32 v37, 8, v37
    v_and_b32 v39, 15, v1
    v_lshl_add_u32 v37, v39, 4, v37
    v_mad_u32_u24 v36, v38, s{S_MX}, v37
    v_lshl_add_u32 v37, v38, 13, v37
    s_lshl_b32 s{T2}, s{S_W4}, 11
    v_add_u32 v37, s{T2}, v37
    v_mul_u32_u24 v39, {4*TILE}, v1
    """.replace(f"v_mad_u32_u24 v36, v38, s{S_MX}, v37", f"s_movk_i32 s{S_MX}, {4*TILE}\nv_mad_u32_u24 v36, v38, s{S_MX}, v37"))
    for i in range(4):
        e(f"v_mov_b32 v{24+i}, 0x3f803f80")
    for i in range(8):
        e(f"v_cvt_pk_bf16_f32 v{VP+i}, v{ACC0+2*i}, v{ACC0+2*i+1}")
    e.vm("st", f"buffer_store_dwordx4 {vr(VP,4)}, v36, {sr(R_WS,4)}, s{T0} offen offset:1024{SC}")
    e.vm("st", f"buffer_store_dwordx4 {vr(VP+4,4)}, v36, {sr(R_WS,4)}, s{T0} offen offset:1536{SC}")
    e("s_mov_b64 exec, 3")
    e.vm("st", f"buffer_store_dwordx4 v[24:27], v39, {sr(R_WS,4)}, s{T0} offen offset:2048{SC}")
    e("s_mov_b64 exec, -1")
    e.ds("ew", f"ds_write_b128 v37, {vr(VP,4)} offset:{L_KVO + 1024}")
    e.ds("ew", f"ds_write_b128 v37, {vr(VP+4,4)} offset:{L_KVO + 1536}")


O_ACC, S_BUF, Q_FR, KV_ST = 64, 128, 192, 208
V_IDX, V_KO, V_V0, V_V1 = 244, 245, 246, 247
NS = 3
C_ACC, C_B = 16, 144
C_A = 32


def ca(a):
    return 48 + 4 * a if a < 4 else 128 + 4 * (a - 4)


def kv_regs(j):
    b = KV_ST + 12 * (j % NS)
    return b, b + 4, b + 8


V_AQ = 64


def attn_addresses(e):
    k, v0, v1 = kv_regs(0)
    e(f"""
    v_lshlrev_b32 v{V_KO}, 4, v1
    v_lshrrev_b32 v60, 5, v1
    v_lshlrev_b32 v60, 4, v60
    v_and_or_b32 v60, v1, 15, v60
    v_lshlrev_b32 v60, 4, v60
    s_lshl_b32 s{T2}, s{S_WAVE}, 11
    v_add_u32 v{V_AQ+4}, s{T2}, v{V_KO}
    v_add_u32 v{V_AQ+5}, s{T2}, v60
    v_and_b32 v61, 27, v1
    v_cmp_eq_u32 vcc, 16, v61
    v_mov_b32 v61, 0x3f803f80
    v_mov_b32 v62, {OOB}
    v_cndmask_b32 v61, 0, v61, vcc
    v_mov_b32 v63, 1024
    v_cndmask_b32 v{V_V0}, v62, v63, vcc
    v_mov_b32 v63, 512
    v_cndmask_b32 v{V_V1}, v62, v63, vcc
    v_and_b32 v62, 16, v1
    v_cmp_eq_u32 vcc, 0, v62
    v_mov_b32 v{V_IDX}, 0xdddddddd
    s_mul_i32 s{T2}, s{S_WAVE}, {TILE}
    v_cndmask_b32 v{V_V0}, v{V_V0}, v60, vcc
    v_cndmask_b32 v{V_V1}, v{V_V1}, v60, vcc
    s_lshl_b32 s{T3}, s{S_BLK}, 15
    s_add_u32 s{S_KVB}, s{T2}, s{T3}
    s_mov_b32 s{S_KVN}, 0
    """)
    for i in range(8):
        e(f"v_mov_b32 v{v0+i}, v61")
    e(f"s_lshr_b32 s{T2}, s{S_WAVE}, 2\ns_lshl_b32 s{T2}, s{T2}, 12\ns_add_u32 s{T2}, s{T2}, {L_Q}")
    for i in range(4):
        e(f"s_add_u32 s{T3}, s{S_W4}, {i}\ns_and_b32 s{T3}, s{T3}, 3\ns_lshl_b32 s{T3}, s{T3}, 10\ns_add_u32 s{T3}, s{T3}, s{T2}")
        e(f"v_add_u32 v{V_AQ+i}, s{T3}, v{V_KO}")
    e(f"v_and_b32 v70, 3, v1\nv_lshlrev_b32 v70, 2, v70\nv_add_u32 v70, {L_MISC}, v70")


def attn_reads(e):
    k, v0, v1 = kv_regs(0)
    e.ds("ak", f"ds_read_b128 {vr(k,4)}, v{V_AQ+4} offset:{L_KVO}")
    for i in range(4):
        e.ds("aq", f"ds_read_b128 {vr(Q_FR+4*i,4)}, v{V_AQ+i}")
    e("s_mov_b32 exec_lo, 0xffff\ns_mov_b32 exec_hi, 0xffff")
    e.ds("aq", f"ds_read_b128 {vr(v0,4)}, v{V_AQ+5} offset:{L_KVO + 1024}")
    e.ds("aq", f"ds_read_b128 {vr(v1,4)}, v{V_AQ+5} offset:{L_KVO + 1536}")
    e("s_mov_b64 exec, -1")
    e.ds("mq", "ds_read_b32 v42, v70")
    e.ds("mq", f"ds_read_b32 v{V_MK}, v70 offset:32")


def kv_load(e, j, soff=None):
    k, v0, v1 = kv_regs(j)
    so = soff or f"s{S_KVO}"
    if not soff:
        e(f"s_add_u32 s{S_KVN}, s{S_KVN}, {BLK}\ns_xor_b32 s{S_KVO}, s{S_KVB}, s{S_KVN}")
    e.vm(f"kv{j}", f"buffer_load_dwordx4 {vr(k,4)}, v{V_KO}, {sr(R_WS,4)}, {so} offen{SC}")
    e.vm(f"kv{j}", f"buffer_load_dwordx4 {vr(v0,4)}, v{V_V0}, {sr(R_WS,4)}, {so} offen offset:1024{SC}")
    e.vm(f"kv{j}", f"buffer_load_dwordx4 {vr(v1,4)}, v{V_V1}, {sr(R_WS,4)}, {so} offen offset:1536{SC}")


def conv_ra(e, tag, a):
    e.ds(f"a{a}{tag}", f"ds_read_b128 {vr(ca(a),4)}, v248 offset:{a*512}")


def conv_rb(e, tag, b):
    e.ds(f"b{b}{tag}", f"ds_read_b128 {vr(C_B+4*b,4)}, v249 offset:{(7-b)*512}")


def conv_body(e, kind):
    if kind != "last":
        e("v_add_u32 v248, 64, v248\nv_add_u32 v249, 64, v249")
    done = []
    for a in range(8):
        for b in range(7 - a, -1, -1):
            e.wait(ds=[f"a{a}", f"b{b}"])
            n = a + b
            c = "0" if kind == "first" and a == 0 else vr(C_ACC + 4 * n, 4)
            e(f"v_mfma_f32_16x16x32_bf16 {vr(C_ACC+4*n,4)}, {vr(ca(a),4)}, {vr(C_B+4*b,4)}, {c}")
            if kind == "last":
                if done and len(e.l) - done[0][1] >= 8:
                    m = done.pop(0)[0]
                    e.ds("pw", f"ds_write_b128 v2, {vr(C_ACC+4*m,4)} offset:{m*1024}")
                if b == 0:
                    done.append((a, len(e.l)))
                continue
            if b == 7 - a:
                conv_rb(e, "n", b)
            if b == 0:
                conv_ra(e, "n", a)
    for m, _ in done:
        e.ds("pw", f"ds_write_b128 v2, {vr(C_ACC+4*m,4)} offset:{m*1024}")
    e.dsq = [t[:-1] if t.endswith("n") else t for t in e.dsq]


def conv_mfma(e):
    for a in range(8):
        conv_rb(e, "", 7 - a)
        conv_ra(e, "", a)
    e(f"s_lshl_b32 s{T1}, s{S_WAVE}, 13\ns_add_u32 s{T1}, s{T1}, {L_P}\nv_add_u32 v2, s{T1}, v{V_KO}\ns_mov_b32 s{T0}, 1")
    conv_body(e, "first")
    q = list(e.dsq)
    b = e.fork()
    conv_body(b, "mid")
    assert b.dsq == q
    b(f"s_sub_u32 s{T0}, s{T0}, 1\ns_cbranch_scc0 L_cvloop")
    body = pad(b.l)
    check_seq(body + body, "conv loop")
    e("L_cvloop:\n" + "\n".join(body))
    conv_body(e, "last")
    e.wait(ds="*")


def conv_addresses(e):
    e(f"""
    s_lshl_b32 s{T2}, s2, 2
    s_load_dword s{S_D}, s[{P_D}:{P_D+1}], s{T2}
    v_and_b32 v60, 3, v1
    v_mul_u32_u24 v248, {A_COPY}, v60
    v_bfe_u32 v60, v1, 2, 2
    v_lshrrev_b32 v61, 4, v1
    v_add_u32 v60, v60, v61
    v_lshl_add_u32 v248, v60, 4, v248
    s_lshr_b32 s{T0}, s{S_W4}, 1
    s_and_b32 s{T1}, s{S_WAVE}, 1
    s_lshl_b32 s{T1}, s{T1}, 8
    s_mul_i32 s{T2}, s{T0}, {4*A_COPY}
    s_add_u32 s{T2}, s{T2}, s{T1}
    s_add_u32 s{T2}, s{T2}, {L_A}
    v_add_u32 v248, s{T2}, v248
    v_and_b32 v60, 1, v1
    v_mul_u32_u24 v249, {B_COPY}, v60
    v_lshl_add_u32 v249, v61, 4, v249
    v_bfe_u32 v60, v1, 1, 3
    v_lshlrev_b32 v60, 6, v60
    v_sub_u32 v249, v249, v60
    v_add_u32 v250, {L_B + 4080}, v249
    v_lshlrev_b32 v62, 5, v61
    v_sub_u32 v250, v250, v62
    s_lshl_b32 s{T3}, s{S_WAVE}, 9
    v_subrev_u32 v250, s{T3}, v250
    s_mul_i32 s{T2}, s{T0}, {2*B_COPY}
    s_add_u32 s{T2}, s{T2}, s{T1}
    s_add_u32 s{T2}, s{T2}, {L_B + 448}
    v_add_u32 v249, s{T2}, v249
    """)


def k_publish(e):
    e(f"v_add_u32 v28, {-8192 & 0xffffffff}, v{V_AQ+4}")
    e.ds("kp", f"ds_read_b128 v[44:47], v28 offset:{L_KVO}")
    attn_reads(e)
    tile_base(e, T0)
    e(f"s_add_u32 s{T1}, s{T0}, {4*TILE}")
    e.wait(ds="kp")
    e.vm("st", f"buffer_store_dwordx4 v[44:47], v{V_KO}, {sr(R_WS,4)}, s{T0} offen{SC}")
    e.wait(ds="ak")
    e.vm("st", f"buffer_store_dwordx4 {vr(kv_regs(0)[0],4)}, v{V_KO}, {sr(R_WS,4)}, s{T1} offen{SC}")


def norms_max(e):
    e.wait(ds="mq")
    for ctl in ("row_shr:1", "row_shr:2"):
        for r in (42, V_MK):
            e(f"v_max_f32_dpp v{r}, v{r}, v{r} {ctl} row_mask:0xf bank_mask:0xf")


def kv_signal(e, sfx):
    e.wait(vm="st")
    e(f"""
    v_mov_b32 v10, {L_CNT}
    v_mov_b32 v11, 1
    s_lshl_b64 exec, 1, 63
    ds_add_rtn_u32 v11, v10, v11
    s_waitcnt lgkmcnt(0)
    v_cmp_eq_u32 vcc, 3, v11
    s_cbranch_vccz L_sig{sfx}
    s_lshl_b32 s{T0}, s{S_BLK}, 7
    s_add_u32 s{T0}, s{T0}, {FL_KV}
    v_mov_b32 v{V_MK-1}, s{S_TAG}
    v_mov_b32 v10, 0
    buffer_store_dwordx2 {vr(V_MK-1,2)}, v10, {sr(R_WS,4)}, s{T0} offen{SC}
    L_sig{sfx}:
    s_mov_b64 exec, -1
    """)
    e.dsq = []


def kv_flag_load(e, text_only=False):
    ld = f"buffer_load_dwordx2 v[12:13], v14, {sr(R_WS,4)}, s{S_KF} offen{SC}"
    if text_only:
        return ld
    e(f"""
    s_lshl_b32 s{S_KF}, s{S_HP}, 11
    s_add_u32 s{S_KF}, s{S_KF}, {FL_KV}
    v_and_b32 v14, 15, v1
    v_cmp_eq_u32 vcc, s{S_J}, v14
    v_xor_b32 v15, 1, v14
    v_cndmask_b32 v14, v14, v15, vcc
    v_lshlrev_b32 v14, 7, v14
    """)
    e.vm("kf", ld)


def kv_wait_and_decide(e):
    for i in range(4):
        e(f"v_mov_b32 v{16+i}, -1")
    of_slot(e, S_XB, T1)
    e(f"s_sub_u32 s{T2}, s{S_XB}, 16384")
    for so in (S_XB, T2):
        e.vm("px", f"buffer_store_dwordx4 v[16:19], v{V_KO}, {sr(R_WS,4)}, s{so} offen{SC}")
    wo_prefetch(e)
    wo_addresses(e)
    kv_flag_load(e)
    poll(e, "L_pollkv", [kv_flag_load(e, True)], [12], first="kf")
    for j in (1, 2):
        kv_load(e, j)
    for ctl in ("row_shr:1", "row_shr:2", "row_shr:4", "row_shr:8"):
        e(f"v_max_f32_dpp v13, v13, v13 {ctl} row_mask:0xf bank_mask:0xf")
    e(f"v_max_f32 v13, v13, v{V_MK}\nv_mul_f32 v11, v42, v13\nv_mov_b32 v10, {L_MISC + 16}\ns_lshl_b64 exec, 1, 63")
    e.ds("dw", "ds_write_b32 v10, v11")
    e("s_mov_b64 exec, -1")
    e.wait(ds="*")


def conv_final(e):
    e(f"""
    s_lshl_b32 s{T1}, s{S_WAVE}, 10
    s_add_u32 s{T1}, s{T1}, {L_P}
    v_add_u32 v2, s{T1}, v{V_KO}
    v_mov_b32 v10, {L_MISC + 16}
    """)
    e.ds("cp", "ds_read_b32 v11, v10")
    for q in range(4):
        e.ds("cp", f"ds_read_b128 {vr(C_A+4*q,4)}, v2 offset:{q*8192}")
    for ch in range(2):
        e.ds("cp", f"ds_read_b128 {vr(C_B+4*ch,4)}, v250 offset:{ch*2*B_COPY}")
    e(f"""
    v_bfe_u32 v2, v1, 1, 3
    v_lshlrev_b32 v2, 7, v2
    v_lshrrev_b32 v59, 4, v1
    v_lshl_add_u32 v2, v59, 5, v2
    v_and_b32 v10, 1, v1
    v_lshl_add_u32 v2, v10, 4, v2
    s_mul_i32 s{T0}, s2, {YSTR}
    s_lshl_b32 s{T1}, s{S_WAVE}, 10
    s_add_u32 s{T0}, s{T0}, s{T1}
    s_add_u32 s{T0}, s{T0}, {WS_Y}
    s_lshl_b32 s{T1}, s{S_D}, 16
    s_and_b32 s{T2}, s{S_D}, 0xffff0000
    v_mov_b32 v10, {BOUND2}
    """)
    of_slot(e, S_XB, S_KF)
    e.wait(ds="*")
    e("s_barrier")
    for ch in range(2):
        for r in range(4):
            e(f"v_add_f32 v{C_A+8*ch+r}, v{C_A+8*ch+r}, v{C_A+8*ch+4+r}")
            e(f"v_lshlrev_b32 v{C_B+4*ch+3-r}, 16, v{C_B+4*ch+3-r}")
        for r in range(4):
            e(f"v_fmac_f32 v{C_A+8*ch+r}, s{T1+ch}, v{C_B+4*ch+3-r}")
    for r in range(4):
        e(f"v_cvt_pk_bf16_f32 v{20+r}, v{C_A+r}, v{C_A+8+r}")
    e.vm("y", f"buffer_store_dwordx4 v[20:23], v2, {sr(R_WS,4)}, s{T0} offen{SC}")
    exchange_addresses(e)
    e("s_setprio 1\nv_cmp_le_f32 vcc, v11, v10")


def wfr(h):
    return 16 + 4 * h if h < 12 else 128 + 4 * (h - 12)


V_XW, V_XC = 56, 58
XR4, XR1 = {1: 49, 2: 50, 3: 51}, {1: 53, 2: 54, 3: 55}


def exchange_addresses(e):
    e(f"s_and_b32 s{T0}, s{S_WAVE}, 4\ns_add_u32 s{T0}, s{T0}, {L_CNT}\nv_mov_b32 v{V_XC}, s{T0}")
    for i in range(4):
        e(f"""
        s_sub_u32 s{T0}, s{S_W4}, {i}
        s_and_b32 s{T0}, s{T0}, 3
        s_mul_i32 s{T2}, s{T0}, 6912
        s_add_u32 s{T2}, s{T2}, {L_O}
        v_add_u32 v{XR4[i] if i else V_XW}, s{T2}, v{V_KO}
        v_lshl_add_u32 v{XR1[i] if i else V_XW+1}, v1, 2, s{T2}
        """)


def lds_count(e, addr, off):
    e(f"v_mov_b32 v10, 1\ns_mov_b64 exec, 1\nds_add_u32 v{addr}, v10 offset:{off}\ns_mov_b64 exec, -1")
    e.dsq.append("cnt")


def lds_spin(e, label, addr, off, low=False):
    low = False
    if low:
        e("s_setprio 0")
    e(f"""
    s_mov_b32 s{S_SPIN}, {SPIN_MAX * 8}
    {label}:
    ds_read_b32 v10, v{addr} offset:{off}
    s_waitcnt lgkmcnt(0)
    v_cmp_gt_u32 vcc, 4, v10
    s_cbranch_vccz {label}_ok
    s_sub_u32 s{S_SPIN}, s{S_SPIN}, 1
    s_cbranch_scc0 {label}
    {label}_ok:
    """)
    if low:
        e("s_setprio 1")
    e.dsq = []


def qk(e, j, i):
    e(f"v_mfma_f32_32x32x16_bf16 {vr(S_BUF+16*i,16)}, {vr(kv_regs(j)[0],4)}, {vr(Q_FR+4*i,4)}, 0")


def pv(e, j, i, half):
    e(f"v_smfmac_f32_32x32x32_bf16 {vr(O_ACC+16*i,16)}, {vr(kv_regs(j)[1+half],4)}, {vr(S_BUF+16*i+8*half,8)}, v{V_IDX}")


def p3_ids(e):
    srd(e, R_W, P_WO, 0x80000)
    e(f"""
    s_lshr_b32 s{T0}, s2, 5
    s_lshl_b32 s{T0}, s{T0}, 3
    s_and_b32 s{S_QT}, s2, 7
    s_add_u32 s{S_QT}, s{S_QT}, s{T0}
    s_bfe_u32 s{S_NQ}, s2, 0x20003
    """)


V_WO = 60


def wo_addresses(e):
    e(f"""
    s_lshl_b32 s{T2}, s{S_NQ}, 2
    s_add_u32 s{T2}, s{T2}, s{S_W4}
    s_lshl_b32 s{T1}, s{T2}, 6
    v_lshrrev_b32 v24, 2, v1
    v_lshlrev_b32 v24, 10, v24
    v_and_b32 v25, 3, v1
    v_lshl_add_u32 v24, v25, 4, v24
    v_add_u32 v{V_WO}, s{T1}, v24
    v_add_u32 v{V_WO+1}, 15360, v{V_WO}
    v_add_u32 v{V_WO+2}, 30720, v{V_WO}
    v_add_u32 v{V_WO+3}, 46080, v{V_WO}
    s_lshl_b32 s{S_WOM}, s{S_W4}, 15
    s_mov_b32 s{S_WOS}, 0
    """)


def wo_stage(e, sfx):
    n = int(OPT.get("wgrp", 4))
    e(f"L_wo{sfx}:\ns_mov_b32 m0, s{S_WOM}\ns_add_u32 s{S_WOM}, s{S_WOM}, 4096")
    for i in range(4):
        e(f"buffer_load_dwordx4 v{V_WO+i}, {sr(R_W,4)}, s{S_WOS} offen offset:{i*1024} lds")
        if n == 2 and i == 1:
            e("s_waitcnt vmcnt(0)")
    e(f"""
    s_add_u32 s{S_WOS}, s{S_WOS}, 65536
    s_cmp_lt_u32 s{S_WOS}, {8*65536}
    s_waitcnt vmcnt(0)
    s_cbranch_scc1 L_wo{sfx}
    """)
    lds_count(e, V_XC, 20)
    flag_store(e, FL_Y, 2, 12, per_wave=True)


def zero_o(e):
    for i in range(4):
        e(f"v_mov_b32 v{32+i}, 0")
    for i in range(4):
        e(f"v_mfma_f32_32x32x16_bf16 {vr(O_ACC+16*i,16)}, v[32:35], v[32:35], 0")


def tile(e, j, i, before_qk=None, cluster=None, with_qk=True, with_prev=True):
    s = S_BUF + 16 * i
    ex = [f"v_exp_f32 v{s+r}, v{s+r}" for r in range(16)]
    if with_qk:
        if before_qk:
            e(before_qk)
        qk(e, j + (i == 3), (i + 1) % 4)
    e("\n".join(ex[0:4]))
    if with_prev:
        pv(e, j - (i == 0), (i + 3) % 4, 1)
    e("\n".join(ex[4:8]))
    if cluster:
        cluster()
    e("\n".join(ex[8:10]))
    pv(e, j, i, 0)
    e("\n".join(ex[10:16]))


def attn_step0(e):
    qk(e, 0, 0)
    for i in range(4):
        tile(e, 0, i, with_qk=i < 3, with_prev=i > 0)


def attn_loop(e):
    b = E()

    def first():
        kv_load(b, 3)
        b(f"s_cmp_eq_u32 s{S_IT}, s{T0}\ns_cbranch_scc1 L_hook\nL_back:")

    for j in (1, 2, 3):
        for i in range(4):
            cl = None if i else first if j == 1 else (lambda j=j: kv_load(b, j + 2))
            tile(b, j, i, ("s_waitcnt vmcnt(40)" if OPT.get("nowait") else "s_waitcnt vmcnt(3)") if i == 3 else None, cl)
    b(f"s_sub_u32 s{S_IT}, s{S_IT}, 16\ns_cbranch_scc0 L_loop")
    check_seq(b.l + b.l, "attention loop")
    e(f"s_or_b32 s{S_IT}, s{S_WAVE}, 4\ns_add_u32 s{S_IT}, s{S_IT}, 64\ns_add_u32 s{T0}, s{S_WAVE}, 64")
    e.wait(vm="kv1")
    qk(e, 1, 0)
    stamp(e, 4)
    e(f"s_nop 10\nL_loop:")
    e("\n".join(b.l))
    e.vmq = []
    pv(e, 3, 3, 1)


def attn_slow(e):
    M = 44
    for i in range(4):
        e(f"v_mov_b32 v{M+i}, 0xff7fffff")
    e.wait(vm="*")
    zero_o(e)
    e(f"s_cmp_lt_u32 s{S_WAVE}, 4\ns_cbranch_scc1 L_nostage")
    wo_stage(e, "s")
    e("L_nostage:")
    e(f"""
    s_mul_i32 s{T2}, s{S_WAVE}, {TILE}
    s_mul_i32 s{T0}, s{S_HP}, {16*BLK}
    s_add_u32 s{T2}, s{T2}, s{T0}
    s_mov_b32 s{T3}, 0
    L_slowloop:
    """)
    kv_load(e, 0, f"s{T2}")
    e.wait(vm="*")
    for i in range(4):
        qk(e, 0, i)
    for i in range(4):
        s, o = S_BUF + 16 * i, O_ACC + 16 * i
        e(f"v_max3_f32 v10, v{s}, v{s+1}, v{M+i}")
        for r in range(2, 16, 2):
            e(f"v_max3_f32 v10, v{s+r}, v{s+r+1}, v10")
        e(f"""
        v_mov_b32 v11, v10
        v_permlane32_swap_b32 v10, v11
        v_max_f32 v10, v10, v11
        v_sub_f32 v11, v{M+i}, v10
        v_exp_f32 v11, v11
        v_mov_b32 v{M+i}, v10
        """)
        for r in range(16):
            e(f"v_sub_f32 v{s+r}, v{s+r}, v10\nv_exp_f32 v{s+r}, v{s+r}")
        for r in range(16):
            e(f"v_mul_f32 v{o+r}, v{o+r}, v11")
        pv(e, 0, i, 0)
        pv(e, 0, i, 1)
    e(f"""
    s_add_u32 s{T2}, s{T2}, {BLK}
    s_add_u32 s{T3}, s{T3}, 1
    s_cmp_lt_u32 s{T3}, 16
    s_nop 7
    s_nop 7
    s_cbranch_scc1 L_slowloop
    """)


def attn_combine(e, slow):
    M, R = 44, S_BUF
    XM = L_O + 4 * 6912
    order = (1, 2, 3)
    sfx = "s" if slow else "f"
    e(f"s_cmp_ge_u32 s{S_WAVE}, 4\ns_cbranch_scc1 L_xf{sfx}_go\ns_nop 3\ns_branch L_xf{sfx}_ok\nL_xf{sfx}_go:")
    lds_spin(e, "L_xf" + sfx, V_XC, 8)
    for i in order:
        o, off = O_ACC + 16 * i, (i - 1) * 2304
        e.ds("xw", f"ds_write_b128 v{V_XW}, {vr(o,4)} offset:{off}")
        e.ds("xw", f"ds_write_b128 v{V_XW}, {vr(o+4,4)} offset:{off+1024}")
        e.ds("xw", f"ds_write_b32 v{V_XW+1}, v{o+8} offset:{off+2048}")
    if slow:
        e(f"s_mul_i32 s{T0}, s{S_WAVE}, 384\ns_add_u32 s{T0}, s{T0}, {XM}\nv_and_b32 v63, 31, v1\nv_lshl_add_u32 v59, v63, 2, s{T0}")
        for i in order:
            e.ds("xw", f"ds_write_b32 v59, v{M+i} offset:{(i-1)*128}")
            e(f"""
            s_sub_u32 s{T0}, s{S_W4}, {i}
            s_and_b32 s{T0}, s{T0}, 3
            s_and_b32 s{T2}, s{S_WAVE}, 4
            s_add_u32 s{T0}, s{T0}, s{T2}
            s_mul_i32 s{T0}, s{T0}, 384
            s_add_u32 s{T0}, s{T0}, {XM}
            v_lshl_add_u32 v{59+i}, v63, 2, s{T0}
            """)
    lds_count(e, V_XC, 4)
    if OPT.get("xprio") and not slow:
        e(f"s_cmp_ge_u32 s{S_WAVE}, 4\ns_cbranch_scc1 L_keepprio\ns_setprio 0\nL_keepprio:")
    lds_spin(e, "L_xs" + sfx, V_XC, 4)
    for n, i in enumerate(order):
        off = (i - 1) * 2304
        e.ds(f"xr{n}", f"ds_read_b128 {vr(R+12*n,4)}, v{XR4[i]} offset:{off}")
        e.ds(f"xr{n}", f"ds_read_b128 {vr(R+12*n+4,4)}, v{XR4[i]} offset:{off+1024}")
        e.ds(f"xr{n}", f"ds_read_b32 v{R+12*n+8}, v{XR1[i]} offset:{off+2048}")
        if slow:
            e.ds(f"xr{n}", f"ds_read_b32 v{R+12*n+9}, v{59+i} offset:{(i-1)*128}")
    if slow:
        e.wait(ds="*")
        e(f"v_max3_f32 v10, v{M}, v{R+9}, v{R+21}\nv_max_f32 v10, v10, v{R+33}")
        for src, base in ((M, O_ACC), (R + 9, R), (R + 21, R + 12), (R + 33, R + 24)):
            e(f"v_sub_f32 v11, v{src}, v10\nv_exp_f32 v11, v11")
            for r in range(9):
                e(f"v_mul_f32 v{base+r}, v{base+r}, v11")
    for n in range(3):
        e.wait(ds=f"xr{n}")
        e(f"v_add_f32 v{O_ACC+8}, v{O_ACC+8}, v{R+12*n+8}")
        for r in range(0, 8, 2):
            e(f"v_pk_add_f32 {vr(O_ACC+r,2)}, {vr(O_ACC+r,2)}, {vr(R+12*n+r,2)}")
    e(f"v_rcp_f32 v{O_ACC+8}, v{O_ACC+8}")
    lds_count(e, V_XC, 12)
    for r in range(0, 8, 2):
        e(f"v_pk_mul_f32 {vr(O_ACC+r,2)}, {vr(O_ACC+r,2)}, {vr(O_ACC+8,2)} op_sel_hi:[1,0]")
    for r in range(4):
        e(f"v_cvt_pk_bf16_f32 v{O_ACC+12+r}, v{O_ACC+2*r}, v{O_ACC+2*r+1}")
    for r in range(4):
        e(f"v_min_u32 v{O_ACC+12+r}, -2, v{O_ACC+12+r}")
    e.vm("o", f"buffer_store_dwordx4 {vr(O_ACC+12,4)}, v{V_KO}, {sr(R_WS,4)}, s{S_XB} offen{SC}")


P_ACC, O_FR, B_T, OP, B_X, B_Y, B_G = 64, 80, 112, 208, 224, 232, 240
V_G, V_CNT, V_TR, V_O2, V_STG, V_OUT, V_FA, V_FB, V_Y = 3, 4, 5, 7, 8, 9, 13, 14, 15
S_YB, S_GB = 96, 97


def tail_addresses(e):
    srd(e, R_OUT, P_OUT, 0x200000)
    e(f"""
    v_and_b32 v24, 7, v1
    v_lshlrev_b32 v24, 15, v24
    v_bfe_u32 v25, v1, 3, 1
    v_lshl_add_u32 v24, v25, 10, v24
    s_bfe_u32 s{T3}, s{S_QT}, 0x20002
    s_lshl_b32 s{T3}, s{T3}, 13
    s_lshr_b32 s{T0}, s{S_QT}, 4
    s_lshl_b32 s{T0}, s{T0}, 11
    s_add_u32 s{T3}, s{T3}, s{T0}
    s_and_b32 s{T0}, s{S_QT}, 3
    s_lshl_b32 s{T0}, s{T0}, 7
    s_add_u32 s{T3}, s{T3}, s{T0}
    s_add_u32 s{T3}, s{T3}, {FL_Y}
    v_bfe_u32 v25, v1, 4, 1
    v_lshl_add_u32 v24, v25, 9, v24
    v_add_u32 v{V_FA}, s{T3}, v24
    s_lshl_b32 s{T2}, s{S_NQ}, 2
    s_add_u32 s{S_ROW}, s{T2}, s{S_WAVE}
    s_lshl_b32 s{T2}, s{S_ROW}, 14
    s_lshr_b32 s{T3}, s{S_QT}, 3
    s_lshl_b32 s{T3}, s{T3}, 7
    s_add_u32 s{T2}, s{T2}, s{T3}
    s_add_u32 s{T2}, s{T2}, {FL_Y}
    v_and_b32 v24, 15, v1
    v_lshl_add_u32 v{V_FB}, v24, 10, s{T2}
    s_lshl_b32 s{T1}, s{S_ROW}, 6
    s_lshl_b32 s{S_MX}, s{S_WAVE}, 15
    v_lshrrev_b32 v26, 5, v1
    v_bfe_u32 v25, v1, 2, 2
    v_lshl_add_u32 v{V_TR}, v26, 2, v25
    v_lshlrev_b32 v{V_TR}, 6, v{V_TR}
    v_bfe_u32 v25, v1, 4, 1
    v_lshl_add_u32 v{V_TR}, v25, 5, v{V_TR}
    v_and_b32 v24, 1, v1
    v_lshl_add_u32 v{V_TR}, v24, 4, v{V_TR}
    v_bfe_u32 v25, v1, 1, 1
    v_lshl_add_u32 v{V_TR}, v25, 3, v{V_TR}
    v_add_u32 v{V_TR}, s{S_MX}, v{V_TR}
    v_add_u32 v{V_O2}, 0x10000, v{V_KO}
    v_add_u32 v{V_STG}, s{S_MX}, v{V_KO}
    v_mov_b32 v{V_CNT}, {L_CNT}
    s_lshl_b32 s{S_KF}, s{S_QT}, 3
    s_add_u32 s{S_KF}, s{S_KF}, s{S_WAVE}
    s_lshl_b32 s{S_KF}, s{S_KF}, 12
    s_add_u32 s{S_KF}, s{S_KF}, {WS_OF}
    s_add_u32 s{S_MODE}, s{S_KF}, 16384
    v_and_b32 v{V_G}, 31, v1
    v_lshlrev_b32 v{V_OUT}, 10, v{V_G}
    v_lshl_add_u32 v{V_OUT}, v26, 4, v{V_OUT}
    s_lshl_b32 s{T2}, s{S_QT}, 15
    s_add_u32 s{T2}, s{T2}, s{T1}
    v_add_u32 v{V_OUT}, s{T2}, v{V_OUT}
    v_bfe_u32 v{V_Y}, v1, 3, 2
    v_lshlrev_b32 v{V_Y}, 5, v{V_Y}
    v_lshl_add_u32 v{V_Y}, v24, 4, v{V_Y}
    v_bfe_u32 v25, v1, 1, 2
    v_lshl_add_u32 v{V_Y}, v25, 2, v{V_Y}
    v_mul_u32_u24 v25, {4*YSTR}, v26
    v_add_u32 v{V_Y}, v25, v{V_Y}
    s_mul_i32 s{S_YB}, s{S_ROW}, {16*YSTR}
    s_lshl_b32 s{S_GB}, s{S_QT}, 7
    s_add_u32 s{S_YB}, s{S_YB}, s{S_GB}
    s_add_u32 s{S_YB}, s{S_YB}, {WS_Y}
    v_lshlrev_b32 v{V_G}, 2, v{V_G}
    s_add_u32 s{S_GB}, s{S_GB}, {WS_G}
    """)


def o_loads(par):
    return [f"buffer_load_dwordx4 {vr(OP+4*i,4)}, v{V_KO}, {sr(R_WS,4)}, s{S_MODE if par else S_KF} offen offset:{i*1024}{SC}" for i in range(4)]


def o_poll(e, par, issued):
    lab = f"L_pollo{par}"
    e(f"s_mov_b32 s{S_SPIN}, {SPIN_MAX}")
    if issued:
        e(f"s_branch {lab}_chk")
    e(f"{lab}:\n" + "\n".join(o_loads(par)))
    e(f"{lab}_chk:\ns_waitcnt vmcnt(0)\nv_max3_u32 v12, v{OP}, v{OP+1}, v{OP+2}")
    e.vmq = []
    for i in range(3, 15, 2):
        e(f"v_max3_u32 v12, v12, v{OP+i}, v{OP+i+1}")
    e(f"""
    v_max_u32 v12, v12, v{OP+15}
    v_cmp_eq_u32 vcc, -1, v12
    s_cbranch_vccz {lab}_ok
    s_sub_u32 s{S_SPIN}, s{S_SPIN}, 1
    s_cbranch_scc0 {lab}
    {lab}_ok:
    """)
    for i in range(4):
        e.ds("ow", f"ds_write_b128 v{V_STG}, {vr(OP+4*i,4)} offset:{par*4096 + i*1024}")


def half_gemm(e, par):
    def rd(b):
        e.ds(f"of{b}", f"ds_read_b128 {vr(O_FR+4*(b%8),4)}, v{V_O2 if b >= 8 else V_KO} offset:{(b//4%2)*32768 + par*4096 + (b%4)*1024}")
    for b in range(8):
        rd(b)
    for b in range(16):
        e.wait(ds=f"of{b}")
        c = "0" if b == 0 and par == 0 else vr(P_ACC, 16)
        e(f"v_mfma_f32_32x32x16_bf16 {vr(P_ACC,16)}, {vr(wfr(2*b+par),4)}, {vr(O_FR+4*(b%8),4)}, {c}")
        if b + 8 < 16:
            rd(b + 8)


def tail(e):
    stamp(e, 13)
    if OPT.get("stamp"):
        e(f"s_cmp_lt_u32 s{S_WAVE}, 4\ns_cbranch_scc1 L_older")
        for k in (14, 15, 16):
            stamp(e, k)
        stamp_flush(e, 17, False)
        e("s_endpgm\nL_older:")
    else:
        e(f"s_cmp_ge_u32 s{S_WAVE}, 4\ns_cbranch_scc1 L_end")
    if not OPT.get("ap"):
        e("s_setprio 0")
    tail_addresses(e)
    e("s_setprio 0")
    fa = f"buffer_load_dword v11, v{V_FA}, {sr(R_WS,4)}, 0 offen{SC}"
    fb = f"buffer_load_dword v6, v{V_FB}, {sr(R_WS,4)}, 0 offen{SC}"
    flag_store(e, FL_Y, 2, 12, per_wave=True)
    e.vm("fa", fa)
    lds_spin(e, "L_ws", V_CNT, 24)

    def frag(h):
        for j in range(2):
            e.ds("wf", f"ds_read_b64_tr_b16 {vr(wfr(h)+2*j,2)}, v{V_TR} offset:{h*1024 + j*512}")
    for h in range(32):
        frag(h)
    poll(e, "L_pollfa", [fa], [11], first="fa")
    for ld in o_loads(0):
        e.vm("op", ld)
    e.vm("fb", fb)
    e.wait(ds="*")
    o_poll(e, 0, True)
    e.wait(ds="*")
    lds_count(e, V_CNT, 20)
    poll(e, "L_pollfb", [fb], [6], first="none")
    for k in range(2):
        e.vm("b", f"buffer_load_dwordx4 {vr(B_X+4*k,4)}, v{V_OUT}, {sr(R_X,4)}, 0 offen offset:{32*k}")
    for jj in range(8):
        e.vm("b", f"buffer_load_dword v{B_Y+jj}, v{V_Y}, {sr(R_WS,4)}, s{S_YB} offen{SC}")
        if jj < 7:
            e(f"s_add_u32 s{S_YB}, s{S_YB}, {YSTR * (5 if jj == 3 else 1)}")
    e.vm("b", f"buffer_load_dword v{B_G}, v{V_G}, {sr(R_WS,4)}, s{S_GB} offen{SC}")
    if not OPT.get("lateg"):
        lds_spin(e, "L_es", V_CNT, 20)
        if OPT.get("hp"):
            e("s_setprio 2")
        half_gemm(e, 0)
        if OPT.get("hp"):
            e("s_setprio 0")
    stamp(e, 14)
    e("s_barrier")
    if not OPT.get("bfirst"):
        for ld in o_loads(1):
            e.vm("op", ld)
    if OPT.get("lateg"):
        half_gemm(e, 0)
    e.wait(vm="b")
    e(f"v_sub_f32 v10, 1.0, v{B_G}")
    for i in range(8):
        e(f"""
        v_lshlrev_b32 v{B_T+2*i}, 16, v{B_X+i}
        v_and_b32 v{B_T+2*i+1}, 0xffff0000, v{B_X+i}
        v_lshlrev_b32 v12, 16, v{B_Y+i}
        v_and_b32 v13, 0xffff0000, v{B_Y+i}
        v_pk_mul_f32 {vr(B_T+2*i,2)}, {vr(B_T+2*i,2)}, v[12:13]
        v_pk_mul_f32 {vr(B_T+2*i,2)}, {vr(B_T+2*i,2)}, v[10:11] op_sel_hi:[1,0]
        """)
    o_poll(e, 1, not OPT.get("bfirst"))
    stamp(e, 15)
    e.wait(ds="*")
    e("s_barrier")
    stamp(e, 16)
    half_gemm(e, 1)
    for r in range(0, 16, 2):
        e(f"v_pk_fma_f32 {vr(P_ACC+r,2)}, {vr(P_ACC+r,2)}, {vr(B_G,2)}, {vr(B_T+r,2)} op_sel_hi:[1,0,1]")
    for r in range(8):
        e(f"v_cvt_pk_bf16_f32 v{O_FR+r}, v{P_ACC+2*r}, v{P_ACC+2*r+1}")
    for k in range(2):
        e.vm("st", f"buffer_store_dwordx4 {vr(O_FR+4*k,4)}, v{V_OUT}, {sr(R_OUT,4)}, 0 offen offset:{32*k}")
    e(f"s_or_b32 s{T0}, s2, s{S_WAVE}\ns_cbranch_scc1 L_nogen\nv_mov_b32 v12, s{S_TAG}\nv_mov_b32 v13, {WS_GEN}\ns_mov_b64 exec, 1")
    e(f"buffer_store_dword v12, v13, {sr(R_WS,4)}, 0 offen sc0 sc1\ns_mov_b64 exec, -1\nL_nogen:")
    stamp_flush(e, 17)


def kernel():
    q = E()
    prologue(q)
    stamp(q, 0)
    e = E()
    staging(q)
    loader_setup(e)
    gemm_v(e)
    stamp(e, 8)
    epi_v(e)
    e.wait(ds="*")
    e("s_barrier")
    stamp(e, 9)
    k_publish(e)
    zero_o(e)
    norms_max(e)
    stamp(e, 28)
    attn_step0(e)
    stamp(e, 29)
    e.wait(vm="h")
    if OPT.get("sigpre"):
        kv_signal(e, "v")
    e("s_barrier")
    stamp(e, 18)
    if OPT.get("sigmid"):
        kv_signal(e, "v")
    p3_ids(e)
    conv_addresses(e)
    if OPT.get("sigpre") or OPT.get("sigmid"):
        e("s_waitcnt lgkmcnt(0)")
    else:
        kv_signal(e, "v")
    e.vmq = []
    kv_wait_and_decide(e)
    stamp(e, 19)
    e("s_barrier\nL_join:")
    gemm_qk(q)
    if OPT.get("qprio"):
        q("s_setprio 0")
    stamp(q, 8)
    epi_qk(q)
    q.wait(ds="*")
    q("s_barrier")
    stamp(q, 9)
    attn_reads(q)
    conv_u_loads(q)
    gate_loads(q)
    zero_o(q)
    q.wait(ds="*")
    stamp(q, 28)
    attn_step0(q)
    stamp(q, 29)
    conv_u_pad(q)
    gate_compute(q)
    q("s_waitcnt lgkmcnt(0)\ns_barrier")
    q.dsq = []
    stamp(q, 18)
    conv_mfma(q)
    stamp(q, 19)
    q("s_barrier")
    for jj in (1, 2):
        kv_load(q, jj)
    q("s_branch L_join\nL_vrole:")
    j = E()
    j.vmq = [f"kv{k}" for k in (1, 2) for _ in range(3)]
    assert e.vmq == j.vmq and q.vmq[-6:] == j.vmq
    stamp(j, 10)
    conv_final(j)
    j("s_cbranch_vccz L_slow" if not OPT.get("slow") else "s_branch L_slow")
    stamp(j, 11)
    attn_loop(j)
    stamp(j, 12)
    attn_combine(j, False)
    j("L_tail:")
    j.vmq = ["o"]
    tail(j)
    j("L_end:\ns_endpgm")
    x = E()
    x("L_hook:")
    wo_stage(x, "f")
    x("s_branch L_back\nL_slow:")
    x.vmq = ["y"]
    attn_slow(x)
    attn_combine(x, True)
    x("L_last:\ns_branch L_tail")
    return q.l + e.l + j.l + x.l


def build():
    hdr = open(__file__.replace("gen/gen_v24.py", "cdna_kernels/" + NAME.replace("_kernel", ".s.ref")).replace("gen_v24.py", "../cdna_kernels/" + NAME.replace("_kernel", ".s.ref"))).read()
    head = hdr[:hdr.index("; @launch")]
    out = [head + f"; @launch grid=(256,1,1) block=(512,1,1) lds={LDS}", '.amdgcn_target "amdgcn-amd-amdhsa--gfx950"', ".text",
           f".globl {NAME}", ".p2align 8", f".type {NAME},@function", f"{NAME}:"]
    body = pad(kernel())
    check_edges(body)
    out += body
    out.append(f""".section .rodata,"a"
.p2align 6
.amdhsa_kernel {NAME}
  .amdhsa_next_free_vgpr 256
  .amdhsa_next_free_sgpr 98
  .amdhsa_accum_offset 256
  .amdhsa_group_segment_fixed_size 0
  .amdhsa_kernarg_size 104
  .amdhsa_user_sgpr_count 2
  .amdhsa_user_sgpr_kernarg_segment_ptr 1
  .amdhsa_system_sgpr_workgroup_id_x 1
  .amdhsa_float_denorm_mode_32 3
.end_amdhsa_kernel""")
    return "\n".join(out) + "\n"


if __name__ == "__main__":
    OPT.update(rot3=True, vclu=True, codepf=True, uf=2, sigpre=True)
    for a in sys.argv[2:]:
        k, _, val = a.partition("=")
        OPT[k] = val or True
    open(sys.argv[1], "w").write(build())
```

```python
import sys
from asmlib import E, vr, sr, pad, check_seq, check_edges

NAME = "gated_mix__mha_block__ssm_conv_h3__prompt_kernel"
OPT = {}

TILE = 2176
BLK = 32768
WS_KV = 0x0000000
WS_U = 0x1000000
USTR, YSTR = 4096 + 256, 8192 + 256
WS_Y = 0x0900000
WS_OF = 0x0C00000
WS_G = 0x0E00000
WS_FL = 0x0E10000
FL_KV, FL_U, FL_Y = WS_FL, WS_FL + 0x8000, WS_FL + 0x10000
WS_GEN = WS_FL + 0x50000
WS_ST = 0x0F00000
WS_SIZE = 0x1400000
OOB = 0x7F000000

QSCALE = 0x3EB8AA3B
NLOG2E = 0xBFB8AA3B
BOUND2 = 0x44610000
SPIN_MAX = 1 << 18

P_X, P_W, P_WO, P_K, P_V, P_SH, P_H, P_D, P_GW, P_OUT, P_WS = 16, 18, 20, 24, 26, 28, 30, 32, 34, 36, 40
S_WAVE, S_HP, S_J, S_CG, S_TB = 3, 4, 5, 6, 7
T0, T1, T2, T3 = 8, 9, 10, 11
S_MX, S_MW, S_ROW, S_W4 = 12, 13, 14, 15
S_D, S_TAG = 42, 43
R_X, R_W, R_K, R_V, R_SH, R_GW, R_WS, R_H, R_OUT = 44, 48, 52, 56, 60, 64, 68, 72, 76
S_KVB, S_KVN, S_KVO, S_IT, S_WOS, S_XB, S_KF, S_WOM = 88, 89, 90, 91, 92, 93, 94, 95
S_BLK, S_ROT, S_SPIN, S_MODE, S_QT, S_NQ = 80, 81, 82, 83, 84, 85

SLOT = 28672
L_Z = 4 * SLOT
L_A, A_COPY = L_Z, 4160
L_PRE = L_Z
L_STG = L_PRE + 64 * 144
L_Q = L_A + 8 * 4160
L_MISC = L_Q + 8192
L_B, B_COPY = 0, 4576
L_KVO = SLOT
L_P = 2 * SLOT
L_WO, L_O = 0, 131072
LDS = 163840
L_CNT = LDS - 64
XCH = 2560

SC = " sc1"


def srd(e, r, p, size):
    e(f"s_mov_b32 s{r}, s{p}\ns_mov_b32 s{r+1}, s{p+1}\ns_mov_b32 s{r+2}, {size}\ns_mov_b32 s{r+3}, 0x20000")


def stamp(e, i):
    if OPT.get("stamp"):
        e(f"s_memrealtime s[86:87]\ns_waitcnt lgkmcnt(0)\nv_writelane_b32 v255, s86, {i}")
        e(f"s_memtime s[86:87]\ns_waitcnt lgkmcnt(0)\nv_writelane_b32 v255, s86, {32+i}")
        e.dsq = []


def stamp_flush(e, n, dbg=True):
    if OPT.get("stamp"):
        e.wait(vm="*")
        stamp(e, n)
        e(f"""
        s_lshl_b32 s86, s2, 3
        s_add_u32 s86, s86, s{S_WAVE}
        s_lshl_b32 s86, s86, 8
        s_add_u32 s86, s86, {WS_ST}
        v_lshlrev_b32 v11, 2, v1
        buffer_store_dword v255, v11, {sr(R_WS,4)}, s86 offen
        """)
        if OPT.get("dbg") and dbg:
            order = [0, 20, 24, 8, 9, 18, 10, 11, 12, 13, 14, 15, 16, 17]
            e(f"s_cmp_lg_u32 s2, 100\ns_cbranch_scc1 L_nodbg\ns_cmp_lg_u32 s{S_WAVE}, 4\ns_cbranch_scc1 L_nodbg")
            srd(e, R_K, 38, 256)
            e("v_readlane_b32 s87, v255, 0")
            for n, i in enumerate(order):
                e(f"v_readlane_b32 s86, v255, {i}\ns_sub_u32 s86, s86, s87\nv_writelane_b32 v254, s86, {n}")
            e("v_readlane_b32 s86, v255, 44\nv_readlane_b32 s87, v255, 43\ns_sub_u32 s86, s86, s87\nv_writelane_b32 v254, s86, 14")
            e("v_readlane_b32 s86, v255, 49\nv_readlane_b32 s87, v255, 32\ns_sub_u32 s86, s86, s87\nv_writelane_b32 v254, s86, 15")
            e(f"s_mov_b64 exec, 0xffff\nbuffer_store_dword v254, v11, {sr(R_K,4)}, 0 offen\ns_mov_b64 exec, -1\nL_nodbg:")


def wave_reduce(e, op, regs):
    for ctl in ("row_shr:1 row_mask:0xf", "row_shr:2 row_mask:0xf", "row_shr:4 row_mask:0xf", "row_shr:8 row_mask:0xf",
                "row_bcast:15 row_mask:0xa", "row_bcast:31 row_mask:0xc"):
        for r in regs:
            e(f"{op}_dpp v{r}, v{r}, v{r} {ctl} bank_mask:0xf")


def poll(e, label, loads, words, first=None):
    e(f"s_mov_b32 s{S_SPIN}, {SPIN_MAX}")
    if first:
        e.wait(vm=first)
        e(f"s_branch {label}_chk")
    e(f"{label}:")
    for ld in loads:
        e(ld)
    e("s_waitcnt vmcnt(0)")
    if first:
        e(f"{label}_chk:")
    else:
        e.vmq = []
    e(f"v_cmp_ne_u32 vcc, s{S_TAG}, v{words[0]}")
    for w in words[1:]:
        e(f"v_cmp_ne_u32 s[{T0}:{T1}], s{S_TAG}, v{w}\ns_or_b64 vcc, vcc, s[{T0}:{T1}]")
    e(f"""
    s_cbranch_vccz {label}_ok
    s_sub_u32 s{S_SPIN}, s{S_SPIN}, 1
    s_cbranch_scc0 {label}
    {label}_ok:
    """)


def flag_store(e, base, idx_sreg, data, per_wave=False, width=4, only=None):
    if only is not None:
        e(f"s_cmp_lg_u32 s{S_WAVE}, {only}\ns_cbranch_scc1 L_nofl{base & 0xfffff:x}")
    if per_wave:
        e(f"s_lshl_b32 s{T0}, s{idx_sreg}, 3\ns_add_u32 s{T0}, s{T0}, s{S_WAVE}\ns_lshl_b32 s{T0}, s{T0}, 7")
    else:
        e(f"s_lshl_b32 s{T0}, s{idx_sreg}, 7")
    e(f"""
    s_add_u32 s{T0}, s{T0}, {base}
    v_mov_b32 v{data}, s{S_TAG}
    v_mov_b32 v2, 0
    s_lshl_b64 exec, 1, 63
    """)
    op = "dword" if width == 4 else "dwordx2"
    st = f"buffer_store_{op} {vr(data, width // 4)}, v2, {sr(R_WS,4)}, s{T0} offen{SC}"
    if only is None:
        e.vm("fl", st)
    else:
        assert not e.vmq, e.vmq
        e(st)
    e("s_mov_b64 exec, -1")
    if only is not None:
        e(f"L_nofl{base & 0xfffff:x}:")


def make_tag(e):
    e.wait(vm="gen")
    e(f"""
    v_readfirstlane_b32 s{S_TAG}, v254
    s_mul_i32 s{S_TAG}, s{S_TAG}, 0x9e3779b1
    s_add_u32 s{S_TAG}, s{S_TAG}, 0x7f4a7c15
    """)


def prologue(e):
    e(f"""
    s_cmp_ge_u32 s2, 256
    s_cbranch_scc1 L_end
    s_load_dwordx16 s[16:31], s[0:1], 0
    s_load_dwordx8 s[32:39], s[0:1], 64
    s_load_dwordx2 s[40:41], s[0:1], 96
    v_lshrrev_b32 v1, 6, v0
    v_readfirstlane_b32 s{S_WAVE}, v1
    v_and_b32 v1, 63, v0
    s_bfe_u32 s{T0}, s2, 0x20001
    s_bfe_u32 s{T1}, s2, 0x20003
    s_lshl_b32 s{S_J}, s{T0}, 2
    s_add_u32 s{S_J}, s{S_J}, s{T1}
    s_and_b32 s{T0}, s2, 1
    s_lshr_b32 s{T2}, s2, 5
    s_lshl_b32 s{S_HP}, s{T0}, 3
    s_add_u32 s{S_HP}, s{S_HP}, s{T2}
    s_lshl_b32 s{T1}, s{T1}, 1
    s_add_u32 s{S_ROT}, s{T2}, s{T1}
    s_lshl_b32 s{S_BLK}, s{S_HP}, 4
    s_add_u32 s{S_BLK}, s{S_BLK}, s{S_J}
    s_and_b32 s{S_CG}, s2, 7
    s_lshr_b32 s{S_TB}, s2, 3
    s_and_b32 s{S_W4}, s{S_WAVE}, 3
    v_mov_b32 v2, {WS_GEN}
    """)
    if OPT.get("codepf"):
        e(f"""
        s_cmp_lg_u32 s{S_WAVE}, 7
        s_cbranch_scc1 L_nocpf
        s_getpc_b64 s[{T0}:{T1}]
        L_pc:
        s_mul_hi_u32 s{T2}, s{S_TB}, 0x55555556
        s_mul_i32 s{T2}, s{T2}, 3
        s_sub_u32 s{T2}, s{S_TB}, s{T2}
        s_lshl_b32 s{T2}, s{T2}, 13
        v_lshl_add_u32 v8, v1, 7, s{T2}
        v_min_u32 v8, L_last - L_pc, v8
        v_mov_b32 v9, s{T1}
        v_add_co_u32 v8, vcc, s{T0}, v8
        v_addc_co_u32 v9, vcc, 0, v9, vcc
        global_load_dword v253, v[8:9], off
        L_nocpf:
        """)
    if OPT.get("rot3"):
        e(f"s_lshr_b32 s{T2}, s2, 5\ns_and_b32 s{T2}, s{T2}, 1\ns_sub_u32 s{S_ROT}, s{S_ROT}, s{T2}")
    if OPT.get("norot"):
        e(f"s_mov_b32 s{S_ROT}, 0")
    if OPT.get("rot2"):
        e(f"s_and_b32 s{S_ROT}, s{S_ROT}, 1\ns_lshl_b32 s{S_ROT}, s{S_ROT}, 2")


V_XD, V_WD = 4, 3
V_ADR = 128
ACC0, ACC1 = 96, 112
FR = 144


def frag_addresses(e):
    e(f"""
    v_and_b32 v56, 31, v1
    v_lshrrev_b32 v57, 5, v1
    v_bfe_u32 v58, v1, 1, 3
    v_xor_b32 v58, v58, v57
    v_lshlrev_b32 v58, 4, v58
    v_lshl_add_u32 v58, v56, 7, v58
    s_lshl_b32 s{T0}, s{S_W4}, 12
    v_add_u32 v{V_ADR}, s{T0}, v58
    v_xor_b32 v{V_ADR+1}, 32, v{V_ADR}
    v_xor_b32 v{V_ADR+2}, 64, v{V_ADR}
    v_xor_b32 v{V_ADR+3}, 0x60, v{V_ADR}
    v_bfe_u32 v58, v1, 2, 2
    v_lshl_add_u32 v58, v57, 3, v58
    v_lshlrev_b32 v58, 6, v58
    v_bfe_u32 v59, v1, 4, 1
    v_lshl_add_u32 v58, v59, 5, v58
    v_and_b32 v59, 3, v1
    v_lshl_add_u32 v58, v59, 3, v58
    v_add_u32 v{V_ADR+4}, 0x4000, v58
    """)
    for i in range(5):
        e(f"v_add_u32 v{V_ADR+5+i}, {2*SLOT}, v{V_ADR+i}")


def chunk_dma_steps(e, c):
    slot = (c % 4) * SLOT

    def x(i):
        if i == 0:
            e(f"s_add_u32 s{T1}, s{S_ROT}, {c}\ns_and_b32 s{T1}, s{T1}, 7\ns_add_u32 m0, s{S_MX}, {slot}\ns_lshl_b32 s{T0}, s{T1}, 7")
        e.vm(f"c{c}", f"buffer_load_dwordx4 v{V_XD+i}, {sr(R_X,4)}, s{T0} offen offset:{i*1024} lds")

    def w(part):
        if part == 0:
            e(f"s_add_u32 m0, s{S_MW}, {slot}\ns_mul_i32 s{T0}, s{T1}, 196608")
        e.vm(f"c{c}", f"buffer_load_dwordx4 v{V_WD}, {sr(R_W,4)}, s{T0} offen offset:{part*1024} lds")

    return [lambda i=i: x(i) for i in range(4)] + [lambda p=p: w(p) for p in range(3)]


def frag_reads(e, c, ks, parts, f):
    a, imm = V_ADR + 5 * ((c % 4) // 2), (c % 2) * SLOT
    e.ds(f"r{c}_{ks}", f"ds_read_b128 {vr(f,4)}, v{a+ks} offset:{imm}")
    for n, part in enumerate(parts):
        for j in range(1 if OPT.get("xhalfw") else 2):
            e.ds(f"r{c}_{ks}", f"ds_read_b64_tr_b16 {vr(f+4+4*n+2*j,2)}, v{a+4} offset:{imm + (ks*3+part)*1024 + j*256}")


SH, GX, GW = 32, 48, 56


def gate_loads(e):
    srd(e, R_GW, P_GW, 1024)
    e(f"""
    s_lshl_b32 s{S_ROW}, s{S_J}, 2
    s_add_u32 s{S_ROW}, s{S_ROW}, s{S_W4}
    s_lshl_b32 s{S_ROW}, s{S_ROW}, 4
    s_add_u32 s{S_ROW}, s{S_ROW}, s{S_HP}
    s_lshl_b32 s{T2}, s{S_ROW}, 11
    """)
    e.vm("gate", f"buffer_load_dwordx4 {vr(GX,4)}, v{V_KO}, {sr(R_X,4)}, s{T2} offen")
    e.vm("gate", f"buffer_load_dwordx4 {vr(GX+4,4)}, v{V_KO}, {sr(R_X,4)}, s{T2} offen offset:1024")
    e.vm("gate", f"buffer_load_dwordx4 {vr(GW,4)}, v{V_KO}, {sr(R_GW,4)}, 0 offen")


def gate_compute(e):
    e.wait(vm="gate")
    for i in range(4):
        for r in range(2):
            e(f"v_dot2_f32_bf16 v{10+r}, v{GX+4*r+i}, v{GW+i}, {'0' if i == 0 else f'v{10+r}'}")
    wave_reduce(e, "v_add_f32", [10, 11])
    for op in (f"v_mul_f32 v{{0}}, {NLOG2E}, v{{0}}", "v_exp_f32 v{0}, v{0}", "v_add_f32 v{0}, 1.0, v{0}", "v_rcp_f32 v{0}, v{0}"):
        e(op.format(10) + "\n" + op.format(11))
    e(f"s_lshl_b32 s{T2}, s{S_ROW}, 3\ns_add_u32 s{T2}, s{T2}, {WS_G}\nv_mov_b32 v2, 0\ns_lshl_b64 exec, 1, 63")
    e.vm("g", f"buffer_store_dwordx2 v[10:11], v2, {sr(R_WS,4)}, s{T2} offen{SC}")
    e("s_mov_b64 exec, -1")


def staging(e):
    e(f"""
    s_cmp_ge_u32 s{S_WAVE}, 4
    s_cbranch_scc1 L_vrole
    s_lshl_b32 s{T0}, s{S_TB}, 2
    s_add_u32 s{T0}, s{T0}, s{S_WAVE}
    s_lshl_b32 s{T0}, s{T0}, 14
    s_lshl_b32 s{T1}, s{S_CG}, 7
    s_add_u32 s{T0}, s{T0}, s{T1}
    v_lshrrev_b32 v54, 3, v1
    v_and_b32 v55, 7, v1
    v_lshlrev_b32 v55, 4, v55
    v_lshl_add_u32 v54, v54, 10, v55
    v_add_u32 v54, s{T0}, v54
    v_add_u32 v53, 0xffffe000, v54
    v_add_u32 v55, 0x2000, v54
    s_mul_i32 s{S_MX}, s{S_WAVE}, 5120
    s_add_u32 s{S_MX}, s{S_MX}, {L_STG}
    v_and_b32 v49, 31, v1
    s_lshl_b32 s{T1}, s{S_CG}, 9
    v_lshl_add_u32 v6, v49, 4, s{T1}
    s_waitcnt lgkmcnt(0)
    """)
    srd(e, R_SH, P_SH, 4096)
    e.vm("pre", f"buffer_load_dwordx4 {vr(SH,4)}, v6, {sr(R_SH,4)}, 0 offen")
    srd(e, R_K, P_K, 0x200000)
    srd(e, R_V, P_V, 0x200000)
    for n, (r, v) in enumerate(((R_K, 53), (R_K, 54), (R_K, 55), (R_V, 54), (R_V, 55))):
        e(f"s_add_u32 m0, s{S_MX}, {n*1024}")
        e.vm("pre", f"buffer_load_dwordx4 v{v}, {sr(r,4)}, 0 offen lds")


def wo_prefetch(e):
    e(f"""
    s_cmp_ge_u32 s{S_WAVE}, 6
    s_cbranch_scc1 L_nowopf
    s_lshr_b32 s{T0}, s2, 5
    s_lshl_b32 s{T0}, s{T0}, 1
    s_add_u32 s{T0}, s{T0}, s{S_W4}
    s_lshl_b32 s{T0}, s{T0}, 15
    s_lshl_b32 s{T1}, s{S_NQ}, 8
    s_add_u32 s{T0}, s{T0}, s{T1}
    v_lshrrev_b32 v10, 1, v1
    v_lshlrev_b32 v10, 10, v10
    v_and_b32 v11, 1, v1
    v_lshl_add_u32 v10, v11, 7, v10
    buffer_load_dword v252, v10, {sr(R_W,4)}, s{T0} offen
    L_nowopf:
    """)


def prepass_compute(e):
    KR, VR, KF, VF, WF, U, PK = 8, 20, 144, 166, 182, 190, 144
    e(f"""
    v_lshrrev_b32 v48, 5, v0
    v_lshrrev_b32 v53, 5, v1
    v_lshlrev_b32 v53, 10, v53
    v_lshl_add_u32 v53, v49, 2, v53
    v_add_u32 v53, s{S_MX}, v53
    """)
    for i in range(11):
        e.ds(f"pk{i//4}", f"ds_read_b32 v{KR+i}, v53 offset:{(5+i)*128}")
    e(f"""
    v_mul_u32_u24 v50, 288, v49
    v_lshlrev_b32 v48, 4, v48
    v_sub_u32 v50, v50, v48
    v_add_u32 v50, {L_PRE + 112}, v50
    """)
    for j in range(4):
        if j % 2 == 0:
            e(f"v_lshlrev_b32 v{WF+2*j}, 16, v{SH+j//2}\nv_lshlrev_b32 v{WF+2*j+1}, 16, v{SH+2+j//2}")
        else:
            e(f"v_and_b32 v{WF+2*j}, 0xffff0000, v{SH+j//2}\nv_and_b32 v{WF+2*j+1}, 0xffff0000, v{SH+2+j//2}")
    for i in range(11):
        if i % 4 == 0:
            e.wait(ds=f"pk{i//4}")
        if i == 4:
            for k in range(8):
                e.ds("pv", f"ds_read_b32 v{VR+k}, v53 offset:{3072 + k*128}")
        e(f"v_lshlrev_b32 v{KF+2*i}, 16, v{KR+i}\nv_and_b32 v{KF+2*i+1}, 0xffff0000, v{KR+i}")
    for j in (3, 2, 1, 0):
        for o in range(8):
            kr = KF + 2 * (o + 3 - j)
            if j == 3:
                e(f"v_pk_mul_f32 {vr(U+2*o,2)}, {vr(kr,2)}, {vr(WF+2*j,2)}")
            else:
                e(f"v_pk_fma_f32 {vr(U+2*o,2)}, {vr(kr,2)}, {vr(WF+2*j,2)}, {vr(U+2*o,2)}")
    e.wait(ds="pv")
    for i in range(8):
        e(f"v_lshlrev_b32 v{VF+2*i}, 16, v{VR+i}\nv_and_b32 v{VF+2*i+1}, 0xffff0000, v{VR+i}")
    for o in range(8):
        e(f"v_pk_mul_f32 {vr(U+2*o,2)}, {vr(U+2*o,2)}, {vr(VF+2*o,2)}")
    for ch in range(2):
        for q in range(4):
            e(f"v_cvt_pk_bf16_f32 v{PK+4*ch+q}, v{U+2*(7-2*q)+ch}, v{U+2*(6-2*q)+ch}")
        e.ds("pw", f"ds_write_b128 v50, {vr(PK+4*ch,4)} offset:{ch*144}")
    e(f"""
    v_lshrrev_b32 v48, 3, v0
    v_and_b32 v52, 7, v0
    v_lshlrev_b32 v52, 4, v52
    v_mul_u32_u24 v51, 144, v48
    v_add_u32 v51, v51, v52
    v_add_u32 v51, {L_PRE}, v51
    v_mul_u32_u24 v48, {USTR}, v48
    v_add_u32 v52, v48, v52
    s_mul_i32 s{S_MW}, s{S_CG}, {64*USTR}
    s_lshl_b32 s{T3}, s{S_TB}, 7
    s_sub_u32 s{S_MW}, s{S_MW}, s{T3}
    s_add_u32 s{S_MW}, s{S_MW}, {WS_U + 3968}
    """)


def prepass_read(e):
    e.ds("pr", "ds_read_b128 v[8:11], v51")
    e.ds("pr", f"ds_read_b128 v[12:15], v51 offset:{32*144}")


def prepass_out(e):
    e(f"s_add_u32 s{T1}, s{S_MW}, {32*USTR}")
    e.wait(ds="pr")
    e.vm("ust", f"buffer_store_dwordx4 v[8:11], v52, {sr(R_WS,4)}, s{S_MW} offen{SC}")
    e.vm("ust", f"buffer_store_dwordx4 v[12:15], v52, {sr(R_WS,4)}, s{T1} offen{SC}")


def of_slot(e, s, tmp):
    e(f"""
    s_lshl_b32 s{s}, s{S_J}, 2
    s_add_u32 s{s}, s{s}, s{S_W4}
    s_lshl_b32 s{s}, s{s}, 1
    s_lshr_b32 s{tmp}, s{S_WAVE}, 2
    s_add_u32 s{s}, s{s}, s{tmp}
    s_lshl_b32 s{s}, s{s}, 4
    s_add_u32 s{s}, s{s}, s{S_HP}
    s_lshl_b32 s{s}, s{s}, 10
    s_add_u32 s{s}, s{s}, {WS_OF}
    """)


UFLAG_AT = 4


def gemm_qk(e):
    srd(e, R_X, P_X, 0x200000)
    srd(e, R_WS, P_WS, WS_SIZE)
    e.vm("gen", f"buffer_load_dword v254, v2, {sr(R_WS,4)}, 0 offen sc0 sc1")
    frag_addresses(e)
    e(f"v_and_b32 v8, 7, v1\nv_lshlrev_b32 v8, 2, v8\nv_add_u32 v8, {L_CNT}, v8\nv_mov_b32 v9, 0")
    e.ds("cnt", "ds_write_b32 v8, v9")
    stamp(e, 1)
    e.wait(vm="pre")
    stamp(e, 2)
    prepass_compute(e)
    make_tag(e)

    attn_addresses(e)
    conv_addresses(e)
    p3_ids(e)
    u_flag_load(e)
    e("s_waitcnt lgkmcnt(0)")
    e.dsq = []
    stamp(e, 3)

    if OPT.get("qprio"):
        e("s_setprio 1")

    def fr(ks):
        return FR + 12 * ks

    def mm(c, ks):
        e.wait(ds=f"r{c}_{ks}")
        f = fr(ks)
        first = c == 0 and ks == 0
        e(f"v_mfma_f32_32x32x16_bf16 {vr(ACC0,16)}, {vr(f+4,4)}, {vr(f,4)}, {'0' if first else vr(ACC0,16)}")
        e(f"v_mfma_f32_32x32x16_bf16 {vr(ACC1,16)}, {vr(f+8,4)}, {vr(f,4)}, {'0' if first else vr(ACC1,16)}")

    for c in range(8):
        if c == int(OPT.get('uf', UFLAG_AT)):
            e.wait(vm="*")
        if not (OPT.get("xnobar") and c in (5, 6)):
            e("s_barrier")
        if c in (0, 1, 4, 7):
            stamp(e, 20 + c)
        if c == int(OPT.get('uf', UFLAG_AT)):
            flag_store(e, FL_U, 2, 8, only=0)
        if c == 0:
            prepass_read(e)
        frag_reads(e, c, 0, (0, 1), fr(0))
        if c:
            mm(c - 1, 2)
        frag_reads(e, c, 1, (0, 1), fr(1))
        if c:
            mm(c - 1, 3)
        frag_reads(e, c, 2, (0, 1), fr(2))
        mm(c, 0)
        frag_reads(e, c, 3, (0, 1), fr(3))
        mm(c, 1)
        if c == 0:
            prepass_out(e)
    e.vm("uf", u_flag_load(e, True))
    mm(7, 2)
    mm(7, 3)


def loader_setup(e):
    e(f"""
    v_lshrrev_b32 v36, 3, v1
    v_lshrrev_b32 v37, 4, v1
    v_xor_b32 v37, v37, v1
    v_and_b32 v37, 7, v37
    v_lshlrev_b32 v37, 4, v37
    v_lshl_add_u32 v37, v36, 10, v37
    s_lshl_b32 s{T0}, s{S_J}, 2
    s_add_u32 s{T0}, s{T0}, s{S_W4}
    s_lshl_b32 s{T0}, s{T0}, 15
    v_add_u32 v{V_XD}, s{T0}, v37
    v_xor_b32 v{V_XD+1}, 64, v{V_XD}
    v_add_u32 v{V_XD+2}, {16384-2048}, v{V_XD}
    v_add_u32 v{V_XD+3}, {24576-3072}, v{V_XD+1}
    v_add_u32 v{V_XD+1}, {8192-1024}, v{V_XD+1}
    s_lshl_b32 s{S_MX}, s{S_W4}, 12
    v_bfe_u32 v36, v0, 2, 6
    v_mul_u32_u24 v36, 0xc00, v36
    v_and_b32 v37, 3, v1
    v_lshl_add_u32 v36, v37, 4, v36
    s_lshl_b32 s{T0}, s{S_HP}, 6
    v_add_u32 v{V_WD}, s{T0}, v36
    s_mul_i32 s{S_MW}, s{S_W4}, 3072
    s_add_u32 s{S_MW}, s{S_MW}, 16384
    s_waitcnt lgkmcnt(0)
    """)
    srd(e, R_X, P_X, 0x200000)
    srd(e, R_W, P_W, 0x180000)


def conv_h_steps(e):
    e(f"""
    s_lshr_b32 s{T0}, s{S_W4}, 1
    s_lshl_b32 s{T1}, s2, 1
    s_add_u32 s{T1}, s{T1}, s{T0}
    s_lshl_b32 s{T2}, s{T1}, 12
    s_add_u32 s{R_H}, s{P_H}, s{T2}
    s_addc_u32 s{R_H+1}, s{P_H+1}, 0
    s_mov_b32 s{R_H+2}, 4096
    s_mov_b32 s{R_H+3}, 0x20000
    s_and_b32 s{T0}, s{S_W4}, 1
    s_lshl_b32 s{T0}, s{T0}, 3
    v_lshl_add_u32 v8, v1, 4, s{T0}
    v_lshl_add_u32 v9, v1, 2, s{T0}
    s_mul_i32 s{T2}, s{S_W4}, {2*A_COPY}
    """)
    steps = []
    for cc in range(2):
        def big(i, cc=cc):
            if i == 0:
                e(f"v_add_u32 v10, {4+4*cc}, v8\nv_add_u32 v11, {-60+4*cc}, v9\ns_add_u32 m0, s{T2}, {L_A + cc*A_COPY + 64}")
            e.vm("h", f"buffer_load_dwordx4 v10, {sr(R_H,4)}, 0 offen offset:{i*1024} lds")

        def head(cc=cc):
            e(f"s_add_u32 m0, s{T2}, {L_A + cc*A_COPY}\ns_mov_b64 exec, 0xffff")
            e.vm("h", f"buffer_load_dword v11, {sr(R_H,4)}, 0 offen lds")
            e("s_mov_b64 exec, -1")
        steps += [lambda i=i, big=big: big(i) for i in range(4)] + [head]
    return steps


def u_flag_load(e, text_only=False):
    ld = f"buffer_load_dword v28, v29, {sr(R_WS,4)}, s{S_WOS} offen{SC}"
    if text_only:
        return ld
    e(f"""
    v_and_b32 v29, 31, v1
    v_lshlrev_b32 v29, 10, v29
    s_lshr_b32 s{S_WOS}, s2, 5
    s_lshl_b32 s{S_WOS}, s{S_WOS}, 7
    s_add_u32 s{S_WOS}, s{S_WOS}, {FL_U}
    s_lshr_b32 s{T0}, s{S_W4}, 1
    s_lshl_b32 s{S_KF}, s2, 1
    s_add_u32 s{S_KF}, s{S_KF}, s{T0}
    s_mul_i32 s{S_KF}, s{S_KF}, {USTR}
    s_and_b32 s{T0}, s{S_W4}, 1
    s_lshl_b32 s{T0}, s{T0}, 1
    s_sub_u32 s{S_KF}, s{S_KF}, s{T0}
    s_add_u32 s{S_KF}, s{S_KF}, {WS_U + 2}
    """)


def conv_u_loads(e):
    poll(e, "L_pollu", [u_flag_load(e, True)], [28], first="uf")
    e(f"s_mul_i32 s{S_WOS}, s{S_W4}, {B_COPY}\ns_add_u32 m0, s{S_WOS}, {L_B}")
    for i in range(4):
        e.vm("u", f"buffer_load_dwordx4 v{V_KO}, {sr(R_WS,4)}, s{S_KF} offen offset:{i*1024}{SC} lds")


def conv_u_pad(e):
    e.wait(vm="u")
    e(f"""
    v_lshl_add_u32 v12, v1, 3, s{S_WOS}
    v_mov_b32 v10, 0
    v_mov_b32 v11, 0
    s_lshr_b64 exec, -1, 4
    ds_write_b64 v12, v[10:11] offset:{L_B + 4096}
    s_and_b32 s{T0}, s{S_WAVE}, 1
    s_xor_b32 exec_lo, s{T0}, 1
    s_mov_b32 exec_hi, 0
    ds_write_b16 v12, v10 offset:{L_B + 4094}
    s_mov_b64 exec, -1
    """)


def gemm_v(e):
    for c in range(2):
        for st in chunk_dma_steps(e, c):
            st()
    srd(e, R_WS, P_WS, WS_SIZE)
    e.vm("gen", f"buffer_load_dword v254, v2, {sr(R_WS,4)}, 0 offen sc0 sc1")
    stamp(e, 1)
    stamp(e, 2)
    frag_addresses(e)
    for c in range(8):
        e.wait(vm=f"c{c}")
        if c == 0:
            stamp(e, 3)
        if not (OPT.get("xnobar") and c in (5, 6)):
            e("s_barrier")
        if c in (0, 1, 4, 7):
            stamp(e, 20 + c)
        steps = chunk_dma_steps(e, c + 2) if c + 2 < 8 else conv_h_steps(e) if c == 6 else []
        if OPT.get("xnodma") and 2 <= c < 6:
            steps = []
        per = 2 if c == 6 else 1

        def step():
            for _ in range(per):
                if steps:
                    steps.pop(0)()
        if c == 7:
            attn_addresses(e)
        if OPT.get("vclu"):
            while steps:
                step()
        for ks in range(4):
            step()
            frag_reads(e, c, ks, (2,), FR + 8 * ks)
        for ks in range(4):
            e.wait(ds=f"r{c}_{ks}")
            f = FR + 8 * ks
            e(f"v_mfma_f32_32x32x16_bf16 {vr(ACC0,16)}, {vr(f,4)}, {vr(f+4,4)}, {'0' if c + ks == 0 else vr(ACC0,16)}")
            step()
        assert not steps
        if c == 3:
            make_tag(e)


def tile_base(e, s):
    e(f"s_mul_i32 s{s}, s{S_BLK}, {BLK}\ns_mul_i32 s{T3}, s{S_W4}, {TILE}\ns_add_u32 s{s}, s{s}, s{T3}")


V_MK = 41


def epi_qk(e):
    QP, KP = 8, 16
    e(f"""
    v_and_b32 v36, 0x33, v1
    v_bfe_u32 v37, v1, 2, 1
    v_lshl_or_b32 v36, v37, 3, v36
    v_bfe_u32 v37, v1, 3, 1
    v_lshl_or_b32 v36, v37, 2, v36
    v_lshlrev_b32 v36, 4, v36
    s_lshl_b32 s{T2}, s{S_W4}, 11
    v_add_u32 v38, s{T2}, v36
    s_mov_b32 s{S_MX}, {QSCALE}
    s_mov_b32 s{S_MW}, {QSCALE}
    s_lshl_b32 s{T2}, s{S_W4}, 10
    v_lshl_add_u32 v37, v1, 4, s{T2}
    """)
    for i in range(8):
        e(f"v_cvt_pk_bf16_f32 v{KP+i}, v{ACC1+2*i}, v{ACC1+2*i+1}")
    e.ds("ew", f"ds_write_b128 v38, {vr(KP,4)} offset:{L_KVO}")
    e.ds("ew", f"ds_write_b128 v38, {vr(KP+4,4)} offset:{L_KVO + 8192}")
    for i in range(8):
        e(f"v_pk_mul_f32 {vr(ACC0+2*i,2)}, {vr(ACC0+2*i,2)}, s[{S_MX}:{S_MW}]")
    for i in range(8):
        e(f"v_cvt_pk_bf16_f32 v{QP+i}, v{ACC0+2*i}, v{ACC0+2*i+1}")
    e(f"v_add_u32 v37, {L_Q}, v37")
    e.ds("ew", f"ds_write_b128 v37, {vr(QP,4)}")
    e.ds("ew", f"ds_write_b128 v37, {vr(QP+4,4)} offset:4096")
    for i in range(4):
        for d, s in ((42, QP), (43, QP + 4), (V_MK, KP), (44, KP + 4)):
            e(f"v_dot2_f32_bf16 v{d}, v{s+i}, v{s+i}, {'0' if i == 0 else f'v{d}'}")
    e(f"v_max_f32 v42, v42, v43\nv_max_f32 v{V_MK}, v{V_MK}, v44")
    wave_reduce(e, "v_max_f32", [42, V_MK])
    e(f"s_lshl_b32 s{T2}, s{S_W4}, 2\ns_add_u32 s{T2}, s{T2}, {L_MISC}\nv_mov_b32 v37, s{T2}\ns_lshl_b64 exec, 1, 63")
    e.ds("ew", f"ds_write_b32 v37, v42")
    e.ds("ew", f"ds_write_b32 v37, v{V_MK} offset:32")
    e("s_mov_b64 exec, -1")


def epi_v(e):
    VP = 16
    tile_base(e, T0)
    e(f"""
    v_bfe_u32 v38, v1, 4, 1
    v_lshrrev_b32 v37, 5, v1
    v_lshlrev_b32 v37, 8, v37
    v_and_b32 v39, 15, v1
    v_lshl_add_u32 v37, v39, 4, v37
    v_mad_u32_u24 v36, v38, s{S_MX}, v37
    v_lshl_add_u32 v37, v38, 13, v37
    s_lshl_b32 s{T2}, s{S_W4}, 11
    v_add_u32 v37, s{T2}, v37
    v_mul_u32_u24 v39, {4*TILE}, v1
    """.replace(f"v_mad_u32_u24 v36, v38, s{S_MX}, v37", f"s_movk_i32 s{S_MX}, {4*TILE}\nv_mad_u32_u24 v36, v38, s{S_MX}, v37"))
    for i in range(4):
        e(f"v_mov_b32 v{24+i}, 0x3f803f80")
    for i in range(8):
        e(f"v_cvt_pk_bf16_f32 v{VP+i}, v{ACC0+2*i}, v{ACC0+2*i+1}")
    e.vm("st", f"buffer_store_dwordx4 {vr(VP,4)}, v36, {sr(R_WS,4)}, s{T0} offen offset:1024{SC}")
    e.vm("st", f"buffer_store_dwordx4 {vr(VP+4,4)}, v36, {sr(R_WS,4)}, s{T0} offen offset:1536{SC}")
    e("s_mov_b64 exec, 3")
    e.vm("st", f"buffer_store_dwordx4 v[24:27], v39, {sr(R_WS,4)}, s{T0} offen offset:2048{SC}")
    e("s_mov_b64 exec, -1")
    e.ds("ew", f"ds_write_b128 v37, {vr(VP,4)} offset:{L_KVO + 1024}")
    e.ds("ew", f"ds_write_b128 v37, {vr(VP+4,4)} offset:{L_KVO + 1536}")


O_ACC, S_BUF, Q_FR, KV_ST = 64, 128, 192, 208
V_IDX, V_KO, V_V0, V_V1 = 244, 245, 246, 247
NS = 3
C_ACC, C_B = 16, 144
C_A = 32


def ca(a):
    return 48 + 4 * a if a < 4 else 128 + 4 * (a - 4)


def kv_regs(j):
    b = KV_ST + 12 * (j % NS)
    return b, b + 4, b + 8


V_AQ = 64


def attn_addresses(e):
    k, v0, v1 = kv_regs(0)
    e(f"""
    v_lshlrev_b32 v{V_KO}, 4, v1
    v_lshrrev_b32 v60, 5, v1
    v_lshlrev_b32 v60, 4, v60
    v_and_or_b32 v60, v1, 15, v60
    v_lshlrev_b32 v60, 4, v60
    s_lshl_b32 s{T2}, s{S_WAVE}, 11
    v_add_u32 v{V_AQ+4}, s{T2}, v{V_KO}
    v_add_u32 v{V_AQ+5}, s{T2}, v60
    v_and_b32 v61, 27, v1
    v_cmp_eq_u32 vcc, 16, v61
    v_mov_b32 v61, 0x3f803f80
    v_mov_b32 v62, {OOB}
    v_cndmask_b32 v61, 0, v61, vcc
    v_mov_b32 v63, 1024
    v_cndmask_b32 v{V_V0}, v62, v63, vcc
    v_mov_b32 v63, 512
    v_cndmask_b32 v{V_V1}, v62, v63, vcc
    v_and_b32 v62, 16, v1
    v_cmp_eq_u32 vcc, 0, v62
    v_mov_b32 v{V_IDX}, 0xdddddddd
    s_mul_i32 s{T2}, s{S_WAVE}, {TILE}
    v_cndmask_b32 v{V_V0}, v{V_V0}, v60, vcc
    v_cndmask_b32 v{V_V1}, v{V_V1}, v60, vcc
    s_lshl_b32 s{T3}, s{S_BLK}, 15
    s_add_u32 s{S_KVB}, s{T2}, s{T3}
    s_mov_b32 s{S_KVN}, 0
    """)
    for i in range(8):
        e(f"v_mov_b32 v{v0+i}, v61")
    e(f"s_lshr_b32 s{T2}, s{S_WAVE}, 2\ns_lshl_b32 s{T2}, s{T2}, 12\ns_add_u32 s{T2}, s{T2}, {L_Q}")
    for i in range(4):
        e(f"s_add_u32 s{T3}, s{S_W4}, {i}\ns_and_b32 s{T3}, s{T3}, 3\ns_lshl_b32 s{T3}, s{T3}, 10\ns_add_u32 s{T3}, s{T3}, s{T2}")
        e(f"v_add_u32 v{V_AQ+i}, s{T3}, v{V_KO}")
    e(f"v_and_b32 v70, 3, v1\nv_lshlrev_b32 v70, 2, v70\nv_add_u32 v70, {L_MISC}, v70")


def attn_reads(e):
    k, v0, v1 = kv_regs(0)
    e.ds("ak", f"ds_read_b128 {vr(k,4)}, v{V_AQ+4} offset:{L_KVO}")
    for i in range(4):
        e.ds("aq", f"ds_read_b128 {vr(Q_FR+4*i,4)}, v{V_AQ+i}")
    e("s_mov_b32 exec_lo, 0xffff\ns_mov_b32 exec_hi, 0xffff")
    e.ds("aq", f"ds_read_b128 {vr(v0,4)}, v{V_AQ+5} offset:{L_KVO + 1024}")
    e.ds("aq", f"ds_read_b128 {vr(v1,4)}, v{V_AQ+5} offset:{L_KVO + 1536}")
    e("s_mov_b64 exec, -1")
    e.ds("mq", "ds_read_b32 v42, v70")
    e.ds("mq", f"ds_read_b32 v{V_MK}, v70 offset:32")


def kv_load(e, j, soff=None):
    k, v0, v1 = kv_regs(j)
    so = soff or f"s{S_KVO}"
    if not soff:
        e(f"s_add_u32 s{S_KVN}, s{S_KVN}, {BLK}\ns_xor_b32 s{S_KVO}, s{S_KVB}, s{S_KVN}")
    e.vm(f"kv{j}", f"buffer_load_dwordx4 {vr(k,4)}, v{V_KO}, {sr(R_WS,4)}, {so} offen{SC}")
    e.vm(f"kv{j}", f"buffer_load_dwordx4 {vr(v0,4)}, v{V_V0}, {sr(R_WS,4)}, {so} offen offset:1024{SC}")
    e.vm(f"kv{j}", f"buffer_load_dwordx4 {vr(v1,4)}, v{V_V1}, {sr(R_WS,4)}, {so} offen offset:1536{SC}")


def conv_ra(e, tag, a):
    e.ds(f"a{a}{tag}", f"ds_read_b128 {vr(ca(a),4)}, v248 offset:{a*512}")


def conv_rb(e, tag, b):
    e.ds(f"b{b}{tag}", f"ds_read_b128 {vr(C_B+4*b,4)}, v249 offset:{(7-b)*512}")


def conv_body(e, kind):
    if kind != "last":
        e("v_add_u32 v248, 64, v248\nv_add_u32 v249, 64, v249")
    done = []
    for a in range(8):
        for b in range(7 - a, -1, -1):
            e.wait(ds=[f"a{a}", f"b{b}"])
            n = a + b
            c = "0" if kind == "first" and a == 0 else vr(C_ACC + 4 * n, 4)
            e(f"v_mfma_f32_16x16x32_bf16 {vr(C_ACC+4*n,4)}, {vr(ca(a),4)}, {vr(C_B+4*b,4)}, {c}")
            if kind == "last":
                if done and len(e.l) - done[0][1] >= 8:
                    m = done.pop(0)[0]
                    e.ds("pw", f"ds_write_b128 v2, {vr(C_ACC+4*m,4)} offset:{m*1024}")
                if b == 0:
                    done.append((a, len(e.l)))
                continue
            if b == 7 - a:
                conv_rb(e, "n", b)
            if b == 0:
                conv_ra(e, "n", a)
    for m, _ in done:
        e.ds("pw", f"ds_write_b128 v2, {vr(C_ACC+4*m,4)} offset:{m*1024}")
    e.dsq = [t[:-1] if t.endswith("n") else t for t in e.dsq]


def conv_mfma(e):
    for a in range(8):
        conv_rb(e, "", 7 - a)
        conv_ra(e, "", a)
    e(f"s_lshl_b32 s{T1}, s{S_WAVE}, 13\ns_add_u32 s{T1}, s{T1}, {L_P}\nv_add_u32 v2, s{T1}, v{V_KO}\ns_mov_b32 s{T0}, 1")
    conv_body(e, "first")
    q = list(e.dsq)
    b = e.fork()
    conv_body(b, "mid")
    assert b.dsq == q
    b(f"s_sub_u32 s{T0}, s{T0}, 1\ns_cbranch_scc0 L_cvloop")
    body = pad(b.l)
    check_seq(body + body, "conv loop")
    e("L_cvloop:\n" + "\n".join(body))
    conv_body(e, "last")
    e.wait(ds="*")


def conv_addresses(e):
    e(f"""
    s_lshl_b32 s{T2}, s2, 2
    s_load_dword s{S_D}, s[{P_D}:{P_D+1}], s{T2}
    v_and_b32 v60, 3, v1
    v_mul_u32_u24 v248, {A_COPY}, v60
    v_bfe_u32 v60, v1, 2, 2
    v_lshrrev_b32 v61, 4, v1
    v_add_u32 v60, v60, v61
    v_lshl_add_u32 v248, v60, 4, v248
    s_lshr_b32 s{T0}, s{S_W4}, 1
    s_and_b32 s{T1}, s{S_WAVE}, 1
    s_lshl_b32 s{T1}, s{T1}, 8
    s_mul_i32 s{T2}, s{T0}, {4*A_COPY}
    s_add_u32 s{T2}, s{T2}, s{T1}
    s_add_u32 s{T2}, s{T2}, {L_A}
    v_add_u32 v248, s{T2}, v248
    v_and_b32 v60, 1, v1
    v_mul_u32_u24 v249, {B_COPY}, v60
    v_lshl_add_u32 v249, v61, 4, v249
    v_bfe_u32 v60, v1, 1, 3
    v_lshlrev_b32 v60, 6, v60
    v_sub_u32 v249, v249, v60
    v_add_u32 v250, {L_B + 4080}, v249
    v_lshlrev_b32 v62, 5, v61
    v_sub_u32 v250, v250, v62
    s_lshl_b32 s{T3}, s{S_WAVE}, 9
    v_subrev_u32 v250, s{T3}, v250
    s_mul_i32 s{T2}, s{T0}, {2*B_COPY}
    s_add_u32 s{T2}, s{T2}, s{T1}
    s_add_u32 s{T2}, s{T2}, {L_B + 448}
    v_add_u32 v249, s{T2}, v249
    """)


def k_publish(e):
    e(f"v_add_u32 v28, {-8192 & 0xffffffff}, v{V_AQ+4}")
    e.ds("kp", f"ds_read_b128 v[44:47], v28 offset:{L_KVO}")
    attn_reads(e)
    tile_base(e, T0)
    e(f"s_add_u32 s{T1}, s{T0}, {4*TILE}")
    e.wait(ds="kp")
    e.vm("st", f"buffer_store_dwordx4 v[44:47], v{V_KO}, {sr(R_WS,4)}, s{T0} offen{SC}")
    e.wait(ds="ak")
    e.vm("st", f"buffer_store_dwordx4 {vr(kv_regs(0)[0],4)}, v{V_KO}, {sr(R_WS,4)}, s{T1} offen{SC}")


def norms_max(e):
    e.wait(ds="mq")
    for ctl in ("row_shr:1", "row_shr:2"):
        for r in (42, V_MK):
            e(f"v_max_f32_dpp v{r}, v{r}, v{r} {ctl} row_mask:0xf bank_mask:0xf")


def kv_signal(e, sfx):
    e.wait(vm="st")
    e(f"""
    v_mov_b32 v10, {L_CNT}
    v_mov_b32 v11, 1
    s_lshl_b64 exec, 1, 63
    ds_add_rtn_u32 v11, v10, v11
    s_waitcnt lgkmcnt(0)
    v_cmp_eq_u32 vcc, 3, v11
    s_cbranch_vccz L_sig{sfx}
    s_lshl_b32 s{T0}, s{S_BLK}, 7
    s_add_u32 s{T0}, s{T0}, {FL_KV}
    v_mov_b32 v{V_MK-1}, s{S_TAG}
    v_mov_b32 v10, 0
    buffer_store_dwordx2 {vr(V_MK-1,2)}, v10, {sr(R_WS,4)}, s{T0} offen{SC}
    L_sig{sfx}:
    s_mov_b64 exec, -1
    """)
    e.dsq = []


def kv_flag_load(e, text_only=False):
    ld = f"buffer_load_dwordx2 v[12:13], v14, {sr(R_WS,4)}, s{S_KF} offen{SC}"
    if text_only:
        return ld
    e(f"""
    s_lshl_b32 s{S_KF}, s{S_HP}, 11
    s_add_u32 s{S_KF}, s{S_KF}, {FL_KV}
    v_and_b32 v14, 15, v1
    v_cmp_eq_u32 vcc, s{S_J}, v14
    v_xor_b32 v15, 1, v14
    v_cndmask_b32 v14, v14, v15, vcc
    v_lshlrev_b32 v14, 7, v14
    """)
    e.vm("kf", ld)


def kv_wait_and_decide(e):
    for i in range(4):
        e(f"v_mov_b32 v{16+i}, -1")
    of_slot(e, S_XB, T1)
    e(f"s_sub_u32 s{T2}, s{S_XB}, 16384")
    for so in (S_XB, T2):
        e.vm("px", f"buffer_store_dwordx4 v[16:19], v{V_KO}, {sr(R_WS,4)}, s{so} offen{SC}")
    wo_prefetch(e)
    wo_addresses(e)
    kv_flag_load(e)
    poll(e, "L_pollkv", [kv_flag_load(e, True)], [12], first="kf")
    for j in (1, 2):
        kv_load(e, j)
    for ctl in ("row_shr:1", "row_shr:2", "row_shr:4", "row_shr:8"):
        e(f"v_max_f32_dpp v13, v13, v13 {ctl} row_mask:0xf bank_mask:0xf")
    e(f"v_max_f32 v13, v13, v{V_MK}\nv_mul_f32 v11, v42, v13\nv_mov_b32 v10, {L_MISC + 16}\ns_lshl_b64 exec, 1, 63")
    e.ds("dw", "ds_write_b32 v10, v11")
    e("s_mov_b64 exec, -1")
    e.wait(ds="*")


def conv_final(e):
    e(f"""
    s_lshl_b32 s{T1}, s{S_WAVE}, 10
    s_add_u32 s{T1}, s{T1}, {L_P}
    v_add_u32 v2, s{T1}, v{V_KO}
    v_mov_b32 v10, {L_MISC + 16}
    """)
    e.ds("cp", "ds_read_b32 v11, v10")
    for q in range(4):
        e.ds("cp", f"ds_read_b128 {vr(C_A+4*q,4)}, v2 offset:{q*8192}")
    for ch in range(2):
        e.ds("cp", f"ds_read_b128 {vr(C_B+4*ch,4)}, v250 offset:{ch*2*B_COPY}")
    e(f"""
    v_bfe_u32 v2, v1, 1, 3
    v_lshlrev_b32 v2, 7, v2
    v_lshrrev_b32 v59, 4, v1
    v_lshl_add_u32 v2, v59, 5, v2
    v_and_b32 v10, 1, v1
    v_lshl_add_u32 v2, v10, 4, v2
    s_mul_i32 s{T0}, s2, {YSTR}
    s_lshl_b32 s{T1}, s{S_WAVE}, 10
    s_add_u32 s{T0}, s{T0}, s{T1}
    s_add_u32 s{T0}, s{T0}, {WS_Y}
    s_lshl_b32 s{T1}, s{S_D}, 16
    s_and_b32 s{T2}, s{S_D}, 0xffff0000
    v_mov_b32 v10, {BOUND2}
    """)
    of_slot(e, S_XB, S_KF)
    e.wait(ds="*")
    e("s_barrier")
    for ch in range(2):
        for r in range(4):
            e(f"v_add_f32 v{C_A+8*ch+r}, v{C_A+8*ch+r}, v{C_A+8*ch+4+r}")
            e(f"v_lshlrev_b32 v{C_B+4*ch+3-r}, 16, v{C_B+4*ch+3-r}")
        for r in range(4):
            e(f"v_fmac_f32 v{C_A+8*ch+r}, s{T1+ch}, v{C_B+4*ch+3-r}")
    for r in range(4):
        e(f"v_cvt_pk_bf16_f32 v{20+r}, v{C_A+r}, v{C_A+8+r}")
    e.vm("y", f"buffer_store_dwordx4 v[20:23], v2, {sr(R_WS,4)}, s{T0} offen{SC}")
    exchange_addresses(e)
    e("s_setprio 1\nv_cmp_le_f32 vcc, v11, v10")


def wfr(h):
    return 16 + 4 * h if h < 12 else 128 + 4 * (h - 12)


V_XW, V_XC = 56, 58
XR4, XR1 = {1: 49, 2: 50, 3: 51}, {1: 53, 2: 54, 3: 55}


def exchange_addresses(e):
    e(f"s_and_b32 s{T0}, s{S_WAVE}, 4\ns_add_u32 s{T0}, s{T0}, {L_CNT}\nv_mov_b32 v{V_XC}, s{T0}")
    for i in range(4):
        e(f"""
        s_sub_u32 s{T0}, s{S_W4}, {i}
        s_and_b32 s{T0}, s{T0}, 3
        s_mul_i32 s{T2}, s{T0}, 6912
        s_add_u32 s{T2}, s{T2}, {L_O}
        v_add_u32 v{XR4[i] if i else V_XW}, s{T2}, v{V_KO}
        v_lshl_add_u32 v{XR1[i] if i else V_XW+1}, v1, 2, s{T2}
        """)


def lds_count(e, addr, off):
    e(f"v_mov_b32 v10, 1\ns_mov_b64 exec, 1\nds_add_u32 v{addr}, v10 offset:{off}\ns_mov_b64 exec, -1")
    e.dsq.append("cnt")


def lds_spin(e, label, addr, off, low=False):
    low = False
    if low:
        e("s_setprio 0")
    e(f"""
    s_mov_b32 s{S_SPIN}, {SPIN_MAX * 8}
    {label}:
    ds_read_b32 v10, v{addr} offset:{off}
    s_waitcnt lgkmcnt(0)
    v_cmp_gt_u32 vcc, 4, v10
    s_cbranch_vccz {label}_ok
    s_sub_u32 s{S_SPIN}, s{S_SPIN}, 1
    s_cbranch_scc0 {label}
    {label}_ok:
    """)
    if low:
        e("s_setprio 1")
    e.dsq = []


def qk(e, j, i):
    e(f"v_mfma_f32_32x32x16_bf16 {vr(S_BUF+16*i,16)}, {vr(kv_regs(j)[0],4)}, {vr(Q_FR+4*i,4)}, 0")


def pv(e, j, i, half):
    e(f"v_smfmac_f32_32x32x32_bf16 {vr(O_ACC+16*i,16)}, {vr(kv_regs(j)[1+half],4)}, {vr(S_BUF+16*i+8*half,8)}, v{V_IDX}")


def p3_ids(e):
    srd(e, R_W, P_WO, 0x80000)
    e(f"""
    s_lshr_b32 s{T0}, s2, 5
    s_lshl_b32 s{T0}, s{T0}, 3
    s_and_b32 s{S_QT}, s2, 7
    s_add_u32 s{S_QT}, s{S_QT}, s{T0}
    s_bfe_u32 s{S_NQ}, s2, 0x20003
    """)


V_WO = 60


def wo_addresses(e):
    e(f"""
    s_lshl_b32 s{T2}, s{S_NQ}, 2
    s_add_u32 s{T2}, s{T2}, s{S_W4}
    s_lshl_b32 s{T1}, s{T2}, 6
    v_lshrrev_b32 v24, 2, v1
    v_lshlrev_b32 v24, 10, v24
    v_and_b32 v25, 3, v1
    v_lshl_add_u32 v24, v25, 4, v24
    v_add_u32 v{V_WO}, s{T1}, v24
    v_add_u32 v{V_WO+1}, 15360, v{V_WO}
    v_add_u32 v{V_WO+2}, 30720, v{V_WO}
    v_add_u32 v{V_WO+3}, 46080, v{V_WO}
    s_lshl_b32 s{S_WOM}, s{S_W4}, 15
    s_mov_b32 s{S_WOS}, 0
    """)


def wo_stage(e, sfx):
    n = int(OPT.get("wgrp", 4))
    e(f"L_wo{sfx}:\ns_mov_b32 m0, s{S_WOM}\ns_add_u32 s{S_WOM}, s{S_WOM}, 4096")
    for i in range(4):
        e(f"buffer_load_dwordx4 v{V_WO+i}, {sr(R_W,4)}, s{S_WOS} offen offset:{i*1024} lds")
        if n == 2 and i == 1:
            e("s_waitcnt vmcnt(0)")
    e(f"""
    s_add_u32 s{S_WOS}, s{S_WOS}, 65536
    s_cmp_lt_u32 s{S_WOS}, {8*65536}
    s_waitcnt vmcnt(0)
    s_cbranch_scc1 L_wo{sfx}
    """)
    lds_count(e, V_XC, 20)
    flag_store(e, FL_Y, 2, 12, per_wave=True)


def zero_o(e):
    for i in range(4):
        e(f"v_mov_b32 v{32+i}, 0")
    for i in range(4):
        e(f"v_mfma_f32_32x32x16_bf16 {vr(O_ACC+16*i,16)}, v[32:35], v[32:35], 0")


def tile(e, j, i, before_qk=None, cluster=None, with_qk=True, with_prev=True):
    s = S_BUF + 16 * i
    ex = [f"v_exp_f32 v{s+r}, v{s+r}" for r in range(16)]
    if with_qk:
        if before_qk:
            e(before_qk)
        qk(e, j + (i == 3), (i + 1) % 4)
    e("\n".join(ex[0:4]))
    if with_prev:
        pv(e, j - (i == 0), (i + 3) % 4, 1)
    e("\n".join(ex[4:8]))
    if cluster:
        cluster()
    e("\n".join(ex[8:10]))
    pv(e, j, i, 0)
    e("\n".join(ex[10:16]))


def attn_step0(e):
    qk(e, 0, 0)
    for i in range(4):
        tile(e, 0, i, with_qk=i < 3, with_prev=i > 0)


def attn_loop(e):
    b = E()

    def first():
        kv_load(b, 3)
        b(f"s_cmp_eq_u32 s{S_IT}, s{T0}\ns_cbranch_scc1 L_hook\nL_back:")

    for j in (1, 2, 3):
        for i in range(4):
            cl = None if i else first if j == 1 else (lambda j=j: kv_load(b, j + 2))
            tile(b, j, i, ("s_waitcnt vmcnt(40)" if OPT.get("nowait") else "s_waitcnt vmcnt(3)") if i == 3 else None, cl)
    b(f"s_sub_u32 s{S_IT}, s{S_IT}, 16\ns_cbranch_scc0 L_loop")
    check_seq(b.l + b.l, "attention loop")
    e(f"s_or_b32 s{S_IT}, s{S_WAVE}, 4\ns_add_u32 s{S_IT}, s{S_IT}, 64\ns_add_u32 s{T0}, s{S_WAVE}, 64")
    e.wait(vm="kv1")
    qk(e, 1, 0)
    stamp(e, 4)
    e(f"s_nop 10\nL_loop:")
    e("\n".join(b.l))
    e.vmq = []
    pv(e, 3, 3, 1)


def attn_slow(e):
    M = 44
    for i in range(4):
        e(f"v_mov_b32 v{M+i}, 0xff7fffff")
    e.wait(vm="*")
    zero_o(e)
    e(f"s_cmp_lt_u32 s{S_WAVE}, 4\ns_cbranch_scc1 L_nostage")
    wo_stage(e, "s")
    e("L_nostage:")
    e(f"""
    s_mul_i32 s{T2}, s{S_WAVE}, {TILE}
    s_mul_i32 s{T0}, s{S_HP}, {16*BLK}
    s_add_u32 s{T2}, s{T2}, s{T0}
    s_mov_b32 s{T3}, 0
    L_slowloop:
    """)
    kv_load(e, 0, f"s{T2}")
    e.wait(vm="*")
    for i in range(4):
        qk(e, 0, i)
    for i in range(4):
        s, o = S_BUF + 16 * i, O_ACC + 16 * i
        e(f"v_max3_f32 v10, v{s}, v{s+1}, v{M+i}")
        for r in range(2, 16, 2):
            e(f"v_max3_f32 v10, v{s+r}, v{s+r+1}, v10")
        e(f"""
        v_mov_b32 v11, v10
        v_permlane32_swap_b32 v10, v11
        v_max_f32 v10, v10, v11
        v_sub_f32 v11, v{M+i}, v10
        v_exp_f32 v11, v11
        v_mov_b32 v{M+i}, v10
        """)
        for r in range(16):
            e(f"v_sub_f32 v{s+r}, v{s+r}, v10\nv_exp_f32 v{s+r}, v{s+r}")
        for r in range(16):
            e(f"v_mul_f32 v{o+r}, v{o+r}, v11")
        pv(e, 0, i, 0)
        pv(e, 0, i, 1)
    e(f"""
    s_add_u32 s{T2}, s{T2}, {BLK}
    s_add_u32 s{T3}, s{T3}, 1
    s_cmp_lt_u32 s{T3}, 16
    s_nop 7
    s_nop 7
    s_cbranch_scc1 L_slowloop
    """)


def attn_combine(e, slow):
    M, R = 44, S_BUF
    XM = L_O + 4 * 6912
    order = (1, 2, 3)
    sfx = "s" if slow else "f"
    e(f"s_cmp_ge_u32 s{S_WAVE}, 4\ns_cbranch_scc1 L_xf{sfx}_go\ns_nop 3\ns_branch L_xf{sfx}_ok\nL_xf{sfx}_go:")
    lds_spin(e, "L_xf" + sfx, V_XC, 8)
    for i in order:
        o, off = O_ACC + 16 * i, (i - 1) * 2304
        e.ds("xw", f"ds_write_b128 v{V_XW}, {vr(o,4)} offset:{off}")
        e.ds("xw", f"ds_write_b128 v{V_XW}, {vr(o+4,4)} offset:{off+1024}")
        e.ds("xw", f"ds_write_b32 v{V_XW+1}, v{o+8} offset:{off+2048}")
    if slow:
        e(f"s_mul_i32 s{T0}, s{S_WAVE}, 384\ns_add_u32 s{T0}, s{T0}, {XM}\nv_and_b32 v63, 31, v1\nv_lshl_add_u32 v59, v63, 2, s{T0}")
        for i in order:
            e.ds("xw", f"ds_write_b32 v59, v{M+i} offset:{(i-1)*128}")
            e(f"""
            s_sub_u32 s{T0}, s{S_W4}, {i}
            s_and_b32 s{T0}, s{T0}, 3
            s_and_b32 s{T2}, s{S_WAVE}, 4
            s_add_u32 s{T0}, s{T0}, s{T2}
            s_mul_i32 s{T0}, s{T0}, 384
            s_add_u32 s{T0}, s{T0}, {XM}
            v_lshl_add_u32 v{59+i}, v63, 2, s{T0}
            """)
    lds_count(e, V_XC, 4)
    if OPT.get("xprio") and not slow:
        e(f"s_cmp_ge_u32 s{S_WAVE}, 4\ns_cbranch_scc1 L_keepprio\ns_setprio 0\nL_keepprio:")
    lds_spin(e, "L_xs" + sfx, V_XC, 4)
    for n, i in enumerate(order):
        off = (i - 1) * 2304
        e.ds(f"xr{n}", f"ds_read_b128 {vr(R+12*n,4)}, v{XR4[i]} offset:{off}")
        e.ds(f"xr{n}", f"ds_read_b128 {vr(R+12*n+4,4)}, v{XR4[i]} offset:{off+1024}")
        e.ds(f"xr{n}", f"ds_read_b32 v{R+12*n+8}, v{XR1[i]} offset:{off+2048}")
        if slow:
            e.ds(f"xr{n}", f"ds_read_b32 v{R+12*n+9}, v{59+i} offset:{(i-1)*128}")
    if slow:
        e.wait(ds="*")
        e(f"v_max3_f32 v10, v{M}, v{R+9}, v{R+21}\nv_max_f32 v10, v10, v{R+33}")
        for src, base in ((M, O_ACC), (R + 9, R), (R + 21, R + 12), (R + 33, R + 24)):
            e(f"v_sub_f32 v11, v{src}, v10\nv_exp_f32 v11, v11")
            for r in range(9):
                e(f"v_mul_f32 v{base+r}, v{base+r}, v11")
    for n in range(3):
        e.wait(ds=f"xr{n}")
        e(f"v_add_f32 v{O_ACC+8}, v{O_ACC+8}, v{R+12*n+8}")
        for r in range(0, 8, 2):
            e(f"v_pk_add_f32 {vr(O_ACC+r,2)}, {vr(O_ACC+r,2)}, {vr(R+12*n+r,2)}")
    e(f"v_rcp_f32 v{O_ACC+8}, v{O_ACC+8}")
    lds_count(e, V_XC, 12)
    for r in range(0, 8, 2):
        e(f"v_pk_mul_f32 {vr(O_ACC+r,2)}, {vr(O_ACC+r,2)}, {vr(O_ACC+8,2)} op_sel_hi:[1,0]")
    for r in range(4):
        e(f"v_cvt_pk_bf16_f32 v{O_ACC+12+r}, v{O_ACC+2*r}, v{O_ACC+2*r+1}")
    for r in range(4):
        e(f"v_min_u32 v{O_ACC+12+r}, -2, v{O_ACC+12+r}")
    e.vm("o", f"buffer_store_dwordx4 {vr(O_ACC+12,4)}, v{V_KO}, {sr(R_WS,4)}, s{S_XB} offen{SC}")


P_ACC, O_FR, B_T, OP, B_X, B_Y, B_G = 64, 80, 112, 208, 224, 232, 240
V_G, V_CNT, V_TR, V_O2, V_STG, V_OUT, V_FA, V_FB, V_Y = 3, 4, 5, 7, 8, 9, 13, 14, 15
S_YB, S_GB = 96, 97


def tail_addresses(e):
    srd(e, R_OUT, P_OUT, 0x200000)
    e(f"""
    v_and_b32 v24, 7, v1
    v_lshlrev_b32 v24, 15, v24
    v_bfe_u32 v25, v1, 3, 1
    v_lshl_add_u32 v24, v25, 10, v24
    s_bfe_u32 s{T3}, s{S_QT}, 0x20002
    s_lshl_b32 s{T3}, s{T3}, 13
    s_lshr_b32 s{T0}, s{S_QT}, 4
    s_lshl_b32 s{T0}, s{T0}, 11
    s_add_u32 s{T3}, s{T3}, s{T0}
    s_and_b32 s{T0}, s{S_QT}, 3
    s_lshl_b32 s{T0}, s{T0}, 7
    s_add_u32 s{T3}, s{T3}, s{T0}
    s_add_u32 s{T3}, s{T3}, {FL_Y}
    v_bfe_u32 v25, v1, 4, 1
    v_lshl_add_u32 v24, v25, 9, v24
    v_add_u32 v{V_FA}, s{T3}, v24
    s_lshl_b32 s{T2}, s{S_NQ}, 2
    s_add_u32 s{S_ROW}, s{T2}, s{S_WAVE}
    s_lshl_b32 s{T2}, s{S_ROW}, 14
    s_lshr_b32 s{T3}, s{S_QT}, 3
    s_lshl_b32 s{T3}, s{T3}, 7
    s_add_u32 s{T2}, s{T2}, s{T3}
    s_add_u32 s{T2}, s{T2}, {FL_Y}
    v_and_b32 v24, 15, v1
    v_lshl_add_u32 v{V_FB}, v24, 10, s{T2}
    s_lshl_b32 s{T1}, s{S_ROW}, 6
    s_lshl_b32 s{S_MX}, s{S_WAVE}, 15
    v_lshrrev_b32 v26, 5, v1
    v_bfe_u32 v25, v1, 2, 2
    v_lshl_add_u32 v{V_TR}, v26, 2, v25
    v_lshlrev_b32 v{V_TR}, 6, v{V_TR}
    v_bfe_u32 v25, v1, 4, 1
    v_lshl_add_u32 v{V_TR}, v25, 5, v{V_TR}
    v_and_b32 v24, 1, v1
    v_lshl_add_u32 v{V_TR}, v24, 4, v{V_TR}
    v_bfe_u32 v25, v1, 1, 1
    v_lshl_add_u32 v{V_TR}, v25, 3, v{V_TR}
    v_add_u32 v{V_TR}, s{S_MX}, v{V_TR}
    v_add_u32 v{V_O2}, 0x10000, v{V_KO}
    v_add_u32 v{V_STG}, s{S_MX}, v{V_KO}
    v_mov_b32 v{V_CNT}, {L_CNT}
    s_lshl_b32 s{S_KF}, s{S_QT}, 3
    s_add_u32 s{S_KF}, s{S_KF}, s{S_WAVE}
    s_lshl_b32 s{S_KF}, s{S_KF}, 12
    s_add_u32 s{S_KF}, s{S_KF}, {WS_OF}
    s_add_u32 s{S_MODE}, s{S_KF}, 16384
    v_and_b32 v{V_G}, 31, v1
    v_lshlrev_b32 v{V_OUT}, 10, v{V_G}
    v_lshl_add_u32 v{V_OUT}, v26, 4, v{V_OUT}
    s_lshl_b32 s{T2}, s{S_QT}, 15
    s_add_u32 s{T2}, s{T2}, s{T1}
    v_add_u32 v{V_OUT}, s{T2}, v{V_OUT}
    v_bfe_u32 v{V_Y}, v1, 3, 2
    v_lshlrev_b32 v{V_Y}, 5, v{V_Y}
    v_lshl_add_u32 v{V_Y}, v24, 4, v{V_Y}
    v_bfe_u32 v25, v1, 1, 2
    v_lshl_add_u32 v{V_Y}, v25, 2, v{V_Y}
    v_mul_u32_u24 v25, {4*YSTR}, v26
    v_add_u32 v{V_Y}, v25, v{V_Y}
    s_mul_i32 s{S_YB}, s{S_ROW}, {16*YSTR}
    s_lshl_b32 s{S_GB}, s{S_QT}, 7
    s_add_u32 s{S_YB}, s{S_YB}, s{S_GB}
    s_add_u32 s{S_YB}, s{S_YB}, {WS_Y}
    v_lshlrev_b32 v{V_G}, 2, v{V_G}
    s_add_u32 s{S_GB}, s{S_GB}, {WS_G}
    """)


def o_loads(par):
    return [f"buffer_load_dwordx4 {vr(OP+4*i,4)}, v{V_KO}, {sr(R_WS,4)}, s{S_MODE if par else S_KF} offen offset:{i*1024}{SC}" for i in range(4)]


def o_poll(e, par, issued):
    lab = f"L_pollo{par}"
    e(f"s_mov_b32 s{S_SPIN}, {SPIN_MAX}")
    if issued:
        e(f"s_branch {lab}_chk")
    e(f"{lab}:\n" + "\n".join(o_loads(par)))
    e(f"{lab}_chk:\ns_waitcnt vmcnt(0)\nv_max3_u32 v12, v{OP}, v{OP+1}, v{OP+2}")
    e.vmq = []
    for i in range(3, 15, 2):
        e(f"v_max3_u32 v12, v12, v{OP+i}, v{OP+i+1}")
    e(f"""
    v_max_u32 v12, v12, v{OP+15}
    v_cmp_eq_u32 vcc, -1, v12
    s_cbranch_vccz {lab}_ok
    s_sub_u32 s{S_SPIN}, s{S_SPIN}, 1
    s_cbranch_scc0 {lab}
    {lab}_ok:
    """)
    for i in range(4):
        e.ds("ow", f"ds_write_b128 v{V_STG}, {vr(OP+4*i,4)} offset:{par*4096 + i*1024}")


def half_gemm(e, par):
    def rd(b):
        e.ds(f"of{b}", f"ds_read_b128 {vr(O_FR+4*(b%8),4)}, v{V_O2 if b >= 8 else V_KO} offset:{(b//4%2)*32768 + par*4096 + (b%4)*1024}")
    for b in range(8):
        rd(b)
    for b in range(16):
        e.wait(ds=f"of{b}")
        c = "0" if b == 0 and par == 0 else vr(P_ACC, 16)
        e(f"v_mfma_f32_32x32x16_bf16 {vr(P_ACC,16)}, {vr(wfr(2*b+par),4)}, {vr(O_FR+4*(b%8),4)}, {c}")
        if b + 8 < 16:
            rd(b + 8)


def tail(e):
    stamp(e, 13)
    if OPT.get("stamp"):
        e(f"s_cmp_lt_u32 s{S_WAVE}, 4\ns_cbranch_scc1 L_older")
        for k in (14, 15, 16):
            stamp(e, k)
        stamp_flush(e, 17, False)
        e("s_endpgm\nL_older:")
    else:
        e(f"s_cmp_ge_u32 s{S_WAVE}, 4\ns_cbranch_scc1 L_end")
    if not OPT.get("ap"):
        e("s_setprio 0")
    tail_addresses(e)
    e("s_setprio 0")
    fa = f"buffer_load_dword v11, v{V_FA}, {sr(R_WS,4)}, 0 offen{SC}"
    fb = f"buffer_load_dword v6, v{V_FB}, {sr(R_WS,4)}, 0 offen{SC}"
    flag_store(e, FL_Y, 2, 12, per_wave=True)
    e.vm("fa", fa)
    lds_spin(e, "L_ws", V_CNT, 24)

    def frag(h):
        for j in range(2):
            e.ds("wf", f"ds_read_b64_tr_b16 {vr(wfr(h)+2*j,2)}, v{V_TR} offset:{h*1024 + j*512}")
    for h in range(32):
        frag(h)
    poll(e, "L_pollfa", [fa], [11], first="fa")
    for ld in o_loads(0):
        e.vm("op", ld)
    e.vm("fb", fb)
    e.wait(ds="*")
    o_poll(e, 0, True)
    e.wait(ds="*")
    lds_count(e, V_CNT, 20)
    poll(e, "L_pollfb", [fb], [6], first="none")
    for k in range(2):
        e.vm("b", f"buffer_load_dwordx4 {vr(B_X+4*k,4)}, v{V_OUT}, {sr(R_X,4)}, 0 offen offset:{32*k}")
    for jj in range(8):
        e.vm("b", f"buffer_load_dword v{B_Y+jj}, v{V_Y}, {sr(R_WS,4)}, s{S_YB} offen{SC}")
        if jj < 7:
            e(f"s_add_u32 s{S_YB}, s{S_YB}, {YSTR * (5 if jj == 3 else 1)}")
    e.vm("b", f"buffer_load_dword v{B_G}, v{V_G}, {sr(R_WS,4)}, s{S_GB} offen{SC}")
    if not OPT.get("lateg"):
        lds_spin(e, "L_es", V_CNT, 20)
        if OPT.get("hp"):
            e("s_setprio 2")
        half_gemm(e, 0)
        if OPT.get("hp"):
            e("s_setprio 0")
    stamp(e, 14)
    e("s_barrier")
    if not OPT.get("bfirst"):
        for ld in o_loads(1):
            e.vm("op", ld)
    if OPT.get("lateg"):
        half_gemm(e, 0)
    e.wait(vm="b")
    e(f"v_sub_f32 v10, 1.0, v{B_G}")
    for i in range(8):
        e(f"""
        v_lshlrev_b32 v{B_T+2*i}, 16, v{B_X+i}
        v_and_b32 v{B_T+2*i+1}, 0xffff0000, v{B_X+i}
        v_lshlrev_b32 v12, 16, v{B_Y+i}
        v_and_b32 v13, 0xffff0000, v{B_Y+i}
        v_pk_mul_f32 {vr(B_T+2*i,2)}, {vr(B_T+2*i,2)}, v[12:13]
        v_pk_mul_f32 {vr(B_T+2*i,2)}, {vr(B_T+2*i,2)}, v[10:11] op_sel_hi:[1,0]
        """)
    o_poll(e, 1, not OPT.get("bfirst"))
    stamp(e, 15)
    e.wait(ds="*")
    e("s_barrier")
    stamp(e, 16)
    half_gemm(e, 1)
    for r in range(0, 16, 2):
        e(f"v_pk_fma_f32 {vr(P_ACC+r,2)}, {vr(P_ACC+r,2)}, {vr(B_G,2)}, {vr(B_T+r,2)} op_sel_hi:[1,0,1]")
    for r in range(8):
        e(f"v_cvt_pk_bf16_f32 v{O_FR+r}, v{P_ACC+2*r}, v{P_ACC+2*r+1}")
    for k in range(2):
        e.vm("st", f"buffer_store_dwordx4 {vr(O_FR+4*k,4)}, v{V_OUT}, {sr(R_OUT,4)}, 0 offen offset:{32*k}")
    e(f"s_or_b32 s{T0}, s2, s{S_WAVE}\ns_cbranch_scc1 L_nogen\nv_mov_b32 v12, s{S_TAG}\nv_mov_b32 v13, {WS_GEN}\ns_mov_b64 exec, 1")
    e(f"buffer_store_dword v12, v13, {sr(R_WS,4)}, 0 offen sc0 sc1\ns_mov_b64 exec, -1\nL_nogen:")
    stamp_flush(e, 17)


def kernel():
    q = E()
    prologue(q)
    stamp(q, 0)
    e = E()
    staging(q)
    loader_setup(e)
    gemm_v(e)
    stamp(e, 8)
    epi_v(e)
    e.wait(ds="*")
    e("s_barrier")
    stamp(e, 9)
    k_publish(e)
    zero_o(e)
    norms_max(e)
    stamp(e, 28)
    attn_step0(e)
    stamp(e, 29)
    e.wait(vm="h")
    if OPT.get("sigpre"):
        kv_signal(e, "v")
    e("s_barrier")
    stamp(e, 18)
    if OPT.get("sigmid"):
        kv_signal(e, "v")
    p3_ids(e)
    conv_addresses(e)
    if OPT.get("sigpre") or OPT.get("sigmid"):
        e("s_waitcnt lgkmcnt(0)")
    else:
        kv_signal(e, "v")
    e.vmq = []
    kv_wait_and_decide(e)
    stamp(e, 19)
    e("s_barrier\nL_join:")
    gemm_qk(q)
    if OPT.get("qprio"):
        q("s_setprio 0")
    stamp(q, 8)
    epi_qk(q)
    q.wait(ds="*")
    q("s_barrier")
    stamp(q, 9)
    attn_reads(q)
    conv_u_loads(q)
    gate_loads(q)
    zero_o(q)
    q.wait(ds="*")
    stamp(q, 28)
    attn_step0(q)
    stamp(q, 29)
    conv_u_pad(q)
    gate_compute(q)
    q("s_waitcnt lgkmcnt(0)\ns_barrier")
    q.dsq = []
    stamp(q, 18)
    conv_mfma(q)
    stamp(q, 19)
    q("s_barrier")
    for jj in (1, 2):
        kv_load(q, jj)
    q("s_branch L_join\nL_vrole:")
    j = E()
    j.vmq = [f"kv{k}" for k in (1, 2) for _ in range(3)]
    assert e.vmq == j.vmq and q.vmq[-6:] == j.vmq
    stamp(j, 10)
    conv_final(j)
    j("s_cbranch_vccz L_slow" if not OPT.get("slow") else "s_branch L_slow")
    stamp(j, 11)
    attn_loop(j)
    stamp(j, 12)
    attn_combine(j, False)
    j("L_tail:")
    j.vmq = ["o"]
    tail(j)
    j("L_end:\ns_endpgm")
    x = E()
    x("L_hook:")
    wo_stage(x, "f")
    x("s_branch L_back\nL_slow:")
    x.vmq = ["y"]
    attn_slow(x)
    attn_combine(x, True)
    x("L_last:\ns_branch L_tail")
    return q.l + e.l + j.l + x.l


def build():
    hdr = open(__file__.replace("gen/gen_v24.py", "cdna_kernels/" + NAME.replace("_kernel", ".s.ref")).replace("gen_v24.py", "../cdna_kernels/" + NAME.replace("_kernel", ".s.ref"))).read()
    head = hdr[:hdr.index("; @launch")]
    out = [head + f"; @launch grid=(256,1,1) block=(512,1,1) lds={LDS}", '.amdgcn_target "amdgcn-amd-amdhsa--gfx950"', ".text",
           f".globl {NAME}", ".p2align 8", f".type {NAME},@function", f"{NAME}:"]
    body = pad(kernel())
    check_edges(body)
    out += body
    out.append(f""".section .rodata,"a"
.p2align 6
.amdhsa_kernel {NAME}
  .amdhsa_next_free_vgpr 256
  .amdhsa_next_free_sgpr 98
  .amdhsa_accum_offset 256
  .amdhsa_group_segment_fixed_size 0
  .amdhsa_kernarg_size 104
  .amdhsa_user_sgpr_count 2
  .amdhsa_user_sgpr_kernarg_segment_ptr 1
  .amdhsa_system_sgpr_workgroup_id_x 1
  .amdhsa_float_denorm_mode_32 3
.end_amdhsa_kernel""")
    return "\n".join(out) + "\n"


if __name__ == "__main__":
    OPT.update(rot3=True, vclu=True, codepf=True, uf=2, sigpre=True)
    for a in sys.argv[2:]:
        k, _, val = a.partition("=")
        if k.startswith("no_"):
            OPT.pop(k[3:])
        else:
            OPT[k] = val or True
    open(sys.argv[1], "w").write(build())
```

```python
import sys
from asmlib import E, vr, sr, pad, check_seq, check_edges

NAME = "gated_mix__mha_block__ssm_conv_h3__prompt_kernel"
OPT = {}

TILE = 2176
BLK = 32768
WS_KV = 0x0000000
WS_U = 0x1000000
USTR, YSTR = 4096 + 256, 8192 + 256
WS_Y = 0x0900000
WS_OF = 0x0C00000
WS_G = 0x0E00000
WS_FL = 0x0E10000
FL_KV, FL_U, FL_Y = WS_FL, WS_FL + 0x8000, WS_FL + 0x10000
WS_GEN = WS_FL + 0x50000
WS_ST = 0x0F00000
WS_SIZE = 0x1400000
OOB = 0x7F000000

QSCALE = 0x3EB8AA3B
NLOG2E = 0xBFB8AA3B
BOUND2 = 0x44610000
SPIN_MAX = 1 << 18

P_X, P_W, P_WO, P_K, P_V, P_SH, P_H, P_D, P_GW, P_OUT, P_WS = 16, 18, 20, 24, 26, 28, 30, 32, 34, 36, 40
S_WAVE, S_HP, S_J, S_CG, S_TB = 3, 4, 5, 6, 7
T0, T1, T2, T3 = 8, 9, 10, 11
S_MX, S_MW, S_ROW, S_W4 = 12, 13, 14, 15
S_D, S_TAG = 42, 43
R_X, R_W, R_K, R_V, R_SH, R_GW, R_WS, R_H, R_OUT = 44, 48, 52, 56, 60, 64, 68, 72, 76
S_KVB, S_KVN, S_KVO, S_IT, S_WOS, S_XB, S_KF, S_WOM = 88, 89, 90, 91, 92, 93, 94, 95
S_BLK, S_ROT, S_SPIN, S_MODE, S_QT, S_NQ = 80, 81, 82, 83, 84, 85

SLOT = 28672
L_Z = 4 * SLOT
L_A, A_COPY = L_Z, 4160
L_PRE = L_Z
L_STG = L_PRE + 64 * 144
L_Q = L_A + 8 * 4160
L_MISC = L_Q + 8192
L_B, B_COPY = 0, 4576
L_KVO = SLOT
L_P = 2 * SLOT
L_WO, L_O = 0, 131072
LDS = 163840
L_CNT = LDS - 64
XCH = 2560

SC = " sc1"


def srd(e, r, p, size):
    e(f"s_mov_b32 s{r}, s{p}\ns_mov_b32 s{r+1}, s{p+1}\ns_mov_b32 s{r+2}, {size}\ns_mov_b32 s{r+3}, 0x20000")


def stamp(e, i):
    if OPT.get("stamp"):
        e(f"s_memrealtime s[86:87]\ns_waitcnt lgkmcnt(0)\nv_writelane_b32 v255, s86, {i}")
        e(f"s_memtime s[86:87]\ns_waitcnt lgkmcnt(0)\nv_writelane_b32 v255, s86, {32+i}")
        e.dsq = []


def stamp_flush(e, n, dbg=True):
    if OPT.get("stamp"):
        e.wait(vm="*")
        stamp(e, n)
        e(f"""
        s_lshl_b32 s86, s2, 3
        s_add_u32 s86, s86, s{S_WAVE}
        s_lshl_b32 s86, s86, 8
        s_add_u32 s86, s86, {WS_ST}
        v_lshlrev_b32 v11, 2, v1
        buffer_store_dword v255, v11, {sr(R_WS,4)}, s86 offen
        """)
        if OPT.get("dbg") and dbg:
            order = [0, 20, 24, 8, 9, 18, 10, 11, 12, 13, 14, 15, 16, 17]
            e(f"s_cmp_lg_u32 s2, 100\ns_cbranch_scc1 L_nodbg\ns_cmp_lg_u32 s{S_WAVE}, 4\ns_cbranch_scc1 L_nodbg")
            srd(e, R_K, 38, 256)
            e("v_readlane_b32 s87, v255, 0")
            for n, i in enumerate(order):
                e(f"v_readlane_b32 s86, v255, {i}\ns_sub_u32 s86, s86, s87\nv_writelane_b32 v254, s86, {n}")
            e("v_readlane_b32 s86, v255, 44\nv_readlane_b32 s87, v255, 43\ns_sub_u32 s86, s86, s87\nv_writelane_b32 v254, s86, 14")
            e("v_readlane_b32 s86, v255, 49\nv_readlane_b32 s87, v255, 32\ns_sub_u32 s86, s86, s87\nv_writelane_b32 v254, s86, 15")
            e(f"s_mov_b64 exec, 0xffff\nbuffer_store_dword v254, v11, {sr(R_K,4)}, 0 offen\ns_mov_b64 exec, -1\nL_nodbg:")


def deadline(e, key, sfx=""):
    if OPT.get(key):
        e(f"""
        L_dl{key}{sfx}:
        s_memrealtime s[86:87]
        s_waitcnt lgkmcnt(0)
        s_sub_u32 s86, s86, s98
        s_cmp_lt_u32 s86, {OPT[key]}
        s_cbranch_scc1 L_dl{key}{sfx}
        """)
        e.dsq = []


def wave_reduce(e, op, regs):
    for ctl in ("row_shr:1 row_mask:0xf", "row_shr:2 row_mask:0xf", "row_shr:4 row_mask:0xf", "row_shr:8 row_mask:0xf",
                "row_bcast:15 row_mask:0xa", "row_bcast:31 row_mask:0xc"):
        for r in regs:
            e(f"{op}_dpp v{r}, v{r}, v{r} {ctl} bank_mask:0xf")


def poll(e, label, loads, words, first=None):
    e(f"s_mov_b32 s{S_SPIN}, {SPIN_MAX}")
    if first:
        e.wait(vm=first)
        e(f"s_branch {label}_chk")
    e(f"{label}:")
    for ld in loads:
        e(ld)
    e("s_waitcnt vmcnt(0)")
    if first:
        e(f"{label}_chk:")
    else:
        e.vmq = []
    e(f"v_cmp_ne_u32 vcc, s{S_TAG}, v{words[0]}")
    for w in words[1:]:
        e(f"v_cmp_ne_u32 s[{T0}:{T1}], s{S_TAG}, v{w}\ns_or_b64 vcc, vcc, s[{T0}:{T1}]")
    e(f"""
    s_cbranch_vccz {label}_ok
    s_sub_u32 s{S_SPIN}, s{S_SPIN}, 1
    s_cbranch_scc0 {label}
    {label}_ok:
    """)


def flag_store(e, base, idx_sreg, data, per_wave=False, width=4, only=None):
    if only is not None:
        e(f"s_cmp_lg_u32 s{S_WAVE}, {only}\ns_cbranch_scc1 L_nofl{base & 0xfffff:x}")
    if per_wave:
        e(f"s_lshl_b32 s{T0}, s{idx_sreg}, 3\ns_add_u32 s{T0}, s{T0}, s{S_WAVE}\ns_lshl_b32 s{T0}, s{T0}, 7")
    else:
        e(f"s_lshl_b32 s{T0}, s{idx_sreg}, 7")
    e(f"""
    s_add_u32 s{T0}, s{T0}, {base}
    v_mov_b32 v{data}, s{S_TAG}
    v_mov_b32 v2, 0
    s_lshl_b64 exec, 1, 63
    """)
    op = "dword" if width == 4 else "dwordx2"
    st = f"buffer_store_{op} {vr(data, width // 4)}, v2, {sr(R_WS,4)}, s{T0} offen{SC}"
    if only is None:
        e.vm("fl", st)
    else:
        assert not e.vmq, e.vmq
        e(st)
    e("s_mov_b64 exec, -1")
    if only is not None:
        e(f"L_nofl{base & 0xfffff:x}:")


def make_tag(e):
    e.wait(vm="gen")
    e(f"""
    v_readfirstlane_b32 s{S_TAG}, v254
    s_mul_i32 s{S_TAG}, s{S_TAG}, 0x9e3779b1
    s_add_u32 s{S_TAG}, s{S_TAG}, 0x7f4a7c15
    """)


def prologue(e):
    e(f"""
    s_cmp_ge_u32 s2, 256
    s_cbranch_scc1 L_end
    s_load_dwordx16 s[16:31], s[0:1], 0
    s_load_dwordx8 s[32:39], s[0:1], 64
    s_load_dwordx2 s[40:41], s[0:1], 96
    v_lshrrev_b32 v1, 6, v0
    v_readfirstlane_b32 s{S_WAVE}, v1
    v_and_b32 v1, 63, v0
    s_bfe_u32 s{T0}, s2, 0x20001
    s_bfe_u32 s{T1}, s2, 0x20003
    s_lshl_b32 s{S_J}, s{T0}, 2
    s_add_u32 s{S_J}, s{S_J}, s{T1}
    s_and_b32 s{T0}, s2, 1
    s_lshr_b32 s{T2}, s2, 5
    s_lshl_b32 s{S_HP}, s{T0}, 3
    s_add_u32 s{S_HP}, s{S_HP}, s{T2}
    s_lshl_b32 s{T1}, s{T1}, 1
    s_add_u32 s{S_ROT}, s{T2}, s{T1}
    s_lshl_b32 s{S_BLK}, s{S_HP}, 4
    s_add_u32 s{S_BLK}, s{S_BLK}, s{S_J}
    s_and_b32 s{S_CG}, s2, 7
    s_lshr_b32 s{S_TB}, s2, 3
    s_and_b32 s{S_W4}, s{S_WAVE}, 3
    v_mov_b32 v2, {WS_GEN}
    """)
    if any(k.startswith("dl") for k in OPT):
        e("s_memrealtime s[98:99]")
    if OPT.get("codepf"):
        e(f"""
        s_cmp_lg_u32 s{S_WAVE}, 7
        s_cbranch_scc1 L_nocpf
        s_getpc_b64 s[{T0}:{T1}]
        L_pc:
        s_mul_hi_u32 s{T2}, s{S_TB}, 0x55555556
        s_mul_i32 s{T2}, s{T2}, 3
        s_sub_u32 s{T2}, s{S_TB}, s{T2}
        s_lshl_b32 s{T2}, s{T2}, 13
        v_lshl_add_u32 v8, v1, 7, s{T2}
        v_min_u32 v8, L_last - L_pc, v8
        v_mov_b32 v9, s{T1}
        v_add_co_u32 v8, vcc, s{T0}, v8
        v_addc_co_u32 v9, vcc, 0, v9, vcc
        global_load_dword v253, v[8:9], off
        L_nocpf:
        """)
    if OPT.get("rot3"):
        e(f"s_lshr_b32 s{T2}, s2, 5\ns_and_b32 s{T2}, s{T2}, 1\ns_sub_u32 s{S_ROT}, s{S_ROT}, s{T2}")
    if OPT.get("norot"):
        e(f"s_mov_b32 s{S_ROT}, 0")
    if OPT.get("rot2"):
        e(f"s_and_b32 s{S_ROT}, s{S_ROT}, 1\ns_lshl_b32 s{S_ROT}, s{S_ROT}, 2")


V_XD, V_WD = 4, 3
V_ADR = 128
ACC0, ACC1 = 96, 112
FR = 144


def frag_addresses(e):
    e(f"""
    v_and_b32 v56, 31, v1
    v_lshrrev_b32 v57, 5, v1
    v_bfe_u32 v58, v1, 1, 3
    v_xor_b32 v58, v58, v57
    v_lshlrev_b32 v58, 4, v58
    v_lshl_add_u32 v58, v56, 7, v58
    s_lshl_b32 s{T0}, s{S_W4}, 12
    v_add_u32 v{V_ADR}, s{T0}, v58
    v_xor_b32 v{V_ADR+1}, 32, v{V_ADR}
    v_xor_b32 v{V_ADR+2}, 64, v{V_ADR}
    v_xor_b32 v{V_ADR+3}, 0x60, v{V_ADR}
    v_bfe_u32 v58, v1, 2, 2
    v_lshl_add_u32 v58, v57, 3, v58
    v_lshlrev_b32 v58, 6, v58
    v_bfe_u32 v59, v1, 4, 1
    v_lshl_add_u32 v58, v59, 5, v58
    v_and_b32 v59, 3, v1
    v_lshl_add_u32 v58, v59, 3, v58
    v_add_u32 v{V_ADR+4}, 0x4000, v58
    """)
    for i in range(5):
        e(f"v_add_u32 v{V_ADR+5+i}, {2*SLOT}, v{V_ADR+i}")


def chunk_dma_steps(e, c):
    slot = (c % 4) * SLOT

    def x(i):
        if i == 0:
            e(f"s_add_u32 s{T1}, s{S_ROT}, {c}\ns_and_b32 s{T1}, s{T1}, 7\ns_add_u32 m0, s{S_MX}, {slot}\ns_lshl_b32 s{T0}, s{T1}, 7")
        e.vm(f"c{c}", f"buffer_load_dwordx4 v{V_XD+i}, {sr(R_X,4)}, s{T0} offen offset:{i*1024} lds")

    def w(part):
        if part == 0:
            e(f"s_add_u32 m0, s{S_MW}, {slot}\ns_mul_i32 s{T0}, s{T1}, 196608")
        e.vm(f"c{c}", f"buffer_load_dwordx4 v{V_WD}, {sr(R_W,4)}, s{T0} offen offset:{part*1024} lds")

    return [lambda i=i: x(i) for i in range(4)] + [lambda p=p: w(p) for p in range(3)]


def frag_reads(e, c, ks, parts, f):
    a, imm = V_ADR + 5 * ((c % 4) // 2), (c % 2) * SLOT
    e.ds(f"r{c}_{ks}", f"ds_read_b128 {vr(f,4)}, v{a+ks} offset:{imm}")
    for n, part in enumerate(parts):
        for j in range(1 if OPT.get("xhalfw") else 2):
            e.ds(f"r{c}_{ks}", f"ds_read_b64_tr_b16 {vr(f+4+4*n+2*j,2)}, v{a+4} offset:{imm + (ks*3+part)*1024 + j*256}")


SH, GX, GW = 32, 48, 56


def gate_loads(e):
    srd(e, R_GW, P_GW, 1024)
    e(f"""
    s_lshl_b32 s{S_ROW}, s{S_J}, 2
    s_add_u32 s{S_ROW}, s{S_ROW}, s{S_W4}
    s_lshl_b32 s{S_ROW}, s{S_ROW}, 4
    s_add_u32 s{S_ROW}, s{S_ROW}, s{S_HP}
    s_lshl_b32 s{T2}, s{S_ROW}, 11
    """)
    e.vm("gate", f"buffer_load_dwordx4 {vr(GX,4)}, v{V_KO}, {sr(R_X,4)}, s{T2} offen")
    e.vm("gate", f"buffer_load_dwordx4 {vr(GX+4,4)}, v{V_KO}, {sr(R_X,4)}, s{T2} offen offset:1024")
    e.vm("gate", f"buffer_load_dwordx4 {vr(GW,4)}, v{V_KO}, {sr(R_GW,4)}, 0 offen")


def gate_compute(e):
    e.wait(vm="gate")
    for i in range(4):
        for r in range(2):
            e(f"v_dot2_f32_bf16 v{10+r}, v{GX+4*r+i}, v{GW+i}, {'0' if i == 0 else f'v{10+r}'}")
    wave_reduce(e, "v_add_f32", [10, 11])
    for op in (f"v_mul_f32 v{{0}}, {NLOG2E}, v{{0}}", "v_exp_f32 v{0}, v{0}", "v_add_f32 v{0}, 1.0, v{0}", "v_rcp_f32 v{0}, v{0}"):
        e(op.format(10) + "\n" + op.format(11))
    e(f"s_lshl_b32 s{T2}, s{S_ROW}, 3\ns_add_u32 s{T2}, s{T2}, {WS_G}\nv_mov_b32 v2, 0\ns_lshl_b64 exec, 1, 63")
    e.vm("g", f"buffer_store_dwordx2 v[10:11], v2, {sr(R_WS,4)}, s{T2} offen{SC}")
    e("s_mov_b64 exec, -1")


def staging(e):
    e(f"""
    s_cmp_ge_u32 s{S_WAVE}, 4
    s_cbranch_scc1 L_vrole
    s_lshl_b32 s{T0}, s{S_TB}, 2
    s_add_u32 s{T0}, s{T0}, s{S_WAVE}
    s_lshl_b32 s{T0}, s{T0}, 14
    s_lshl_b32 s{T1}, s{S_CG}, 7
    s_add_u32 s{T0}, s{T0}, s{T1}
    v_lshrrev_b32 v54, 3, v1
    v_and_b32 v55, 7, v1
    v_lshlrev_b32 v55, 4, v55
    v_lshl_add_u32 v54, v54, 10, v55
    v_add_u32 v54, s{T0}, v54
    v_add_u32 v53, 0xffffe000, v54
    v_add_u32 v55, 0x2000, v54
    s_mul_i32 s{S_MX}, s{S_WAVE}, 5120
    s_add_u32 s{S_MX}, s{S_MX}, {L_STG}
    v_and_b32 v49, 31, v1
    s_lshl_b32 s{T1}, s{S_CG}, 9
    v_lshl_add_u32 v6, v49, 4, s{T1}
    s_waitcnt lgkmcnt(0)
    """)
    srd(e, R_SH, P_SH, 4096)
    e.vm("pre", f"buffer_load_dwordx4 {vr(SH,4)}, v6, {sr(R_SH,4)}, 0 offen")
    srd(e, R_K, P_K, 0x200000)
    srd(e, R_V, P_V, 0x200000)
    for n, (r, v) in enumerate(((R_K, 53), (R_K, 54), (R_K, 55), (R_V, 54), (R_V, 55))):
        e(f"s_add_u32 m0, s{S_MX}, {n*1024}")
        e.vm("pre", f"buffer_load_dwordx4 v{v}, {sr(r,4)}, 0 offen lds")


def wo_prefetch(e):
    e(f"""
    s_cmp_ge_u32 s{S_WAVE}, 6
    s_cbranch_scc1 L_nowopf
    s_lshr_b32 s{T0}, s2, 5
    s_lshl_b32 s{T0}, s{T0}, 1
    s_add_u32 s{T0}, s{T0}, s{S_W4}
    s_lshl_b32 s{T0}, s{T0}, 15
    s_lshl_b32 s{T1}, s{S_NQ}, 8
    s_add_u32 s{T0}, s{T0}, s{T1}
    v_lshrrev_b32 v10, 1, v1
    v_lshlrev_b32 v10, 10, v10
    v_and_b32 v11, 1, v1
    v_lshl_add_u32 v10, v11, 7, v10
    buffer_load_dword v252, v10, {sr(R_W,4)}, s{T0} offen
    L_nowopf:
    """)


def prepass_compute(e):
    KR, VR, KF, VF, WF, U, PK = 8, 20, 144, 166, 182, 190, 144
    e(f"""
    v_lshrrev_b32 v48, 5, v0
    v_lshrrev_b32 v53, 5, v1
    v_lshlrev_b32 v53, 10, v53
    v_lshl_add_u32 v53, v49, 2, v53
    v_add_u32 v53, s{S_MX}, v53
    """)
    for i in range(11):
        e.ds(f"pk{i//4}", f"ds_read_b32 v{KR+i}, v53 offset:{(5+i)*128}")
    e(f"""
    v_mul_u32_u24 v50, 288, v49
    v_lshlrev_b32 v48, 4, v48
    v_sub_u32 v50, v50, v48
    v_add_u32 v50, {L_PRE + 112}, v50
    """)
    for j in range(4):
        if j % 2 == 0:
            e(f"v_lshlrev_b32 v{WF+2*j}, 16, v{SH+j//2}\nv_lshlrev_b32 v{WF+2*j+1}, 16, v{SH+2+j//2}")
        else:
            e(f"v_and_b32 v{WF+2*j}, 0xffff0000, v{SH+j//2}\nv_and_b32 v{WF+2*j+1}, 0xffff0000, v{SH+2+j//2}")
    for i in range(11):
        if i % 4 == 0:
            e.wait(ds=f"pk{i//4}")
        if i == 4:
            for k in range(8):
                e.ds("pv", f"ds_read_b32 v{VR+k}, v53 offset:{3072 + k*128}")
        e(f"v_lshlrev_b32 v{KF+2*i}, 16, v{KR+i}\nv_and_b32 v{KF+2*i+1}, 0xffff0000, v{KR+i}")
    for j in (3, 2, 1, 0):
        for o in range(8):
            kr = KF + 2 * (o + 3 - j)
            if j == 3:
                e(f"v_pk_mul_f32 {vr(U+2*o,2)}, {vr(kr,2)}, {vr(WF+2*j,2)}")
            else:
                e(f"v_pk_fma_f32 {vr(U+2*o,2)}, {vr(kr,2)}, {vr(WF+2*j,2)}, {vr(U+2*o,2)}")
    e.wait(ds="pv")
    for i in range(8):
        e(f"v_lshlrev_b32 v{VF+2*i}, 16, v{VR+i}\nv_and_b32 v{VF+2*i+1}, 0xffff0000, v{VR+i}")
    for o in range(8):
        e(f"v_pk_mul_f32 {vr(U+2*o,2)}, {vr(U+2*o,2)}, {vr(VF+2*o,2)}")
    for ch in range(2):
        for q in range(4):
            e(f"v_cvt_pk_bf16_f32 v{PK+4*ch+q}, v{U+2*(7-2*q)+ch}, v{U+2*(6-2*q)+ch}")
        e.ds("pw", f"ds_write_b128 v50, {vr(PK+4*ch,4)} offset:{ch*144}")
    e(f"""
    v_lshrrev_b32 v48, 3, v0
    v_and_b32 v52, 7, v0
    v_lshlrev_b32 v52, 4, v52
    v_mul_u32_u24 v51, 144, v48
    v_add_u32 v51, v51, v52
    v_add_u32 v51, {L_PRE}, v51
    v_mul_u32_u24 v48, {USTR}, v48
    v_add_u32 v52, v48, v52
    s_mul_i32 s{S_MW}, s{S_CG}, {64*USTR}
    s_lshl_b32 s{T3}, s{S_TB}, 7
    s_sub_u32 s{S_MW}, s{S_MW}, s{T3}
    s_add_u32 s{S_MW}, s{S_MW}, {WS_U + 3968}
    """)


def prepass_read(e):
    e.ds("pr", "ds_read_b128 v[8:11], v51")
    e.ds("pr", f"ds_read_b128 v[12:15], v51 offset:{32*144}")


def prepass_out(e):
    e(f"s_add_u32 s{T1}, s{S_MW}, {32*USTR}")
    e.wait(ds="pr")
    e.vm("ust", f"buffer_store_dwordx4 v[8:11], v52, {sr(R_WS,4)}, s{S_MW} offen{SC}")
    e.vm("ust", f"buffer_store_dwordx4 v[12:15], v52, {sr(R_WS,4)}, s{T1} offen{SC}")


def of_slot(e, s, tmp):
    e(f"""
    s_lshl_b32 s{s}, s{S_J}, 2
    s_add_u32 s{s}, s{s}, s{S_W4}
    s_lshl_b32 s{s}, s{s}, 1
    s_lshr_b32 s{tmp}, s{S_WAVE}, 2
    s_add_u32 s{s}, s{s}, s{tmp}
    s_lshl_b32 s{s}, s{s}, 4
    s_add_u32 s{s}, s{s}, s{S_HP}
    s_lshl_b32 s{s}, s{s}, 10
    s_add_u32 s{s}, s{s}, {WS_OF}
    """)


UFLAG_AT = 4


def gemm_qk(e):
    srd(e, R_X, P_X, 0x200000)
    srd(e, R_WS, P_WS, WS_SIZE)
    e.vm("gen", f"buffer_load_dword v254, v2, {sr(R_WS,4)}, 0 offen sc0 sc1")
    frag_addresses(e)
    e(f"v_and_b32 v8, 7, v1\nv_lshlrev_b32 v8, 2, v8\nv_add_u32 v8, {L_CNT}, v8\nv_mov_b32 v9, 0")
    e.ds("cnt", "ds_write_b32 v8, v9")
    stamp(e, 1)
    e.wait(vm="pre")
    stamp(e, 2)
    prepass_compute(e)
    make_tag(e)

    attn_addresses(e)
    conv_addresses(e)
    p3_ids(e)
    u_flag_load(e)
    e("s_waitcnt lgkmcnt(0)")
    e.dsq = []
    deadline(e, "dl0")
    stamp(e, 3)

    if OPT.get("qprio"):
        e("s_setprio 1")

    def fr(ks):
        return FR + 12 * ks

    def mm(c, ks):
        e.wait(ds=f"r{c}_{ks}")
        f = fr(ks)
        first = c == 0 and ks == 0
        e(f"v_mfma_f32_32x32x16_bf16 {vr(ACC0,16)}, {vr(f+4,4)}, {vr(f,4)}, {'0' if first else vr(ACC0,16)}")
        e(f"v_mfma_f32_32x32x16_bf16 {vr(ACC1,16)}, {vr(f+8,4)}, {vr(f,4)}, {'0' if first else vr(ACC1,16)}")

    for c in range(8):
        if c == int(OPT.get('uf', UFLAG_AT)):
            e.wait(vm="*")
        if not (OPT.get("xnobar") and c in (5, 6)):
            e("s_barrier")
        if c in (0, 1, 4, 7):
            stamp(e, 20 + c)
        if c == int(OPT.get('uf', UFLAG_AT)):
            flag_store(e, FL_U, 2, 8, only=0)
        if c == 0:
            prepass_read(e)
        frag_reads(e, c, 0, (0, 1), fr(0))
        if c:
            mm(c - 1, 2)
        frag_reads(e, c, 1, (0, 1), fr(1))
        if c:
            mm(c - 1, 3)
        frag_reads(e, c, 2, (0, 1), fr(2))
        mm(c, 0)
        frag_reads(e, c, 3, (0, 1), fr(3))
        mm(c, 1)
        if c == 0:
            prepass_out(e)
    e.vm("uf", u_flag_load(e, True))
    mm(7, 2)
    mm(7, 3)


def loader_setup(e):
    e(f"""
    v_lshrrev_b32 v36, 3, v1
    v_lshrrev_b32 v37, 4, v1
    v_xor_b32 v37, v37, v1
    v_and_b32 v37, 7, v37
    v_lshlrev_b32 v37, 4, v37
    v_lshl_add_u32 v37, v36, 10, v37
    s_lshl_b32 s{T0}, s{S_J}, 2
    s_add_u32 s{T0}, s{T0}, s{S_W4}
    s_lshl_b32 s{T0}, s{T0}, 15
    v_add_u32 v{V_XD}, s{T0}, v37
    v_xor_b32 v{V_XD+1}, 64, v{V_XD}
    v_add_u32 v{V_XD+2}, {16384-2048}, v{V_XD}
    v_add_u32 v{V_XD+3}, {24576-3072}, v{V_XD+1}
    v_add_u32 v{V_XD+1}, {8192-1024}, v{V_XD+1}
    s_lshl_b32 s{S_MX}, s{S_W4}, 12
    v_bfe_u32 v36, v0, 2, 6
    v_mul_u32_u24 v36, 0xc00, v36
    v_and_b32 v37, 3, v1
    v_lshl_add_u32 v36, v37, 4, v36
    s_lshl_b32 s{T0}, s{S_HP}, 6
    v_add_u32 v{V_WD}, s{T0}, v36
    s_mul_i32 s{S_MW}, s{S_W4}, 3072
    s_add_u32 s{S_MW}, s{S_MW}, 16384
    s_waitcnt lgkmcnt(0)
    """)
    srd(e, R_X, P_X, 0x200000)
    srd(e, R_W, P_W, 0x180000)


def conv_h_steps(e):
    e(f"""
    s_lshr_b32 s{T0}, s{S_W4}, 1
    s_lshl_b32 s{T1}, s2, 1
    s_add_u32 s{T1}, s{T1}, s{T0}
    s_lshl_b32 s{T2}, s{T1}, 12
    s_add_u32 s{R_H}, s{P_H}, s{T2}
    s_addc_u32 s{R_H+1}, s{P_H+1}, 0
    s_mov_b32 s{R_H+2}, 4096
    s_mov_b32 s{R_H+3}, 0x20000
    s_and_b32 s{T0}, s{S_W4}, 1
    s_lshl_b32 s{T0}, s{T0}, 3
    v_lshl_add_u32 v8, v1, 4, s{T0}
    v_lshl_add_u32 v9, v1, 2, s{T0}
    s_mul_i32 s{T2}, s{S_W4}, {2*A_COPY}
    """)
    steps = []
    for cc in range(2):
        def big(i, cc=cc):
            if i == 0:
                e(f"v_add_u32 v10, {4+4*cc}, v8\nv_add_u32 v11, {-60+4*cc}, v9\ns_add_u32 m0, s{T2}, {L_A + cc*A_COPY + 64}")
            e.vm("h", f"buffer_load_dwordx4 v10, {sr(R_H,4)}, 0 offen offset:{i*1024} lds")

        def head(cc=cc):
            e(f"s_add_u32 m0, s{T2}, {L_A + cc*A_COPY}\ns_mov_b64 exec, 0xffff")
            e.vm("h", f"buffer_load_dword v11, {sr(R_H,4)}, 0 offen lds")
            e("s_mov_b64 exec, -1")
        steps += [lambda i=i, big=big: big(i) for i in range(4)] + [head]
    return steps


def u_flag_load(e, text_only=False):
    ld = f"buffer_load_dword v28, v29, {sr(R_WS,4)}, s{S_WOS} offen{SC}"
    if text_only:
        return ld
    e(f"""
    v_and_b32 v29, 31, v1
    v_lshlrev_b32 v29, 10, v29
    s_lshr_b32 s{S_WOS}, s2, 5
    s_lshl_b32 s{S_WOS}, s{S_WOS}, 7
    s_add_u32 s{S_WOS}, s{S_WOS}, {FL_U}
    s_lshr_b32 s{T0}, s{S_W4}, 1
    s_lshl_b32 s{S_KF}, s2, 1
    s_add_u32 s{S_KF}, s{S_KF}, s{T0}
    s_mul_i32 s{S_KF}, s{S_KF}, {USTR}
    s_and_b32 s{T0}, s{S_W4}, 1
    s_lshl_b32 s{T0}, s{T0}, 1
    s_sub_u32 s{S_KF}, s{S_KF}, s{T0}
    s_add_u32 s{S_KF}, s{S_KF}, {WS_U + 2}
    """)


def conv_u_loads(e):
    poll(e, "L_pollu", [u_flag_load(e, True)], [28], first="uf")
    e(f"s_mul_i32 s{S_WOS}, s{S_W4}, {B_COPY}\ns_add_u32 m0, s{S_WOS}, {L_B}")
    for i in range(4):
        e.vm("u", f"buffer_load_dwordx4 v{V_KO}, {sr(R_WS,4)}, s{S_KF} offen offset:{i*1024}{SC} lds")


def conv_u_pad(e):
    e.wait(vm="u")
    e(f"""
    v_lshl_add_u32 v12, v1, 3, s{S_WOS}
    v_mov_b32 v10, 0
    v_mov_b32 v11, 0
    s_lshr_b64 exec, -1, 4
    ds_write_b64 v12, v[10:11] offset:{L_B + 4096}
    s_and_b32 s{T0}, s{S_WAVE}, 1
    s_xor_b32 exec_lo, s{T0}, 1
    s_mov_b32 exec_hi, 0
    ds_write_b16 v12, v10 offset:{L_B + 4094}
    s_mov_b64 exec, -1
    """)


def gemm_v(e):
    for c in range(2):
        for st in chunk_dma_steps(e, c):
            st()
    srd(e, R_WS, P_WS, WS_SIZE)
    e.vm("gen", f"buffer_load_dword v254, v2, {sr(R_WS,4)}, 0 offen sc0 sc1")
    stamp(e, 1)
    stamp(e, 2)
    frag_addresses(e)
    for c in range(8):
        e.wait(vm=f"c{c}")
        if c == 0:
            stamp(e, 3)
        if not (OPT.get("xnobar") and c in (5, 6)):
            e("s_barrier")
        if c in (0, 1, 4, 7):
            stamp(e, 20 + c)
        steps = chunk_dma_steps(e, c + 2) if c + 2 < 8 else conv_h_steps(e) if c == 6 else []
        if OPT.get("xnodma") and 2 <= c < 6:
            steps = []
        per = 2 if c == 6 else 1

        def step():
            for _ in range(per):
                if steps:
                    steps.pop(0)()
        if c == 7:
            attn_addresses(e)
        if OPT.get("vclu"):
            while steps:
                step()
        for ks in range(4):
            step()
            frag_reads(e, c, ks, (2,), FR + 8 * ks)
        for ks in range(4):
            e.wait(ds=f"r{c}_{ks}")
            f = FR + 8 * ks
            e(f"v_mfma_f32_32x32x16_bf16 {vr(ACC0,16)}, {vr(f,4)}, {vr(f+4,4)}, {'0' if c + ks == 0 else vr(ACC0,16)}")
            step()
        assert not steps
        if c == 3:
            make_tag(e)


def tile_base(e, s):
    e(f"s_mul_i32 s{s}, s{S_BLK}, {BLK}\ns_mul_i32 s{T3}, s{S_W4}, {TILE}\ns_add_u32 s{s}, s{s}, s{T3}")


V_MK = 41


def epi_qk(e):
    QP, KP = 8, 16
    e(f"""
    v_and_b32 v36, 0x33, v1
    v_bfe_u32 v37, v1, 2, 1
    v_lshl_or_b32 v36, v37, 3, v36
    v_bfe_u32 v37, v1, 3, 1
    v_lshl_or_b32 v36, v37, 2, v36
    v_lshlrev_b32 v36, 4, v36
    s_lshl_b32 s{T2}, s{S_W4}, 11
    v_add_u32 v38, s{T2}, v36
    s_mov_b32 s{S_MX}, {QSCALE}
    s_mov_b32 s{S_MW}, {QSCALE}
    s_lshl_b32 s{T2}, s{S_W4}, 10
    v_lshl_add_u32 v37, v1, 4, s{T2}
    """)
    for i in range(8):
        e(f"v_cvt_pk_bf16_f32 v{KP+i}, v{ACC1+2*i}, v{ACC1+2*i+1}")
    e.ds("ew", f"ds_write_b128 v38, {vr(KP,4)} offset:{L_KVO}")
    e.ds("ew", f"ds_write_b128 v38, {vr(KP+4,4)} offset:{L_KVO + 8192}")
    for i in range(8):
        e(f"v_pk_mul_f32 {vr(ACC0+2*i,2)}, {vr(ACC0+2*i,2)}, s[{S_MX}:{S_MW}]")
    for i in range(8):
        e(f"v_cvt_pk_bf16_f32 v{QP+i}, v{ACC0+2*i}, v{ACC0+2*i+1}")
    e(f"v_add_u32 v37, {L_Q}, v37")
    e.ds("ew", f"ds_write_b128 v37, {vr(QP,4)}")
    e.ds("ew", f"ds_write_b128 v37, {vr(QP+4,4)} offset:4096")
    for i in range(4):
        for d, s in ((42, QP), (43, QP + 4), (V_MK, KP), (44, KP + 4)):
            e(f"v_dot2_f32_bf16 v{d}, v{s+i}, v{s+i}, {'0' if i == 0 else f'v{d}'}")
    e(f"v_max_f32 v42, v42, v43\nv_max_f32 v{V_MK}, v{V_MK}, v44")
    wave_reduce(e, "v_max_f32", [42, V_MK])
    e(f"s_lshl_b32 s{T2}, s{S_W4}, 2\ns_add_u32 s{T2}, s{T2}, {L_MISC}\nv_mov_b32 v37, s{T2}\ns_lshl_b64 exec, 1, 63")
    e.ds("ew", f"ds_write_b32 v37, v42")
    e.ds("ew", f"ds_write_b32 v37, v{V_MK} offset:32")
    e("s_mov_b64 exec, -1")


def epi_v(e):
    VP = 16
    tile_base(e, T0)
    e(f"""
    v_bfe_u32 v38, v1, 4, 1
    v_lshrrev_b32 v37, 5, v1
    v_lshlrev_b32 v37, 8, v37
    v_and_b32 v39, 15, v1
    v_lshl_add_u32 v37, v39, 4, v37
    v_mad_u32_u24 v36, v38, s{S_MX}, v37
    v_lshl_add_u32 v37, v38, 13, v37
    s_lshl_b32 s{T2}, s{S_W4}, 11
    v_add_u32 v37, s{T2}, v37
    v_mul_u32_u24 v39, {4*TILE}, v1
    """.replace(f"v_mad_u32_u24 v36, v38, s{S_MX}, v37", f"s_movk_i32 s{S_MX}, {4*TILE}\nv_mad_u32_u24 v36, v38, s{S_MX}, v37"))
    for i in range(4):
        e(f"v_mov_b32 v{24+i}, 0x3f803f80")
    for i in range(8):
        e(f"v_cvt_pk_bf16_f32 v{VP+i}, v{ACC0+2*i}, v{ACC0+2*i+1}")
    e.vm("st", f"buffer_store_dwordx4 {vr(VP,4)}, v36, {sr(R_WS,4)}, s{T0} offen offset:1024{SC}")
    e.vm("st", f"buffer_store_dwordx4 {vr(VP+4,4)}, v36, {sr(R_WS,4)}, s{T0} offen offset:1536{SC}")
    e("s_mov_b64 exec, 3")
    e.vm("st", f"buffer_store_dwordx4 v[24:27], v39, {sr(R_WS,4)}, s{T0} offen offset:2048{SC}")
    e("s_mov_b64 exec, -1")
    e.ds("ew", f"ds_write_b128 v37, {vr(VP,4)} offset:{L_KVO + 1024}")
    e.ds("ew", f"ds_write_b128 v37, {vr(VP+4,4)} offset:{L_KVO + 1536}")


O_ACC, S_BUF, Q_FR, KV_ST = 64, 128, 192, 208
V_IDX, V_KO, V_V0, V_V1 = 244, 245, 246, 247
NS = 3
C_ACC, C_B = 16, 144
C_A = 32


def ca(a):
    return 48 + 4 * a if a < 4 else 128 + 4 * (a - 4)


def kv_regs(j):
    b = KV_ST + 12 * (j % NS)
    return b, b + 4, b + 8


V_AQ = 64


def attn_addresses(e):
    k, v0, v1 = kv_regs(0)
    e(f"""
    v_lshlrev_b32 v{V_KO}, 4, v1
    v_lshrrev_b32 v60, 5, v1
    v_lshlrev_b32 v60, 4, v60
    v_and_or_b32 v60, v1, 15, v60
    v_lshlrev_b32 v60, 4, v60
    s_lshl_b32 s{T2}, s{S_WAVE}, 11
    v_add_u32 v{V_AQ+4}, s{T2}, v{V_KO}
    v_add_u32 v{V_AQ+5}, s{T2}, v60
    v_and_b32 v61, 27, v1
    v_cmp_eq_u32 vcc, 16, v61
    v_mov_b32 v61, 0x3f803f80
    v_mov_b32 v62, {OOB}
    v_cndmask_b32 v61, 0, v61, vcc
    v_mov_b32 v63, 1024
    v_cndmask_b32 v{V_V0}, v62, v63, vcc
    v_mov_b32 v63, 512
    v_cndmask_b32 v{V_V1}, v62, v63, vcc
    v_and_b32 v62, 16, v1
    v_cmp_eq_u32 vcc, 0, v62
    v_mov_b32 v{V_IDX}, 0xdddddddd
    s_mul_i32 s{T2}, s{S_WAVE}, {TILE}
    v_cndmask_b32 v{V_V0}, v{V_V0}, v60, vcc
    v_cndmask_b32 v{V_V1}, v{V_V1}, v60, vcc
    s_lshl_b32 s{T3}, s{S_BLK}, 15
    s_add_u32 s{S_KVB}, s{T2}, s{T3}
    s_mov_b32 s{S_KVN}, 0
    """)
    for i in range(8):
        e(f"v_mov_b32 v{v0+i}, v61")
    e(f"s_lshr_b32 s{T2}, s{S_WAVE}, 2\ns_lshl_b32 s{T2}, s{T2}, 12\ns_add_u32 s{T2}, s{T2}, {L_Q}")
    for i in range(4):
        e(f"s_add_u32 s{T3}, s{S_W4}, {i}\ns_and_b32 s{T3}, s{T3}, 3\ns_lshl_b32 s{T3}, s{T3}, 10\ns_add_u32 s{T3}, s{T3}, s{T2}")
        e(f"v_add_u32 v{V_AQ+i}, s{T3}, v{V_KO}")
    e(f"v_and_b32 v70, 3, v1\nv_lshlrev_b32 v70, 2, v70\nv_add_u32 v70, {L_MISC}, v70")


def attn_reads(e):
    k, v0, v1 = kv_regs(0)
    e.ds("ak", f"ds_read_b128 {vr(k,4)}, v{V_AQ+4} offset:{L_KVO}")
    for i in range(4):
        e.ds("aq", f"ds_read_b128 {vr(Q_FR+4*i,4)}, v{V_AQ+i}")
    e("s_mov_b32 exec_lo, 0xffff\ns_mov_b32 exec_hi, 0xffff")
    e.ds("aq", f"ds_read_b128 {vr(v0,4)}, v{V_AQ+5} offset:{L_KVO + 1024}")
    e.ds("aq", f"ds_read_b128 {vr(v1,4)}, v{V_AQ+5} offset:{L_KVO + 1536}")
    e("s_mov_b64 exec, -1")
    e.ds("mq", "ds_read_b32 v42, v70")
    e.ds("mq", f"ds_read_b32 v{V_MK}, v70 offset:32")


def kv_load(e, j, soff=None):
    k, v0, v1 = kv_regs(j)
    so = soff or f"s{S_KVO}"
    if not soff:
        e(f"s_add_u32 s{S_KVN}, s{S_KVN}, {BLK}\ns_xor_b32 s{S_KVO}, s{S_KVB}, s{S_KVN}")
    e.vm(f"kv{j}", f"buffer_load_dwordx4 {vr(k,4)}, v{V_KO}, {sr(R_WS,4)}, {so} offen{SC}")
    e.vm(f"kv{j}", f"buffer_load_dwordx4 {vr(v0,4)}, v{V_V0}, {sr(R_WS,4)}, {so} offen offset:1024{SC}")
    e.vm(f"kv{j}", f"buffer_load_dwordx4 {vr(v1,4)}, v{V_V1}, {sr(R_WS,4)}, {so} offen offset:1536{SC}")


def conv_ra(e, tag, a):
    e.ds(f"a{a}{tag}", f"ds_read_b128 {vr(ca(a),4)}, v248 offset:{a*512}")


def conv_rb(e, tag, b):
    e.ds(f"b{b}{tag}", f"ds_read_b128 {vr(C_B+4*b,4)}, v249 offset:{(7-b)*512}")


def conv_body(e, kind):
    if kind != "last":
        e("v_add_u32 v248, 64, v248\nv_add_u32 v249, 64, v249")
    done = []
    for a in range(8):
        for b in range(7 - a, -1, -1):
            e.wait(ds=[f"a{a}", f"b{b}"])
            n = a + b
            c = "0" if kind == "first" and a == 0 else vr(C_ACC + 4 * n, 4)
            e(f"v_mfma_f32_16x16x32_bf16 {vr(C_ACC+4*n,4)}, {vr(ca(a),4)}, {vr(C_B+4*b,4)}, {c}")
            if kind == "last":
                if done and len(e.l) - done[0][1] >= 8:
                    m = done.pop(0)[0]
                    e.ds("pw", f"ds_write_b128 v2, {vr(C_ACC+4*m,4)} offset:{m*1024}")
                if b == 0:
                    done.append((a, len(e.l)))
                continue
            if b == 7 - a:
                conv_rb(e, "n", b)
            if b == 0:
                conv_ra(e, "n", a)
    for m, _ in done:
        e.ds("pw", f"ds_write_b128 v2, {vr(C_ACC+4*m,4)} offset:{m*1024}")
    e.dsq = [t[:-1] if t.endswith("n") else t for t in e.dsq]


def conv_mfma(e):
    for a in range(8):
        conv_rb(e, "", 7 - a)
        conv_ra(e, "", a)
    e(f"s_lshl_b32 s{T1}, s{S_WAVE}, 13\ns_add_u32 s{T1}, s{T1}, {L_P}\nv_add_u32 v2, s{T1}, v{V_KO}\ns_mov_b32 s{T0}, 1")
    conv_body(e, "first")
    q = list(e.dsq)
    b = e.fork()
    conv_body(b, "mid")
    assert b.dsq == q
    b(f"s_sub_u32 s{T0}, s{T0}, 1\ns_cbranch_scc0 L_cvloop")
    body = pad(b.l)
    check_seq(body + body, "conv loop")
    e("L_cvloop:\n" + "\n".join(body))
    conv_body(e, "last")
    e.wait(ds="*")


def conv_addresses(e):
    e(f"""
    s_lshl_b32 s{T2}, s2, 2
    s_load_dword s{S_D}, s[{P_D}:{P_D+1}], s{T2}
    v_and_b32 v60, 3, v1
    v_mul_u32_u24 v248, {A_COPY}, v60
    v_bfe_u32 v60, v1, 2, 2
    v_lshrrev_b32 v61, 4, v1
    v_add_u32 v60, v60, v61
    v_lshl_add_u32 v248, v60, 4, v248
    s_lshr_b32 s{T0}, s{S_W4}, 1
    s_and_b32 s{T1}, s{S_WAVE}, 1
    s_lshl_b32 s{T1}, s{T1}, 8
    s_mul_i32 s{T2}, s{T0}, {4*A_COPY}
    s_add_u32 s{T2}, s{T2}, s{T1}
    s_add_u32 s{T2}, s{T2}, {L_A}
    v_add_u32 v248, s{T2}, v248
    v_and_b32 v60, 1, v1
    v_mul_u32_u24 v249, {B_COPY}, v60
    v_lshl_add_u32 v249, v61, 4, v249
    v_bfe_u32 v60, v1, 1, 3
    v_lshlrev_b32 v60, 6, v60
    v_sub_u32 v249, v249, v60
    v_add_u32 v250, {L_B + 4080}, v249
    v_lshlrev_b32 v62, 5, v61
    v_sub_u32 v250, v250, v62
    s_lshl_b32 s{T3}, s{S_WAVE}, 9
    v_subrev_u32 v250, s{T3}, v250
    s_mul_i32 s{T2}, s{T0}, {2*B_COPY}
    s_add_u32 s{T2}, s{T2}, s{T1}
    s_add_u32 s{T2}, s{T2}, {L_B + 448}
    v_add_u32 v249, s{T2}, v249
    """)


def k_publish(e):
    e(f"v_add_u32 v28, {-8192 & 0xffffffff}, v{V_AQ+4}")
    e.ds("kp", f"ds_read_b128 v[44:47], v28 offset:{L_KVO}")
    attn_reads(e)
    tile_base(e, T0)
    e(f"s_add_u32 s{T1}, s{T0}, {4*TILE}")
    e.wait(ds="kp")
    e.vm("st", f"buffer_store_dwordx4 v[44:47], v{V_KO}, {sr(R_WS,4)}, s{T0} offen{SC}")
    e.wait(ds="ak")
    e.vm("st", f"buffer_store_dwordx4 {vr(kv_regs(0)[0],4)}, v{V_KO}, {sr(R_WS,4)}, s{T1} offen{SC}")


def norms_max(e):
    e.wait(ds="mq")
    for ctl in ("row_shr:1", "row_shr:2"):
        for r in (42, V_MK):
            e(f"v_max_f32_dpp v{r}, v{r}, v{r} {ctl} row_mask:0xf bank_mask:0xf")


def kv_signal(e, sfx):
    e.wait(vm="st")
    e(f"""
    v_mov_b32 v10, {L_CNT}
    v_mov_b32 v11, 1
    s_lshl_b64 exec, 1, 63
    ds_add_rtn_u32 v11, v10, v11
    s_waitcnt lgkmcnt(0)
    v_cmp_eq_u32 vcc, 3, v11
    s_cbranch_vccz L_sig{sfx}
    s_lshl_b32 s{T0}, s{S_BLK}, 7
    s_add_u32 s{T0}, s{T0}, {FL_KV}
    v_mov_b32 v{V_MK-1}, s{S_TAG}
    v_mov_b32 v10, 0
    buffer_store_dwordx2 {vr(V_MK-1,2)}, v10, {sr(R_WS,4)}, s{T0} offen{SC}
    L_sig{sfx}:
    s_mov_b64 exec, -1
    """)
    e.dsq = []


def kv_flag_load(e, text_only=False):
    ld = f"buffer_load_dwordx2 v[12:13], v14, {sr(R_WS,4)}, s{S_KF} offen{SC}"
    if text_only:
        return ld
    e(f"""
    s_lshl_b32 s{S_KF}, s{S_HP}, 11
    s_add_u32 s{S_KF}, s{S_KF}, {FL_KV}
    v_and_b32 v14, 15, v1
    v_cmp_eq_u32 vcc, s{S_J}, v14
    v_xor_b32 v15, 1, v14
    v_cndmask_b32 v14, v14, v15, vcc
    v_lshlrev_b32 v14, 7, v14
    """)
    e.vm("kf", ld)


def kv_wait_and_decide(e):
    for i in range(4):
        e(f"v_mov_b32 v{16+i}, -1")
    of_slot(e, S_XB, T1)
    e(f"s_sub_u32 s{T2}, s{S_XB}, 16384")
    for so in (S_XB, T2):
        e.vm("px", f"buffer_store_dwordx4 v[16:19], v{V_KO}, {sr(R_WS,4)}, s{so} offen{SC}")
    wo_prefetch(e)
    wo_addresses(e)
    kv_flag_load(e)
    poll(e, "L_pollkv", [kv_flag_load(e, True)], [12], first="kf")
    for j in (1, 2):
        kv_load(e, j)
    for ctl in ("row_shr:1", "row_shr:2", "row_shr:4", "row_shr:8"):
        e(f"v_max_f32_dpp v13, v13, v13 {ctl} row_mask:0xf bank_mask:0xf")
    e(f"v_max_f32 v13, v13, v{V_MK}\nv_mul_f32 v11, v42, v13\nv_mov_b32 v10, {L_MISC + 16}\ns_lshl_b64 exec, 1, 63")
    e.ds("dw", "ds_write_b32 v10, v11")
    e("s_mov_b64 exec, -1")
    e.wait(ds="*")


def conv_final(e):
    e(f"""
    s_lshl_b32 s{T1}, s{S_WAVE}, 10
    s_add_u32 s{T1}, s{T1}, {L_P}
    v_add_u32 v2, s{T1}, v{V_KO}
    v_mov_b32 v10, {L_MISC + 16}
    """)
    e.ds("cp", "ds_read_b32 v11, v10")
    for q in range(4):
        e.ds("cp", f"ds_read_b128 {vr(C_A+4*q,4)}, v2 offset:{q*8192}")
    for ch in range(2):
        e.ds("cp", f"ds_read_b128 {vr(C_B+4*ch,4)}, v250 offset:{ch*2*B_COPY}")
    e(f"""
    v_bfe_u32 v2, v1, 1, 3
    v_lshlrev_b32 v2, 7, v2
    v_lshrrev_b32 v59, 4, v1
    v_lshl_add_u32 v2, v59, 5, v2
    v_and_b32 v10, 1, v1
    v_lshl_add_u32 v2, v10, 4, v2
    s_mul_i32 s{T0}, s2, {YSTR}
    s_lshl_b32 s{T1}, s{S_WAVE}, 10
    s_add_u32 s{T0}, s{T0}, s{T1}
    s_add_u32 s{T0}, s{T0}, {WS_Y}
    s_lshl_b32 s{T1}, s{S_D}, 16
    s_and_b32 s{T2}, s{S_D}, 0xffff0000
    v_mov_b32 v10, {BOUND2}
    """)
    of_slot(e, S_XB, S_KF)
    e.wait(ds="*")
    e("s_barrier")
    for ch in range(2):
        for r in range(4):
            e(f"v_add_f32 v{C_A+8*ch+r}, v{C_A+8*ch+r}, v{C_A+8*ch+4+r}")
            e(f"v_lshlrev_b32 v{C_B+4*ch+3-r}, 16, v{C_B+4*ch+3-r}")
        for r in range(4):
            e(f"v_fmac_f32 v{C_A+8*ch+r}, s{T1+ch}, v{C_B+4*ch+3-r}")
    for r in range(4):
        e(f"v_cvt_pk_bf16_f32 v{20+r}, v{C_A+r}, v{C_A+8+r}")
    e.vm("y", f"buffer_store_dwordx4 v[20:23], v2, {sr(R_WS,4)}, s{T0} offen{SC}")
    exchange_addresses(e)
    e("s_setprio 1\nv_cmp_le_f32 vcc, v11, v10")


def wfr(h):
    return 16 + 4 * h if h < 12 else 128 + 4 * (h - 12)


V_XW, V_XC = 56, 58
XR4, XR1 = {1: 49, 2: 50, 3: 51}, {1: 53, 2: 54, 3: 55}


def exchange_addresses(e):
    e(f"s_and_b32 s{T0}, s{S_WAVE}, 4\ns_add_u32 s{T0}, s{T0}, {L_CNT}\nv_mov_b32 v{V_XC}, s{T0}")
    for i in range(4):
        e(f"""
        s_sub_u32 s{T0}, s{S_W4}, {i}
        s_and_b32 s{T0}, s{T0}, 3
        s_mul_i32 s{T2}, s{T0}, 6912
        s_add_u32 s{T2}, s{T2}, {L_O}
        v_add_u32 v{XR4[i] if i else V_XW}, s{T2}, v{V_KO}
        v_lshl_add_u32 v{XR1[i] if i else V_XW+1}, v1, 2, s{T2}
        """)


def lds_count(e, addr, off):
    e(f"v_mov_b32 v10, 1\ns_mov_b64 exec, 1\nds_add_u32 v{addr}, v10 offset:{off}\ns_mov_b64 exec, -1")
    e.dsq.append("cnt")


def lds_spin(e, label, addr, off, low=False):
    low = False
    if low:
        e("s_setprio 0")
    e(f"""
    s_mov_b32 s{S_SPIN}, {SPIN_MAX * 8}
    {label}:
    ds_read_b32 v10, v{addr} offset:{off}
    s_waitcnt lgkmcnt(0)
    v_cmp_gt_u32 vcc, 4, v10
    s_cbranch_vccz {label}_ok
    s_sub_u32 s{S_SPIN}, s{S_SPIN}, 1
    s_cbranch_scc0 {label}
    {label}_ok:
    """)
    if low:
        e("s_setprio 1")
    e.dsq = []


def qk(e, j, i):
    e(f"v_mfma_f32_32x32x16_bf16 {vr(S_BUF+16*i,16)}, {vr(kv_regs(j)[0],4)}, {vr(Q_FR+4*i,4)}, 0")


def pv(e, j, i, half):
    e(f"v_smfmac_f32_32x32x32_bf16 {vr(O_ACC+16*i,16)}, {vr(kv_regs(j)[1+half],4)}, {vr(S_BUF+16*i+8*half,8)}, v{V_IDX}")


def p3_ids(e):
    srd(e, R_W, P_WO, 0x80000)
    e(f"""
    s_lshr_b32 s{T0}, s2, 5
    s_lshl_b32 s{T0}, s{T0}, 3
    s_and_b32 s{S_QT}, s2, 7
    s_add_u32 s{S_QT}, s{S_QT}, s{T0}
    s_bfe_u32 s{S_NQ}, s2, 0x20003
    """)


V_WO = 60


def wo_addresses(e):
    e(f"""
    s_lshl_b32 s{T2}, s{S_NQ}, 2
    s_add_u32 s{T2}, s{T2}, s{S_W4}
    s_lshl_b32 s{T1}, s{T2}, 6
    v_lshrrev_b32 v24, 2, v1
    v_lshlrev_b32 v24, 10, v24
    v_and_b32 v25, 3, v1
    v_lshl_add_u32 v24, v25, 4, v24
    v_add_u32 v{V_WO}, s{T1}, v24
    v_add_u32 v{V_WO+1}, 15360, v{V_WO}
    v_add_u32 v{V_WO+2}, 30720, v{V_WO}
    v_add_u32 v{V_WO+3}, 46080, v{V_WO}
    s_lshl_b32 s{S_WOM}, s{S_W4}, 15
    s_mov_b32 s{S_WOS}, 0
    """)


def wo_stage(e, sfx):
    n = int(OPT.get("wgrp", 4))
    e(f"L_wo{sfx}:\ns_mov_b32 m0, s{S_WOM}\ns_add_u32 s{S_WOM}, s{S_WOM}, 4096")
    for i in range(4):
        e(f"buffer_load_dwordx4 v{V_WO+i}, {sr(R_W,4)}, s{S_WOS} offen offset:{i*1024} lds")
        if n == 2 and i == 1:
            e("s_waitcnt vmcnt(0)")
    e(f"""
    s_add_u32 s{S_WOS}, s{S_WOS}, 65536
    s_cmp_lt_u32 s{S_WOS}, {8*65536}
    s_waitcnt vmcnt(0)
    s_cbranch_scc1 L_wo{sfx}
    """)
    lds_count(e, V_XC, 20)
    flag_store(e, FL_Y, 2, 12, per_wave=True)


def zero_o(e):
    for i in range(4):
        e(f"v_mov_b32 v{32+i}, 0")
    for i in range(4):
        e(f"v_mfma_f32_32x32x16_bf16 {vr(O_ACC+16*i,16)}, v[32:35], v[32:35], 0")


def tile(e, j, i, before_qk=None, cluster=None, with_qk=True, with_prev=True):
    s = S_BUF + 16 * i
    ex = [f"v_exp_f32 v{s+r}, v{s+r}" for r in range(16)]
    if with_qk:
        if before_qk:
            e(before_qk)
        qk(e, j + (i == 3), (i + 1) % 4)
    e("\n".join(ex[0:4]))
    if with_prev:
        pv(e, j - (i == 0), (i + 3) % 4, 1)
    e("\n".join(ex[4:8]))
    if cluster:
        cluster()
    e("\n".join(ex[8:10]))
    pv(e, j, i, 0)
    e("\n".join(ex[10:16]))


def attn_step0(e):
    qk(e, 0, 0)
    for i in range(4):
        tile(e, 0, i, with_qk=i < 3, with_prev=i > 0)


def attn_loop(e):
    b = E()

    def first():
        kv_load(b, 3)
        b(f"s_cmp_eq_u32 s{S_IT}, s{T0}\ns_cbranch_scc1 L_hook\nL_back:")

    for j in (1, 2, 3):
        for i in range(4):
            cl = None if i else first if j == 1 else (lambda j=j: kv_load(b, j + 2))
            tile(b, j, i, ("s_waitcnt vmcnt(40)" if OPT.get("nowait") else "s_waitcnt vmcnt(3)") if i == 3 else None, cl)
    b(f"s_sub_u32 s{S_IT}, s{S_IT}, 16\ns_cbranch_scc0 L_loop")
    check_seq(b.l + b.l, "attention loop")
    e(f"s_or_b32 s{S_IT}, s{S_WAVE}, 4\ns_add_u32 s{S_IT}, s{S_IT}, 64\ns_add_u32 s{T0}, s{S_WAVE}, 64")
    e.wait(vm="kv1")
    qk(e, 1, 0)
    deadline(e, "dl2")
    stamp(e, 4)
    e(f"s_nop 10\nL_loop:")
    e("\n".join(b.l))
    e.vmq = []
    pv(e, 3, 3, 1)


def attn_slow(e):
    M = 44
    for i in range(4):
        e(f"v_mov_b32 v{M+i}, 0xff7fffff")
    e.wait(vm="*")
    zero_o(e)
    e(f"s_cmp_lt_u32 s{S_WAVE}, 4\ns_cbranch_scc1 L_nostage")
    wo_stage(e, "s")
    e("L_nostage:")
    e(f"""
    s_mul_i32 s{T2}, s{S_WAVE}, {TILE}
    s_mul_i32 s{T0}, s{S_HP}, {16*BLK}
    s_add_u32 s{T2}, s{T2}, s{T0}
    s_mov_b32 s{T3}, 0
    L_slowloop:
    """)
    kv_load(e, 0, f"s{T2}")
    e.wait(vm="*")
    for i in range(4):
        qk(e, 0, i)
    for i in range(4):
        s, o = S_BUF + 16 * i, O_ACC + 16 * i
        e(f"v_max3_f32 v10, v{s}, v{s+1}, v{M+i}")
        for r in range(2, 16, 2):
            e(f"v_max3_f32 v10, v{s+r}, v{s+r+1}, v10")
        e(f"""
        v_mov_b32 v11, v10
        v_permlane32_swap_b32 v10, v11
        v_max_f32 v10, v10, v11
        v_sub_f32 v11, v{M+i}, v10
        v_exp_f32 v11, v11
        v_mov_b32 v{M+i}, v10
        """)
        for r in range(16):
            e(f"v_sub_f32 v{s+r}, v{s+r}, v10\nv_exp_f32 v{s+r}, v{s+r}")
        for r in range(16):
            e(f"v_mul_f32 v{o+r}, v{o+r}, v11")
        pv(e, 0, i, 0)
        pv(e, 0, i, 1)
    e(f"""
    s_add_u32 s{T2}, s{T2}, {BLK}
    s_add_u32 s{T3}, s{T3}, 1
    s_cmp_lt_u32 s{T3}, 16
    s_nop 7
    s_nop 7
    s_cbranch_scc1 L_slowloop
    """)


def attn_combine(e, slow):
    M, R = 44, S_BUF
    XM = L_O + 4 * 6912
    order = (1, 2, 3)
    sfx = "s" if slow else "f"
    e(f"s_cmp_ge_u32 s{S_WAVE}, 4\ns_cbranch_scc1 L_xf{sfx}_go\ns_nop 3\ns_branch L_xf{sfx}_ok\nL_xf{sfx}_go:")
    lds_spin(e, "L_xf" + sfx, V_XC, 8)
    for i in order:
        o, off = O_ACC + 16 * i, (i - 1) * 2304
        e.ds("xw", f"ds_write_b128 v{V_XW}, {vr(o,4)} offset:{off}")
        e.ds("xw", f"ds_write_b128 v{V_XW}, {vr(o+4,4)} offset:{off+1024}")
        e.ds("xw", f"ds_write_b32 v{V_XW+1}, v{o+8} offset:{off+2048}")
    if slow:
        e(f"s_mul_i32 s{T0}, s{S_WAVE}, 384\ns_add_u32 s{T0}, s{T0}, {XM}\nv_and_b32 v63, 31, v1\nv_lshl_add_u32 v59, v63, 2, s{T0}")
        for i in order:
            e.ds("xw", f"ds_write_b32 v59, v{M+i} offset:{(i-1)*128}")
            e(f"""
            s_sub_u32 s{T0}, s{S_W4}, {i}
            s_and_b32 s{T0}, s{T0}, 3
            s_and_b32 s{T2}, s{S_WAVE}, 4
            s_add_u32 s{T0}, s{T0}, s{T2}
            s_mul_i32 s{T0}, s{T0}, 384
            s_add_u32 s{T0}, s{T0}, {XM}
            v_lshl_add_u32 v{59+i}, v63, 2, s{T0}
            """)
    lds_count(e, V_XC, 4)
    if OPT.get("xprio") and not slow:
        e(f"s_cmp_ge_u32 s{S_WAVE}, 4\ns_cbranch_scc1 L_keepprio\ns_setprio 0\nL_keepprio:")
    lds_spin(e, "L_xs" + sfx, V_XC, 4)
    for n, i in enumerate(order):
        off = (i - 1) * 2304
        e.ds(f"xr{n}", f"ds_read_b128 {vr(R+12*n,4)}, v{XR4[i]} offset:{off}")
        e.ds(f"xr{n}", f"ds_read_b128 {vr(R+12*n+4,4)}, v{XR4[i]} offset:{off+1024}")
        e.ds(f"xr{n}", f"ds_read_b32 v{R+12*n+8}, v{XR1[i]} offset:{off+2048}")
        if slow:
            e.ds(f"xr{n}", f"ds_read_b32 v{R+12*n+9}, v{59+i} offset:{(i-1)*128}")
    if slow:
        e.wait(ds="*")
        e(f"v_max3_f32 v10, v{M}, v{R+9}, v{R+21}\nv_max_f32 v10, v10, v{R+33}")
        for src, base in ((M, O_ACC), (R + 9, R), (R + 21, R + 12), (R + 33, R + 24)):
            e(f"v_sub_f32 v11, v{src}, v10\nv_exp_f32 v11, v11")
            for r in range(9):
                e(f"v_mul_f32 v{base+r}, v{base+r}, v11")
    for n in range(3):
        e.wait(ds=f"xr{n}")
        e(f"v_add_f32 v{O_ACC+8}, v{O_ACC+8}, v{R+12*n+8}")
        for r in range(0, 8, 2):
            e(f"v_pk_add_f32 {vr(O_ACC+r,2)}, {vr(O_ACC+r,2)}, {vr(R+12*n+r,2)}")
    e(f"v_rcp_f32 v{O_ACC+8}, v{O_ACC+8}")
    lds_count(e, V_XC, 12)
    for r in range(0, 8, 2):
        e(f"v_pk_mul_f32 {vr(O_ACC+r,2)}, {vr(O_ACC+r,2)}, {vr(O_ACC+8,2)} op_sel_hi:[1,0]")
    for r in range(4):
        e(f"v_cvt_pk_bf16_f32 v{O_ACC+12+r}, v{O_ACC+2*r}, v{O_ACC+2*r+1}")
    for r in range(4):
        e(f"v_min_u32 v{O_ACC+12+r}, -2, v{O_ACC+12+r}")
    e.vm("o", f"buffer_store_dwordx4 {vr(O_ACC+12,4)}, v{V_KO}, {sr(R_WS,4)}, s{S_XB} offen{SC}")


P_ACC, O_FR, B_T, OP, B_X, B_Y, B_G = 64, 80, 112, 208, 224, 232, 240
V_G, V_CNT, V_TR, V_O2, V_STG, V_OUT, V_FA, V_FB, V_Y = 3, 4, 5, 7, 8, 9, 13, 14, 15
S_YB, S_GB = 96, 97


def tail_addresses(e):
    srd(e, R_OUT, P_OUT, 0x200000)
    e(f"""
    v_and_b32 v24, 7, v1
    v_lshlrev_b32 v24, 15, v24
    v_bfe_u32 v25, v1, 3, 1
    v_lshl_add_u32 v24, v25, 10, v24
    s_bfe_u32 s{T3}, s{S_QT}, 0x20002
    s_lshl_b32 s{T3}, s{T3}, 13
    s_lshr_b32 s{T0}, s{S_QT}, 4
    s_lshl_b32 s{T0}, s{T0}, 11
    s_add_u32 s{T3}, s{T3}, s{T0}
    s_and_b32 s{T0}, s{S_QT}, 3
    s_lshl_b32 s{T0}, s{T0}, 7
    s_add_u32 s{T3}, s{T3}, s{T0}
    s_add_u32 s{T3}, s{T3}, {FL_Y}
    v_bfe_u32 v25, v1, 4, 1
    v_lshl_add_u32 v24, v25, 9, v24
    v_add_u32 v{V_FA}, s{T3}, v24
    s_lshl_b32 s{T2}, s{S_NQ}, 2
    s_add_u32 s{S_ROW}, s{T2}, s{S_WAVE}
    s_lshl_b32 s{T2}, s{S_ROW}, 14
    s_lshr_b32 s{T3}, s{S_QT}, 3
    s_lshl_b32 s{T3}, s{T3}, 7
    s_add_u32 s{T2}, s{T2}, s{T3}
    s_add_u32 s{T2}, s{T2}, {FL_Y}
    v_and_b32 v24, 15, v1
    v_lshl_add_u32 v{V_FB}, v24, 10, s{T2}
    s_lshl_b32 s{T1}, s{S_ROW}, 6
    s_lshl_b32 s{S_MX}, s{S_WAVE}, 15
    v_lshrrev_b32 v26, 5, v1
    v_bfe_u32 v25, v1, 2, 2
    v_lshl_add_u32 v{V_TR}, v26, 2, v25
    v_lshlrev_b32 v{V_TR}, 6, v{V_TR}
    v_bfe_u32 v25, v1, 4, 1
    v_lshl_add_u32 v{V_TR}, v25, 5, v{V_TR}
    v_and_b32 v24, 1, v1
    v_lshl_add_u32 v{V_TR}, v24, 4, v{V_TR}
    v_bfe_u32 v25, v1, 1, 1
    v_lshl_add_u32 v{V_TR}, v25, 3, v{V_TR}
    v_add_u32 v{V_TR}, s{S_MX}, v{V_TR}
    v_add_u32 v{V_O2}, 0x10000, v{V_KO}
    v_add_u32 v{V_STG}, s{S_MX}, v{V_KO}
    v_mov_b32 v{V_CNT}, {L_CNT}
    s_lshl_b32 s{S_KF}, s{S_QT}, 3
    s_add_u32 s{S_KF}, s{S_KF}, s{S_WAVE}
    s_lshl_b32 s{S_KF}, s{S_KF}, 12
    s_add_u32 s{S_KF}, s{S_KF}, {WS_OF}
    s_add_u32 s{S_MODE}, s{S_KF}, 16384
    v_and_b32 v{V_G}, 31, v1
    v_lshlrev_b32 v{V_OUT}, 10, v{V_G}
    v_lshl_add_u32 v{V_OUT}, v26, 4, v{V_OUT}
    s_lshl_b32 s{T2}, s{S_QT}, 15
    s_add_u32 s{T2}, s{T2}, s{T1}
    v_add_u32 v{V_OUT}, s{T2}, v{V_OUT}
    v_bfe_u32 v{V_Y}, v1, 3, 2
    v_lshlrev_b32 v{V_Y}, 5, v{V_Y}
    v_lshl_add_u32 v{V_Y}, v24, 4, v{V_Y}
    v_bfe_u32 v25, v1, 1, 2
    v_lshl_add_u32 v{V_Y}, v25, 2, v{V_Y}
    v_mul_u32_u24 v25, {4*YSTR}, v26
    v_add_u32 v{V_Y}, v25, v{V_Y}
    s_mul_i32 s{S_YB}, s{S_ROW}, {16*YSTR}
    s_lshl_b32 s{S_GB}, s{S_QT}, 7
    s_add_u32 s{S_YB}, s{S_YB}, s{S_GB}
    s_add_u32 s{S_YB}, s{S_YB}, {WS_Y}
    v_lshlrev_b32 v{V_G}, 2, v{V_G}
    s_add_u32 s{S_GB}, s{S_GB}, {WS_G}
    """)


def o_loads(par):
    return [f"buffer_load_dwordx4 {vr(OP+4*i,4)}, v{V_KO}, {sr(R_WS,4)}, s{S_MODE if par else S_KF} offen offset:{i*1024}{SC}" for i in range(4)]


def o_poll(e, par, issued):
    lab = f"L_pollo{par}"
    e(f"s_mov_b32 s{S_SPIN}, {SPIN_MAX}")
    if issued:
        e(f"s_branch {lab}_chk")
    e(f"{lab}:\n" + "\n".join(o_loads(par)))
    e(f"{lab}_chk:\ns_waitcnt vmcnt(0)\nv_max3_u32 v12, v{OP}, v{OP+1}, v{OP+2}")
    e.vmq = []
    for i in range(3, 15, 2):
        e(f"v_max3_u32 v12, v12, v{OP+i}, v{OP+i+1}")
    e(f"""
    v_max_u32 v12, v12, v{OP+15}
    v_cmp_eq_u32 vcc, -1, v12
    s_cbranch_vccz {lab}_ok
    s_sub_u32 s{S_SPIN}, s{S_SPIN}, 1
    s_cbranch_scc0 {lab}
    {lab}_ok:
    """)
    for i in range(4):
        e.ds("ow", f"ds_write_b128 v{V_STG}, {vr(OP+4*i,4)} offset:{par*4096 + i*1024}")


def half_gemm(e, par):
    def rd(b):
        e.ds(f"of{b}", f"ds_read_b128 {vr(O_FR+4*(b%8),4)}, v{V_O2 if b >= 8 else V_KO} offset:{(b//4%2)*32768 + par*4096 + (b%4)*1024}")
    for b in range(8):
        rd(b)
    for b in range(16):
        e.wait(ds=f"of{b}")
        c = "0" if b == 0 and par == 0 else vr(P_ACC, 16)
        e(f"v_mfma_f32_32x32x16_bf16 {vr(P_ACC,16)}, {vr(wfr(2*b+par),4)}, {vr(O_FR+4*(b%8),4)}, {c}")
        if b + 8 < 16:
            rd(b + 8)


def tail(e):
    stamp(e, 13)
    if OPT.get("stamp"):
        e(f"s_cmp_lt_u32 s{S_WAVE}, 4\ns_cbranch_scc1 L_older")
        for k in (14, 15, 16):
            stamp(e, k)
        stamp_flush(e, 17, False)
        e("s_endpgm\nL_older:")
    else:
        e(f"s_cmp_ge_u32 s{S_WAVE}, 4\ns_cbranch_scc1 L_end")
    if not OPT.get("ap"):
        e("s_setprio 0")
    tail_addresses(e)
    e("s_setprio 0")
    fa = f"buffer_load_dword v11, v{V_FA}, {sr(R_WS,4)}, 0 offen{SC}"
    fb = f"buffer_load_dword v6, v{V_FB}, {sr(R_WS,4)}, 0 offen{SC}"
    flag_store(e, FL_Y, 2, 12, per_wave=True)
    e.vm("fa", fa)
    lds_spin(e, "L_ws", V_CNT, 24)

    def frag(h):
        for j in range(2):
            e.ds("wf", f"ds_read_b64_tr_b16 {vr(wfr(h)+2*j,2)}, v{V_TR} offset:{h*1024 + j*512}")
    for h in range(32):
        frag(h)
    poll(e, "L_pollfa", [fa], [11], first="fa")
    for ld in o_loads(0):
        e.vm("op", ld)
    e.vm("fb", fb)
    e.wait(ds="*")
    o_poll(e, 0, True)
    e.wait(ds="*")
    lds_count(e, V_CNT, 20)
    poll(e, "L_pollfb", [fb], [6], first="none")
    for k in range(2):
        e.vm("b", f"buffer_load_dwordx4 {vr(B_X+4*k,4)}, v{V_OUT}, {sr(R_X,4)}, 0 offen offset:{32*k}")
    for jj in range(8):
        e.vm("b", f"buffer_load_dword v{B_Y+jj}, v{V_Y}, {sr(R_WS,4)}, s{S_YB} offen{SC}")
        if jj < 7:
            e(f"s_add_u32 s{S_YB}, s{S_YB}, {YSTR * (5 if jj == 3 else 1)}")
    e.vm("b", f"buffer_load_dword v{B_G}, v{V_G}, {sr(R_WS,4)}, s{S_GB} offen{SC}")
    if not OPT.get("lateg"):
        lds_spin(e, "L_es", V_CNT, 20)
        if OPT.get("hp"):
            e("s_setprio 2")
        half_gemm(e, 0)
        if OPT.get("hp"):
            e("s_setprio 0")
    stamp(e, 14)
    e("s_barrier")
    if not OPT.get("bfirst"):
        for ld in o_loads(1):
            e.vm("op", ld)
    if OPT.get("lateg"):
        half_gemm(e, 0)
    e.wait(vm="b")
    e(f"v_sub_f32 v10, 1.0, v{B_G}")
    for i in range(8):
        e(f"""
        v_lshlrev_b32 v{B_T+2*i}, 16, v{B_X+i}
        v_and_b32 v{B_T+2*i+1}, 0xffff0000, v{B_X+i}
        v_lshlrev_b32 v12, 16, v{B_Y+i}
        v_and_b32 v13, 0xffff0000, v{B_Y+i}
        v_pk_mul_f32 {vr(B_T+2*i,2)}, {vr(B_T+2*i,2)}, v[12:13]
        v_pk_mul_f32 {vr(B_T+2*i,2)}, {vr(B_T+2*i,2)}, v[10:11] op_sel_hi:[1,0]
        """)
    o_poll(e, 1, not OPT.get("bfirst"))
    stamp(e, 15)
    e.wait(ds="*")
    e("s_barrier")
    deadline(e, "dl3")
    stamp(e, 16)
    half_gemm(e, 1)
    for r in range(0, 16, 2):
        e(f"v_pk_fma_f32 {vr(P_ACC+r,2)}, {vr(P_ACC+r,2)}, {vr(B_G,2)}, {vr(B_T+r,2)} op_sel_hi:[1,0,1]")
    for r in range(8):
        e(f"v_cvt_pk_bf16_f32 v{O_FR+r}, v{P_ACC+2*r}, v{P_ACC+2*r+1}")
    for k in range(2):
        e.vm("st", f"buffer_store_dwordx4 {vr(O_FR+4*k,4)}, v{V_OUT}, {sr(R_OUT,4)}, 0 offen offset:{32*k}")
    e(f"s_or_b32 s{T0}, s2, s{S_WAVE}\ns_cbranch_scc1 L_nogen\nv_mov_b32 v12, s{S_TAG}\nv_mov_b32 v13, {WS_GEN}\ns_mov_b64 exec, 1")
    e(f"buffer_store_dword v12, v13, {sr(R_WS,4)}, 0 offen sc0 sc1\ns_mov_b64 exec, -1\nL_nogen:")
    stamp_flush(e, 17)


def kernel():
    q = E()
    prologue(q)
    stamp(q, 0)
    e = E()
    staging(q)
    loader_setup(e)
    gemm_v(e)
    stamp(e, 8)
    epi_v(e)
    e.wait(ds="*")
    e("s_barrier")
    stamp(e, 9)
    k_publish(e)
    zero_o(e)
    norms_max(e)
    stamp(e, 28)
    attn_step0(e)
    stamp(e, 29)
    e.wait(vm="h")
    if OPT.get("sigpre"):
        kv_signal(e, "v")
    e("s_barrier")
    stamp(e, 18)
    if OPT.get("sigmid"):
        kv_signal(e, "v")
    p3_ids(e)
    conv_addresses(e)
    if OPT.get("sigpre") or OPT.get("sigmid"):
        e("s_waitcnt lgkmcnt(0)")
    else:
        kv_signal(e, "v")
    e.vmq = []
    kv_wait_and_decide(e)
    stamp(e, 19)
    e("s_barrier\nL_join:")
    gemm_qk(q)
    if OPT.get("qprio"):
        q("s_setprio 0")
    deadline(q, "dl1")
    stamp(q, 8)
    epi_qk(q)
    q.wait(ds="*")
    q("s_barrier")
    stamp(q, 9)
    attn_reads(q)
    conv_u_loads(q)
    gate_loads(q)
    zero_o(q)
    q.wait(ds="*")
    stamp(q, 28)
    attn_step0(q)
    stamp(q, 29)
    conv_u_pad(q)
    gate_compute(q)
    q("s_waitcnt lgkmcnt(0)\ns_barrier")
    q.dsq = []
    stamp(q, 18)
    conv_mfma(q)
    stamp(q, 19)
    q("s_barrier")
    for jj in (1, 2):
        kv_load(q, jj)
    q("s_branch L_join\nL_vrole:")
    j = E()
    j.vmq = [f"kv{k}" for k in (1, 2) for _ in range(3)]
    assert e.vmq == j.vmq and q.vmq[-6:] == j.vmq
    stamp(j, 10)
    conv_final(j)
    j("s_cbranch_vccz L_slow" if not OPT.get("slow") else "s_branch L_slow")
    stamp(j, 11)
    attn_loop(j)
    stamp(j, 12)
    attn_combine(j, False)
    j("L_tail:")
    j.vmq = ["o"]
    tail(j)
    j("L_end:\ns_endpgm")
    x = E()
    x("L_hook:")
    wo_stage(x, "f")
    x("s_branch L_back\nL_slow:")
    x.vmq = ["y"]
    attn_slow(x)
    attn_combine(x, True)
    x("L_last:\ns_branch L_tail")
    return q.l + e.l + j.l + x.l


def build():
    hdr = open(__file__.replace("gen/gen_v24.py", "cdna_kernels/" + NAME.replace("_kernel", ".s.ref")).replace("gen_v24.py", "../cdna_kernels/" + NAME.replace("_kernel", ".s.ref"))).read()
    head = hdr[:hdr.index("; @launch")]
    out = [head + f"; @launch grid=(256,1,1) block=(512,1,1) lds={LDS}", '.amdgcn_target "amdgcn-amd-amdhsa--gfx950"', ".text",
           f".globl {NAME}", ".p2align 8", f".type {NAME},@function", f"{NAME}:"]
    body = pad(kernel())
    check_edges(body)
    out += body
    out.append(f""".section .rodata,"a"
.p2align 6
.amdhsa_kernel {NAME}
  .amdhsa_next_free_vgpr 256
  .amdhsa_next_free_sgpr 100
  .amdhsa_accum_offset 256
  .amdhsa_group_segment_fixed_size 0
  .amdhsa_kernarg_size 104
  .amdhsa_user_sgpr_count 2
  .amdhsa_user_sgpr_kernarg_segment_ptr 1
  .amdhsa_system_sgpr_workgroup_id_x 1
  .amdhsa_float_denorm_mode_32 3
.end_amdhsa_kernel""")
    return "\n".join(out) + "\n"


if __name__ == "__main__":
    OPT.update(rot3=True, vclu=True, codepf=True, uf=3, sigpre=True)
    for a in sys.argv[2:]:
        k, _, val = a.partition("=")
        if k.startswith("no_"):
            OPT.pop(k[3:])
        else:
            OPT[k] = val or True
    open(sys.argv[1], "w").write(build())
```

```python
import sys
from asmlib import E, vr, sr, pad, check_seq, check_edges

NAME = "gated_mix__mha_block__ssm_conv_h3__prompt_kernel"
OPT = {}

TILE = 2176
BLK = 32768
WS_KV = 0x0000000
WS_U = 0x1000000
USTR, YSTR = 4096 + 256, 8192 + 256
WS_Y = 0x0900000
WS_OF = 0x0C00000
WS_G = 0x0E00000
WS_FL = 0x0E10000
FL_KV, FL_U, FL_Y = WS_FL, WS_FL + 0x8000, WS_FL + 0x10000
WS_GEN = WS_FL + 0x50000
WS_ST = 0x0F00000
WS_SIZE = 0x1400000
OOB = 0x7F000000

QSCALE = 0x3EB8AA3B
NLOG2E = 0xBFB8AA3B
BOUND2 = 0x44610000
SPIN_MAX = 1 << 18

P_X, P_W, P_WO, P_K, P_V, P_SH, P_H, P_D, P_GW, P_OUT, P_WS = 16, 18, 20, 24, 26, 28, 30, 32, 34, 36, 40
S_WAVE, S_HP, S_J, S_CG, S_TB = 3, 4, 5, 6, 7
T0, T1, T2, T3 = 8, 9, 10, 11
S_MX, S_MW, S_ROW, S_W4 = 12, 13, 14, 15
S_D, S_TAG = 42, 43
R_X, R_W, R_K, R_V, R_SH, R_GW, R_WS, R_H, R_OUT = 44, 48, 52, 56, 60, 64, 68, 72, 76
S_KVB, S_KVN, S_KVO, S_IT, S_WOS, S_XB, S_KF, S_WOM = 88, 89, 90, 91, 92, 93, 94, 95
S_BLK, S_ROT, S_SPIN, S_MODE, S_QT, S_NQ = 80, 81, 82, 83, 84, 85

SLOT = 28672
L_Z = 4 * SLOT
L_A, A_COPY = L_Z, 4160
L_PRE = L_Z
L_STG = L_PRE + 64 * 144
L_Q = L_A + 8 * 4160
L_MISC = L_Q + 8192
L_B, B_COPY = 0, 4576
L_KVO = SLOT
L_P = 2 * SLOT
L_WO, L_O = 0, 131072
LDS = 163840
L_CNT = LDS - 64
XCH = 2560

SC = " sc1"


def srd(e, r, p, size):
    e(f"s_mov_b32 s{r}, s{p}\ns_mov_b32 s{r+1}, s{p+1}\ns_mov_b32 s{r+2}, {size}\ns_mov_b32 s{r+3}, 0x20000")


def stamp(e, i):
    if OPT.get("stamp"):
        e(f"s_memrealtime s[86:87]\ns_waitcnt lgkmcnt(0)\nv_writelane_b32 v255, s86, {i}")
        e(f"s_memtime s[86:87]\ns_waitcnt lgkmcnt(0)\nv_writelane_b32 v255, s86, {32+i}")
        e.dsq = []


def stamp_flush(e, n, dbg=True):
    if OPT.get("stamp"):
        e.wait(vm="*")
        stamp(e, n)
        e(f"""
        s_lshl_b32 s86, s2, 3
        s_add_u32 s86, s86, s{S_WAVE}
        s_lshl_b32 s86, s86, 8
        s_add_u32 s86, s86, {WS_ST}
        v_lshlrev_b32 v11, 2, v1
        buffer_store_dword v255, v11, {sr(R_WS,4)}, s86 offen
        """)
        if OPT.get("dbg") and dbg:
            order = [0, 20, 24, 8, 9, 18, 10, 11, 12, 13, 14, 15, 16, 17]
            e(f"s_cmp_lg_u32 s2, 100\ns_cbranch_scc1 L_nodbg\ns_cmp_lg_u32 s{S_WAVE}, 4\ns_cbranch_scc1 L_nodbg")
            srd(e, R_K, 38, 256)
            e("v_readlane_b32 s87, v255, 0")
            for n, i in enumerate(order):
                e(f"v_readlane_b32 s86, v255, {i}\ns_sub_u32 s86, s86, s87\nv_writelane_b32 v254, s86, {n}")
            e("v_readlane_b32 s86, v255, 44\nv_readlane_b32 s87, v255, 43\ns_sub_u32 s86, s86, s87\nv_writelane_b32 v254, s86, 14")
            e("v_readlane_b32 s86, v255, 49\nv_readlane_b32 s87, v255, 32\ns_sub_u32 s86, s86, s87\nv_writelane_b32 v254, s86, 15")
            e(f"s_mov_b64 exec, 0xffff\nbuffer_store_dword v254, v11, {sr(R_K,4)}, 0 offen\ns_mov_b64 exec, -1\nL_nodbg:")


def deadline(e, key, sfx=""):
    if OPT.get(key):
        e(f"""
        L_dl{key}{sfx}:
        s_memrealtime s[86:87]
        s_waitcnt lgkmcnt(0)
        s_sub_u32 s86, s86, s98
        s_cmp_lt_u32 s86, {OPT[key]}
        s_cbranch_scc1 L_dl{key}{sfx}
        """)
        e.dsq = []


def wave_reduce(e, op, regs):
    for ctl in ("row_shr:1 row_mask:0xf", "row_shr:2 row_mask:0xf", "row_shr:4 row_mask:0xf", "row_shr:8 row_mask:0xf",
                "row_bcast:15 row_mask:0xa", "row_bcast:31 row_mask:0xc"):
        for r in regs:
            e(f"{op}_dpp v{r}, v{r}, v{r} {ctl} bank_mask:0xf")


def poll(e, label, loads, words, first=None):
    e(f"s_mov_b32 s{S_SPIN}, {SPIN_MAX}")
    if first:
        e.wait(vm=first)
        e(f"s_branch {label}_chk")
    e(f"{label}:")
    for ld in loads:
        e(ld)
    e("s_waitcnt vmcnt(0)")
    if first:
        e(f"{label}_chk:")
    else:
        e.vmq = []
    e(f"v_cmp_ne_u32 vcc, s{S_TAG}, v{words[0]}")
    for w in words[1:]:
        e(f"v_cmp_ne_u32 s[{T0}:{T1}], s{S_TAG}, v{w}\ns_or_b64 vcc, vcc, s[{T0}:{T1}]")
    e(f"""
    s_cbranch_vccz {label}_ok
    s_sub_u32 s{S_SPIN}, s{S_SPIN}, 1
    s_cbranch_scc0 {label}
    {label}_ok:
    """)


def flag_store(e, base, idx_sreg, data, per_wave=False, width=4, only=None, free=False):
    if only is not None:
        e(f"s_cmp_lg_u32 s{S_WAVE}, {only}\ns_cbranch_scc1 L_nofl{base & 0xfffff:x}")
    if per_wave:
        e(f"s_lshl_b32 s{T0}, s{idx_sreg}, 3\ns_add_u32 s{T0}, s{T0}, s{S_WAVE}\ns_lshl_b32 s{T0}, s{T0}, 7")
    else:
        e(f"s_lshl_b32 s{T0}, s{idx_sreg}, 7")
    e(f"""
    s_add_u32 s{T0}, s{T0}, {base}
    v_mov_b32 v{data}, s{S_TAG}
    v_mov_b32 v2, 0
    s_lshl_b64 exec, 1, 63
    """)
    op = "dword" if width == 4 else "dwordx2"
    st = f"buffer_store_{op} {vr(data, width // 4)}, v2, {sr(R_WS,4)}, s{T0} offen{SC}"
    if only is None:
        e.vm("fl", st)
    else:
        assert free or not e.vmq, e.vmq
        e(st)
    e("s_mov_b64 exec, -1")
    if only is not None:
        e(f"L_nofl{base & 0xfffff:x}:")


def make_tag(e):
    e.wait(vm="gen")
    e(f"""
    v_readfirstlane_b32 s{S_TAG}, v254
    s_mul_i32 s{S_TAG}, s{S_TAG}, 0x9e3779b1
    s_add_u32 s{S_TAG}, s{S_TAG}, 0x7f4a7c15
    """)


def prologue(e):
    e(f"""
    s_cmp_ge_u32 s2, 256
    s_cbranch_scc1 L_end
    s_load_dwordx16 s[16:31], s[0:1], 0
    s_load_dwordx8 s[32:39], s[0:1], 64
    s_load_dwordx2 s[40:41], s[0:1], 96
    v_lshrrev_b32 v1, 6, v0
    v_readfirstlane_b32 s{S_WAVE}, v1
    v_and_b32 v1, 63, v0
    s_bfe_u32 s{T0}, s2, 0x20001
    s_bfe_u32 s{T1}, s2, 0x20003
    s_lshl_b32 s{S_J}, s{T0}, 2
    s_add_u32 s{S_J}, s{S_J}, s{T1}
    s_and_b32 s{T0}, s2, 1
    s_lshr_b32 s{T2}, s2, 5
    s_lshl_b32 s{S_HP}, s{T0}, 3
    s_add_u32 s{S_HP}, s{S_HP}, s{T2}
    s_lshl_b32 s{T1}, s{T1}, 1
    s_add_u32 s{S_ROT}, s{T2}, s{T1}
    s_lshl_b32 s{S_BLK}, s{S_HP}, 4
    s_add_u32 s{S_BLK}, s{S_BLK}, s{S_J}
    s_and_b32 s{S_CG}, s2, 7
    s_lshr_b32 s{S_TB}, s2, 3
    s_and_b32 s{S_W4}, s{S_WAVE}, 3
    v_mov_b32 v2, {WS_GEN}
    """)
    if any(k.startswith(("dl", "dg")) for k in OPT):
        e("s_memrealtime s[98:99]")
    if OPT.get("codepf"):
        e(f"""
        s_cmp_lg_u32 s{S_WAVE}, 7
        s_cbranch_scc1 L_nocpf
        s_getpc_b64 s[{T0}:{T1}]
        L_pc:
        s_mul_hi_u32 s{T2}, s{S_TB}, 0x55555556
        s_mul_i32 s{T2}, s{T2}, 3
        s_sub_u32 s{T2}, s{S_TB}, s{T2}
        s_lshl_b32 s{T2}, s{T2}, 13
        v_lshl_add_u32 v8, v1, 7, s{T2}
        v_min_u32 v8, L_last - L_pc, v8
        v_mov_b32 v9, s{T1}
        v_add_co_u32 v8, vcc, s{T0}, v8
        v_addc_co_u32 v9, vcc, 0, v9, vcc
        global_load_dword v253, v[8:9], off
        L_nocpf:
        """)
    if OPT.get("rot3"):
        e(f"s_lshr_b32 s{T2}, s2, 5\ns_and_b32 s{T2}, s{T2}, 1\ns_sub_u32 s{S_ROT}, s{S_ROT}, s{T2}")
    if OPT.get("norot"):
        e(f"s_mov_b32 s{S_ROT}, 0")
    if OPT.get("rot2"):
        e(f"s_and_b32 s{S_ROT}, s{S_ROT}, 1\ns_lshl_b32 s{S_ROT}, s{S_ROT}, 2")


V_XD, V_WD = 4, 71
V_ADR = 128
ACC0, ACC1 = 96, 112
FR = 144


def frag_addresses(e):
    e(f"""
    v_and_b32 v56, 31, v1
    v_lshrrev_b32 v57, 5, v1
    v_bfe_u32 v58, v1, 1, 3
    v_xor_b32 v58, v58, v57
    v_lshlrev_b32 v58, 4, v58
    v_lshl_add_u32 v58, v56, 7, v58
    s_lshl_b32 s{T0}, s{S_W4}, 12
    v_add_u32 v{V_ADR}, s{T0}, v58
    v_xor_b32 v{V_ADR+1}, 32, v{V_ADR}
    v_xor_b32 v{V_ADR+2}, 64, v{V_ADR}
    v_xor_b32 v{V_ADR+3}, 0x60, v{V_ADR}
    v_bfe_u32 v58, v1, 2, 2
    v_lshl_add_u32 v58, v57, 3, v58
    v_lshlrev_b32 v58, 6, v58
    v_bfe_u32 v59, v1, 4, 1
    v_lshl_add_u32 v58, v59, 5, v58
    v_and_b32 v59, 3, v1
    v_lshl_add_u32 v58, v59, 3, v58
    v_add_u32 v{V_ADR+4}, 0x4000, v58
    """)
    for i in range(5):
        e(f"v_add_u32 v{V_ADR+5+i}, {2*SLOT}, v{V_ADR+i}")


S_WM, S_WM2 = 96, 97


def chunk_dma_steps(e, c, which='xw'):
    slot = (c % 4) * SLOT

    def x(i):
        if i == 0:
            e(f"s_add_u32 s{T1}, s{S_ROT}, {c}\ns_and_b32 s{T1}, s{T1}, 7\ns_add_u32 m0, s{S_MX}, {slot}\ns_lshl_b32 s{T0}, s{T1}, 7")
        e.vm(f"c{c}", f"buffer_load_dwordx4 v{V_XD+i}, {sr(R_X,4)}, s{T0} offen offset:{i*1024}{' nt' if OPT.get('ntx') else ''} lds")

    def w(part):
        if part == 0:
            e(f"s_add_u32 s{T1}, s{S_ROT}, {c}\ns_and_b32 s{T1}, s{T1}, 7\ns_add_u32 m0, s{S_WM}, {slot}\ns_mul_i32 s{T0}, s{T1}, 196608")
        e.vm(f"c{c}", f"buffer_load_dwordx4 v{V_WD}, {sr(R_W,4)}, s{T0} offen offset:{part*1024}{' nt' if OPT.get('ntx') else ''} lds")

    return [lambda i=i: x(i) for i in range(4)] * ('x' in which) + [lambda p=p: w(p) for p in range(3)] * ('w' in which)


def frag_reads(e, c, ks, parts, f):
    a, imm = V_ADR + 5 * ((c % 4) // 2), (c % 2) * SLOT
    e.ds(f"r{c}_{ks}", f"ds_read_b128 {vr(f,4)}, v{a+ks} offset:{imm}")
    for n, part in enumerate(parts):
        for j in range(1 if OPT.get("xhalfw") else 2):
            e.ds(f"r{c}_{ks}", f"ds_read_b64_tr_b16 {vr(f+4+4*n+2*j,2)}, v{a+4} offset:{imm + (ks*3+part)*1024 + j*256}")


SH, GX, GW = 32, 48, 56


def gate_loads(e):
    srd(e, R_GW, P_GW, 1024)
    e(f"""
    s_lshl_b32 s{S_ROW}, s{S_J}, 2
    s_add_u32 s{S_ROW}, s{S_ROW}, s{S_W4}
    s_lshl_b32 s{S_ROW}, s{S_ROW}, 4
    s_add_u32 s{S_ROW}, s{S_ROW}, s{S_HP}
    s_lshl_b32 s{T2}, s{S_ROW}, 11
    """)
    e.vm("gate", f"buffer_load_dwordx4 {vr(GX,4)}, v{V_KO}, {sr(R_X,4)}, s{T2} offen")
    e.vm("gate", f"buffer_load_dwordx4 {vr(GX+4,4)}, v{V_KO}, {sr(R_X,4)}, s{T2} offen offset:1024")
    e.vm("gate", f"buffer_load_dwordx4 {vr(GW,4)}, v{V_KO}, {sr(R_GW,4)}, 0 offen")


def gate_compute(e):
    e.wait(vm="gate")
    for i in range(4):
        for r in range(2):
            e(f"v_dot2_f32_bf16 v{10+r}, v{GX+4*r+i}, v{GW+i}, {'0' if i == 0 else f'v{10+r}'}")
    wave_reduce(e, "v_add_f32", [10, 11])
    for op in (f"v_mul_f32 v{{0}}, {NLOG2E}, v{{0}}", "v_exp_f32 v{0}, v{0}", "v_add_f32 v{0}, 1.0, v{0}", "v_rcp_f32 v{0}, v{0}"):
        e(op.format(10) + "\n" + op.format(11))
    e(f"s_lshl_b32 s{T2}, s{S_ROW}, 3\ns_add_u32 s{T2}, s{T2}, {WS_G}\nv_mov_b32 v2, 0\ns_lshl_b64 exec, 1, 63")
    e.vm("g", f"buffer_store_dwordx2 v[10:11], v2, {sr(R_WS,4)}, s{T2} offen{SC}")
    e("s_mov_b64 exec, -1")


def staging(e):
    e(f"""
    s_cmp_ge_u32 s{S_WAVE}, 4
    s_cbranch_scc1 L_vrole
    s_lshl_b32 s{T0}, s{S_TB}, 2
    s_add_u32 s{T0}, s{T0}, s{S_WAVE}
    s_lshl_b32 s{T0}, s{T0}, 14
    s_lshl_b32 s{T1}, s{S_CG}, 7
    s_add_u32 s{T0}, s{T0}, s{T1}
    v_lshrrev_b32 v54, 3, v1
    v_and_b32 v55, 7, v1
    v_lshlrev_b32 v55, 4, v55
    v_lshl_add_u32 v54, v54, 10, v55
    v_add_u32 v54, s{T0}, v54
    v_add_u32 v53, 0xffffe000, v54
    v_add_u32 v55, 0x2000, v54
    s_mul_i32 s{S_MX}, s{S_WAVE}, 5120
    s_add_u32 s{S_MX}, s{S_MX}, {L_STG}
    v_and_b32 v49, 31, v1
    s_lshl_b32 s{T1}, s{S_CG}, 9
    v_lshl_add_u32 v6, v49, 4, s{T1}
    s_waitcnt lgkmcnt(0)
    """)
    srd(e, R_SH, P_SH, 4096)
    e.vm("pre", f"buffer_load_dwordx4 {vr(SH,4)}, v6, {sr(R_SH,4)}, 0 offen")
    srd(e, R_K, P_K, 0x200000)
    srd(e, R_V, P_V, 0x200000)
    for n, (r, v) in enumerate(((R_K, 53), (R_K, 54), (R_K, 55), (R_V, 54), (R_V, 55))):
        e(f"s_add_u32 m0, s{S_MX}, {n*1024}")
        e.vm("pre", f"buffer_load_dwordx4 v{v}, {sr(r,4)}, 0 offen lds")


def wo_prefetch(e):
    e(f"""
    s_cmp_ge_u32 s{S_WAVE}, 6
    s_cbranch_scc1 L_nowopf
    s_lshr_b32 s{T0}, s2, 5
    s_lshl_b32 s{T0}, s{T0}, 1
    s_add_u32 s{T0}, s{T0}, s{S_W4}
    s_lshl_b32 s{T0}, s{T0}, 15
    s_lshl_b32 s{T1}, s{S_NQ}, 8
    s_add_u32 s{T0}, s{T0}, s{T1}
    v_lshrrev_b32 v10, 1, v1
    v_lshlrev_b32 v10, 10, v10
    v_and_b32 v11, 1, v1
    v_lshl_add_u32 v10, v11, 7, v10
    buffer_load_dword v252, v10, {sr(R_W,4)}, s{T0} offen
    L_nowopf:
    """)


def prepass_compute(e):
    KR, VR, KF, VF, WF, U, PK = 8, 20, 144, 166, 182, 190, 144
    e(f"""
    v_lshrrev_b32 v48, 5, v0
    v_lshrrev_b32 v53, 5, v1
    v_lshlrev_b32 v53, 10, v53
    v_lshl_add_u32 v53, v49, 2, v53
    v_add_u32 v53, s{S_MX}, v53
    """)
    for i in range(11):
        e.ds(f"pk{i//4}", f"ds_read_b32 v{KR+i}, v53 offset:{(5+i)*128}")
    e(f"""
    v_mul_u32_u24 v50, 288, v49
    v_lshlrev_b32 v48, 4, v48
    v_sub_u32 v50, v50, v48
    v_add_u32 v50, {L_PRE + 112}, v50
    """)
    for j in range(4):
        if j % 2 == 0:
            e(f"v_lshlrev_b32 v{WF+2*j}, 16, v{SH+j//2}\nv_lshlrev_b32 v{WF+2*j+1}, 16, v{SH+2+j//2}")
        else:
            e(f"v_and_b32 v{WF+2*j}, 0xffff0000, v{SH+j//2}\nv_and_b32 v{WF+2*j+1}, 0xffff0000, v{SH+2+j//2}")
    for i in range(11):
        if i % 4 == 0:
            e.wait(ds=f"pk{i//4}")
        if i == 4:
            for k in range(8):
                e.ds("pv", f"ds_read_b32 v{VR+k}, v53 offset:{3072 + k*128}")
        e(f"v_lshlrev_b32 v{KF+2*i}, 16, v{KR+i}\nv_and_b32 v{KF+2*i+1}, 0xffff0000, v{KR+i}")
    for j in (3, 2, 1, 0):
        for o in range(8):
            kr = KF + 2 * (o + 3 - j)
            if j == 3:
                e(f"v_pk_mul_f32 {vr(U+2*o,2)}, {vr(kr,2)}, {vr(WF+2*j,2)}")
            else:
                e(f"v_pk_fma_f32 {vr(U+2*o,2)}, {vr(kr,2)}, {vr(WF+2*j,2)}, {vr(U+2*o,2)}")
    e.wait(ds="pv")
    for i in range(8):
        e(f"v_lshlrev_b32 v{VF+2*i}, 16, v{VR+i}\nv_and_b32 v{VF+2*i+1}, 0xffff0000, v{VR+i}")
    for o in range(8):
        e(f"v_pk_mul_f32 {vr(U+2*o,2)}, {vr(U+2*o,2)}, {vr(VF+2*o,2)}")
    for ch in range(2):
        for q in range(4):
            e(f"v_cvt_pk_bf16_f32 v{PK+4*ch+q}, v{U+2*(7-2*q)+ch}, v{U+2*(6-2*q)+ch}")
        e.ds("pw", f"ds_write_b128 v50, {vr(PK+4*ch,4)} offset:{ch*144}")
    e(f"""
    v_lshrrev_b32 v48, 3, v0
    v_and_b32 v52, 7, v0
    v_lshlrev_b32 v52, 4, v52
    v_mul_u32_u24 v51, 144, v48
    v_add_u32 v51, v51, v52
    v_add_u32 v51, {L_PRE}, v51
    v_mul_u32_u24 v48, {USTR}, v48
    v_add_u32 v52, v48, v52
    s_mul_i32 s{S_MW}, s{S_CG}, {64*USTR}
    s_lshl_b32 s{T3}, s{S_TB}, 7
    s_sub_u32 s{S_MW}, s{S_MW}, s{T3}
    s_add_u32 s{S_MW}, s{S_MW}, {WS_U + 3968}
    """)


def prepass_read(e):
    e.ds("pr", "ds_read_b128 v[8:11], v51")
    e.ds("pr", f"ds_read_b128 v[12:15], v51 offset:{32*144}")


def prepass_out(e):
    e(f"s_add_u32 s{T1}, s{S_MW}, {32*USTR}")
    e.wait(ds="pr")
    e.vm("ust", f"buffer_store_dwordx4 v[8:11], v52, {sr(R_WS,4)}, s{S_MW} offen{SC}")
    e.vm("ust", f"buffer_store_dwordx4 v[12:15], v52, {sr(R_WS,4)}, s{T1} offen{SC}")


def of_slot(e, s, tmp):
    e(f"""
    s_lshl_b32 s{s}, s{S_J}, 2
    s_add_u32 s{s}, s{s}, s{S_W4}
    s_lshl_b32 s{s}, s{s}, 1
    s_lshr_b32 s{tmp}, s{S_WAVE}, 2
    s_add_u32 s{s}, s{s}, s{tmp}
    s_lshl_b32 s{s}, s{s}, 4
    s_add_u32 s{s}, s{s}, s{S_HP}
    s_lshl_b32 s{s}, s{s}, 10
    s_add_u32 s{s}, s{s}, {WS_OF}
    """)


UFLAG_AT = 4


def gemm_qk(e):
    srd(e, R_X, P_X, 0x200000)
    srd(e, R_WS, P_WS, WS_SIZE)
    e.vm("gen", f"buffer_load_dword v254, v2, {sr(R_WS,4)}, 0 offen sc0 sc1")
    frag_addresses(e)
    w_setup(e)
    srd(e, R_W, P_W, 0x180000)
    e(f"v_and_b32 v8, 7, v1\nv_lshlrev_b32 v8, 2, v8\nv_add_u32 v8, {L_CNT}, v8\nv_mov_b32 v9, 0")
    e.ds("cnt", "ds_write_b32 v8, v9")
    stamp(e, 1)
    e.wait(vm="pre")
    stamp(e, 2)
    prepass_compute(e)
    make_tag(e)

    attn_addresses(e)
    conv_addresses(e)
    u_flag_load(e)
    e("s_waitcnt lgkmcnt(0)")
    e.dsq = []
    if OPT.get("dg3"):
        srd(e, R_OUT, 38, 256)
        e(f"s_not_b32 s86, s98\nv_mov_b32 v252, s86\nv_mov_b32 v253, 0\ns_mov_b64 exec, 1")
        e(f"buffer_atomic_umax v252, v253, {sr(R_OUT,4)}, 0 offen sc1\ns_mov_b64 exec, -1\ns_waitcnt vmcnt(0)")
    deadline(e, "dl0")
    stamp(e, 3)

    if OPT.get("qprio"):
        e("s_setprio 1")

    def fr(ks):
        return FR + 12 * ks

    def mm(c, ks):
        e.wait(ds=f"r{c}_{ks}")
        f = fr(ks)
        first = c == 0 and ks == 0
        e(f"v_mfma_f32_32x32x16_bf16 {vr(ACC0,16)}, {vr(f+4,4)}, {vr(f,4)}, {'0' if first else vr(ACC0,16)}")
        e(f"v_mfma_f32_32x32x16_bf16 {vr(ACC1,16)}, {vr(f+8,4)}, {vr(f,4)}, {'0' if first else vr(ACC1,16)}")

    for c in range(8):
        if c == int(OPT.get('uf', UFLAG_AT)):
            e.wait(vm="ust")
        e.wait(vm=f"c{c}")
        if c and OPT.get("d3"):
            e.wait(ds=f"r{c-1}_3")
        if not (OPT.get("xnobar") and c in (5, 6)):
            e("s_barrier")
        if c in (0, 1, 4, 7) or OPT.get('allst'):
            stamp(e, 20 + c)
        if c == int(OPT.get('uf', UFLAG_AT)):
            flag_store(e, FL_U, 2, 8, only=0, free=True)
        if c == 0:
            prepass_read(e)
        if c + 2 < 8 and OPT.get("wpos") == "0":
            for st in chunk_dma_steps(e, c + 2, "w"):
                st()
        frag_reads(e, c, 0, (0, 1), fr(0))
        if c:
            mm(c - 1, 2)
        frag_reads(e, c, 1, (0, 1), fr(1))
        if c:
            mm(c - 1, 3)
        if c + 2 < 8 and OPT.get("wpos", "1") == "1":
            for st in chunk_dma_steps(e, c + 2, "w"):
                st()
        frag_reads(e, c, 2, (0, 1), fr(2))
        mm(c, 0)
        frag_reads(e, c, 3, (0, 1), fr(3))
        mm(c, 1)
        if c + 2 < 8 and OPT.get("wpos") == "2":
            for st in chunk_dma_steps(e, c + 2, "w"):
                st()
        if c == 0:
            prepass_out(e)
    e.vm("uf", u_flag_load(e, True))
    mm(7, 2)
    mm(7, 3)


def w_setup(e):
    e(f"""
    v_bfe_u32 v36, v0, 2, 6
    v_mul_u32_u24 v36, 0xc00, v36
    v_and_b32 v37, 3, v1
    v_lshl_add_u32 v36, v37, 4, v36
    s_lshl_b32 s{T0}, s{S_HP}, 6
    v_add_u32 v{V_WD}, s{T0}, v36
    s_mul_i32 s{S_WM}, s{S_W4}, 3072
    s_add_u32 s{S_WM}, s{S_WM}, 16384
    """)


def loader_setup(e):
    w_setup(e)
    e(f"""
    v_lshrrev_b32 v36, 3, v1
    v_lshrrev_b32 v37, 4, v1
    v_xor_b32 v37, v37, v1
    v_and_b32 v37, 7, v37
    v_lshlrev_b32 v37, 4, v37
    v_lshl_add_u32 v37, v36, 10, v37
    s_lshl_b32 s{T0}, s{S_J}, 2
    s_add_u32 s{T0}, s{T0}, s{S_W4}
    s_lshl_b32 s{T0}, s{T0}, 15
    v_add_u32 v{V_XD}, s{T0}, v37
    v_xor_b32 v{V_XD+1}, 64, v{V_XD}
    v_add_u32 v{V_XD+2}, {16384-2048}, v{V_XD}
    v_add_u32 v{V_XD+3}, {24576-3072}, v{V_XD+1}
    v_add_u32 v{V_XD+1}, {8192-1024}, v{V_XD+1}
    s_lshl_b32 s{S_MX}, s{S_W4}, 12
    s_waitcnt lgkmcnt(0)
    """)
    srd(e, R_X, P_X, 0x200000)
    srd(e, R_W, P_W, 0x180000)


def conv_h_steps(e):
    e(f"""
    s_lshr_b32 s{T0}, s{S_W4}, 1
    s_lshl_b32 s{T1}, s2, 1
    s_add_u32 s{T1}, s{T1}, s{T0}
    s_lshl_b32 s{T2}, s{T1}, 12
    s_add_u32 s{R_H}, s{P_H}, s{T2}
    s_addc_u32 s{R_H+1}, s{P_H+1}, 0
    s_mov_b32 s{R_H+2}, 4096
    s_mov_b32 s{R_H+3}, 0x20000
    s_and_b32 s{T0}, s{S_W4}, 1
    s_lshl_b32 s{T0}, s{T0}, 3
    v_lshl_add_u32 v8, v1, 4, s{T0}
    v_lshl_add_u32 v9, v1, 2, s{T0}
    s_mul_i32 s{T2}, s{S_W4}, {2*A_COPY}
    """)
    steps = []
    for cc in range(2):
        def big(i, cc=cc):
            if i == 0:
                e(f"v_add_u32 v10, {4+4*cc}, v8\nv_add_u32 v11, {-60+4*cc}, v9\ns_add_u32 m0, s{T2}, {L_A + cc*A_COPY + 64}")
            e.vm("h", f"buffer_load_dwordx4 v10, {sr(R_H,4)}, 0 offen offset:{i*1024} lds")

        def head(cc=cc):
            e(f"s_add_u32 m0, s{T2}, {L_A + cc*A_COPY}\ns_mov_b64 exec, 0xffff")
            e.vm("h", f"buffer_load_dword v11, {sr(R_H,4)}, 0 offen lds")
            e("s_mov_b64 exec, -1")
        steps += [lambda i=i, big=big: big(i) for i in range(4)] + [head]
    return steps


def u_flag_load(e, text_only=False):
    ld = f"buffer_load_dword v28, v29, {sr(R_WS,4)}, s{S_WOS} offen{SC}"
    if text_only:
        return ld
    e(f"""
    v_and_b32 v29, 31, v1
    v_lshlrev_b32 v29, 10, v29
    s_lshr_b32 s{S_WOS}, s2, 5
    s_lshl_b32 s{S_WOS}, s{S_WOS}, 7
    s_add_u32 s{S_WOS}, s{S_WOS}, {FL_U}
    s_lshr_b32 s{T0}, s{S_W4}, 1
    s_lshl_b32 s{S_KF}, s2, 1
    s_add_u32 s{S_KF}, s{S_KF}, s{T0}
    s_mul_i32 s{S_KF}, s{S_KF}, {USTR}
    s_and_b32 s{T0}, s{S_W4}, 1
    s_lshl_b32 s{T0}, s{T0}, 1
    s_sub_u32 s{S_KF}, s{S_KF}, s{T0}
    s_add_u32 s{S_KF}, s{S_KF}, {WS_U + 2}
    """)


def conv_u_loads(e):
    poll(e, "L_pollu", [u_flag_load(e, True)], [28], first="uf")
    e(f"s_mul_i32 s{S_WOS}, s{S_W4}, {B_COPY}\ns_add_u32 m0, s{S_WOS}, {L_B}")
    for i in range(4):
        e.vm("u", f"buffer_load_dwordx4 v{V_KO}, {sr(R_WS,4)}, s{S_KF} offen offset:{i*1024}{SC} lds")


def conv_u_pad(e):
    e.wait(vm="u")
    e(f"""
    v_lshl_add_u32 v12, v1, 3, s{S_WOS}
    v_mov_b32 v10, 0
    v_mov_b32 v11, 0
    s_lshr_b64 exec, -1, 4
    ds_write_b64 v12, v[10:11] offset:{L_B + 4096}
    s_and_b32 s{T0}, s{S_WAVE}, 1
    s_xor_b32 exec_lo, s{T0}, 1
    s_mov_b32 exec_hi, 0
    ds_write_b16 v12, v10 offset:{L_B + 4094}
    s_mov_b64 exec, -1
    """)


def gemm_v(e):
    for c in range(3 if OPT.get("d3") else 2):
        for st in chunk_dma_steps(e, c):
            st()
    srd(e, R_WS, P_WS, WS_SIZE)
    e.vm("gen", f"buffer_load_dword v254, v2, {sr(R_WS,4)}, 0 offen sc0 sc1")
    stamp(e, 1)
    stamp(e, 2)
    frag_addresses(e)
    for c in range(8):
        e.wait(vm=f"c{c}")
        if c == 0:
            stamp(e, 3)
        if not (OPT.get("xnobar") and c in (5, 6)):
            e("s_barrier")
        if c in (0, 1, 4, 7) or OPT.get('allst'):
            stamp(e, 20 + c)
        steps = chunk_dma_steps(e, c + 2, 'x') if c + 2 < 8 else conv_h_steps(e) if c == 6 else []
        if OPT.get("d3"):
            steps = chunk_dma_steps(e, c + 3) if c + 3 < 8 else conv_h_steps(e) if c == int(OPT["d3"]) else []
        if OPT.get("xnodma") and 2 <= c < 6:
            steps = []
        per = 2 if c == 6 else 1

        def step():
            for _ in range(per):
                if steps:
                    steps.pop(0)()
        if c == 7:
            attn_addresses(e)
        if OPT.get("vclu"):
            while steps:
                step()
        for ks in range(4):
            step()
            frag_reads(e, c, ks, (2,), FR + 8 * ks)
        for ks in range(4):
            e.wait(ds=f"r{c}_{ks}")
            f = FR + 8 * ks
            e(f"v_mfma_f32_32x32x16_bf16 {vr(ACC0,16)}, {vr(f,4)}, {vr(f+4,4)}, {'0' if c + ks == 0 else vr(ACC0,16)}")
            step()
        assert not steps
        if c == 3:
            make_tag(e)


def tile_base(e, s):
    e(f"s_mul_i32 s{s}, s{S_BLK}, {BLK}\ns_mul_i32 s{T3}, s{S_W4}, {TILE}\ns_add_u32 s{s}, s{s}, s{T3}")


V_MK = 41


def epi_qk(e):
    QP, KP = 8, 16
    e(f"""
    v_and_b32 v36, 0x33, v1
    v_bfe_u32 v37, v1, 2, 1
    v_lshl_or_b32 v36, v37, 3, v36
    v_bfe_u32 v37, v1, 3, 1
    v_lshl_or_b32 v36, v37, 2, v36
    v_lshlrev_b32 v36, 4, v36
    s_lshl_b32 s{T2}, s{S_W4}, 11
    v_add_u32 v38, s{T2}, v36
    s_mov_b32 s{S_MX}, {QSCALE}
    s_mov_b32 s{S_MW}, {QSCALE}
    s_lshl_b32 s{T2}, s{S_W4}, 10
    v_lshl_add_u32 v37, v1, 4, s{T2}
    """)
    for i in range(8):
        e(f"v_cvt_pk_bf16_f32 v{KP+i}, v{ACC1+2*i}, v{ACC1+2*i+1}")
    e.ds("ew", f"ds_write_b128 v38, {vr(KP,4)} offset:{L_KVO}")
    e.ds("ew", f"ds_write_b128 v38, {vr(KP+4,4)} offset:{L_KVO + 8192}")
    for i in range(8):
        e(f"v_pk_mul_f32 {vr(ACC0+2*i,2)}, {vr(ACC0+2*i,2)}, s[{S_MX}:{S_MW}]")
    for i in range(8):
        e(f"v_cvt_pk_bf16_f32 v{QP+i}, v{ACC0+2*i}, v{ACC0+2*i+1}")
    e(f"v_add_u32 v37, {L_Q}, v37")
    e.ds("ew", f"ds_write_b128 v37, {vr(QP,4)}")
    e.ds("ew", f"ds_write_b128 v37, {vr(QP+4,4)} offset:4096")
    for i in range(4):
        for d, s in ((42, QP), (43, QP + 4), (V_MK, KP), (44, KP + 4)):
            e(f"v_dot2_f32_bf16 v{d}, v{s+i}, v{s+i}, {'0' if i == 0 else f'v{d}'}")
    e(f"v_max_f32 v42, v42, v43\nv_max_f32 v{V_MK}, v{V_MK}, v44")
    wave_reduce(e, "v_max_f32", [42, V_MK])
    e(f"s_lshl_b32 s{T2}, s{S_W4}, 2\ns_add_u32 s{T2}, s{T2}, {L_MISC}\nv_mov_b32 v37, s{T2}\ns_lshl_b64 exec, 1, 63")
    e.ds("ew", f"ds_write_b32 v37, v42")
    e.ds("ew", f"ds_write_b32 v37, v{V_MK} offset:32")
    e("s_mov_b64 exec, -1")


def epi_v(e):
    VP = 16
    tile_base(e, T0)
    e(f"""
    v_bfe_u32 v38, v1, 4, 1
    v_lshrrev_b32 v37, 5, v1
    v_lshlrev_b32 v37, 8, v37
    v_and_b32 v39, 15, v1
    v_lshl_add_u32 v37, v39, 4, v37
    v_mad_u32_u24 v36, v38, s{S_MX}, v37
    v_lshl_add_u32 v37, v38, 13, v37
    s_lshl_b32 s{T2}, s{S_W4}, 11
    v_add_u32 v37, s{T2}, v37
    v_mul_u32_u24 v39, {4*TILE}, v1
    """.replace(f"v_mad_u32_u24 v36, v38, s{S_MX}, v37", f"s_movk_i32 s{S_MX}, {4*TILE}\nv_mad_u32_u24 v36, v38, s{S_MX}, v37"))
    for i in range(4):
        e(f"v_mov_b32 v{24+i}, 0x3f803f80")
    for i in range(8):
        e(f"v_cvt_pk_bf16_f32 v{VP+i}, v{ACC0+2*i}, v{ACC0+2*i+1}")
    e.vm("st", f"buffer_store_dwordx4 {vr(VP,4)}, v36, {sr(R_WS,4)}, s{T0} offen offset:1024{SC}")
    e.vm("st", f"buffer_store_dwordx4 {vr(VP+4,4)}, v36, {sr(R_WS,4)}, s{T0} offen offset:1536{SC}")
    e("s_mov_b64 exec, 3")
    e.vm("st", f"buffer_store_dwordx4 v[24:27], v39, {sr(R_WS,4)}, s{T0} offen offset:2048{SC}")
    e("s_mov_b64 exec, -1")
    e.ds("ew", f"ds_write_b128 v37, {vr(VP,4)} offset:{L_KVO + 1024}")
    e.ds("ew", f"ds_write_b128 v37, {vr(VP+4,4)} offset:{L_KVO + 1536}")


O_ACC, S_BUF, Q_FR, KV_ST = 64, 128, 192, 208
V_IDX, V_KO, V_V0, V_V1 = 244, 245, 246, 247
NS = 3
C_ACC, C_B = 16, 144
C_A = 32


def ca(a):
    return 48 + 4 * a if a < 4 else 128 + 4 * (a - 4)


def kv_regs(j):
    b = KV_ST + 12 * (j % NS)
    return b, b + 4, b + 8


V_AQ = 64


def attn_addresses(e):
    k, v0, v1 = kv_regs(0)
    e(f"""
    v_lshlrev_b32 v{V_KO}, 4, v1
    v_lshrrev_b32 v60, 5, v1
    v_lshlrev_b32 v60, 4, v60
    v_and_or_b32 v60, v1, 15, v60
    v_lshlrev_b32 v60, 4, v60
    s_lshl_b32 s{T2}, s{S_WAVE}, 11
    v_add_u32 v{V_AQ+4}, s{T2}, v{V_KO}
    v_add_u32 v{V_AQ+5}, s{T2}, v60
    v_and_b32 v61, 27, v1
    v_cmp_eq_u32 vcc, 16, v61
    v_mov_b32 v61, 0x3f803f80
    v_mov_b32 v62, {OOB}
    v_cndmask_b32 v61, 0, v61, vcc
    v_mov_b32 v63, 1024
    v_cndmask_b32 v{V_V0}, v62, v63, vcc
    v_mov_b32 v63, 512
    v_cndmask_b32 v{V_V1}, v62, v63, vcc
    v_and_b32 v62, 16, v1
    v_cmp_eq_u32 vcc, 0, v62
    v_mov_b32 v{V_IDX}, 0xdddddddd
    s_mul_i32 s{T2}, s{S_WAVE}, {TILE}
    v_cndmask_b32 v{V_V0}, v{V_V0}, v60, vcc
    v_cndmask_b32 v{V_V1}, v{V_V1}, v60, vcc
    s_lshl_b32 s{T3}, s{S_BLK}, 15
    s_add_u32 s{S_KVB}, s{T2}, s{T3}
    s_mov_b32 s{S_KVN}, 0
    """)
    for i in range(8):
        e(f"v_mov_b32 v{v0+i}, v61")
    e(f"s_lshr_b32 s{T2}, s{S_WAVE}, 2\ns_lshl_b32 s{T2}, s{T2}, 12\ns_add_u32 s{T2}, s{T2}, {L_Q}")
    for i in range(4):
        e(f"s_add_u32 s{T3}, s{S_W4}, {i}\ns_and_b32 s{T3}, s{T3}, 3\ns_lshl_b32 s{T3}, s{T3}, 10\ns_add_u32 s{T3}, s{T3}, s{T2}")
        e(f"v_add_u32 v{V_AQ+i}, s{T3}, v{V_KO}")
    e(f"v_and_b32 v70, 3, v1\nv_lshlrev_b32 v70, 2, v70\nv_add_u32 v70, {L_MISC}, v70")


def attn_reads(e):
    k, v0, v1 = kv_regs(0)
    e.ds("ak", f"ds_read_b128 {vr(k,4)}, v{V_AQ+4} offset:{L_KVO}")
    for i in range(4):
        e.ds("aq", f"ds_read_b128 {vr(Q_FR+4*i,4)}, v{V_AQ+i}")
    e("s_mov_b32 exec_lo, 0xffff\ns_mov_b32 exec_hi, 0xffff")
    e.ds("aq", f"ds_read_b128 {vr(v0,4)}, v{V_AQ+5} offset:{L_KVO + 1024}")
    e.ds("aq", f"ds_read_b128 {vr(v1,4)}, v{V_AQ+5} offset:{L_KVO + 1536}")
    e("s_mov_b64 exec, -1")
    e.ds("mq", "ds_read_b32 v42, v70")
    e.ds("mq", f"ds_read_b32 v{V_MK}, v70 offset:32")


def kv_next(e):
    e(f"s_add_u32 s{S_KVN}, s{S_KVN}, {BLK}\ns_xor_b32 s{S_KVO}, s{S_KVB}, s{S_KVN}")


def kv_load(e, j, soff=None, advance=True):
    k, v0, v1 = kv_regs(j)
    so = soff or f"s{S_KVO}"
    if not soff and advance:
        e(f"s_add_u32 s{S_KVN}, s{S_KVN}, {BLK}\ns_xor_b32 s{S_KVO}, s{S_KVB}, s{S_KVN}")
    e.vm(f"kv{j}", f"buffer_load_dwordx4 {vr(k,4)}, v{V_KO}, {sr(R_WS,4)}, {so} offen{SC}")
    e.vm(f"kv{j}", f"buffer_load_dwordx4 {vr(v0,4)}, v{V_V0}, {sr(R_WS,4)}, {so} offen offset:1024{SC}")
    e.vm(f"kv{j}", f"buffer_load_dwordx4 {vr(v1,4)}, v{V_V1}, {sr(R_WS,4)}, {so} offen offset:1536{SC}")


def conv_ra(e, tag, a):
    e.ds(f"a{a}{tag}", f"ds_read_b128 {vr(ca(a),4)}, v248 offset:{a*512}")


def conv_rb(e, tag, b):
    e.ds(f"b{b}{tag}", f"ds_read_b128 {vr(C_B+4*b,4)}, v249 offset:{(7-b)*512}")


def conv_body(e, kind):
    if kind != "last":
        e("v_add_u32 v248, 64, v248\nv_add_u32 v249, 64, v249")
    done = []
    for a in range(8):
        for b in range(7 - a, -1, -1):
            e.wait(ds=[f"a{a}", f"b{b}"])
            n = a + b
            c = "0" if kind == "first" and a == 0 else vr(C_ACC + 4 * n, 4)
            e(f"v_mfma_f32_16x16x32_bf16 {vr(C_ACC+4*n,4)}, {vr(ca(a),4)}, {vr(C_B+4*b,4)}, {c}")
            if kind == "last":
                if done and len(e.l) - done[0][1] >= 8:
                    m = done.pop(0)[0]
                    e.ds("pw", f"ds_write_b128 v2, {vr(C_ACC+4*m,4)} offset:{m*1024}")
                if b == 0:
                    done.append((a, len(e.l)))
                continue
            if b == 7 - a:
                conv_rb(e, "n", b)
            if b == 0:
                conv_ra(e, "n", a)
    for m, _ in done:
        e.ds("pw", f"ds_write_b128 v2, {vr(C_ACC+4*m,4)} offset:{m*1024}")
    e.dsq = [t[:-1] if t.endswith("n") else t for t in e.dsq]


def conv_mfma(e):
    for a in range(8):
        conv_rb(e, "", 7 - a)
        conv_ra(e, "", a)
    e(f"s_lshl_b32 s{T1}, s{S_WAVE}, 13\ns_add_u32 s{T1}, s{T1}, {L_P}\nv_add_u32 v2, s{T1}, v{V_KO}\ns_mov_b32 s{T0}, 1")
    conv_body(e, "first")
    q = list(e.dsq)
    b = e.fork()
    conv_body(b, "mid")
    assert b.dsq == q
    b(f"s_sub_u32 s{T0}, s{T0}, 1\ns_cbranch_scc0 L_cvloop")
    body = pad(b.l)
    check_seq(body + body, "conv loop")
    e("L_cvloop:\n" + "\n".join(body))
    conv_body(e, "last")
    e.wait(ds="*")


def conv_addresses(e):
    e(f"""
    s_lshl_b32 s{T2}, s2, 2
    s_load_dword s{S_D}, s[{P_D}:{P_D+1}], s{T2}
    v_and_b32 v60, 3, v1
    v_mul_u32_u24 v248, {A_COPY}, v60
    v_bfe_u32 v60, v1, 2, 2
    v_lshrrev_b32 v61, 4, v1
    v_add_u32 v60, v60, v61
    v_lshl_add_u32 v248, v60, 4, v248
    s_lshr_b32 s{T0}, s{S_W4}, 1
    s_and_b32 s{T1}, s{S_WAVE}, 1
    s_lshl_b32 s{T1}, s{T1}, 8
    s_mul_i32 s{T2}, s{T0}, {4*A_COPY}
    s_add_u32 s{T2}, s{T2}, s{T1}
    s_add_u32 s{T2}, s{T2}, {L_A}
    v_add_u32 v248, s{T2}, v248
    v_and_b32 v60, 1, v1
    v_mul_u32_u24 v249, {B_COPY}, v60
    v_lshl_add_u32 v249, v61, 4, v249
    v_bfe_u32 v60, v1, 1, 3
    v_lshlrev_b32 v60, 6, v60
    v_sub_u32 v249, v249, v60
    v_add_u32 v250, {L_B + 4080}, v249
    v_lshlrev_b32 v62, 5, v61
    v_sub_u32 v250, v250, v62
    s_lshl_b32 s{T3}, s{S_WAVE}, 9
    v_subrev_u32 v250, s{T3}, v250
    s_mul_i32 s{T2}, s{T0}, {2*B_COPY}
    s_add_u32 s{T2}, s{T2}, s{T1}
    s_add_u32 s{T2}, s{T2}, {L_B + 448}
    v_add_u32 v249, s{T2}, v249
    """)


def k_publish(e):
    e(f"v_add_u32 v28, {-8192 & 0xffffffff}, v{V_AQ+4}")
    e.ds("kp", f"ds_read_b128 v[44:47], v28 offset:{L_KVO}")
    attn_reads(e)
    tile_base(e, T0)
    e(f"s_add_u32 s{T1}, s{T0}, {4*TILE}")
    e.wait(ds="kp")
    e.vm("st", f"buffer_store_dwordx4 v[44:47], v{V_KO}, {sr(R_WS,4)}, s{T0} offen{SC}")
    e.wait(ds="ak")
    e.vm("st", f"buffer_store_dwordx4 {vr(kv_regs(0)[0],4)}, v{V_KO}, {sr(R_WS,4)}, s{T1} offen{SC}")


def norms_max(e):
    e.wait(ds="mq")
    for ctl in ("row_shr:1", "row_shr:2"):
        for r in (42, V_MK):
            e(f"v_max_f32_dpp v{r}, v{r}, v{r} {ctl} row_mask:0xf bank_mask:0xf")


def kv_signal(e, sfx):
    e.wait(vm="st")
    e(f"""
    v_mov_b32 v10, {L_CNT}
    v_mov_b32 v11, 1
    s_lshl_b64 exec, 1, 63
    ds_add_rtn_u32 v11, v10, v11
    s_waitcnt lgkmcnt(0)
    v_cmp_eq_u32 vcc, 3, v11
    s_cbranch_vccz L_sig{sfx}
    s_lshl_b32 s{T0}, s{S_BLK}, 7
    s_add_u32 s{T0}, s{T0}, {FL_KV}
    v_mov_b32 v{V_MK-1}, s{S_TAG}
    v_mov_b32 v10, 0
    buffer_store_dwordx2 {vr(V_MK-1,2)}, v10, {sr(R_WS,4)}, s{T0} offen{SC}
    L_sig{sfx}:
    s_mov_b64 exec, -1
    """)
    e.dsq = []


def kv_flag_load(e, text_only=False):
    ld = f"buffer_load_dwordx2 v[12:13], v14, {sr(R_WS,4)}, s{S_KF} offen{SC}"
    if text_only:
        return ld
    e(f"""
    s_lshl_b32 s{S_KF}, s{S_HP}, 11
    s_add_u32 s{S_KF}, s{S_KF}, {FL_KV}
    v_and_b32 v14, 15, v1
    v_cmp_eq_u32 vcc, s{S_J}, v14
    v_xor_b32 v15, 1, v14
    v_cndmask_b32 v14, v14, v15, vcc
    v_lshlrev_b32 v14, 7, v14
    """)
    e.vm("kf", ld)


def kv_wait_and_decide(e):
    for i in range(4):
        e(f"v_mov_b32 v{16+i}, -1")
    of_slot(e, S_XB, T1)
    e(f"s_sub_u32 s{T2}, s{S_XB}, 16384")
    for so in (S_XB, T2):
        e.vm("px", f"buffer_store_dwordx4 v[16:19], v{V_KO}, {sr(R_WS,4)}, s{so} offen{SC}")
    wo_prefetch(e)
    wo_addresses(e)
    kv_flag_load(e)
    poll(e, "L_pollkv", [kv_flag_load(e, True)], [12], first="kf")
    for j in (1, 2):
        kv_load(e, j)
    for ctl in ("row_shr:1", "row_shr:2", "row_shr:4", "row_shr:8"):
        e(f"v_max_f32_dpp v13, v13, v13 {ctl} row_mask:0xf bank_mask:0xf")
    e(f"v_max_f32 v13, v13, v{V_MK}\nv_mul_f32 v11, v42, v13\nv_mov_b32 v10, {L_MISC + 16}\ns_lshl_b64 exec, 1, 63")
    e.ds("dw", "ds_write_b32 v10, v11")
    e("s_mov_b64 exec, -1")
    e.wait(ds="*")


def conv_final(e):
    e(f"""
    s_lshl_b32 s{T1}, s{S_WAVE}, 10
    s_add_u32 s{T1}, s{T1}, {L_P}
    v_add_u32 v2, s{T1}, v{V_KO}
    v_mov_b32 v10, {L_MISC + 16}
    """)
    e.ds("cp", "ds_read_b32 v11, v10")
    for q in range(4):
        e.ds("cp", f"ds_read_b128 {vr(C_A+4*q,4)}, v2 offset:{q*8192}")
    for ch in range(2):
        e.ds("cp", f"ds_read_b128 {vr(C_B+4*ch,4)}, v250 offset:{ch*2*B_COPY}")
    e(f"""
    v_bfe_u32 v2, v1, 1, 3
    v_lshlrev_b32 v2, 7, v2
    v_lshrrev_b32 v59, 4, v1
    v_lshl_add_u32 v2, v59, 5, v2
    v_and_b32 v10, 1, v1
    v_lshl_add_u32 v2, v10, 4, v2
    s_mul_i32 s{T0}, s2, {YSTR}
    s_lshl_b32 s{T1}, s{S_WAVE}, 10
    s_add_u32 s{T0}, s{T0}, s{T1}
    s_add_u32 s{T0}, s{T0}, {WS_Y}
    s_lshl_b32 s{T1}, s{S_D}, 16
    s_and_b32 s{T2}, s{S_D}, 0xffff0000
    v_mov_b32 v10, {BOUND2}
    """)
    of_slot(e, S_XB, S_KF)
    e.wait(ds="*")
    e("s_barrier")
    for ch in range(2):
        for r in range(4):
            e(f"v_add_f32 v{C_A+8*ch+r}, v{C_A+8*ch+r}, v{C_A+8*ch+4+r}")
            e(f"v_lshlrev_b32 v{C_B+4*ch+3-r}, 16, v{C_B+4*ch+3-r}")
        for r in range(4):
            e(f"v_fmac_f32 v{C_A+8*ch+r}, s{T1+ch}, v{C_B+4*ch+3-r}")
    for r in range(4):
        e(f"v_cvt_pk_bf16_f32 v{20+r}, v{C_A+r}, v{C_A+8+r}")
    e.vm("y", f"buffer_store_dwordx4 v[20:23], v2, {sr(R_WS,4)}, s{T0} offen{SC}")
    exchange_addresses(e)
    e("s_setprio 1\nv_cmp_le_f32 vcc, v11, v10")


def wfr(h):
    return 16 + 4 * h if h < 12 else 128 + 4 * (h - 12)


V_XW, V_XC = 56, 58
XR4, XR1 = {1: 49, 2: 50, 3: 51}, {1: 53, 2: 54, 3: 55}


def exchange_addresses(e):
    e(f"s_and_b32 s{T0}, s{S_WAVE}, 4\ns_add_u32 s{T0}, s{T0}, {L_CNT}\nv_mov_b32 v{V_XC}, s{T0}")
    for i in range(4):
        e(f"""
        s_sub_u32 s{T0}, s{S_W4}, {i}
        s_and_b32 s{T0}, s{T0}, 3
        s_mul_i32 s{T2}, s{T0}, 6912
        s_add_u32 s{T2}, s{T2}, {L_O}
        v_add_u32 v{XR4[i] if i else V_XW}, s{T2}, v{V_KO}
        v_lshl_add_u32 v{XR1[i] if i else V_XW+1}, v1, 2, s{T2}
        """)


def lds_count(e, addr, off):
    e(f"v_mov_b32 v10, 1\ns_mov_b64 exec, 1\nds_add_u32 v{addr}, v10 offset:{off}\ns_mov_b64 exec, -1")
    e.dsq.append("cnt")


def lds_spin(e, label, addr, off, low=False):
    low = False
    if low:
        e("s_setprio 0")
    e(f"""
    s_mov_b32 s{S_SPIN}, {SPIN_MAX * 8}
    {label}:
    ds_read_b32 v10, v{addr} offset:{off}
    s_waitcnt lgkmcnt(0)
    v_cmp_gt_u32 vcc, 4, v10
    s_cbranch_vccz {label}_ok
    s_sub_u32 s{S_SPIN}, s{S_SPIN}, 1
    s_cbranch_scc0 {label}
    {label}_ok:
    """)
    if low:
        e("s_setprio 1")
    e.dsq = []


def qk(e, j, i):
    e(f"v_mfma_f32_32x32x16_bf16 {vr(S_BUF+16*i,16)}, {vr(kv_regs(j)[0],4)}, {vr(Q_FR+4*i,4)}, 0")


def pv(e, j, i, half):
    e(f"v_smfmac_f32_32x32x32_bf16 {vr(O_ACC+16*i,16)}, {vr(kv_regs(j)[1+half],4)}, {vr(S_BUF+16*i+8*half,8)}, v{V_IDX}")


def p3_ids(e):
    srd(e, R_W, P_WO, 0x80000)
    e(f"""
    s_lshr_b32 s{T0}, s2, 5
    s_lshl_b32 s{T0}, s{T0}, 3
    s_and_b32 s{S_QT}, s2, 7
    s_add_u32 s{S_QT}, s{S_QT}, s{T0}
    s_bfe_u32 s{S_NQ}, s2, 0x20003
    """)


V_WO = 60


def wo_addresses(e):
    e(f"""
    s_lshl_b32 s{T2}, s{S_NQ}, 2
    s_add_u32 s{T2}, s{T2}, s{S_W4}
    s_lshl_b32 s{T1}, s{T2}, 6
    v_lshrrev_b32 v24, 2, v1
    v_lshlrev_b32 v24, 10, v24
    v_and_b32 v25, 3, v1
    v_lshl_add_u32 v24, v25, 4, v24
    v_add_u32 v{V_WO}, s{T1}, v24
    v_add_u32 v{V_WO+1}, 15360, v{V_WO}
    v_add_u32 v{V_WO+2}, 30720, v{V_WO}
    v_add_u32 v{V_WO+3}, 46080, v{V_WO}
    s_lshl_b32 s{S_WOM}, s{S_W4}, 15
    s_mov_b32 s{S_WOS}, 0
    """)


def wo_stage(e, sfx):
    n = int(OPT.get("wgrp", 4))
    e(f"L_wo{sfx}:\ns_mov_b32 m0, s{S_WOM}\ns_add_u32 s{S_WOM}, s{S_WOM}, 4096")
    for i in range(4):
        e(f"buffer_load_dwordx4 v{V_WO+i}, {sr(R_W,4)}, s{S_WOS} offen offset:{i*1024} lds")
        if n == 2 and i == 1:
            e("s_waitcnt vmcnt(0)")
    e(f"""
    s_add_u32 s{S_WOS}, s{S_WOS}, 65536
    s_cmp_lt_u32 s{S_WOS}, {8*65536}
    s_waitcnt vmcnt(0)
    s_cbranch_scc1 L_wo{sfx}
    """)
    lds_count(e, V_XC, 20)
    flag_store(e, FL_Y, 2, 12, per_wave=True)


def zero_o(e):
    for i in range(4):
        e(f"v_mov_b32 v{32+i}, 0")
    for i in range(4):
        e(f"v_mfma_f32_32x32x16_bf16 {vr(O_ACC+16*i,16)}, v[32:35], v[32:35], 0")


def tile(e, j, i, before_qk=None, cluster=None, with_qk=True, with_prev=True):
    s = S_BUF + 16 * i
    ex = [f"v_exp_f32 v{s+r}, v{s+r}" for r in range(16)]
    if with_qk:
        if before_qk:
            e(before_qk)
        qk(e, j + (i == 3), (i + 1) % 4)
    early = OPT.get("p6")
    if cluster and early:
        kv_next(e)
    e("\n".join(ex[0:4]))
    if with_prev:
        pv(e, j - (i == 0), (i + 3) % 4, 1)
    if cluster and early:
        cluster()
    e("\n".join(ex[4:8]))
    if cluster and not early:
        kv_next(e)
        cluster()
    e("\n".join(ex[8:10]))
    pv(e, j, i, 0)
    e("\n".join(ex[10:16]))


def attn_step0(e):
    qk(e, 0, 0)
    for i in range(4):
        tile(e, 0, i, with_qk=i < 3, with_prev=i > 0)


def attn_loop(e):
    b = E()

    def first():
        kv_load(b, 3, advance=False)
        b(f"s_cmp_eq_u32 s{S_IT}, s{T0}\ns_cbranch_scc1 L_hook\nL_back:")

    for j in (1, 2, 3):
        for i in range(4):
            cl = None if i else first if j == 1 else (lambda j=j: kv_load(b, j + 2, advance=False))
            tile(b, j, i, ("s_waitcnt vmcnt(40)" if OPT.get("nowait") else "s_waitcnt vmcnt(3)") if i == 3 else None, cl)
    b(f"s_sub_u32 s{S_IT}, s{S_IT}, 16\ns_cbranch_scc0 L_loop")
    check_seq(b.l + b.l, "attention loop")
    e(f"s_or_b32 s{S_IT}, s{S_WAVE}, 4\ns_add_u32 s{S_IT}, s{S_IT}, 64\ns_add_u32 s{T0}, s{S_WAVE}, 64")
    e.wait(vm="kv1")
    qk(e, 1, 0)
    deadline(e, "dl2")
    stamp(e, 4)
    e(f"s_nop 10\nL_loop:")
    e("\n".join(b.l))
    e.vmq = []
    pv(e, 3, 3, 1)


def attn_slow(e):
    M = 44
    for i in range(4):
        e(f"v_mov_b32 v{M+i}, 0xff7fffff")
    e.wait(vm="*")
    zero_o(e)
    e(f"s_cmp_lt_u32 s{S_WAVE}, 4\ns_cbranch_scc1 L_nostage")
    wo_stage(e, "s")
    e("L_nostage:")
    e(f"""
    s_mul_i32 s{T2}, s{S_WAVE}, {TILE}
    s_mul_i32 s{T0}, s{S_HP}, {16*BLK}
    s_add_u32 s{T2}, s{T2}, s{T0}
    s_mov_b32 s{T3}, 0
    L_slowloop:
    """)
    kv_load(e, 0, f"s{T2}")
    e.wait(vm="*")
    for i in range(4):
        qk(e, 0, i)
    for i in range(4):
        s, o = S_BUF + 16 * i, O_ACC + 16 * i
        e(f"v_max3_f32 v10, v{s}, v{s+1}, v{M+i}")
        for r in range(2, 16, 2):
            e(f"v_max3_f32 v10, v{s+r}, v{s+r+1}, v10")
        e(f"""
        v_mov_b32 v11, v10
        v_permlane32_swap_b32 v10, v11
        v_max_f32 v10, v10, v11
        v_sub_f32 v11, v{M+i}, v10
        v_exp_f32 v11, v11
        v_mov_b32 v{M+i}, v10
        """)
        for r in range(16):
            e(f"v_sub_f32 v{s+r}, v{s+r}, v10\nv_exp_f32 v{s+r}, v{s+r}")
        for r in range(16):
            e(f"v_mul_f32 v{o+r}, v{o+r}, v11")
        pv(e, 0, i, 0)
        pv(e, 0, i, 1)
    e(f"""
    s_add_u32 s{T2}, s{T2}, {BLK}
    s_add_u32 s{T3}, s{T3}, 1
    s_cmp_lt_u32 s{T3}, 16
    s_nop 7
    s_nop 7
    s_cbranch_scc1 L_slowloop
    """)


def attn_combine(e, slow):
    M, R = 44, S_BUF
    XM = L_O + 4 * 6912
    order = (1, 2, 3)
    sfx = "s" if slow else "f"
    e(f"s_cmp_ge_u32 s{S_WAVE}, 4\ns_cbranch_scc1 L_xf{sfx}_go\ns_nop 3\ns_branch L_xf{sfx}_ok\nL_xf{sfx}_go:")
    lds_spin(e, "L_xf" + sfx, V_XC, 8)
    for i in order:
        o, off = O_ACC + 16 * i, (i - 1) * 2304
        e.ds("xw", f"ds_write_b128 v{V_XW}, {vr(o,4)} offset:{off}")
        e.ds("xw", f"ds_write_b128 v{V_XW}, {vr(o+4,4)} offset:{off+1024}")
        e.ds("xw", f"ds_write_b32 v{V_XW+1}, v{o+8} offset:{off+2048}")
    if slow:
        e(f"s_mul_i32 s{T0}, s{S_WAVE}, 384\ns_add_u32 s{T0}, s{T0}, {XM}\nv_and_b32 v63, 31, v1\nv_lshl_add_u32 v59, v63, 2, s{T0}")
        for i in order:
            e.ds("xw", f"ds_write_b32 v59, v{M+i} offset:{(i-1)*128}")
            e(f"""
            s_sub_u32 s{T0}, s{S_W4}, {i}
            s_and_b32 s{T0}, s{T0}, 3
            s_and_b32 s{T2}, s{S_WAVE}, 4
            s_add_u32 s{T0}, s{T0}, s{T2}
            s_mul_i32 s{T0}, s{T0}, 384
            s_add_u32 s{T0}, s{T0}, {XM}
            v_lshl_add_u32 v{59+i}, v63, 2, s{T0}
            """)
    lds_count(e, V_XC, 4)
    if OPT.get("xprio") and not slow:
        e(f"s_cmp_ge_u32 s{S_WAVE}, 4\ns_cbranch_scc1 L_keepprio\ns_setprio 0\nL_keepprio:")
    lds_spin(e, "L_xs" + sfx, V_XC, 4)
    for n, i in enumerate(order):
        off = (i - 1) * 2304
        e.ds(f"xr{n}", f"ds_read_b128 {vr(R+12*n,4)}, v{XR4[i]} offset:{off}")
        e.ds(f"xr{n}", f"ds_read_b128 {vr(R+12*n+4,4)}, v{XR4[i]} offset:{off+1024}")
        e.ds(f"xr{n}", f"ds_read_b32 v{R+12*n+8}, v{XR1[i]} offset:{off+2048}")
        if slow:
            e.ds(f"xr{n}", f"ds_read_b32 v{R+12*n+9}, v{59+i} offset:{(i-1)*128}")
    if slow:
        e.wait(ds="*")
        e(f"v_max3_f32 v10, v{M}, v{R+9}, v{R+21}\nv_max_f32 v10, v10, v{R+33}")
        for src, base in ((M, O_ACC), (R + 9, R), (R + 21, R + 12), (R + 33, R + 24)):
            e(f"v_sub_f32 v11, v{src}, v10\nv_exp_f32 v11, v11")
            for r in range(9):
                e(f"v_mul_f32 v{base+r}, v{base+r}, v11")
    for n in range(3):
        e.wait(ds=f"xr{n}")
        e(f"v_add_f32 v{O_ACC+8}, v{O_ACC+8}, v{R+12*n+8}")
        for r in range(0, 8, 2):
            e(f"v_pk_add_f32 {vr(O_ACC+r,2)}, {vr(O_ACC+r,2)}, {vr(R+12*n+r,2)}")
    e(f"v_rcp_f32 v{O_ACC+8}, v{O_ACC+8}")
    lds_count(e, V_XC, 12)
    for r in range(0, 8, 2):
        e(f"v_pk_mul_f32 {vr(O_ACC+r,2)}, {vr(O_ACC+r,2)}, {vr(O_ACC+8,2)} op_sel_hi:[1,0]")
    for r in range(4):
        e(f"v_cvt_pk_bf16_f32 v{O_ACC+12+r}, v{O_ACC+2*r}, v{O_ACC+2*r+1}")
    for r in range(4):
        e(f"v_min_u32 v{O_ACC+12+r}, -2, v{O_ACC+12+r}")
    e.vm("o", f"buffer_store_dwordx4 {vr(O_ACC+12,4)}, v{V_KO}, {sr(R_WS,4)}, s{S_XB} offen{SC}")


P_ACC, O_FR, B_T, OP, B_X, B_Y, B_G = 64, 80, 112, 208, 224, 232, 240
V_G, V_CNT, V_TR, V_O2, V_STG, V_OUT, V_FA, V_FB, V_Y = 3, 4, 5, 7, 8, 9, 13, 14, 15
S_YB, S_GB = 96, 97


def tail_addresses(e):
    srd(e, R_OUT, P_OUT, 0x200000)
    e(f"""
    v_and_b32 v24, 7, v1
    v_lshlrev_b32 v24, 15, v24
    v_bfe_u32 v25, v1, 3, 1
    v_lshl_add_u32 v24, v25, 10, v24
    s_bfe_u32 s{T3}, s{S_QT}, 0x20002
    s_lshl_b32 s{T3}, s{T3}, 13
    s_lshr_b32 s{T0}, s{S_QT}, 4
    s_lshl_b32 s{T0}, s{T0}, 11
    s_add_u32 s{T3}, s{T3}, s{T0}
    s_and_b32 s{T0}, s{S_QT}, 3
    s_lshl_b32 s{T0}, s{T0}, 7
    s_add_u32 s{T3}, s{T3}, s{T0}
    s_add_u32 s{T3}, s{T3}, {FL_Y}
    v_bfe_u32 v25, v1, 4, 1
    v_lshl_add_u32 v24, v25, 9, v24
    v_add_u32 v{V_FA}, s{T3}, v24
    s_lshl_b32 s{T2}, s{S_NQ}, 2
    s_add_u32 s{S_ROW}, s{T2}, s{S_WAVE}
    s_lshl_b32 s{T2}, s{S_ROW}, 14
    s_lshr_b32 s{T3}, s{S_QT}, 3
    s_lshl_b32 s{T3}, s{T3}, 7
    s_add_u32 s{T2}, s{T2}, s{T3}
    s_add_u32 s{T2}, s{T2}, {FL_Y}
    v_and_b32 v24, 15, v1
    v_lshl_add_u32 v{V_FB}, v24, 10, s{T2}
    s_lshl_b32 s{T1}, s{S_ROW}, 6
    s_lshl_b32 s{S_MX}, s{S_WAVE}, 15
    v_lshrrev_b32 v26, 5, v1
    v_bfe_u32 v25, v1, 2, 2
    v_lshl_add_u32 v{V_TR}, v26, 2, v25
    v_lshlrev_b32 v{V_TR}, 6, v{V_TR}
    v_bfe_u32 v25, v1, 4, 1
    v_lshl_add_u32 v{V_TR}, v25, 5, v{V_TR}
    v_and_b32 v24, 1, v1
    v_lshl_add_u32 v{V_TR}, v24, 4, v{V_TR}
    v_bfe_u32 v25, v1, 1, 1
    v_lshl_add_u32 v{V_TR}, v25, 3, v{V_TR}
    v_add_u32 v{V_TR}, s{S_MX}, v{V_TR}
    v_add_u32 v{V_O2}, 0x10000, v{V_KO}
    v_add_u32 v{V_STG}, s{S_MX}, v{V_KO}
    v_mov_b32 v{V_CNT}, {L_CNT}
    s_lshl_b32 s{S_KF}, s{S_QT}, 3
    s_add_u32 s{S_KF}, s{S_KF}, s{S_WAVE}
    s_lshl_b32 s{S_KF}, s{S_KF}, 12
    s_add_u32 s{S_KF}, s{S_KF}, {WS_OF}
    s_add_u32 s{S_MODE}, s{S_KF}, 16384
    v_and_b32 v{V_G}, 31, v1
    v_lshlrev_b32 v{V_OUT}, 10, v{V_G}
    v_lshl_add_u32 v{V_OUT}, v26, 4, v{V_OUT}
    s_lshl_b32 s{T2}, s{S_QT}, 15
    s_add_u32 s{T2}, s{T2}, s{T1}
    v_add_u32 v{V_OUT}, s{T2}, v{V_OUT}
    v_bfe_u32 v{V_Y}, v1, 3, 2
    v_lshlrev_b32 v{V_Y}, 5, v{V_Y}
    v_lshl_add_u32 v{V_Y}, v24, 4, v{V_Y}
    v_bfe_u32 v25, v1, 1, 2
    v_lshl_add_u32 v{V_Y}, v25, 2, v{V_Y}
    v_mul_u32_u24 v25, {4*YSTR}, v26
    v_add_u32 v{V_Y}, v25, v{V_Y}
    s_mul_i32 s{S_YB}, s{S_ROW}, {16*YSTR}
    s_lshl_b32 s{S_GB}, s{S_QT}, 7
    s_add_u32 s{S_YB}, s{S_YB}, s{S_GB}
    s_add_u32 s{S_YB}, s{S_YB}, {WS_Y}
    v_lshlrev_b32 v{V_G}, 2, v{V_G}
    s_add_u32 s{S_GB}, s{S_GB}, {WS_G}
    """)


def o_loads(par):
    return [f"buffer_load_dwordx4 {vr(OP+4*i,4)}, v{V_KO}, {sr(R_WS,4)}, s{S_MODE if par else S_KF} offen offset:{i*1024}{SC}" for i in range(4)]


def o_poll(e, par, issued):
    lab = f"L_pollo{par}"
    e(f"s_mov_b32 s{S_SPIN}, {SPIN_MAX}")
    if issued:
        e(f"s_branch {lab}_chk")
    e(f"{lab}:\n" + "\n".join(o_loads(par)))
    e(f"{lab}_chk:\ns_waitcnt vmcnt(0)\nv_max3_u32 v12, v{OP}, v{OP+1}, v{OP+2}")
    e.vmq = []
    for i in range(3, 15, 2):
        e(f"v_max3_u32 v12, v12, v{OP+i}, v{OP+i+1}")
    e(f"""
    v_max_u32 v12, v12, v{OP+15}
    v_cmp_eq_u32 vcc, -1, v12
    s_cbranch_vccz {lab}_ok
    s_sub_u32 s{S_SPIN}, s{S_SPIN}, 1
    s_cbranch_scc0 {lab}
    {lab}_ok:
    """)
    for i in range(4):
        e.ds("ow", f"ds_write_b128 v{V_STG}, {vr(OP+4*i,4)} offset:{par*4096 + i*1024}")


def half_gemm(e, par):
    def rd(b):
        e.ds(f"of{b}", f"ds_read_b128 {vr(O_FR+4*(b%8),4)}, v{V_O2 if b >= 8 else V_KO} offset:{(b//4%2)*32768 + par*4096 + (b%4)*1024}")
    for b in range(8):
        rd(b)
    for b in range(16):
        e.wait(ds=f"of{b}")
        c = "0" if b == 0 and par == 0 else vr(P_ACC, 16)
        e(f"v_mfma_f32_32x32x16_bf16 {vr(P_ACC,16)}, {vr(wfr(2*b+par),4)}, {vr(O_FR+4*(b%8),4)}, {c}")
        if b + 8 < 16:
            rd(b + 8)


def tail(e):
    stamp(e, 13)
    if OPT.get("stamp"):
        e(f"s_cmp_lt_u32 s{S_WAVE}, 4\ns_cbranch_scc1 L_older")
        for k in (14, 15, 16):
            stamp(e, k)
        stamp_flush(e, 17, False)
        e("s_endpgm\nL_older:")
    else:
        e(f"s_cmp_ge_u32 s{S_WAVE}, 4\ns_cbranch_scc1 L_end")
    if not OPT.get("ap"):
        e("s_setprio 0")
    tail_addresses(e)
    e("s_setprio 0")
    fa = f"buffer_load_dword v11, v{V_FA}, {sr(R_WS,4)}, 0 offen{SC}"
    fb = f"buffer_load_dword v6, v{V_FB}, {sr(R_WS,4)}, 0 offen{SC}"
    flag_store(e, FL_Y, 2, 12, per_wave=True)
    e.vm("fa", fa)
    lds_spin(e, "L_ws", V_CNT, 24)

    def frag(h):
        for j in range(2):
            e.ds("wf", f"ds_read_b64_tr_b16 {vr(wfr(h)+2*j,2)}, v{V_TR} offset:{h*1024 + j*512}")
    for h in range(32):
        frag(h)
    poll(e, "L_pollfa", [fa], [11], first="fa")
    for ld in o_loads(0):
        e.vm("op", ld)
    e.vm("fb", fb)
    e.wait(ds="*")
    o_poll(e, 0, True)
    e.wait(ds="*")
    lds_count(e, V_CNT, 20)
    poll(e, "L_pollfb", [fb], [6], first="none")
    for k in range(2):
        e.vm("b", f"buffer_load_dwordx4 {vr(B_X+4*k,4)}, v{V_OUT}, {sr(R_X,4)}, 0 offen offset:{32*k}")
    for jj in range(8):
        e.vm("b", f"buffer_load_dword v{B_Y+jj}, v{V_Y}, {sr(R_WS,4)}, s{S_YB} offen{SC}")
        if jj < 7:
            e(f"s_add_u32 s{S_YB}, s{S_YB}, {YSTR * (5 if jj == 3 else 1)}")
    e.vm("b", f"buffer_load_dword v{B_G}, v{V_G}, {sr(R_WS,4)}, s{S_GB} offen{SC}")
    if not OPT.get("lateg"):
        lds_spin(e, "L_es", V_CNT, 20)
        if OPT.get("hp"):
            e("s_setprio 2")
        half_gemm(e, 0)
        if OPT.get("hp"):
            e("s_setprio 0")
    stamp(e, 14)
    e("s_barrier")
    if not OPT.get("bfirst"):
        for ld in o_loads(1):
            e.vm("op", ld)
    if OPT.get("lateg"):
        half_gemm(e, 0)
    e.wait(vm="b")
    e(f"v_sub_f32 v10, 1.0, v{B_G}")
    for i in range(8):
        e(f"""
        v_lshlrev_b32 v{B_T+2*i}, 16, v{B_X+i}
        v_and_b32 v{B_T+2*i+1}, 0xffff0000, v{B_X+i}
        v_lshlrev_b32 v12, 16, v{B_Y+i}
        v_and_b32 v13, 0xffff0000, v{B_Y+i}
        v_pk_mul_f32 {vr(B_T+2*i,2)}, {vr(B_T+2*i,2)}, v[12:13]
        v_pk_mul_f32 {vr(B_T+2*i,2)}, {vr(B_T+2*i,2)}, v[10:11] op_sel_hi:[1,0]
        """)
    o_poll(e, 1, not OPT.get("bfirst"))
    stamp(e, 15)
    e.wait(ds="*")
    e("s_barrier")
    if OPT.get("dg3"):
        srd(e, R_K, 38, 256)
        e(f"v_mov_b32 v253, 0\nbuffer_load_dword v252, v253, {sr(R_K,4)}, 0 offen sc0 sc1\ns_waitcnt vmcnt(0)\nv_readfirstlane_b32 s98, v252\ns_not_b32 s98, s98")
        deadline(e, "dg3")
    if OPT.get("xdiag"):
        e(f"""
        s_getreg_b32 s99, hwreg(HW_REG_XCC_ID)
        s_sub_u32 s99, s2, s99
        s_add_u32 s99, s99, {OPT['xoff']}
        s_and_b32 s99, s99, 7
        s_mul_i32 s99, s99, {OPT['xdiag']}
        s_memrealtime s[86:87]
        s_waitcnt lgkmcnt(0)
        s_mov_b32 s98, s86
        L_xd:
        s_memrealtime s[86:87]
        s_waitcnt lgkmcnt(0)
        s_sub_u32 s86, s86, s98
        s_cmp_lt_u32 s86, s99
        s_cbranch_scc1 L_xd
        """)
    deadline(e, "dl3")
    stamp(e, 16)
    half_gemm(e, 1)
    for r in range(0, 16, 2):
        e(f"v_pk_fma_f32 {vr(P_ACC+r,2)}, {vr(P_ACC+r,2)}, {vr(B_G,2)}, {vr(B_T+r,2)} op_sel_hi:[1,0,1]")
    for r in range(8):
        e(f"v_cvt_pk_bf16_f32 v{O_FR+r}, v{P_ACC+2*r}, v{P_ACC+2*r+1}")
    for k in range(2):
        e.vm("st", f"buffer_store_dwordx4 {vr(O_FR+4*k,4)}, v{V_OUT}, {sr(R_OUT,4)}, 0 offen offset:{32*k}" + (" sc1" if OPT.get("osc1") else ""))
    e(f"s_or_b32 s{T0}, s2, s{S_WAVE}\ns_cbranch_scc1 L_nogen\nv_mov_b32 v12, s{S_TAG}\nv_mov_b32 v13, {WS_GEN}\ns_mov_b64 exec, 1")
    e(f"buffer_store_dword v12, v13, {sr(R_WS,4)}, 0 offen sc0 sc1\ns_mov_b64 exec, -1\nL_nogen:")
    stamp_flush(e, 17)


def kernel():
    q = E()
    prologue(q)
    stamp(q, 0)
    e = E()
    staging(q)
    loader_setup(e)
    gemm_v(e)
    stamp(e, 8)
    epi_v(e)
    e.wait(ds="*")
    e("s_barrier")
    stamp(e, 9)
    k_publish(e)
    zero_o(e)
    norms_max(e)
    stamp(e, 28)
    attn_step0(e)
    stamp(e, 29)
    e.wait(vm="h")
    if OPT.get("sigpre"):
        kv_signal(e, "v")
    e("s_barrier")
    stamp(e, 18)
    if OPT.get("sigmid"):
        kv_signal(e, "v")
    p3_ids(e)
    conv_addresses(e)
    if OPT.get("sigpre") or OPT.get("sigmid"):
        e("s_waitcnt lgkmcnt(0)")
    else:
        kv_signal(e, "v")
    e.vmq = []
    kv_wait_and_decide(e)
    stamp(e, 19)
    e("s_barrier\nL_join:")
    gemm_qk(q)
    if OPT.get("qprio"):
        q("s_setprio 0")
    deadline(q, "dl1")
    stamp(q, 8)
    epi_qk(q)
    q.wait(ds="*")
    q("s_barrier")
    stamp(q, 9)
    attn_reads(q)
    conv_u_loads(q)
    gate_loads(q)
    zero_o(q)
    q.wait(ds="*")
    stamp(q, 28)
    attn_step0(q)
    stamp(q, 29)
    conv_u_pad(q)
    gate_compute(q)
    p3_ids(q)
    q("s_waitcnt lgkmcnt(0)\ns_barrier")
    q.dsq = []
    stamp(q, 18)
    conv_mfma(q)
    stamp(q, 19)
    q("s_barrier")
    for jj in (1, 2):
        kv_load(q, jj)
    q("s_branch L_join\nL_vrole:")
    j = E()
    j.vmq = [f"kv{k}" for k in (1, 2) for _ in range(3)]
    assert e.vmq == j.vmq and q.vmq[-6:] == j.vmq
    stamp(j, 10)
    conv_final(j)
    j("s_cbranch_vccz L_slow" if not OPT.get("slow") else "s_branch L_slow")
    stamp(j, 11)
    attn_loop(j)
    stamp(j, 12)
    attn_combine(j, False)
    j("L_tail:")
    j.vmq = ["o"]
    tail(j)
    j("L_end:\ns_endpgm")
    x = E()
    x("L_hook:")
    wo_stage(x, "f")
    x("s_branch L_back\nL_slow:")
    x.vmq = ["y"]
    attn_slow(x)
    attn_combine(x, True)
    x("L_last:\ns_branch L_tail")
    return q.l + e.l + j.l + x.l


def build():
    hdr = open(__file__.replace("gen/gen_v41.py", "cdna_kernels/" + NAME.replace("_kernel", ".s.ref")).replace("gen_v41.py", "../cdna_kernels/" + NAME.replace("_kernel", ".s.ref"))).read()
    head = hdr[:hdr.index("; @launch")]
    out = [head + f"; @launch grid=(256,1,1) block=(512,1,1) lds={LDS}", '.amdgcn_target "amdgcn-amd-amdhsa--gfx950"', ".text",
           f".globl {NAME}", ".p2align 8", f".type {NAME},@function", f"{NAME}:"]
    body = pad(kernel())
    check_edges(body)
    out += body
    out.append(f""".section .rodata,"a"
.p2align 6
.amdhsa_kernel {NAME}
  .amdhsa_next_free_vgpr 256
  .amdhsa_next_free_sgpr 100
  .amdhsa_accum_offset 256
  .amdhsa_group_segment_fixed_size 0
  .amdhsa_kernarg_size 104
  .amdhsa_user_sgpr_count 2
  .amdhsa_user_sgpr_kernarg_segment_ptr 1
  .amdhsa_system_sgpr_workgroup_id_x 1
  .amdhsa_float_denorm_mode_32 3
.end_amdhsa_kernel""")
    return "\n".join(out) + "\n"


if __name__ == "__main__":
    OPT.update(rot3=True, vclu=True, codepf=True, uf=3, sigpre=True)
    for a in sys.argv[2:]:
        k, _, val = a.partition("=")
        if k.startswith("no_"):
            OPT.pop(k[3:])
        else:
            OPT[k] = val or True
    open(sys.argv[1], "w").write(build())
```

```python
import re

TRANS = ("v_exp_f32", "v_log_f32", "v_rcp_f32", "v_rsq_f32", "v_sqrt_f32", "v_sin_f32", "v_cos_f32")
REG_RE = re.compile(r"\b([vs])\[(\d+):(\d+)\]|\b([vs])(\d+)\b|\b(vcc|exec|m0)(?:_lo|_hi)?\b")


def regs_of(tok):
    out = set()
    for m in REG_RE.finditer(tok):
        if m.group(1):
            out |= {(m.group(1), i) for i in range(int(m.group(2)), int(m.group(3)) + 1)}
        elif m.group(4):
            out.add((m.group(4), int(m.group(5))))
        else:
            out.add((m.group(6), 0))
    return out


def split_ops(rest):
    ops, depth, cur = [], 0, ""
    for ch in rest:
        if ch == "[":
            depth += 1
        if ch == "]":
            depth -= 1
        if ch == "," and depth == 0:
            ops.append(cur.strip())
            cur = ""
        else:
            cur += ch
    if cur.strip():
        ops.append(cur.strip())
    return ops


class Ins:
    def __init__(self, text):
        self.text = text
        t = text.split(";")[0].strip()
        self.label = t.endswith(":")
        self.directive = t.startswith(".")
        self.op = "" if (self.label or self.directive or not t) else t.split()[0]
        rest = t[len(self.op):].strip() if self.op else ""
        ops = split_ops(rest)
        self.ops = ops
        op = self.op
        self.kind = "none"
        self.defs, self.uses = set(), set()
        self.srcc = set()
        self.srcab = set()
        self.passes = 0
        self.states = 1 if op else 0
        self.wide_store = set()
        if not op:
            return
        allr = [regs_of(o) for o in ops]
        if op.startswith("v_mfma") or op.startswith("v_smfmac"):
            self.kind = "mfma"
            self.passes = 4 if "16x16" in op else 8
            self.defs = allr[0]
            if op.startswith("v_smfmac"):
                self.srcc = allr[0]
                self.srcab = allr[1] | allr[2] | allr[3]
            else:
                self.srcc = allr[3]
                self.srcab = allr[1] | allr[2]
            self.uses = self.srcc | self.srcab
        elif op.startswith("v_"):
            self.kind = "valu"
            self.trans = op.replace("_e32", "").replace("_e64", "") in TRANS
            self.dpp = "dpp" in op or "row_" in t or "quad_perm" in t
            self.defs = set(allr[0])
            srcs = allr[1:]
            if op.startswith("v_permlane"):
                self.defs = allr[0] | allr[1]
                srcs = allr
            elif "_co_" in op:
                self.defs |= allr[1]
                srcs = allr[2:]
            if op.startswith(("v_fmac", "v_dot2c", "v_pk_fmac", "v_writelane")) or self.dpp:
                srcs = allr
            for s in srcs:
                self.uses |= s
            if op.startswith("v_cmpx"):
                self.defs.add(("exec", 0))
            if op.startswith("v_cndmask") and len(ops) == 3:
                self.uses.add(("vcc", 0))
        elif op.startswith("ds_"):
            self.kind = "ds"
            if op.startswith(("ds_read", "ds_bpermute", "ds_permute", "ds_swizzle")) or "_rtn_" in op:
                self.defs = allr[0]
                for s in allr[1:]:
                    self.uses |= s
            else:
                for s in allr:
                    self.uses |= s
        elif op.startswith(("buffer_", "global_")):
            self.kind = "vmem"
            self.lds = bool(re.search(r"\blds\b", t)) or "_lds_" in op
            if "atomic" in op and " sc0" in t:
                self.defs = allr[0]
                for s in allr:
                    self.uses |= s
            elif "load" in op and not self.lds:
                self.defs = allr[0]
                for s in allr[1:]:
                    self.uses |= s
                if "d16" in op:
                    self.uses |= allr[0]
            else:
                for s in allr:
                    self.uses |= s
                if "store" in op and ("x4" in op or "x3" in op):
                    self.wide_store = allr[0] if op.startswith("buffer_") else allr[1]
            if self.lds:
                self.uses.add(("m0", 0))
        elif op == "s_nop":
            self.kind = "nop"
            self.states = int(ops[0]) + 1
        elif op.startswith("s_"):
            self.kind = "salu"
            if op.startswith(("s_cmp", "s_waitcnt", "s_barrier", "s_cbranch", "s_branch", "s_endpgm", "s_setprio", "s_sleep", "s_bitcmp")):
                for s in allr:
                    self.uses |= s
            else:
                self.defs = set(allr[0]) if allr else set()
                for s in allr[1:]:
                    self.uses |= s
                if "saveexec" in op:
                    self.defs.add(("exec", 0))


def vg(rs):
    return {r for r in rs if r[0] == "v"}


def sg(rs):
    return {r for r in rs if r[0] != "v"}


MFMA_RD = {4: 8, 8: 12}
MFMA_OVL = {4: 6, 8: 10}
MFMA_WAR = {4: 3, 8: 7}


def need(p, c):
    n = 0
    if p.kind == "valu":
        pv, ps = vg(p.defs), sg(p.defs)
        if c.kind == "mfma" and pv & c.uses:
            n = max(n, 2)
        if c.kind == "mfma" and ("exec", 0) in ps:
            n = max(n, 4)
        if c.kind == "valu":
            if c.dpp and pv & c.uses:
                n = max(n, 2)
            if c.op.startswith("v_permlane") and pv & c.uses:
                n = max(n, 2)
            if c.op.startswith(("v_readlane", "v_readfirstlane")) and pv & c.uses:
                n = max(n, 1)
            if p.trans and pv & (c.uses | c.defs):
                n = max(n, 1)
            if ps & c.uses:
                n = max(n, 4 if c.op.startswith(("v_readlane", "v_writelane")) else 2)
            if ("exec", 0) in ps:
                n = max(n, 5 if c.dpp else 4 if c.op.startswith(("v_readlane", "v_readfirstlane", "v_writelane", "v_permlane")) else 0)
        if c.kind == "vmem" and ps & c.uses:
            n = max(n, 5)
        if c.kind == "salu" and ps & c.uses:
            n = max(n, 2)
        if p.trans and c.kind in ("ds", "vmem") and pv & c.uses:
            n = max(n, 1)
        if p.op.startswith("v_dot") and pv & (c.uses | c.defs):
            chain = c.op == p.op and pv == vg(c.defs) and not (pv & regs_of(",".join(c.ops[1:3])))
            if not chain:
                n = max(n, 3)
    if p.kind == "mfma":
        d = p.defs
        if c.kind == "mfma":
            if d & c.srcab:
                n = max(n, MFMA_RD[p.passes])
            if d & c.srcc and not (d == c.srcc and p.passes == c.passes):
                n = max(n, MFMA_OVL[p.passes])
            if d & c.defs and not (d & c.srcc) and not (d == c.defs and p.passes == c.passes):
                n = max(n, MFMA_OVL[p.passes])
        elif c.kind in ("valu", "ds", "vmem"):
            if d & (c.uses | c.defs):
                n = max(n, MFMA_RD[p.passes])
            if c.kind == "valu" and p.srcc & c.defs:
                n = max(n, MFMA_WAR[p.passes])
    if p.kind == "salu" and ("m0", 0) in p.defs and c.kind == "vmem" and getattr(c, "lds", False):
        n = max(n, 1)
    if p.kind == "vmem" and p.wide_store and (c.defs & p.wide_store):
        n = max(n, 2)
    return n


def pad(lines, window=24):
    out = []
    for t in lines:
        c = Ins(t)
        if c.op:
            dist, short = 0, 0
            for p in reversed(out[-3 * window:]):
                if dist >= window:
                    break
                if p.op:
                    short = max(short, need(p, c) - dist)
                    dist += p.states
                if p.op in ("s_branch", "s_endpgm", "s_setpc_b64"):
                    break
            while short > 0:
                k = min(short, 16)
                out.append(Ins(f"    s_nop {k - 1}"))
                short -= k
        out.append(c)
    return [i.text for i in out]


def check_seq(lines, what):
    padded = pad(lines)
    if len(padded) != len(lines):
        for a, b in zip(padded, lines):
            if a != b:
                raise AssertionError(f"hazard across edge in {what}: needs '{a.strip()}' before '{b.strip()}'")
        raise AssertionError(f"hazard across edge in {what}")


class E:
    def __init__(self):
        self.l = []
        self.vmq = []
        self.dsq = []

    def __call__(self, text):
        for t in text.strip().split("\n"):
            t = t.strip()
            if t:
                self.l.append(t if t.endswith(":") else "    " + t)

    def vm(self, tag, text):
        self(text)
        self.vmq.append(tag)

    def ds(self, tag, text):
        self(text)
        self.dsq.append(tag)

    @staticmethod
    def _count(q, tags):
        tags = (tags,) if isinstance(tags, str) else tuple(tags)
        last = max((i for i, t in enumerate(q) if t in tags), default=-1)
        return last, len(q) - 1 - last

    def wait(self, vm=None, ds=None):
        parts = []
        if vm is not None:
            last, n = self._count(self.vmq, vm) if vm != "*" else (len(self.vmq) - 1, 0)
            if last >= 0:
                assert n <= 63, n
                parts.append(f"vmcnt({n})")
                self.vmq = self.vmq[last + 1:]
        if ds is not None:
            last, n = self._count(self.dsq, ds) if ds != "*" else (len(self.dsq) - 1, 0)
            if last >= 0:
                n = min(n, 14)
                parts.append(f"lgkmcnt({n})")
                self.dsq = self.dsq[len(self.dsq) - n:] if n else []
        if parts:
            self("s_waitcnt " + " ".join(parts))

    def fork(self):
        e = E()
        e.vmq, e.dsq = list(self.vmq), list(self.dsq)
        return e


def vr(a, n):
    return f"v{a}" if n == 1 else f"v[{a}:{a + n - 1}]"


def sr(a, n):
    return f"s{a}" if n == 1 else f"s[{a}:{a + n - 1}]"


def check_edges(lines, window=40):
    labels = {t.strip()[:-1]: i for i, t in enumerate(lines) if t.strip().endswith(":")}
    bad = []
    for i, t in enumerate(lines):
        p = t.split()
        if p and p[0].startswith(("s_cbranch", "s_branch")) and p[1] in labels:
            head = lines[max(0, i - window):i] + ["    s_nop 0"]
            seq = head + lines[labels[p[1]] + 1:labels[p[1]] + 1 + window]
            padded = pad(seq)
            if len(padded) != len(seq):
                k = next(n for n, (a, b) in enumerate(zip(padded, seq)) if a != b)
                bad.append(f"edge '{t.strip()}': needs '{padded[k].strip()}' before '{seq[k].strip()}'")
    assert not bad, "\n".join(bad)
```

```python
import sys
from asmlib import E, vr, sr, pad, check_seq, check_edges

NAME = "gated_mix__mha_block__ssm_conv_h3__prompt_kernel"
OPT = {}

TILE = 2176
BLK = 32768
WS_KV = 0x0000000
WS_U = 0x1000000
USTR, YSTR = 4096 + 256, 8192 + 256
WS_Y = 0x0900000
WS_OF = 0x0C00000
WS_G = 0x0E00000
WS_FL = 0x0E10000
FL_KV, FL_U, FL_Y = WS_FL, WS_FL + 0x8000, WS_FL + 0x10000
WS_GEN = WS_FL + 0x50000
WS_ST = 0x0F00000
WS_SIZE = 0x1400000
OOB = 0x7F000000

QSCALE = 0x3EB8AA3B
NLOG2E = 0xBFB8AA3B
BOUND2 = 0x44610000
SPIN_MAX = 1 << 18

P_X, P_W, P_WO, P_K, P_V, P_SH, P_H, P_D, P_GW, P_OUT, P_WS = 16, 18, 20, 24, 26, 28, 30, 32, 34, 36, 40
S_WAVE, S_HP, S_J, S_CG, S_TB = 3, 4, 5, 6, 7
T0, T1, T2, T3 = 8, 9, 10, 11
S_MX, S_MW, S_ROW, S_W4 = 12, 13, 14, 15
S_D, S_TAG = 42, 43
R_X, R_W, R_K, R_V, R_SH, R_GW, R_WS, R_H, R_OUT = 44, 48, 52, 56, 60, 64, 68, 72, 76
S_KVB, S_KVN, S_KVX, S_IT, S_WOS, S_XB, S_KF, S_WOM = 88, 89, 90, 91, 92, 93, 94, 95
S_BLK, S_ROT, S_SPIN, S_MODE, S_QT, S_NQ = 80, 81, 82, 83, 84, 85

SLOT = 28672
L_Z = 4 * SLOT
L_A, A_COPY = L_Z, 4160
L_PRE = L_Z
L_STG = L_PRE + 64 * 144
L_Q = L_A + 8 * 4160
L_MISC = L_Q + 8192
L_B, B_COPY = 0, 4576
L_KVO = SLOT
L_P = 2 * SLOT
L_WO, L_O = 0, 131072
LDS = 163840
L_CNT = LDS - 64
XCH = 2560

SC = " sc1"


def align_ws(e):
    e(f"s_add_u32 s{P_WS}, s{P_WS}, 0xfffff\ns_addc_u32 s{P_WS+1}, s{P_WS+1}, 0\ns_and_b32 s{P_WS}, s{P_WS}, 0xfff00000")


def srd(e, r, p, size):
    if p == P_WS:
        align_ws(e)
    e(f"s_mov_b32 s{r}, s{p}\ns_mov_b32 s{r+1}, s{p+1}\ns_mov_b32 s{r+2}, {size}\ns_mov_b32 s{r+3}, 0x20000")


def stamp(e, i):
    if OPT.get("stamp"):
        e(f"s_memrealtime s[86:87]\ns_waitcnt lgkmcnt(0)\nv_writelane_b32 v255, s86, {i}")
        e(f"s_memtime s[86:87]\ns_waitcnt lgkmcnt(0)\nv_writelane_b32 v255, s86, {32+i}")
        e.dsq = []


def stamp_flush(e, n, dbg=True):
    if OPT.get("stamp"):
        e.wait(vm="*")
        stamp(e, n)
        e(f"""
        s_lshl_b32 s86, s2, 3
        s_add_u32 s86, s86, s{S_WAVE}
        s_lshl_b32 s86, s86, 8
        s_add_u32 s86, s86, {WS_ST}
        v_lshlrev_b32 v11, 2, v1
        buffer_store_dword v255, v11, {sr(R_WS,4)}, s86 offen
        """)
        if OPT.get("dbg") and dbg:
            order = [0, 20, 24, 8, 9, 18, 10, 11, 12, 13, 14, 15, 16, 17]
            e(f"s_cmp_lg_u32 s2, 100\ns_cbranch_scc1 L_nodbg\ns_cmp_lg_u32 s{S_WAVE}, 4\ns_cbranch_scc1 L_nodbg")
            srd(e, R_K, 38, 256)
            e("v_readlane_b32 s87, v255, 0")
            for n, i in enumerate(order):
                e(f"v_readlane_b32 s86, v255, {i}\ns_sub_u32 s86, s86, s87\nv_writelane_b32 v254, s86, {n}")
            e("v_readlane_b32 s86, v255, 44\nv_readlane_b32 s87, v255, 43\ns_sub_u32 s86, s86, s87\nv_writelane_b32 v254, s86, 14")
            e("v_readlane_b32 s86, v255, 49\nv_readlane_b32 s87, v255, 32\ns_sub_u32 s86, s86, s87\nv_writelane_b32 v254, s86, 15")
            e(f"s_mov_b64 exec, 0xffff\nbuffer_store_dword v254, v11, {sr(R_K,4)}, 0 offen\ns_mov_b64 exec, -1\nL_nodbg:")


def deadline(e, key, sfx=""):
    if OPT.get(key):
        e(f"""
        L_dl{key}{sfx}:
        s_memrealtime s[86:87]
        s_waitcnt lgkmcnt(0)
        s_sub_u32 s86, s86, s98
        s_cmp_lt_u32 s86, {OPT[key]}
        s_cbranch_scc1 L_dl{key}{sfx}
        """)
        e.dsq = []


def wave_reduce(e, op, regs):
    for ctl in ("row_shr:1 row_mask:0xf", "row_shr:2 row_mask:0xf", "row_shr:4 row_mask:0xf", "row_shr:8 row_mask:0xf",
                "row_bcast:15 row_mask:0xa", "row_bcast:31 row_mask:0xc"):
        for r in regs:
            e(f"{op}_dpp v{r}, v{r}, v{r} {ctl} bank_mask:0xf")


def poll(e, label, loads, words, first=None):
    e(f"s_mov_b32 s{S_SPIN}, {SPIN_MAX}")
    if first:
        e.wait(vm=first)
        e(f"s_branch {label}_chk")
    e(f"{label}:")
    for ld in loads:
        e(ld)
    e("s_waitcnt vmcnt(0)")
    if first:
        e(f"{label}_chk:")
    else:
        e.vmq = []
    e(f"v_cmp_ne_u32 vcc, s{S_TAG}, v{words[0]}")
    if label == "L_pollkv" and OPT.get("pollat"):
        e("s_and_b64 vcc, vcc, 0xffff")
    for w in words[1:]:
        e(f"v_cmp_ne_u32 s[{T0}:{T1}], s{S_TAG}, v{w}\ns_or_b64 vcc, vcc, s[{T0}:{T1}]")
    e(f"""
    s_cbranch_vccz {label}_ok
    s_sub_u32 s{S_SPIN}, s{S_SPIN}, 1
    s_cbranch_scc0 {label}
    {label}_ok:
    """)


def flag_store(e, base, idx_sreg, data, per_wave=False, width=4, only=None):
    if only is not None:
        e(f"s_cmp_lg_u32 s{S_WAVE}, {only}\ns_cbranch_scc1 L_nofl{base & 0xfffff:x}")
    if per_wave:
        e(f"s_lshl_b32 s{T0}, s{idx_sreg}, 3\ns_add_u32 s{T0}, s{T0}, s{S_WAVE}\ns_lshl_b32 s{T0}, s{T0}, 7")
    else:
        e(f"s_lshl_b32 s{T0}, s{idx_sreg}, 7")
    e(f"""
    s_add_u32 s{T0}, s{T0}, {base}
    v_mov_b32 v{data}, s{S_TAG}
    v_mov_b32 v2, 0
    s_lshl_b64 exec, 1, 63
    """)
    op = "dword" if width == 4 else "dwordx2"
    st = f"buffer_store_{op} {vr(data, width // 4)}, v2, {sr(R_WS,4)}, s{T0} offen{SC}"
    if only is None:
        e.vm("fl", st)
    else:
        assert not e.vmq, e.vmq
        e(st)
    e("s_mov_b64 exec, -1")
    if only is not None:
        e(f"L_nofl{base & 0xfffff:x}:")


def make_tag(e):
    e.wait(vm="gen")
    e(f"""
    v_readfirstlane_b32 s{S_TAG}, v254
    s_mul_i32 s{S_TAG}, s{S_TAG}, 0x9e3779b1
    s_add_u32 s{S_TAG}, s{S_TAG}, 0x7f4a7c15
    """)


def prologue(e):
    e(f"""
    s_cmp_ge_u32 s2, 256
    s_cbranch_scc1 L_end
    s_load_dwordx16 s[16:31], s[0:1], 0
    s_load_dwordx8 s[32:39], s[0:1], 64
    s_load_dwordx2 s[40:41], s[0:1], 96
    v_lshrrev_b32 v1, 6, v0
    v_readfirstlane_b32 s{S_WAVE}, v1
    v_and_b32 v1, 63, v0
    s_bfe_u32 s{T0}, s2, 0x20001
    s_bfe_u32 s{T1}, s2, 0x20003
    s_lshl_b32 s{S_J}, s{T0}, 2
    s_add_u32 s{S_J}, s{S_J}, s{T1}
    s_and_b32 s{T0}, s2, 1
    s_lshr_b32 s{T2}, s2, 5
    s_lshl_b32 s{S_HP}, s{T0}, 3
    s_add_u32 s{S_HP}, s{S_HP}, s{T2}
    s_lshl_b32 s{T1}, s{T1}, 1
    s_add_u32 s{S_ROT}, s{T2}, s{T1}
    s_lshl_b32 s{S_BLK}, s{S_HP}, 4
    s_add_u32 s{S_BLK}, s{S_BLK}, s{S_J}
    s_and_b32 s{S_CG}, s2, 7
    s_lshr_b32 s{S_TB}, s2, 3
    s_and_b32 s{S_W4}, s{S_WAVE}, 3
    v_mov_b32 v2, {WS_GEN}
    """)
    if any(k.startswith(("dl", "dg")) for k in OPT):
        e("s_memrealtime s[98:99]")
    if OPT.get("codepf"):
        e(f"""
        s_cmp_lg_u32 s{S_WAVE}, 7
        s_cbranch_scc1 L_nocpf
        s_getpc_b64 s[{T0}:{T1}]
        L_pc:
        s_mul_hi_u32 s{T2}, s{S_TB}, 0x55555556
        s_mul_i32 s{T2}, s{T2}, 3
        s_sub_u32 s{T2}, s{S_TB}, s{T2}
        s_lshl_b32 s{T2}, s{T2}, 13
        v_lshl_add_u32 v8, v1, 7, s{T2}
        v_min_u32 v8, L_last - L_pc, v8
        v_mov_b32 v9, s{T1}
        v_add_co_u32 v8, vcc, s{T0}, v8
        v_addc_co_u32 v9, vcc, 0, v9, vcc
        global_load_dword v253, v[8:9], off
        L_nocpf:
        """)
    if OPT.get("rot3"):
        e(f"s_lshr_b32 s{T2}, s2, 5\ns_and_b32 s{T2}, s{T2}, 1\ns_sub_u32 s{S_ROT}, s{S_ROT}, s{T2}")
    if OPT.get("norot"):
        e(f"s_mov_b32 s{S_ROT}, 0")
    if OPT.get("rot2"):
        e(f"s_and_b32 s{S_ROT}, s{S_ROT}, 1\ns_lshl_b32 s{S_ROT}, s{S_ROT}, 2")


V_XD, V_WD = 4, 3
V_ADR = 128
ACC0, ACC1 = 96, 112
FR = 144


def frag_addresses(e):
    e(f"""
    v_and_b32 v56, 31, v1
    v_lshrrev_b32 v57, 5, v1
    v_bfe_u32 v58, v1, 1, 3
    v_xor_b32 v58, v58, v57
    v_lshlrev_b32 v58, 4, v58
    v_lshl_add_u32 v58, v56, 7, v58
    s_lshl_b32 s{T0}, s{S_W4}, 12
    v_add_u32 v{V_ADR}, s{T0}, v58
    v_xor_b32 v{V_ADR+1}, 32, v{V_ADR}
    v_xor_b32 v{V_ADR+2}, 64, v{V_ADR}
    v_xor_b32 v{V_ADR+3}, 0x60, v{V_ADR}
    v_bfe_u32 v58, v1, 2, 2
    v_lshl_add_u32 v58, v57, 3, v58
    v_lshlrev_b32 v58, 6, v58
    v_bfe_u32 v59, v1, 4, 1
    v_lshl_add_u32 v58, v59, 5, v58
    v_and_b32 v59, 3, v1
    v_lshl_add_u32 v58, v59, 3, v58
    v_add_u32 v{V_ADR+4}, 0x4000, v58
    """)
    for i in range(5):
        e(f"v_add_u32 v{V_ADR+5+i}, {2*SLOT}, v{V_ADR+i}")


def chunk_dma_steps(e, c):
    slot = (c % 4) * SLOT

    def x(i):
        if i == 0:
            e(f"s_add_u32 s{T1}, s{S_ROT}, {c}\ns_and_b32 s{T1}, s{T1}, 7\ns_add_u32 m0, s{S_MX}, {slot}\ns_lshl_b32 s{T0}, s{T1}, 7")
        e.vm(f"c{c}", f"buffer_load_dwordx4 v{V_XD+i}, {sr(R_X,4)}, s{T0} offen offset:{i*1024}{' nt' if OPT.get('ntx') else ''} lds")

    def w(part):
        if part == 0:
            e(f"s_add_u32 m0, s{S_MW}, {slot}\ns_mul_i32 s{T0}, s{T1}, 196608")
        e.vm(f"c{c}", f"buffer_load_dwordx4 v{V_WD}, {sr(R_W,4)}, s{T0} offen offset:{part*1024}{' nt' if OPT.get('ntx') else ''} lds")

    return [lambda i=i: x(i) for i in range(4)] + [lambda p=p: w(p) for p in range(3)]


def frag_reads(e, c, ks, parts, f):
    a, imm = V_ADR + 5 * ((c % 4) // 2), (c % 2) * SLOT
    e.ds(f"r{c}_{ks}", f"ds_read_b128 {vr(f,4)}, v{a+ks} offset:{imm}")
    for n, part in enumerate(parts):
        for j in range(1 if OPT.get("xhalfw") else 2):
            e.ds(f"r{c}_{ks}", f"ds_read_b64_tr_b16 {vr(f+4+4*n+2*j,2)}, v{a+4} offset:{imm + (ks*3+part)*1024 + j*256}")


SH, GX, GW = 32, 48, 56


def gate_loads(e):
    srd(e, R_GW, P_GW, 1024)
    e(f"""
    s_lshl_b32 s{S_ROW}, s{S_J}, 2
    s_add_u32 s{S_ROW}, s{S_ROW}, s{S_W4}
    s_lshl_b32 s{S_ROW}, s{S_ROW}, 4
    s_add_u32 s{S_ROW}, s{S_ROW}, s{S_HP}
    s_lshl_b32 s{T2}, s{S_ROW}, 11
    """)
    e.vm("gate", f"buffer_load_dwordx4 {vr(GX,4)}, v{V_KO}, {sr(R_X,4)}, s{T2} offen")
    e.vm("gate", f"buffer_load_dwordx4 {vr(GX+4,4)}, v{V_KO}, {sr(R_X,4)}, s{T2} offen offset:1024")
    e.vm("gate", f"buffer_load_dwordx4 {vr(GW,4)}, v{V_KO}, {sr(R_GW,4)}, 0 offen")


def gate_compute(e):
    e.wait(vm="gate")
    for i in range(4):
        for r in range(2):
            e(f"v_dot2_f32_bf16 v{10+r}, v{GX+4*r+i}, v{GW+i}, {'0' if i == 0 else f'v{10+r}'}")
    wave_reduce(e, "v_add_f32", [10, 11])
    for op in (f"v_mul_f32 v{{0}}, {NLOG2E}, v{{0}}", "v_exp_f32 v{0}, v{0}", "v_add_f32 v{0}, 1.0, v{0}", "v_rcp_f32 v{0}, v{0}"):
        e(op.format(10) + "\n" + op.format(11))
    e(f"s_lshl_b32 s{T2}, s{S_ROW}, 3\ns_add_u32 s{T2}, s{T2}, {WS_G}\nv_mov_b32 v2, 0\ns_lshl_b64 exec, 1, 63")
    e.vm("g", f"buffer_store_dwordx2 v[10:11], v2, {sr(R_WS,4)}, s{T2} offen{SC}")
    e("s_mov_b64 exec, -1")


def staging(e):
    e(f"""
    s_cmp_ge_u32 s{S_WAVE}, 4
    s_cbranch_scc1 L_vrole
    s_lshl_b32 s{T0}, s{S_TB}, 2
    s_add_u32 s{T0}, s{T0}, s{S_WAVE}
    s_lshl_b32 s{T0}, s{T0}, 14
    s_lshl_b32 s{T1}, s{S_CG}, 7
    s_add_u32 s{T0}, s{T0}, s{T1}
    v_lshrrev_b32 v54, 3, v1
    v_and_b32 v55, 7, v1
    v_lshlrev_b32 v55, 4, v55
    v_lshl_add_u32 v54, v54, 10, v55
    v_add_u32 v54, s{T0}, v54
    v_add_u32 v53, 0xffffe000, v54
    v_add_u32 v55, 0x2000, v54
    s_mul_i32 s{S_MX}, s{S_WAVE}, 5120
    s_add_u32 s{S_MX}, s{S_MX}, {L_STG}
    v_and_b32 v49, 31, v1
    s_lshl_b32 s{T1}, s{S_CG}, 9
    v_lshl_add_u32 v6, v49, 4, s{T1}
    s_waitcnt lgkmcnt(0)
    """)
    srd(e, R_SH, P_SH, 4096)
    e.vm("pre", f"buffer_load_dwordx4 {vr(SH,4)}, v6, {sr(R_SH,4)}, 0 offen")
    srd(e, R_K, P_K, 0x200000)
    srd(e, R_V, P_V, 0x200000)
    for n, (r, v) in enumerate(((R_K, 53), (R_K, 54), (R_K, 55), (R_V, 54), (R_V, 55))):
        e(f"s_add_u32 m0, s{S_MX}, {n*1024}")
        e.vm("pre", f"buffer_load_dwordx4 v{v}, {sr(r,4)}, 0 offen lds")


def wo_prefetch(e):
    e(f"""
    s_cmp_ge_u32 s{S_WAVE}, 6
    s_cbranch_scc1 L_nowopf
    s_lshr_b32 s{T0}, s2, 5
    s_lshl_b32 s{T0}, s{T0}, 1
    s_add_u32 s{T0}, s{T0}, s{S_W4}
    s_lshl_b32 s{T0}, s{T0}, 15
    s_lshl_b32 s{T1}, s{S_NQ}, 8
    s_add_u32 s{T0}, s{T0}, s{T1}
    v_lshrrev_b32 v10, 1, v1
    v_lshlrev_b32 v10, 10, v10
    v_and_b32 v11, 1, v1
    v_lshl_add_u32 v10, v11, 7, v10
    buffer_load_dword v252, v10, {sr(R_W,4)}, s{T0} offen
    L_nowopf:
    """)


def prepass_compute(e):
    KR, VR, KF, VF, WF, U, PK = 8, 20, 144, 166, 182, 190, 144
    e(f"""
    v_lshrrev_b32 v48, 5, v0
    v_lshrrev_b32 v53, 5, v1
    v_lshlrev_b32 v53, 10, v53
    v_lshl_add_u32 v53, v49, 2, v53
    v_add_u32 v53, s{S_MX}, v53
    """)
    for i in range(11):
        e.ds(f"pk{i//4}", f"ds_read_b32 v{KR+i}, v53 offset:{(5+i)*128}")
    e(f"""
    v_mul_u32_u24 v50, 288, v49
    v_lshlrev_b32 v48, 4, v48
    v_sub_u32 v50, v50, v48
    v_add_u32 v50, {L_PRE + 112}, v50
    """)
    for j in range(4):
        if j % 2 == 0:
            e(f"v_lshlrev_b32 v{WF+2*j}, 16, v{SH+j//2}\nv_lshlrev_b32 v{WF+2*j+1}, 16, v{SH+2+j//2}")
        else:
            e(f"v_and_b32 v{WF+2*j}, 0xffff0000, v{SH+j//2}\nv_and_b32 v{WF+2*j+1}, 0xffff0000, v{SH+2+j//2}")
    for i in range(11):
        if i % 4 == 0:
            e.wait(ds=f"pk{i//4}")
        if i == 4:
            for k in range(8):
                e.ds("pv", f"ds_read_b32 v{VR+k}, v53 offset:{3072 + k*128}")
        e(f"v_lshlrev_b32 v{KF+2*i}, 16, v{KR+i}\nv_and_b32 v{KF+2*i+1}, 0xffff0000, v{KR+i}")
    for j in (3, 2, 1, 0):
        for o in range(8):
            kr = KF + 2 * (o + 3 - j)
            if j == 3:
                e(f"v_pk_mul_f32 {vr(U+2*o,2)}, {vr(kr,2)}, {vr(WF+2*j,2)}")
            else:
                e(f"v_pk_fma_f32 {vr(U+2*o,2)}, {vr(kr,2)}, {vr(WF+2*j,2)}, {vr(U+2*o,2)}")
    e.wait(ds="pv")
    for i in range(8):
        e(f"v_lshlrev_b32 v{VF+2*i}, 16, v{VR+i}\nv_and_b32 v{VF+2*i+1}, 0xffff0000, v{VR+i}")
    for o in range(8):
        e(f"v_pk_mul_f32 {vr(U+2*o,2)}, {vr(U+2*o,2)}, {vr(VF+2*o,2)}")
    for ch in range(2):
        for q in range(4):
            e(f"v_cvt_pk_bf16_f32 v{PK+4*ch+q}, v{U+2*(7-2*q)+ch}, v{U+2*(6-2*q)+ch}")
        e.ds("pw", f"ds_write_b128 v50, {vr(PK+4*ch,4)} offset:{ch*144}")
    e(f"""
    v_lshrrev_b32 v48, 3, v0
    v_and_b32 v52, 7, v0
    v_lshlrev_b32 v52, 4, v52
    v_mul_u32_u24 v51, 144, v48
    v_add_u32 v51, v51, v52
    v_add_u32 v51, {L_PRE}, v51
    v_mul_u32_u24 v48, {USTR}, v48
    v_add_u32 v52, v48, v52
    s_mul_i32 s{S_MW}, s{S_CG}, {64*USTR}
    s_lshl_b32 s{T3}, s{S_TB}, 7
    s_sub_u32 s{S_MW}, s{S_MW}, s{T3}
    s_add_u32 s{S_MW}, s{S_MW}, {WS_U + 3968}
    """)


def prepass_read(e):
    e.ds("pr", "ds_read_b128 v[8:11], v51")
    e.ds("pr", f"ds_read_b128 v[12:15], v51 offset:{32*144}")


def prepass_out(e):
    e(f"s_add_u32 s{T1}, s{S_MW}, {32*USTR}")
    e.wait(ds="pr")
    e.vm("ust", f"buffer_store_dwordx4 v[8:11], v52, {sr(R_WS,4)}, s{S_MW} offen{SC}")
    e.vm("ust", f"buffer_store_dwordx4 v[12:15], v52, {sr(R_WS,4)}, s{T1} offen{SC}")


def of_slot(e, s, tmp):
    e(f"""
    s_lshl_b32 s{s}, s{S_J}, 2
    s_add_u32 s{s}, s{s}, s{S_W4}
    s_lshl_b32 s{s}, s{s}, 1
    s_lshr_b32 s{tmp}, s{S_WAVE}, 2
    s_add_u32 s{s}, s{s}, s{tmp}
    s_lshl_b32 s{s}, s{s}, 4
    s_add_u32 s{s}, s{s}, s{S_HP}
    s_lshl_b32 s{s}, s{s}, 10
    s_add_u32 s{s}, s{s}, {WS_OF}
    """)


UFLAG_AT = 4


def gemm_qk(e):
    srd(e, R_X, P_X, 0x200000)
    srd(e, R_WS, P_WS, WS_SIZE)
    e.vm("gen", f"buffer_load_dword v254, v2, {sr(R_WS,4)}, 0 offen sc0 sc1")
    frag_addresses(e)
    e(f"v_and_b32 v8, 7, v1\nv_lshlrev_b32 v8, 2, v8\nv_add_u32 v8, {L_CNT}, v8\nv_mov_b32 v9, 0")
    e.ds("cnt", "ds_write_b32 v8, v9")
    stamp(e, 1)
    e.wait(vm="pre")
    stamp(e, 2)
    prepass_compute(e)
    make_tag(e)

    attn_addresses(e)
    conv_addresses(e)
    p3_ids(e)
    u_flag_load(e)
    e("s_waitcnt lgkmcnt(0)")
    e.dsq = []
    if OPT.get("dg3"):
        srd(e, R_OUT, 38, 256)
        e(f"s_not_b32 s86, s98\nv_mov_b32 v252, s86\nv_mov_b32 v253, 0\ns_mov_b64 exec, 1")
        e(f"buffer_atomic_umax v252, v253, {sr(R_OUT,4)}, 0 offen sc1\ns_mov_b64 exec, -1\ns_waitcnt vmcnt(0)")
    deadline(e, "dl0")
    stamp(e, 3)

    if OPT.get("qprio"):
        e("s_setprio 1")

    def fr(ks):
        return FR + 12 * ks

    def mm(c, ks):
        e.wait(ds=f"r{c}_{ks}")
        f = fr(ks)
        first = c == 0 and ks == 0
        e(f"v_mfma_f32_32x32x16_bf16 {vr(ACC0,16)}, {vr(f+4,4)}, {vr(f,4)}, {'0' if first else vr(ACC0,16)}")
        e(f"v_mfma_f32_32x32x16_bf16 {vr(ACC1,16)}, {vr(f+8,4)}, {vr(f,4)}, {'0' if first else vr(ACC1,16)}")

    for c in range(8):
        if c == int(OPT.get('uf', UFLAG_AT)):
            e.wait(vm="*")
        if c and OPT.get("d3"):
            e.wait(ds=f"r{c-1}_3")
        if not (OPT.get("xnobar") and c in (5, 6)):
            e("s_barrier")
        if c in (0, 1, 4, 7) or OPT.get('allst'):
            stamp(e, 20 + c)
        if c == int(OPT.get('uf', UFLAG_AT)):
            flag_store(e, FL_U, 2, 8, only=0)
        if c == 0:
            prepass_read(e)
        frag_reads(e, c, 0, (0, 1), fr(0))
        if c:
            mm(c - 1, 2)
        frag_reads(e, c, 1, (0, 1), fr(1))
        if c:
            mm(c - 1, 3)
        frag_reads(e, c, 2, (0, 1), fr(2))
        mm(c, 0)
        frag_reads(e, c, 3, (0, 1), fr(3))
        mm(c, 1)
        if c == 0:
            prepass_out(e)
    e.vm("uf", u_flag_load(e, True))
    mm(7, 2)
    mm(7, 3)


def loader_setup(e):
    e(f"""
    v_lshrrev_b32 v36, 3, v1
    v_lshrrev_b32 v37, 4, v1
    v_xor_b32 v37, v37, v1
    v_and_b32 v37, 7, v37
    v_lshlrev_b32 v37, 4, v37
    v_lshl_add_u32 v37, v36, 10, v37
    s_lshl_b32 s{T0}, s{S_J}, 2
    s_add_u32 s{T0}, s{T0}, s{S_W4}
    s_lshl_b32 s{T0}, s{T0}, 15
    v_add_u32 v{V_XD}, s{T0}, v37
    v_xor_b32 v{V_XD+1}, 64, v{V_XD}
    v_add_u32 v{V_XD+2}, {16384-2048}, v{V_XD}
    v_add_u32 v{V_XD+3}, {24576-3072}, v{V_XD+1}
    v_add_u32 v{V_XD+1}, {8192-1024}, v{V_XD+1}
    s_lshl_b32 s{S_MX}, s{S_W4}, 12
    v_bfe_u32 v36, v0, 2, 6
    v_mul_u32_u24 v36, 0xc00, v36
    v_and_b32 v37, 3, v1
    v_lshl_add_u32 v36, v37, 4, v36
    s_lshl_b32 s{T0}, s{S_HP}, 6
    v_add_u32 v{V_WD}, s{T0}, v36
    s_mul_i32 s{S_MW}, s{S_W4}, 3072
    s_add_u32 s{S_MW}, s{S_MW}, 16384
    s_waitcnt lgkmcnt(0)
    """)
    srd(e, R_X, P_X, 0x200000)
    srd(e, R_W, P_W, 0x180000)


def conv_h_steps(e):
    e(f"""
    s_lshr_b32 s{T0}, s{S_W4}, 1
    s_lshl_b32 s{T1}, s2, 1
    s_add_u32 s{T1}, s{T1}, s{T0}
    s_lshl_b32 s{T2}, s{T1}, 12
    s_add_u32 s{R_H}, s{P_H}, s{T2}
    s_addc_u32 s{R_H+1}, s{P_H+1}, 0
    s_mov_b32 s{R_H+2}, 4096
    s_mov_b32 s{R_H+3}, 0x20000
    s_and_b32 s{T0}, s{S_W4}, 1
    s_lshl_b32 s{T0}, s{T0}, 3
    v_lshl_add_u32 v8, v1, 4, s{T0}
    v_lshl_add_u32 v9, v1, 2, s{T0}
    s_mul_i32 s{T2}, s{S_W4}, {2*A_COPY}
    """)
    steps = []
    for cc in range(2):
        def big(i, cc=cc):
            if i == 0:
                e(f"v_add_u32 v10, {4+4*cc}, v8\nv_add_u32 v11, {-60+4*cc}, v9\ns_add_u32 m0, s{T2}, {L_A + cc*A_COPY + 64}")
            e.vm("h", f"buffer_load_dwordx4 v10, {sr(R_H,4)}, 0 offen offset:{i*1024} lds")

        def head(cc=cc):
            e(f"s_add_u32 m0, s{T2}, {L_A + cc*A_COPY}\ns_mov_b64 exec, 0xffff")
            e.vm("h", f"buffer_load_dword v11, {sr(R_H,4)}, 0 offen lds")
            e("s_mov_b64 exec, -1")
        steps += [lambda i=i, big=big: big(i) for i in range(4)] + [head]
    return steps


def u_flag_load(e, text_only=False):
    ld = f"buffer_load_dword v28, v29, {sr(R_WS,4)}, s{S_WOS} offen{SC}"
    if text_only:
        return ld
    e(f"""
    v_and_b32 v29, 31, v1
    v_lshlrev_b32 v29, 10, v29
    s_lshr_b32 s{S_WOS}, s2, 5
    s_lshl_b32 s{S_WOS}, s{S_WOS}, 7
    s_add_u32 s{S_WOS}, s{S_WOS}, {FL_U}
    s_lshr_b32 s{T0}, s{S_W4}, 1
    s_lshl_b32 s{S_KF}, s2, 1
    s_add_u32 s{S_KF}, s{S_KF}, s{T0}
    s_mul_i32 s{S_KF}, s{S_KF}, {USTR}
    s_and_b32 s{T0}, s{S_W4}, 1
    s_lshl_b32 s{T0}, s{T0}, 1
    s_sub_u32 s{S_KF}, s{S_KF}, s{T0}
    s_add_u32 s{S_KF}, s{S_KF}, {WS_U + 2}
    """)


def conv_u_loads(e):
    poll(e, "L_pollu", [u_flag_load(e, True)], [28], first="uf")
    e(f"s_mul_i32 s{S_WOS}, s{S_W4}, {B_COPY}\ns_add_u32 m0, s{S_WOS}, {L_B}")
    for i in range(4):
        e.vm("u", f"buffer_load_dwordx4 v{V_KO}, {sr(R_WS,4)}, s{S_KF} offen offset:{i*1024}{SC} lds")


def conv_u_pad(e):
    e.wait(vm="u")
    e(f"""
    v_lshl_add_u32 v12, v1, 3, s{S_WOS}
    v_mov_b32 v10, 0
    v_mov_b32 v11, 0
    s_lshr_b64 exec, -1, 4
    ds_write_b64 v12, v[10:11] offset:{L_B + 4096}
    s_and_b32 s{T0}, s{S_WAVE}, 1
    s_xor_b32 exec_lo, s{T0}, 1
    s_mov_b32 exec_hi, 0
    ds_write_b16 v12, v10 offset:{L_B + 4094}
    s_mov_b64 exec, -1
    """)


def gemm_v(e):
    for c in range(3 if OPT.get("d3") else 2):
        for st in chunk_dma_steps(e, c):
            st()
    srd(e, R_WS, P_WS, WS_SIZE)
    e.vm("gen", f"buffer_load_dword v254, v2, {sr(R_WS,4)}, 0 offen sc0 sc1")
    stamp(e, 1)
    stamp(e, 2)
    frag_addresses(e)
    for c in range(8):
        e.wait(vm=f"c{c}")
        if c == 0:
            stamp(e, 3)
        if not (OPT.get("xnobar") and c in (5, 6)):
            e("s_barrier")
        if c in (0, 1, 4, 7) or OPT.get('allst'):
            stamp(e, 20 + c)
        steps = chunk_dma_steps(e, c + 2) if c + 2 < 8 else conv_h_steps(e) if c == 6 else []
        if OPT.get("d3"):
            steps = chunk_dma_steps(e, c + 3) if c + 3 < 8 else conv_h_steps(e) if c == int(OPT["d3"]) else []
        if OPT.get("xnodma") and 2 <= c < 6:
            steps = []
        per = 2 if c == 6 else 1

        def step():
            for _ in range(per):
                if steps:
                    steps.pop(0)()
        if c == 7:
            attn_addresses(e)
        if OPT.get("vclu"):
            while steps:
                step()
        for ks in range(4):
            step()
            frag_reads(e, c, ks, (2,), FR + 8 * ks)
        for ks in range(4):
            e.wait(ds=f"r{c}_{ks}")
            f = FR + 8 * ks
            e(f"v_mfma_f32_32x32x16_bf16 {vr(ACC0,16)}, {vr(f,4)}, {vr(f+4,4)}, {'0' if c + ks == 0 else vr(ACC0,16)}")
            step()
        assert not steps
        if c == 3:
            make_tag(e)


def tile_base(e, s):
    e(f"s_mul_i32 s{s}, s{S_BLK}, {BLK}\ns_mul_i32 s{T3}, s{S_W4}, {TILE}\ns_add_u32 s{s}, s{s}, s{T3}")


V_MK = 41


def epi_qk(e):
    QP, KP = 8, 16
    e(f"""
    v_and_b32 v36, 0x33, v1
    v_bfe_u32 v37, v1, 2, 1
    v_lshl_or_b32 v36, v37, 3, v36
    v_bfe_u32 v37, v1, 3, 1
    v_lshl_or_b32 v36, v37, 2, v36
    v_lshlrev_b32 v36, 4, v36
    s_lshl_b32 s{T2}, s{S_W4}, 11
    v_add_u32 v38, s{T2}, v36
    s_mov_b32 s{S_MX}, {QSCALE}
    s_mov_b32 s{S_MW}, {QSCALE}
    s_lshl_b32 s{T2}, s{S_W4}, 10
    v_lshl_add_u32 v37, v1, 4, s{T2}
    """)
    for i in range(8):
        e(f"v_cvt_pk_bf16_f32 v{KP+i}, v{ACC1+2*i}, v{ACC1+2*i+1}")
    e.ds("ew", f"ds_write_b128 v38, {vr(KP,4)} offset:{L_KVO}")
    e.ds("ew", f"ds_write_b128 v38, {vr(KP+4,4)} offset:{L_KVO + 8192}")
    for i in range(8):
        e(f"v_pk_mul_f32 {vr(ACC0+2*i,2)}, {vr(ACC0+2*i,2)}, s[{S_MX}:{S_MW}]")
    for i in range(8):
        e(f"v_cvt_pk_bf16_f32 v{QP+i}, v{ACC0+2*i}, v{ACC0+2*i+1}")
    e(f"v_add_u32 v37, {L_Q}, v37")
    e.ds("ew", f"ds_write_b128 v37, {vr(QP,4)}")
    e.ds("ew", f"ds_write_b128 v37, {vr(QP+4,4)} offset:4096")
    for i in range(4):
        for d, s in ((42, QP), (43, QP + 4), (V_MK, KP), (44, KP + 4)):
            e(f"v_dot2_f32_bf16 v{d}, v{s+i}, v{s+i}, {'0' if i == 0 else f'v{d}'}")
    e(f"v_max_f32 v42, v42, v43\nv_max_f32 v{V_MK}, v{V_MK}, v44")
    wave_reduce(e, "v_max_f32", [42, V_MK])
    e(f"s_lshl_b32 s{T2}, s{S_W4}, 2\ns_add_u32 s{T2}, s{T2}, {L_MISC}\nv_mov_b32 v37, s{T2}\ns_lshl_b64 exec, 1, 63")
    e.ds("ew", f"ds_write_b32 v37, v42")
    e.ds("ew", f"ds_write_b32 v37, v{V_MK} offset:32")
    e("s_mov_b64 exec, -1")


def epi_v(e):
    VP = 16
    tile_base(e, T0)
    e(f"""
    v_bfe_u32 v38, v1, 4, 1
    v_lshrrev_b32 v37, 5, v1
    v_lshlrev_b32 v37, 8, v37
    v_and_b32 v39, 15, v1
    v_lshl_add_u32 v37, v39, 4, v37
    v_mad_u32_u24 v36, v38, s{S_MX}, v37
    v_lshl_add_u32 v37, v38, 13, v37
    s_lshl_b32 s{T2}, s{S_W4}, 11
    v_add_u32 v37, s{T2}, v37
    v_and_b32 v39, 1, v1
    v_mul_u32_u24 v39, {4*TILE}, v39
    v_and_b32 v24, 2, v1
    v_lshl_add_u32 v39, v24, 3, v39
    v_cmp_eq_u32 vcc, 0, v24
    v_mov_b32 v25, 0x3f803f80
    v_cndmask_b32 v24, 0, v25, vcc
    """.replace(f"v_mad_u32_u24 v36, v38, s{S_MX}, v37", f"s_movk_i32 s{S_MX}, {4*TILE}\nv_mad_u32_u24 v36, v38, s{S_MX}, v37"))
    for i in range(1, 4):
        e(f"v_mov_b32 v{24+i}, v24")
    for i in range(8):
        e(f"v_cvt_pk_bf16_f32 v{VP+i}, v{ACC0+2*i}, v{ACC0+2*i+1}")
    e.vm("st", f"buffer_store_dwordx4 {vr(VP,4)}, v36, {sr(R_WS,4)}, s{T0} offen offset:1024{SC}")
    e.vm("st", f"buffer_store_dwordx4 {vr(VP+4,4)}, v36, {sr(R_WS,4)}, s{T0} offen offset:1536{SC}")
    e("s_mov_b64 exec, 15")
    e.vm("st", f"buffer_store_dwordx4 v[24:27], v39, {sr(R_WS,4)}, s{T0} offen offset:2048{SC}")
    e("s_mov_b64 exec, -1")
    e.ds("ew", f"ds_write_b128 v37, {vr(VP,4)} offset:{L_KVO + 1024}")
    e.ds("ew", f"ds_write_b128 v37, {vr(VP+4,4)} offset:{L_KVO + 1536}")


O_ACC, S_BUF, Q_FR, KV_ST = 64, 128, 192, 208
V_IDX, V_KO, V_V0, V_V1 = 244, 245, 246, 247
NS = 3
C_ACC, C_B = 16, 144
C_A = 32


def ca(a):
    return 48 + 4 * a if a < 4 else 128 + 4 * (a - 4)


def kv_regs(j):
    b = KV_ST + 12 * (j % NS)
    return b, b + 4, b + 8


V_AQ = 64


def attn_addresses(e):
    k, v0, v1 = kv_regs(0)
    e(f"""
    v_lshlrev_b32 v{V_KO}, 4, v1
    v_lshrrev_b32 v60, 5, v1
    v_lshlrev_b32 v60, 4, v60
    v_and_or_b32 v60, v1, 15, v60
    v_lshlrev_b32 v60, 4, v60
    s_lshl_b32 s{T2}, s{S_WAVE}, 11
    v_add_u32 v{V_AQ+4}, s{T2}, v{V_KO}
    v_add_u32 v{V_AQ+5}, s{T2}, v60
    v_and_b32 v61, 27, v1
    v_cmp_eq_u32 vcc, 16, v61
    v_mov_b32 v61, 0x3f803f80
    v_mov_b32 v62, 1040
    v_cndmask_b32 v61, 0, v61, vcc
    v_mov_b32 v63, 1024
    v_cndmask_b32 v{V_V0}, v62, v63, vcc
    v_add_u32 v{V_V1}, 0xfffffe00, v{V_V0}
    v_and_b32 v62, 16, v1
    v_cmp_eq_u32 vcc, 0, v62
    v_mov_b32 v{V_IDX}, 0xdddddddd
    s_mul_i32 s{T2}, s{S_WAVE}, {TILE}
    v_cndmask_b32 v{V_V0}, v{V_V0}, v60, vcc
    v_cndmask_b32 v{V_V1}, v{V_V1}, v60, vcc
    s_lshl_b32 s{T3}, s{S_BLK}, 15
    s_add_u32 s{S_KVB}, s{T2}, s{T3}
    s_add_u32 s{S_KVB}, s{S_KVB}, s{P_WS}
    s_addc_u32 s39, s{P_WS+1}, 0
    s_mov_b32 s{S_KVN}, 0
    """)
    for i in range(8):
        e(f"v_mov_b32 v{v0+i}, v61")
    e(f"s_lshr_b32 s{T2}, s{S_WAVE}, 2\ns_lshl_b32 s{T2}, s{T2}, 12\ns_add_u32 s{T2}, s{T2}, {L_Q}")
    for i in range(4):
        e(f"s_add_u32 s{T3}, s{S_W4}, {i}\ns_and_b32 s{T3}, s{T3}, 3\ns_lshl_b32 s{T3}, s{T3}, 10\ns_add_u32 s{T3}, s{T3}, s{T2}")
        e(f"v_add_u32 v{V_AQ+i}, s{T3}, v{V_KO}")
    e(f"v_and_b32 v70, 3, v1\nv_lshlrev_b32 v70, 2, v70\nv_add_u32 v70, {L_MISC}, v70")


def attn_reads(e):
    k, v0, v1 = kv_regs(0)
    e.ds("ak", f"ds_read_b128 {vr(k,4)}, v{V_AQ+4} offset:{L_KVO}")
    for i in range(4):
        e.ds("aq", f"ds_read_b128 {vr(Q_FR+4*i,4)}, v{V_AQ+i}")
    e("s_mov_b32 exec_lo, 0xffff\ns_mov_b32 exec_hi, 0xffff")
    e.ds("aq", f"ds_read_b128 {vr(v0,4)}, v{V_AQ+5} offset:{L_KVO + 1024}")
    e.ds("aq", f"ds_read_b128 {vr(v1,4)}, v{V_AQ+5} offset:{L_KVO + 1536}")
    e("s_mov_b64 exec, -1")
    e.ds("mq", "ds_read_b32 v42, v70")
    e.ds("mq", f"ds_read_b32 v{V_MK}, v70 offset:32")


S_KVO = 38


def kv_next(e):
    e(f"s_add_u32 s{S_KVN}, s{S_KVN}, {BLK}\ns_xor_b32 s{S_KVO}, s{S_KVB}, s{S_KVN}")


def kv_load(e, j, advance=True):
    k, v0, v1 = kv_regs(j)
    if advance:
        kv_next(e)
    e.vm(f"kv{j}", f"global_load_dwordx4 {vr(k,4)}, v{V_KO}, s[{S_KVO}:{S_KVO+1}]{SC}")
    e.vm(f"kv{j}", f"global_load_dwordx4 {vr(v0,4)}, v{V_V0}, s[{S_KVO}:{S_KVO+1}] offset:1024{SC}")
    e.vm(f"kv{j}", f"global_load_dwordx4 {vr(v1,4)}, v{V_V1}, s[{S_KVO}:{S_KVO+1}] offset:1536{SC}")


def conv_ra(e, tag, a):
    e.ds(f"a{a}{tag}", f"ds_read_b128 {vr(ca(a),4)}, v248 offset:{a*512}")


def conv_rb(e, tag, b):
    e.ds(f"b{b}{tag}", f"ds_read_b128 {vr(C_B+4*b,4)}, v249 offset:{(7-b)*512}")


def conv_body(e, kind):
    if kind != "last":
        e("v_add_u32 v248, 64, v248\nv_add_u32 v249, 64, v249")
    done = []
    for a in range(8):
        for b in range(7 - a, -1, -1):
            e.wait(ds=[f"a{a}", f"b{b}"])
            n = a + b
            c = "0" if kind == "first" and a == 0 else vr(C_ACC + 4 * n, 4)
            e(f"v_mfma_f32_16x16x32_bf16 {vr(C_ACC+4*n,4)}, {vr(ca(a),4)}, {vr(C_B+4*b,4)}, {c}")
            if kind == "last":
                if done and len(e.l) - done[0][1] >= 8:
                    m = done.pop(0)[0]
                    e.ds("pw", f"ds_write_b128 v2, {vr(C_ACC+4*m,4)} offset:{m*1024}")
                if b == 0:
                    done.append((a, len(e.l)))
                continue
            if b == 7 - a:
                conv_rb(e, "n", b)
            if b == 0:
                conv_ra(e, "n", a)
    for m, _ in done:
        e.ds("pw", f"ds_write_b128 v2, {vr(C_ACC+4*m,4)} offset:{m*1024}")
    e.dsq = [t[:-1] if t.endswith("n") else t for t in e.dsq]


def conv_mfma(e):
    for a in range(8):
        conv_rb(e, "", 7 - a)
        conv_ra(e, "", a)
    e(f"s_lshl_b32 s{T1}, s{S_WAVE}, 13\ns_add_u32 s{T1}, s{T1}, {L_P}\nv_add_u32 v2, s{T1}, v{V_KO}\ns_mov_b32 s{T0}, 1")
    conv_body(e, "first")
    q = list(e.dsq)
    b = e.fork()
    conv_body(b, "mid")
    assert b.dsq == q
    b(f"s_sub_u32 s{T0}, s{T0}, 1\ns_cbranch_scc0 L_cvloop")
    body = pad(b.l)
    check_seq(body + body, "conv loop")
    e("L_cvloop:\n" + "\n".join(body))
    conv_body(e, "last")
    e.wait(ds="*")


def conv_addresses(e):
    e(f"""
    s_lshl_b32 s{T2}, s2, 2
    s_load_dword s{S_D}, s[{P_D}:{P_D+1}], s{T2}
    v_and_b32 v60, 3, v1
    v_mul_u32_u24 v248, {A_COPY}, v60
    v_bfe_u32 v60, v1, 2, 2
    v_lshrrev_b32 v61, 4, v1
    v_add_u32 v60, v60, v61
    v_lshl_add_u32 v248, v60, 4, v248
    s_lshr_b32 s{T0}, s{S_W4}, 1
    s_and_b32 s{T1}, s{S_WAVE}, 1
    s_lshl_b32 s{T1}, s{T1}, 8
    s_mul_i32 s{T2}, s{T0}, {4*A_COPY}
    s_add_u32 s{T2}, s{T2}, s{T1}
    s_add_u32 s{T2}, s{T2}, {L_A}
    v_add_u32 v248, s{T2}, v248
    v_and_b32 v60, 1, v1
    v_mul_u32_u24 v249, {B_COPY}, v60
    v_lshl_add_u32 v249, v61, 4, v249
    v_bfe_u32 v60, v1, 1, 3
    v_lshlrev_b32 v60, 6, v60
    v_sub_u32 v249, v249, v60
    v_add_u32 v250, {L_B + 4080}, v249
    v_lshlrev_b32 v62, 5, v61
    v_sub_u32 v250, v250, v62
    s_lshl_b32 s{T3}, s{S_WAVE}, 9
    v_subrev_u32 v250, s{T3}, v250
    s_mul_i32 s{T2}, s{T0}, {2*B_COPY}
    s_add_u32 s{T2}, s{T2}, s{T1}
    s_add_u32 s{T2}, s{T2}, {L_B + 448}
    v_add_u32 v249, s{T2}, v249
    """)


def k_publish(e):
    e(f"v_add_u32 v28, {-8192 & 0xffffffff}, v{V_AQ+4}")
    e.ds("kp", f"ds_read_b128 v[44:47], v28 offset:{L_KVO}")
    attn_reads(e)
    tile_base(e, T0)
    e(f"s_add_u32 s{T1}, s{T0}, {4*TILE}")
    e.wait(ds="kp")
    e.vm("st", f"buffer_store_dwordx4 v[44:47], v{V_KO}, {sr(R_WS,4)}, s{T0} offen{SC}")
    e.wait(ds="ak")
    e.vm("st", f"buffer_store_dwordx4 {vr(kv_regs(0)[0],4)}, v{V_KO}, {sr(R_WS,4)}, s{T1} offen{SC}")


def norms_max(e):
    e.wait(ds="mq")
    for ctl in ("row_shr:1", "row_shr:2"):
        for r in (42, V_MK):
            e(f"v_max_f32_dpp v{r}, v{r}, v{r} {ctl} row_mask:0xf bank_mask:0xf")


def kv_signal(e, sfx):
    e.wait(vm="st")
    e(f"""
    v_mov_b32 v10, {L_CNT}
    v_mov_b32 v11, 1
    s_lshl_b64 exec, 1, 63
    ds_add_rtn_u32 v11, v10, v11
    s_waitcnt lgkmcnt(0)
    v_cmp_eq_u32 vcc, 3, v11
    s_cbranch_vccz L_sig{sfx}
    s_lshl_b32 s{T0}, s{S_BLK}, 7
    s_add_u32 s{T0}, s{T0}, {FL_KV}
    v_mov_b32 v{V_MK-1}, s{S_TAG}
    v_mov_b32 v10, 0
    buffer_store_dwordx2 {vr(V_MK-1,2)}, v10, {sr(R_WS,4)}, s{T0} offen{SC}
    L_sig{sfx}:
    s_mov_b64 exec, -1
    """)
    e.dsq = []


def kv_flag_load(e, text_only=False):
    ld = f"buffer_load_dwordx2 v[12:13], v14, {sr(R_WS,4)}, s{S_KF} offen{SC}"
    if OPT.get("pollat"):
        ld = f"v_mov_b32 v12, 0\nv_mov_b32 v13, 0\ns_mov_b64 exec, 0xffff\nbuffer_atomic_or_x2 v[12:13], v14, {sr(R_WS,4)}, s{S_KF} offen sc0 sc1\ns_mov_b64 exec, -1"
    if text_only:
        return ld
    e(f"""
    s_lshl_b32 s{S_KF}, s{S_HP}, 11
    s_add_u32 s{S_KF}, s{S_KF}, {FL_KV}
    v_and_b32 v14, 15, v1
    v_cmp_eq_u32 vcc, s{S_J}, v14
    v_xor_b32 v15, 1, v14
    v_cndmask_b32 v14, v14, v15, vcc
    v_lshlrev_b32 v14, 7, v14
    """)
    e.vm("kf", ld)


def kv_wait_and_decide(e):
    for i in range(4):
        e(f"v_mov_b32 v{16+i}, -1")
    of_slot(e, S_XB, T1)
    e(f"s_sub_u32 s{T2}, s{S_XB}, 16384")
    for so in (S_XB, T2):
        e.vm("px", f"buffer_store_dwordx4 v[16:19], v{V_KO}, {sr(R_WS,4)}, s{so} offen{SC}")
    wo_prefetch(e)
    wo_addresses(e)
    if OPT.get("poll1"):
        e(f"s_cmp_lg_u32 s{S_WAVE}, 4\ns_cbranch_scc1 L_nopoll")
    kv_flag_load(e)
    poll(e, "L_pollkv", [kv_flag_load(e, True)], [12], first="kf")
    if not OPT.get("poll1"):
        for j in (1, 2):
            kv_load(e, j)
    for ctl in ("row_shr:1", "row_shr:2", "row_shr:4", "row_shr:8"):
        e(f"v_max_f32_dpp v13, v13, v13 {ctl} row_mask:0xf bank_mask:0xf")
    if OPT.get("pollat"):
        e("v_max_f32_dpp v13, v13, v13 row_bcast:15 row_mask:0xa bank_mask:0xf\nv_max_f32_dpp v13, v13, v13 row_bcast:31 row_mask:0xc bank_mask:0xf")
    e(f"v_max_f32 v13, v13, v{V_MK}\nv_mul_f32 v11, v42, v13\nv_mov_b32 v10, {L_MISC + 16}\ns_lshl_b64 exec, 1, 63")
    e.ds("dw", "ds_write_b32 v10, v11")
    e("s_mov_b64 exec, -1")
    e.wait(ds="*")
    if OPT.get("poll1"):
        e("L_nopoll:")


def conv_final(e):
    e(f"""
    s_lshl_b32 s{T1}, s{S_WAVE}, 10
    s_add_u32 s{T1}, s{T1}, {L_P}
    v_add_u32 v2, s{T1}, v{V_KO}
    v_mov_b32 v10, {L_MISC + 16}
    """)
    e.ds("cp", "ds_read_b32 v11, v10")
    for q in range(4):
        e.ds("cp", f"ds_read_b128 {vr(C_A+4*q,4)}, v2 offset:{q*8192}")
    for ch in range(2):
        e.ds("cp", f"ds_read_b128 {vr(C_B+4*ch,4)}, v250 offset:{ch*2*B_COPY}")
    e(f"""
    v_bfe_u32 v2, v1, 1, 3
    v_lshlrev_b32 v2, 7, v2
    v_lshrrev_b32 v59, 4, v1
    v_lshl_add_u32 v2, v59, 5, v2
    v_and_b32 v10, 1, v1
    v_lshl_add_u32 v2, v10, 4, v2
    s_mul_i32 s{T0}, s2, {YSTR}
    s_lshl_b32 s{T1}, s{S_WAVE}, 10
    s_add_u32 s{T0}, s{T0}, s{T1}
    s_add_u32 s{T0}, s{T0}, {WS_Y}
    s_lshl_b32 s{T1}, s{S_D}, 16
    s_and_b32 s{T2}, s{S_D}, 0xffff0000
    v_mov_b32 v10, {BOUND2}
    """)
    of_slot(e, S_XB, S_KF)
    e.wait(ds="*")
    e("s_barrier")
    for ch in range(2):
        for r in range(4):
            e(f"v_add_f32 v{C_A+8*ch+r}, v{C_A+8*ch+r}, v{C_A+8*ch+4+r}")
            e(f"v_lshlrev_b32 v{C_B+4*ch+3-r}, 16, v{C_B+4*ch+3-r}")
        for r in range(4):
            e(f"v_fmac_f32 v{C_A+8*ch+r}, s{T1+ch}, v{C_B+4*ch+3-r}")
    for r in range(4):
        e(f"v_cvt_pk_bf16_f32 v{20+r}, v{C_A+r}, v{C_A+8+r}")
    e.vm("y", f"buffer_store_dwordx4 v[20:23], v2, {sr(R_WS,4)}, s{T0} offen{SC}")
    exchange_addresses(e)
    e("s_setprio 1\nv_cmp_le_f32 vcc, v11, v10")


def wfr(h):
    return 16 + 4 * h if h < 12 else 128 + 4 * (h - 12)


V_XW, V_XC = 56, 58
XR4, XR1 = {1: 49, 2: 50, 3: 51}, {1: 53, 2: 54, 3: 55}


def exchange_addresses(e):
    e(f"s_and_b32 s{T0}, s{S_WAVE}, 4\ns_add_u32 s{T0}, s{T0}, {L_CNT}\nv_mov_b32 v{V_XC}, s{T0}")
    for i in range(4):
        e(f"""
        s_sub_u32 s{T0}, s{S_W4}, {i}
        s_and_b32 s{T0}, s{T0}, 3
        s_mul_i32 s{T2}, s{T0}, 6912
        s_add_u32 s{T2}, s{T2}, {L_O}
        v_add_u32 v{XR4[i] if i else V_XW}, s{T2}, v{V_KO}
        v_lshl_add_u32 v{XR1[i] if i else V_XW+1}, v1, 2, s{T2}
        """)


def lds_count(e, addr, off):
    e(f"v_mov_b32 v10, 1\ns_mov_b64 exec, 1\nds_add_u32 v{addr}, v10 offset:{off}\ns_mov_b64 exec, -1")
    e.dsq.append("cnt")


def lds_spin(e, label, addr, off, low=False):
    low = False
    if low:
        e("s_setprio 0")
    e(f"""
    s_mov_b32 s{S_SPIN}, {SPIN_MAX * 8}
    {label}:
    ds_read_b32 v10, v{addr} offset:{off}
    s_waitcnt lgkmcnt(0)
    v_cmp_gt_u32 vcc, 4, v10
    s_cbranch_vccz {label}_ok
    s_sub_u32 s{S_SPIN}, s{S_SPIN}, 1
    s_cbranch_scc0 {label}
    {label}_ok:
    """)
    if low:
        e("s_setprio 1")
    e.dsq = []


def qk(e, j, i):
    e(f"v_mfma_f32_32x32x16_bf16 {vr(S_BUF+16*i,16)}, {vr(kv_regs(j)[0],4)}, {vr(Q_FR+4*i,4)}, 0")


def pv(e, j, i, half):
    e(f"v_smfmac_f32_32x32x32_bf16 {vr(O_ACC+16*i,16)}, {vr(kv_regs(j)[1+half],4)}, {vr(S_BUF+16*i+8*half,8)}, v{V_IDX}")


def p3_ids(e):
    srd(e, R_W, P_WO, 0x80000)
    e(f"""
    s_lshr_b32 s{T0}, s2, 5
    s_lshl_b32 s{T0}, s{T0}, 3
    s_and_b32 s{S_QT}, s2, 7
    s_add_u32 s{S_QT}, s{S_QT}, s{T0}
    s_bfe_u32 s{S_NQ}, s2, 0x20003
    """)


V_WO = 60


def wo_addresses(e):
    e(f"""
    s_lshl_b32 s{T2}, s{S_NQ}, 2
    s_add_u32 s{T2}, s{T2}, s{S_W4}
    s_lshl_b32 s{T1}, s{T2}, 6
    v_lshrrev_b32 v24, 2, v1
    v_lshlrev_b32 v24, 10, v24
    v_and_b32 v25, 3, v1
    v_lshl_add_u32 v24, v25, 4, v24
    v_add_u32 v{V_WO}, s{T1}, v24
    v_add_u32 v{V_WO+1}, 15360, v{V_WO}
    v_add_u32 v{V_WO+2}, 30720, v{V_WO}
    v_add_u32 v{V_WO+3}, 46080, v{V_WO}
    s_lshl_b32 s{S_WOM}, s{S_W4}, 15
    s_mov_b32 s{S_WOS}, 0
    """)


def wo_stage(e, sfx):
    n = int(OPT.get("wgrp", 4))
    e(f"L_wo{sfx}:\ns_mov_b32 m0, s{S_WOM}\ns_add_u32 s{S_WOM}, s{S_WOM}, 4096")
    for i in range(4):
        e(f"buffer_load_dwordx4 v{V_WO+i}, {sr(R_W,4)}, s{S_WOS} offen offset:{i*1024} lds")
        if n == 2 and i == 1:
            e("s_waitcnt vmcnt(0)")
    e(f"""
    s_add_u32 s{S_WOS}, s{S_WOS}, 65536
    s_cmp_lt_u32 s{S_WOS}, {8*65536}
    s_waitcnt vmcnt(0)
    s_cbranch_scc1 L_wo{sfx}
    """)
    lds_count(e, V_XC, 20)
    flag_store(e, FL_Y, 2, 12, per_wave=True)


def zero_o(e):
    for i in range(4):
        e(f"v_mov_b32 v{32+i}, 0")
    for i in range(4):
        e(f"v_mfma_f32_32x32x16_bf16 {vr(O_ACC+16*i,16)}, v[32:35], v[32:35], 0")


def tile(e, j, i, before_qk=None, cluster=None, with_qk=True, with_prev=True):
    s = S_BUF + 16 * i
    ex = [f"v_exp_f32 v{s+r}, v{s+r}" for r in range(16)]
    if with_qk:
        if before_qk:
            e(before_qk)
        qk(e, j + (i == 3), (i + 1) % 4)
    early = OPT.get("p6")
    if cluster and early:
        kv_next(e)
    e("\n".join(ex[0:4]))
    if with_prev:
        pv(e, j - (i == 0), (i + 3) % 4, 1)
    if cluster and early:
        cluster()
    e("\n".join(ex[4:8]))
    if cluster and not early:
        kv_next(e)
        cluster()
    e("\n".join(ex[8:10]))
    pv(e, j, i, 0)
    e("\n".join(ex[10:16]))


def attn_step0(e):
    qk(e, 0, 0)
    for i in range(4):
        tile(e, 0, i, with_qk=i < 3, with_prev=i > 0)


def attn_loop(e):
    b = E()

    def first():
        kv_load(b, 3, advance=False)
        b(f"s_cmp_eq_u32 s{S_IT}, s{T0}\ns_cbranch_scc1 L_hook\nL_back:")

    for j in (1, 2, 3):
        for i in range(4):
            cl = None if i else first if j == 1 else (lambda j=j: kv_load(b, j + 2, advance=False))
            tile(b, j, i, ("s_waitcnt vmcnt(40)" if OPT.get("nowait") else "s_waitcnt vmcnt(3)") if i == 3 else None, cl)
    b(f"s_sub_u32 s{S_IT}, s{S_IT}, 16\ns_cbranch_scc0 L_loop")
    check_seq(b.l + b.l, "attention loop")
    e(f"s_or_b32 s{S_IT}, s{S_WAVE}, 4\ns_add_u32 s{S_IT}, s{S_IT}, 64\ns_add_u32 s{T0}, s{S_WAVE}, 64")
    e.wait(vm="kv1")
    qk(e, 1, 0)
    deadline(e, "dl2")
    stamp(e, 4)
    e(f"s_nop 10\nL_loop:")
    e("\n".join(b.l))
    e.vmq = []
    pv(e, 3, 3, 1)


def attn_slow(e):
    M = 44
    for i in range(4):
        e(f"v_mov_b32 v{M+i}, 0xff7fffff")
    e.wait(vm="*")
    zero_o(e)
    e(f"s_cmp_lt_u32 s{S_WAVE}, 4\ns_cbranch_scc1 L_nostage")
    wo_stage(e, "s")
    e("L_nostage:")
    e(f"""
    s_mov_b32 s{S_KVN}, {-BLK & 0xffffffff}
    s_mov_b32 s{T3}, 0
    L_slowloop:
    """)
    kv_load(e, 0)
    e.wait(vm="*")
    for i in range(4):
        qk(e, 0, i)
    for i in range(4):
        s, o = S_BUF + 16 * i, O_ACC + 16 * i
        e(f"v_max3_f32 v10, v{s}, v{s+1}, v{M+i}")
        for r in range(2, 16, 2):
            e(f"v_max3_f32 v10, v{s+r}, v{s+r+1}, v10")
        e(f"""
        v_mov_b32 v11, v10
        v_permlane32_swap_b32 v10, v11
        v_max_f32 v10, v10, v11
        v_sub_f32 v11, v{M+i}, v10
        v_exp_f32 v11, v11
        v_mov_b32 v{M+i}, v10
        """)
        for r in range(16):
            e(f"v_sub_f32 v{s+r}, v{s+r}, v10\nv_exp_f32 v{s+r}, v{s+r}")
        for r in range(16):
            e(f"v_mul_f32 v{o+r}, v{o+r}, v11")
        pv(e, 0, i, 0)
        pv(e, 0, i, 1)
    e(f"""
    s_add_u32 s{T3}, s{T3}, 1
    s_cmp_lt_u32 s{T3}, 16
    s_nop 7
    s_nop 7
    s_cbranch_scc1 L_slowloop
    """)


def attn_combine(e, slow):
    M, R = 44, S_BUF
    XM = L_O + 4 * 6912
    order = (1, 2, 3)
    sfx = "s" if slow else "f"
    e(f"s_cmp_ge_u32 s{S_WAVE}, 4\ns_cbranch_scc1 L_xf{sfx}_go\ns_nop 3\ns_branch L_xf{sfx}_ok\nL_xf{sfx}_go:")
    lds_spin(e, "L_xf" + sfx, V_XC, 8)
    for i in order:
        o, off = O_ACC + 16 * i, (i - 1) * 2304
        e.ds("xw", f"ds_write_b128 v{V_XW}, {vr(o,4)} offset:{off}")
        e.ds("xw", f"ds_write_b128 v{V_XW}, {vr(o+4,4)} offset:{off+1024}")
        e.ds("xw", f"ds_write_b32 v{V_XW+1}, v{o+8} offset:{off+2048}")
    if slow:
        e(f"s_mul_i32 s{T0}, s{S_WAVE}, 384\ns_add_u32 s{T0}, s{T0}, {XM}\nv_and_b32 v63, 31, v1\nv_lshl_add_u32 v59, v63, 2, s{T0}")
        for i in order:
            e.ds("xw", f"ds_write_b32 v59, v{M+i} offset:{(i-1)*128}")
            e(f"""
            s_sub_u32 s{T0}, s{S_W4}, {i}
            s_and_b32 s{T0}, s{T0}, 3
            s_and_b32 s{T2}, s{S_WAVE}, 4
            s_add_u32 s{T0}, s{T0}, s{T2}
            s_mul_i32 s{T0}, s{T0}, 384
            s_add_u32 s{T0}, s{T0}, {XM}
            v_lshl_add_u32 v{59+i}, v63, 2, s{T0}
            """)
    lds_count(e, V_XC, 4)
    if OPT.get("xprio") and not slow:
        e(f"s_cmp_ge_u32 s{S_WAVE}, 4\ns_cbranch_scc1 L_keepprio\ns_setprio 0\nL_keepprio:")
    lds_spin(e, "L_xs" + sfx, V_XC, 4)
    for n, i in enumerate(order):
        off = (i - 1) * 2304
        e.ds(f"xr{n}", f"ds_read_b128 {vr(R+12*n,4)}, v{XR4[i]} offset:{off}")
        e.ds(f"xr{n}", f"ds_read_b128 {vr(R+12*n+4,4)}, v{XR4[i]} offset:{off+1024}")
        e.ds(f"xr{n}", f"ds_read_b32 v{R+12*n+8}, v{XR1[i]} offset:{off+2048}")
        if slow:
            e.ds(f"xr{n}", f"ds_read_b32 v{R+12*n+9}, v{59+i} offset:{(i-1)*128}")
    if slow:
        e.wait(ds="*")
        e(f"v_max3_f32 v10, v{M}, v{R+9}, v{R+21}\nv_max_f32 v10, v10, v{R+33}")
        for src, base in ((M, O_ACC), (R + 9, R), (R + 21, R + 12), (R + 33, R + 24)):
            e(f"v_sub_f32 v11, v{src}, v10\nv_exp_f32 v11, v11")
            for r in range(9):
                e(f"v_mul_f32 v{base+r}, v{base+r}, v11")
    for n in range(3):
        e.wait(ds=f"xr{n}")
        e(f"v_add_f32 v{O_ACC+8}, v{O_ACC+8}, v{R+12*n+8}")
        for r in range(0, 8, 2):
            e(f"v_pk_add_f32 {vr(O_ACC+r,2)}, {vr(O_ACC+r,2)}, {vr(R+12*n+r,2)}")
    e(f"v_rcp_f32 v{O_ACC+8}, v{O_ACC+8}")
    lds_count(e, V_XC, 12)
    for r in range(0, 8, 2):
        e(f"v_pk_mul_f32 {vr(O_ACC+r,2)}, {vr(O_ACC+r,2)}, {vr(O_ACC+8,2)} op_sel_hi:[1,0]")
    for r in range(4):
        e(f"v_cvt_pk_bf16_f32 v{O_ACC+12+r}, v{O_ACC+2*r}, v{O_ACC+2*r+1}")
    for r in range(4):
        e(f"v_min_u32 v{O_ACC+12+r}, -2, v{O_ACC+12+r}")
    e.vm("o", f"buffer_store_dwordx4 {vr(O_ACC+12,4)}, v{V_KO}, {sr(R_WS,4)}, s{S_XB} offen{SC}")


P_ACC, O_FR, B_T, OP, B_X, B_Y, B_G = 64, 80, 112, 208, 224, 232, 240
V_G, V_CNT, V_TR, V_O2, V_STG, V_OUT, V_FA, V_FB, V_Y = 3, 4, 5, 7, 8, 9, 13, 14, 15
S_YB, S_GB = 96, 97


def tail_addresses(e):
    srd(e, R_OUT, P_OUT, 0x200000)
    e(f"""
    v_and_b32 v24, 7, v1
    v_lshlrev_b32 v24, 15, v24
    v_bfe_u32 v25, v1, 3, 1
    v_lshl_add_u32 v24, v25, 10, v24
    s_bfe_u32 s{T3}, s{S_QT}, 0x20002
    s_lshl_b32 s{T3}, s{T3}, 13
    s_lshr_b32 s{T0}, s{S_QT}, 4
    s_lshl_b32 s{T0}, s{T0}, 11
    s_add_u32 s{T3}, s{T3}, s{T0}
    s_and_b32 s{T0}, s{S_QT}, 3
    s_lshl_b32 s{T0}, s{T0}, 7
    s_add_u32 s{T3}, s{T3}, s{T0}
    s_add_u32 s{T3}, s{T3}, {FL_Y}
    v_bfe_u32 v25, v1, 4, 1
    v_lshl_add_u32 v24, v25, 9, v24
    v_add_u32 v{V_FA}, s{T3}, v24
    s_lshl_b32 s{T2}, s{S_NQ}, 2
    s_add_u32 s{S_ROW}, s{T2}, s{S_WAVE}
    s_lshl_b32 s{T2}, s{S_ROW}, 14
    s_lshr_b32 s{T3}, s{S_QT}, 3
    s_lshl_b32 s{T3}, s{T3}, 7
    s_add_u32 s{T2}, s{T2}, s{T3}
    s_add_u32 s{T2}, s{T2}, {FL_Y}
    v_and_b32 v24, 15, v1
    v_lshl_add_u32 v{V_FB}, v24, 10, s{T2}
    s_lshl_b32 s{T1}, s{S_ROW}, 6
    s_lshl_b32 s{S_MX}, s{S_WAVE}, 15
    v_lshrrev_b32 v26, 5, v1
    v_bfe_u32 v25, v1, 2, 2
    v_lshl_add_u32 v{V_TR}, v26, 2, v25
    v_lshlrev_b32 v{V_TR}, 6, v{V_TR}
    v_bfe_u32 v25, v1, 4, 1
    v_lshl_add_u32 v{V_TR}, v25, 5, v{V_TR}
    v_and_b32 v24, 1, v1
    v_lshl_add_u32 v{V_TR}, v24, 4, v{V_TR}
    v_bfe_u32 v25, v1, 1, 1
    v_lshl_add_u32 v{V_TR}, v25, 3, v{V_TR}
    v_add_u32 v{V_TR}, s{S_MX}, v{V_TR}
    v_add_u32 v{V_O2}, 0x10000, v{V_KO}
    v_add_u32 v{V_STG}, s{S_MX}, v{V_KO}
    v_mov_b32 v{V_CNT}, {L_CNT}
    s_lshl_b32 s{S_KF}, s{S_QT}, 3
    s_add_u32 s{S_KF}, s{S_KF}, s{S_WAVE}
    s_lshl_b32 s{S_KF}, s{S_KF}, 12
    s_add_u32 s{S_KF}, s{S_KF}, {WS_OF}
    s_add_u32 s{S_MODE}, s{S_KF}, 16384
    v_and_b32 v{V_G}, 31, v1
    v_lshlrev_b32 v{V_OUT}, 10, v{V_G}
    v_lshl_add_u32 v{V_OUT}, v26, 4, v{V_OUT}
    s_lshl_b32 s{T2}, s{S_QT}, 15
    s_add_u32 s{T2}, s{T2}, s{T1}
    v_add_u32 v{V_OUT}, s{T2}, v{V_OUT}
    v_bfe_u32 v{V_Y}, v1, 3, 2
    v_lshlrev_b32 v{V_Y}, 5, v{V_Y}
    v_lshl_add_u32 v{V_Y}, v24, 4, v{V_Y}
    v_bfe_u32 v25, v1, 1, 2
    v_lshl_add_u32 v{V_Y}, v25, 2, v{V_Y}
    v_mul_u32_u24 v25, {4*YSTR}, v26
    v_add_u32 v{V_Y}, v25, v{V_Y}
    s_mul_i32 s{S_YB}, s{S_ROW}, {16*YSTR}
    s_lshl_b32 s{S_GB}, s{S_QT}, 7
    s_add_u32 s{S_YB}, s{S_YB}, s{S_GB}
    s_add_u32 s{S_YB}, s{S_YB}, {WS_Y}
    v_lshlrev_b32 v{V_G}, 2, v{V_G}
    s_add_u32 s{S_GB}, s{S_GB}, {WS_G}
    """)


def o_loads(par):
    return [f"buffer_load_dwordx4 {vr(OP+4*i,4)}, v{V_KO}, {sr(R_WS,4)}, s{S_MODE if par else S_KF} offen offset:{i*1024}{SC}" for i in range(4)]


def o_poll(e, par, issued):
    lab = f"L_pollo{par}"
    e(f"s_mov_b32 s{S_SPIN}, {SPIN_MAX}")
    if issued:
        e(f"s_branch {lab}_chk")
    e(f"{lab}:\n" + "\n".join(o_loads(par)))
    e(f"{lab}_chk:\ns_waitcnt vmcnt(0)\nv_max3_u32 v12, v{OP}, v{OP+1}, v{OP+2}")
    e.vmq = []
    for i in range(3, 15, 2):
        e(f"v_max3_u32 v12, v12, v{OP+i}, v{OP+i+1}")
    e(f"""
    v_max_u32 v12, v12, v{OP+15}
    v_cmp_eq_u32 vcc, -1, v12
    s_cbranch_vccz {lab}_ok
    s_sub_u32 s{S_SPIN}, s{S_SPIN}, 1
    s_cbranch_scc0 {lab}
    {lab}_ok:
    """)
    for i in range(4):
        e.ds("ow", f"ds_write_b128 v{V_STG}, {vr(OP+4*i,4)} offset:{par*4096 + i*1024}")


def half_gemm(e, par):
    def rd(b):
        e.ds(f"of{b}", f"ds_read_b128 {vr(O_FR+4*(b%8),4)}, v{V_O2 if b >= 8 else V_KO} offset:{(b//4%2)*32768 + par*4096 + (b%4)*1024}")
    for b in range(8):
        rd(b)
    for b in range(16):
        e.wait(ds=f"of{b}")
        c = "0" if b == 0 and par == 0 else vr(P_ACC, 16)
        e(f"v_mfma_f32_32x32x16_bf16 {vr(P_ACC,16)}, {vr(wfr(2*b+par),4)}, {vr(O_FR+4*(b%8),4)}, {c}")
        if b + 8 < 16:
            rd(b + 8)


def tail(e):
    stamp(e, 13)
    if OPT.get("stamp"):
        e(f"s_cmp_lt_u32 s{S_WAVE}, 4\ns_cbranch_scc1 L_older")
        for k in (14, 15, 16):
            stamp(e, k)
        stamp_flush(e, 17, False)
        e("s_endpgm\nL_older:")
    else:
        e(f"s_cmp_ge_u32 s{S_WAVE}, 4\ns_cbranch_scc1 L_end")
    if not OPT.get("ap"):
        e("s_setprio 0")
    tail_addresses(e)
    e("s_setprio 0")
    fa = f"buffer_load_dword v11, v{V_FA}, {sr(R_WS,4)}, 0 offen{SC}"
    fb = f"buffer_load_dword v6, v{V_FB}, {sr(R_WS,4)}, 0 offen{SC}"
    flag_store(e, FL_Y, 2, 12, per_wave=True)
    e.vm("fa", fa)
    lds_spin(e, "L_ws", V_CNT, 24)

    def frag(h):
        for j in range(2):
            e.ds("wf", f"ds_read_b64_tr_b16 {vr(wfr(h)+2*j,2)}, v{V_TR} offset:{h*1024 + j*512}")
    for h in range(32):
        frag(h)
    poll(e, "L_pollfa", [fa], [11], first="fa")
    for ld in o_loads(0):
        e.vm("op", ld)
    e.vm("fb", fb)
    e.wait(ds="*")
    o_poll(e, 0, True)
    e.wait(ds="*")
    lds_count(e, V_CNT, 20)
    poll(e, "L_pollfb", [fb], [6], first="none")
    for k in range(2):
        e.vm("b", f"buffer_load_dwordx4 {vr(B_X+4*k,4)}, v{V_OUT}, {sr(R_X,4)}, 0 offen offset:{32*k}")
    for jj in range(8):
        e.vm("b", f"buffer_load_dword v{B_Y+jj}, v{V_Y}, {sr(R_WS,4)}, s{S_YB} offen{SC}")
        if jj < 7:
            e(f"s_add_u32 s{S_YB}, s{S_YB}, {YSTR * (5 if jj == 3 else 1)}")
    e.vm("b", f"buffer_load_dword v{B_G}, v{V_G}, {sr(R_WS,4)}, s{S_GB} offen{SC}")
    if not OPT.get("lateg"):
        lds_spin(e, "L_es", V_CNT, 20)
        if OPT.get("hp"):
            e("s_setprio 2")
        half_gemm(e, 0)
        if OPT.get("hp"):
            e("s_setprio 0")
    stamp(e, 14)
    e("s_barrier")
    if not OPT.get("bfirst"):
        for ld in o_loads(1):
            e.vm("op", ld)
    if OPT.get("lateg"):
        half_gemm(e, 0)
    e.wait(vm="b")
    e(f"v_sub_f32 v10, 1.0, v{B_G}")
    for i in range(8):
        e(f"""
        v_lshlrev_b32 v{B_T+2*i}, 16, v{B_X+i}
        v_and_b32 v{B_T+2*i+1}, 0xffff0000, v{B_X+i}
        v_lshlrev_b32 v12, 16, v{B_Y+i}
        v_and_b32 v13, 0xffff0000, v{B_Y+i}
        v_pk_mul_f32 {vr(B_T+2*i,2)}, {vr(B_T+2*i,2)}, v[12:13]
        v_pk_mul_f32 {vr(B_T+2*i,2)}, {vr(B_T+2*i,2)}, v[10:11] op_sel_hi:[1,0]
        """)
    o_poll(e, 1, not OPT.get("bfirst"))
    stamp(e, 15)
    e.wait(ds="*")
    e("s_barrier")
    if OPT.get("dg3"):
        srd(e, R_K, 38, 256)
        e(f"v_mov_b32 v253, 0\nbuffer_load_dword v252, v253, {sr(R_K,4)}, 0 offen sc0 sc1\ns_waitcnt vmcnt(0)\nv_readfirstlane_b32 s98, v252\ns_not_b32 s98, s98")
        deadline(e, "dg3")
    if OPT.get("xdiag"):
        e(f"""
        s_getreg_b32 s99, hwreg(HW_REG_XCC_ID)
        s_sub_u32 s99, s2, s99
        s_add_u32 s99, s99, {OPT['xoff']}
        s_and_b32 s99, s99, 7
        s_mul_i32 s99, s99, {OPT['xdiag']}
        s_memrealtime s[86:87]
        s_waitcnt lgkmcnt(0)
        s_mov_b32 s98, s86
        L_xd:
        s_memrealtime s[86:87]
        s_waitcnt lgkmcnt(0)
        s_sub_u32 s86, s86, s98
        s_cmp_lt_u32 s86, s99
        s_cbranch_scc1 L_xd
        """)
    deadline(e, "dl3")
    stamp(e, 16)
    half_gemm(e, 1)
    for r in range(0, 16, 2):
        e(f"v_pk_fma_f32 {vr(P_ACC+r,2)}, {vr(P_ACC+r,2)}, {vr(B_G,2)}, {vr(B_T+r,2)} op_sel_hi:[1,0,1]")
    for r in range(8):
        e(f"v_cvt_pk_bf16_f32 v{O_FR+r}, v{P_ACC+2*r}, v{P_ACC+2*r+1}")
    for k in range(2):
        e.vm("st", f"buffer_store_dwordx4 {vr(O_FR+4*k,4)}, v{V_OUT}, {sr(R_OUT,4)}, 0 offen offset:{32*k}" + (" sc1" if OPT.get("osc1") else ""))
    e(f"s_or_b32 s{T0}, s2, s{S_WAVE}\ns_cbranch_scc1 L_nogen\nv_mov_b32 v12, s{S_TAG}\nv_mov_b32 v13, {WS_GEN}\ns_mov_b64 exec, 1")
    e(f"buffer_store_dword v12, v13, {sr(R_WS,4)}, 0 offen sc0 sc1\ns_mov_b64 exec, -1\nL_nogen:")
    stamp_flush(e, 17)


def kernel():
    q = E()
    prologue(q)
    stamp(q, 0)
    e = E()
    staging(q)
    loader_setup(e)
    gemm_v(e)
    stamp(e, 8)
    epi_v(e)
    e.wait(ds="*")
    e("s_barrier")
    stamp(e, 9)
    k_publish(e)
    zero_o(e)
    norms_max(e)
    stamp(e, 28)
    attn_step0(e)
    stamp(e, 29)
    e.wait(vm="h")
    if OPT.get("sigpre"):
        kv_signal(e, "v")
    e("s_barrier")
    stamp(e, 18)
    if OPT.get("sigmid"):
        kv_signal(e, "v")
    p3_ids(e)
    conv_addresses(e)
    if OPT.get("sigpre") or OPT.get("sigmid"):
        e("s_waitcnt lgkmcnt(0)")
    else:
        kv_signal(e, "v")
    e.vmq = []
    kv_wait_and_decide(e)
    stamp(e, 19)
    e("s_barrier")
    if OPT.get("poll1"):
        e.vmq = []
        for jj in (1, 2):
            kv_load(e, jj)
    e("L_join:")
    gemm_qk(q)
    if OPT.get("qprio"):
        q("s_setprio 0")
    deadline(q, "dl1")
    stamp(q, 8)
    epi_qk(q)
    q.wait(ds="*")
    q("s_barrier")
    stamp(q, 9)
    attn_reads(q)
    conv_u_loads(q)
    gate_loads(q)
    zero_o(q)
    q.wait(ds="*")
    stamp(q, 28)
    attn_step0(q)
    stamp(q, 29)
    conv_u_pad(q)
    gate_compute(q)
    q("s_waitcnt lgkmcnt(0)\ns_barrier")
    q.dsq = []
    stamp(q, 18)
    conv_mfma(q)
    stamp(q, 19)
    q("s_barrier")
    for jj in (1, 2):
        kv_load(q, jj)
    q("s_branch L_join\nL_vrole:")
    j = E()
    j.vmq = [f"kv{k}" for k in (1, 2) for _ in range(3)]
    assert e.vmq == j.vmq and q.vmq[-6:] == j.vmq
    stamp(j, 10)
    conv_final(j)
    j("s_cbranch_vccz L_slow" if not OPT.get("slow") else "s_branch L_slow")
    stamp(j, 11)
    attn_loop(j)
    stamp(j, 12)
    attn_combine(j, False)
    j("L_tail:")
    j.vmq = ["o"]
    tail(j)
    j("L_end:\ns_endpgm")
    x = E()
    x("L_hook:")
    wo_stage(x, "f")
    x("s_branch L_back\nL_slow:")
    x.vmq = ["y"]
    attn_slow(x)
    attn_combine(x, True)
    x("L_last:\ns_branch L_tail")
    return q.l + e.l + j.l + x.l


OVERVIEW = """
"""
NOTES = {
    "L_nocpf:": "waves 0-3: stage k / v, pre-pass, then the Q | K half of the projection GEMM",
    "L_cvloop:": "long conv: Toeplitz products, filter phases 1 and 2 (0 above, 3 below)",
    "L_vrole:": "waves 4-7: x / W loaders and the V third of the projection GEMM",
    "L_pollkv:": "wait for the other key blocks of the head pair",
    "L_join:": "all waves: finish the conv tile, pick the softmax path",
    "L_loop:": "attention: three key tiles x four query tiles per pass",
    "L_xff:": "reduce the four key quarters through LDS, normalise, publish O",
    "L_tail:": "waves 0-3: out-projection (even heads early, odd heads last), gate mix, output",
    "L_hook:": "waves 4-7, first pass: stage Wo and publish the y tile",
    "L_slow:": "online-softmax path",
}


def build():
    hdr = open(__file__.replace("gen/gen_v43.py", "cdna_kernels/" + NAME.replace("_kernel", ".s.ref")).replace("gen_v43.py", "../cdna_kernels/" + NAME.replace("_kernel", ".s.ref"))).read()
    head = hdr[:hdr.index("; @launch")]
    out = [head + f"; @launch grid=(256,1,1) block=(512,1,1) lds={LDS}", '.amdgcn_target "amdgcn-amd-amdhsa--gfx950"', ".text",
           f".globl {NAME}", ".p2align 8", f".type {NAME},@function", f"{NAME}:"]
    body = pad(kernel())
    check_edges(body)
    out += OVERVIEW.strip().split("\n")
    for line in body:
        note = NOTES.get(line.strip())
        if note:
            out.append("; ---- " + note)
        out.append(line)
    out.append(f""".section .rodata,"a"
.p2align 6
.amdhsa_kernel {NAME}
  .amdhsa_next_free_vgpr 256
  .amdhsa_next_free_sgpr 100
  .amdhsa_accum_offset 256
  .amdhsa_group_segment_fixed_size 0
  .amdhsa_kernarg_size 104
  .amdhsa_user_sgpr_count 2
  .amdhsa_user_sgpr_kernarg_segment_ptr 1
  .amdhsa_system_sgpr_workgroup_id_x 1
  .amdhsa_float_denorm_mode_32 3
.end_amdhsa_kernel""")
    return "\n".join(out) + "\n"


if __name__ == "__main__":
    OPT.update(rot3=True, vclu=True, codepf=True, uf=3, sigpre=True, p6=True)
    for a in sys.argv[2:]:
        k, _, val = a.partition("=")
        if k.startswith("no_"):
            OPT.pop(k[3:])
        else:
            OPT[k] = val or True
    open(sys.argv[1], "w").write(build())
```
